```python
import torch

def _softmax(x, axis=-1):
    return torch.softmax(x, dim=axis)
def _gelu(x):
    return torch.nn.functional.gelu(x, approximate="tanh")
def _silu(x):
    return torch.nn.functional.silu(x)
def _sigmoid(x):
    return torch.sigmoid(x)
def _layernorm(x, axis=-1, eps=1e-5):
    m = x.mean(dim=axis, keepdim=True)
    v = x.var(dim=axis, keepdim=True, unbiased=False)
    return (x - m) / torch.sqrt(v + eps)
def _scatter_add(tgt, idx, src, axis=0):
    return tgt.clone().index_add_(axis, idx, src)
def _segment_sum(src, seg, n):
    out = torch.zeros((n,) + src.shape[1:], dtype=src.dtype)
    return out.index_add_(0, seg, src)
def _pad(x, pw):
    flat = tuple(v for pair in reversed(pw) for v in pair)
    return torch.nn.functional.pad(x, flat)

kernel_name = 'concat_heads__ssm_conv_s4d__linear_attn_block__prompt'

def setup_inputs():

    _w = (lambda a: (lambda t: t.to(torch.bfloat16) if t.is_floating_point() else t)(torch.as_tensor(a)))
    def _A_setup():
        Bsz, L, D, N = 1, 2048, 576, 128
        return {
            "u": _w((lambda *s: torch.randn(*s, dtype=torch.bfloat16) * 0.05)(Bsz, L, D)),
            "log_A_real": _w((lambda *s: torch.randn(*s, dtype=torch.bfloat16) * 6.4)(D, N) * 0.5),
            "A_imag": _w((lambda *s: torch.randn(*s, dtype=torch.bfloat16) * 0.05)(D, N) * 3.14),
            "C_real": _w((lambda *s: torch.randn(*s, dtype=torch.bfloat16) * 0.1)(D, N) / N ** 0.5),
            "C_imag": _w((lambda *s: torch.randn(*s, dtype=torch.bfloat16) * 0.1)(D, N) / N ** 0.5),
            "log_dt": _w((lambda *s: torch.randn(*s, dtype=torch.bfloat16) * 0.05)(D) * 0.5 - 4.0),
            "D_skip": _w((lambda *s: torch.randn(*s, dtype=torch.bfloat16) * 0.05)(D)),
        }
    _A_in = _A_setup()

    def _B_setup():
        B, S, D = 1, 2048, 576
        return {
            "x": _w((lambda *s: torch.randn(*s, dtype=torch.bfloat16) * 0.05)(B, S, D)),
            "wqkv": _w((lambda *s: torch.randn(*s, dtype=torch.bfloat16) * 0.4)(D, 3 * D)),
            "wo": _w((lambda *s: torch.randn(*s, dtype=torch.bfloat16) * 0.05)(D, D)),
        }
    _B_in = _B_setup()

    return {
        "A_u": _A_in["u"],
        "A_log_A_real": _A_in["log_A_real"],
        "A_A_imag": _A_in["A_imag"],
        "A_C_real": _A_in["C_real"],
        "A_C_imag": _A_in["C_imag"],
        "A_log_dt": _A_in["log_dt"],
        "A_D_skip": _A_in["D_skip"],
        "B_x": _B_in["x"],
        "B_wqkv": _B_in["wqkv"],
        "B_wo": _B_in["wo"],
    }

def reference(A_u, A_log_A_real, A_A_imag, A_C_real, A_C_imag, A_log_dt, A_D_skip, B_x, B_wqkv, B_wo):
    def _A_ref(u, log_A_real, A_imag, C_real, C_imag, log_dt, D_skip):
        L = u.shape[1]
        dt = torch.exp(log_dt)
        A = -torch.exp(log_A_real) + 1j * A_imag
        C = (C_real + 1j * C_imag) * dt[:, None]
        pos = (lambda x, dt: x.to(dt))(torch.arange(L), log_dt.dtype)
        P = torch.exp((A * dt[:, None])[:, :, None] * pos[None, None, :])
        K = 2.0 * torch.einsum("dn,dnl->dl", C, P).real
        L2 = 2 * L
        u_t = (lambda x, *d: x.permute(*d))(u, 0, 2, 1)
        Kf = (lambda x, *a, **k: torch.fft.rfft(x.float(), *a, **k))(K, L2)
        Uf = (lambda x, *a, **k: torch.fft.rfft(x.float(), *a, **k))(u_t, L2)
        y = (lambda x, *a, **k: torch.fft.irfft(x, *a, **k).to(torch.bfloat16))(Uf * Kf[None, :, :], L2)[:, :, :L]
        y = (lambda x, *d: x.permute(*d))(y, 0, 2, 1)
        return y + u * D_skip[None, None, :]

    def _B_ref(x, wqkv, wo):
        B, S, D = x.shape
        H = 32; Dh = D // H
        qkv = (lambda x, *d: x.permute(*d))((x @ wqkv).reshape(B, S, 3, H, Dh), 2, 0, 3, 1, 4)
        q, k, v = qkv[0], qkv[1], qkv[2]
        phi = lambda t: torch.where(t > 0, t + 1, torch.exp(t)) + 1e-6
        pq, pk = phi(q), phi(k)
        kv = torch.einsum("bhsd,bhse->bhde", pk, v)
        z = torch.einsum("bhsd->bhd", pk)
        num = torch.einsum("bhqd,bhde->bhqe", pq, kv)
        den = torch.einsum("bhqd,bhd->bhq", pq, z)[..., None] + 1e-6
        o = num / den
        return (lambda x, *d: x.permute(*d))(o, 0, 2, 1, 3).reshape(B, S, D) @ wo

    a = _A_ref(A_u, A_log_A_real, A_A_imag, A_C_real, A_C_imag, A_log_dt, A_D_skip)
    b = _B_ref(B_x, B_wqkv, B_wo)
    return torch.concatenate([a, b], axis=-1)
```

```python
KN = "concat_heads__ssm_conv_s4d__linear_attn_block__prompt"
HEADER = open("cdna_kernels/%s.s.ref" % KN).read().split("; Override launch")[0]

class Asm:
    def __init__(self):
        self.lines = []
        self.nlab = 0
    def __call__(self, s, *a):
        for l in s.split("\n"):
            l = l.strip()
            if l: self.lines.append("    " + l if not l.endswith(":") else l)
    def label(self, base="L"):
        self.nlab += 1
        return f"{base}_{self.nlab}"
    def c(self, s): self.lines.append("    ; " + s)
    def text(self): return "\n".join(self.lines) + "\n"

def kernel_wrap(name, body, vgpr, sgpr, accum=None, extra=""):
    accum = accum or ((vgpr + 3) // 4 * 4)
    if accum > 256: accum = 256
    return f""".globl {name}
.p2align 8
.type {name},@function
{name}:
{body}
""", f""".p2align 6
.amdhsa_kernel {name}
  .amdhsa_next_free_vgpr {vgpr}
  .amdhsa_next_free_sgpr {sgpr}
  .amdhsa_accum_offset {accum}
  .amdhsa_group_segment_fixed_size 0
  .amdhsa_kernarg_size 104
  .amdhsa_user_sgpr_count 2
  .amdhsa_user_sgpr_kernarg_segment_ptr 1
  .amdhsa_system_sgpr_workgroup_id_x 1
{extra}.end_amdhsa_kernel
"""

def make_file(launch_lines, kernels):
    s = HEADER
    for l in launch_lines: s += l + "\n"
    s += '.amdgcn_target "amdgcn-amd-amdhsa--gfx950"\n.text\n'
    for t, _ in kernels: s += t
    s += '.section .rodata,"a"\n'
    for _, kd in kernels: s += kd
    return s
```

```python
import math
LOG2E = 1.4426950408889634
import struct
def f2u(x): return struct.unpack("<I", struct.pack("<f", x))[0]
def hexf(x): return "0x%08x" % f2u(x)
L2E_HI = struct.unpack("<f", struct.pack("<f", LOG2E))[0]
L2E_LO = LOG2E - L2E_HI

USTR = 4672
KBASE = 8 * USTR
KSTR = 8704
EOFF = 4160
GROW = 544
A_LDS = KBASE + 8 * KSTR

def role_a(a, stamp=lambda i: None):
    a.c("---------------- role A ----------------")
    a("s_lshl_b32 s32, s30, 3")
    a("s_add_u32 s32, s32, s31")
    a("s_lshl_b32 s33, s32, 8")
    a("v_lshl_add_u32 v2, v1, 2, s33")
    a("s_lshl_b32 s33, s32, 1")
    a("v_mov_b32 v3, s33")
    a("s_waitcnt lgkmcnt(0)")
    a("global_load_dword v10, v2, s[6:7]")
    a("global_load_ushort v14, v3, s[14:15]")
    a("global_load_dword v11, v2, s[8:9]")
    a("global_load_dword v12, v2, s[10:11]")
    a("global_load_dword v13, v2, s[12:13]")
    a("global_load_ushort v15, v3, s[16:17]")
    a("s_add_u32 s33, s31, s43")
    a("s_and_b32 s33, s33, 7")
    a("s_lshl_b32 s33, s33, 6")
    a("v_add_u32 v35, s33, v1")
    a("s_movk_i32 s33, 4608")
    a("v_mul_lo_u32 v4, v35, s33")
    a("s_lshl_b32 s33, s30, 4")
    a("v_add_u32 v4, s33, v4")
    a("v_lshlrev_b32 v216, 3, v35")
    a("s_barrier")
    U = 200
    for j in range(4):
        a(f"global_load_dwordx4 v[{U+4*j}:{U+4*j+3}], v4, s[4:5] offset:{1152*j}")
    a("v_and_b32 v5, 15, v1")
    a("v_lshrrev_b32 v6, 4, v1")
    a(f"s_mul_i32 s34, s31, {KSTR}")
    a(f"s_add_u32 s34, s34, {KBASE}")
    a(f"s_mul_i32 s35, s31, {USTR}")
    a("v_lshl_add_u32 v7, v1, 3, s34")
    a(f"v_mul_u32_u24 v8, {GROW}, v5")
    a("v_lshl_add_u32 v8, v6, 4, v8")
    a("v_add_u32 v8, s34, v8")
    a("v_mov_b32 v16, 0\nv_mov_b32 v17, 0")
    a("v_lshl_add_u32 v9, v1, 3, s35")
    a("ds_write_b64 v9, v[16:17]")
    a(f"s_mov_b32 s36, {hexf(L2E_HI)}")
    a(f"s_mov_b32 s37, {hexf(L2E_LO)}")
    a(f"s_mov_b32 s38, {hexf(math.log(2.0))}")
    a("s_mov_b32 s39, 0xffff0000")
    stamp(1)
    def exp_bf16(dst, x, t0, t1):
        a(f"v_mul_f32 v{t0}, s36, v{x}")
        a(f"v_fma_f32 v{t1}, v{x}, s36, -v{t0}")
        a(f"v_fmac_f32 v{t1}, s37, v{x}")
        a(f"v_exp_f32 v{t0}, v{t0}")
        a(f"v_mul_f32 v{t1}, s38, v{t1}")
        a(f"v_fma_f32 v{t0}, v{t0}, v{t1}, v{t0}")
        a(f"v_cvt_pk_bf16_f32 v{t0}, v{t0}, v{t0}")
        a(f"v_and_b32 v{dst}, s39, v{t0}")
    a("s_waitcnt vmcnt(8)")
    a("v_lshlrev_b32 v20, 16, v10")
    a("v_and_b32 v21, s39, v10")
    a("v_lshlrev_b32 v14, 16, v14")
    exp_bf16(18, 14, 22, 23)
    exp_bf16(20, 20, 22, 23)
    exp_bf16(21, 21, 24, 25)
    a("v_mul_f32 v20, v20, v18\nv_mul_f32 v21, v21, v18")
    a("v_mul_f32 v20, s36, v20\nv_mul_f32 v21, s36, v21")
    a("s_waitcnt vmcnt(4)")
    a("v_lshlrev_b32 v22, 16, v11\nv_and_b32 v23, s39, v11")
    a("v_mul_f32 v22, v22, v18\nv_mul_f32 v23, v23, v18")
    a("v_mul_f32 v22, 0.15915494, v22\nv_mul_f32 v23, 0.15915494, v23")
    a("v_add_f32 v19, v18, v18")
    C = 24
    a("v_lshlrev_b32 v24, 16, v12\nv_and_b32 v25, s39, v12")
    a("v_lshlrev_b32 v26, 16, v13\nv_and_b32 v27, s39, v13")
    a("v_mul_f32 v24, v24, v19\nv_mul_f32 v25, v25, v19")
    a("v_mul_f32 v26, v26, -v19\nv_mul_f32 v27, v27, -v19" .replace("v_mul_f32", "v_mul_f32_e64"))
    a("v_lshlrev_b32 v15, 16, v15")
    def direct(dst, c, conj):
        t = 60
        cs = hexf(float(c))
        for h in range(2):
            a(f"v_mul_f32 v{t+h}, {hexf(-float(c))}, v{20+h}")
            a(f"v_mul_f32 v{t+2+h}, {hexf(-float(c) if conj else float(c))}, v{22+h}")
        for h in range(2):
            a(f"v_exp_f32 v{t+h}, v{t+h}")
            a(f"v_fract_f32 v{t+2+h}, v{t+2+h}")
        for h in range(2):
            a(f"v_cos_f32 v{dst+h}, v{t+2+h}")
            a(f"v_sin_f32 v{dst+2+h}, v{t+2+h}")
        a(f"v_pk_mul_f32 v[{dst}:{dst+1}], v[{dst}:{dst+1}], v[{t}:{t+1}]")
        a(f"v_pk_mul_f32 v[{dst+2}:{dst+3}], v[{dst+2}:{dst+3}], v[{t}:{t+1}]")
    tcnt = [0]
    def cmul(d, z, w):
        t = 64 + 4 * (tcnt[0] % 2); tcnt[0] += 1
        assert d != z and d != w
        a(f"v_pk_mul_f32 v[{t}:{t+1}], v[{z+2}:{z+3}], v[{w+2}:{w+3}]")
        a(f"v_pk_mul_f32 v[{t+2}:{t+3}], v[{z+2}:{z+3}], v[{w}:{w+1}]")
        a(f"v_pk_fma_f32 v[{d}:{d+1}], v[{z}:{z+1}], v[{w}:{w+1}], v[{t}:{t+1}] neg_lo:[0,0,1] neg_hi:[0,0,1]")
        a(f"v_pk_fma_f32 v[{d+2}:{d+3}], v[{z}:{z+1}], v[{w+2}:{w+3}], v[{t+2}:{t+3}]")
    pcnt = [0]
    def emit(z, row):
        p = 72 + 2 * (pcnt[0] % 4); pcnt[0] += 1
        a(f"v_cvt_pk_bf16_f32 v{p}, v{z}, v{z+2}")
        a(f"v_cvt_pk_bf16_f32 v{p+1}, v{z+1}, v{z+3}")
        a(f"ds_write_b64 v7, v[{p}:{p+1}] offset:{row*GROW}")
    W16, W1, E256, W2, W4, W8 = 28, 32, 36, 40, 44, 48
    Z0, Z1, G0, G1 = 52, 56, 80, 84
    FA, FB = 96, 128
    ACC = 160
    direct(W16, 16, False)
    a("v_mov_b32 v72, 0x3f80\nv_mov_b32 v73, 0x3f80")
    a("ds_write_b64 v7, v[72:73]"); pcnt[0] = 1
    emit(W16, 1)
    cmul(Z0, W16, W16); emit(Z0, 2)
    z, o = Z0, Z1
    for i in range(3, 16):
        cmul(o, z, W16); emit(o, i); z, o = o, z
    for s in range(8): a(f"ds_read_b128 v[{FA+4*s}:{FA+4*s+3}], v8 offset:{64*s}")
    direct(W1, 1, True)
    direct(E256, 256, True)
    def tile_mfma(t):
        for s in range(8): a(f"ds_read_b128 v[{FB+4*s}:{FB+4*s+3}], v8 offset:{64*s}")
    def tile_mfma2(t):
        a("s_waitcnt lgkmcnt(0)")
        for s in range(8):
            c = "0" if s == 0 else f"v[{ACC+4*t}:{ACC+4*t+3}]"
            a(f"v_mfma_f32_16x16x32_bf16 v[{ACC+4*t}:{ACC+4*t+3}], v[{FB+4*s}:{FB+4*s+3}], v[{FA+4*s}:{FA+4*s+3}], {c}")
    emit(C, 0)
    cmul(Z0, C, W1); emit(Z0, 1)
    z, o = Z0, Z1
    for j in range(2, 16):
        cmul(o, z, W1); emit(o, j); z, o = o, z
    tile_mfma(0)
    cmul(W2, W1, W1); cmul(G0, C, E256); cmul(W4, W2, W2); cmul(Z0, G0, W2); cmul(W8, W4, W4)
    tile_mfma2(0)
    emit(G0, 0); emit(Z0, 1)
    cmul(G1, G0, E256)
    z, o = Z0, Z1
    for j in range(2, 8):
        cmul(o, z, W2); emit(o, j); z, o = o, z
    emit(G1, 8)
    cmul(G0, G1, E256)
    cmul(Z0, G1, W4); emit(Z0, 9); cmul(Z1, Z0, W4); emit(Z1, 10); cmul(Z0, Z1, W4); emit(Z0, 11)
    emit(G0, 12)
    cmul(G1, G0, E256)
    cmul(Z0, G0, W4); emit(Z0, 13); cmul(Z1, Z0, W4); emit(Z1, 14); cmul(Z0, Z1, W4); emit(Z0, 15)
    tile_mfma(1)
    cmul(Z0, G1, W8); cmul(G0, G1, E256)
    tile_mfma2(1)
    emit(G1, 0); emit(Z0, 1)
    g, og = G0, G1
    for h in range(1, 4):
        cmul(Z0, g, W8); emit(g, 4*h); emit(Z0, 4*h+1)
        cmul(og, g, E256); g, og = og, g
    emit(g, 2)
    tile_mfma(2)
    stamp(2)
    a("s_mov_b32 s40, 0x05040100\ns_mov_b32 s41, 0x07060302")
    a("v_mov_b32 v9, v216")
    a("s_waitcnt vmcnt(0)")
    for d in range(4):
        for hh in range(2):
            p = 60 + 2 * ((2*d+hh) % 4)
            a(f"v_perm_b32 v{p}, v{U+4+d}, v{U+d}, s{40+hh}")
            a(f"v_perm_b32 v{p+1}, v{U+12+d}, v{U+8+d}, s{40+hh}")
            a(f"ds_write_b64 v9, v[{p}:{p+1}] offset:{(2*d+hh)*USTR+512}")
    tile_mfma2(2)
    stamp(3)
    T0, T1, T2 = ACC, ACC+4, ACC+8
    a("v_cmp_eq_u32 vcc, 0, v1")
    a("v_cndmask_b32 v15, 0, v15, vcc")
    a(f"v_add_f32 v{T0}, v{T0}, v15")
    a("v_lshlrev_b32 v20, 5, v5")
    a("v_sub_u32 v20, s34, v20")
    a("v_lshlrev_b32 v21, 9, v6")
    a("v_sub_u32 v21, v20, v21")
    a(f"v_add_u32 v22, {506*4}, v21")
    a(f"v_cvt_pk_bf16_f32 v60, v{T2+1}, v{T2+1}")
    a(f"v_cvt_pk_bf16_f32 v61, v{T2+1}, v{T2}")
    a(f"v_cvt_pk_bf16_f32 v62, v{T2}, v{T2}")
    a(f"v_cvt_pk_bf16_f32 v63, v{T2+2}, v{T2+2}")
    a("ds_write2_b32 v22, v60, v60 offset0:0 offset1:1")
    a("ds_write2_b32 v22, v60, v61 offset0:2 offset1:3")
    a("ds_write2_b32 v22, v62, v62 offset0:4 offset1:5")
    a("ds_write2_b32 v22, v62, v62 offset0:6 offset1:7")
    a("s_mov_b64 exec, 1")
    a("ds_write2_b32 v20, v63, v63 offset0:0 offset1:1")
    a("s_mov_b64 exec, 15")
    a(f"ds_write_b64 v7, v[16:17] offset:{4096}")
    a(f"ds_write_b64 v7, v[16:17] offset:{EOFF+4096}")
    a("s_mov_b64 exec, -1")
    a(f"v_cvt_pk_bf16_f32 v64, v{T1+3}, v{T1+3}")
    a(f"v_cvt_pk_bf16_f32 v65, v{T1+3}, v{T1+2}")
    a(f"v_cvt_pk_bf16_f32 v66, v{T1+2}, v{T1+2}")
    a(f"v_cvt_pk_bf16_f32 v67, v{T1+1}, v{T1+1}")
    a(f"v_cvt_pk_bf16_f32 v68, v{T1+1}, v{T1}")
    a(f"v_cvt_pk_bf16_f32 v69, v{T1}, v{T1}")
    a(f"v_cvt_pk_bf16_f32 v70, v{T1+2}, v{T1+1}")
    a(f"v_add_u32 v22, {1017*4}, v21")
    a("v_lshlrev_b32 v23, 4, v6")
    a("v_sub_u32 v23, v20, v23")
    a(f"v_add_u32 v23, {892*4}, v23")
    a("v_lshlrev_b32 v24, 3, v6")
    a("v_sub_u32 v24, v20, v24")
    a(f"v_cvt_pk_bf16_f32 v72, v{T0+3}, v{T0+2}")
    a(f"v_cvt_pk_bf16_f32 v73, v{T0+1}, v{T0}")
    a("s_mov_b32 exec_lo, 0")
    a("ds_write2_b32 v22, v64, v65 offset0:0 offset1:1")
    a("ds_write2_b32 v22, v66, v66 offset0:2 offset1:3")
    a("ds_write2_b32 v22, v67, v68 offset0:4 offset1:5")
    a("ds_write2_b32 v22, v69, v69 offset0:6 offset1:7")
    a("s_mov_b32 exec_lo, -1\ns_mov_b32 exec_hi, 0")
    a("ds_write_b16 v23, v64 offset:2")
    a("ds_write2_b32 v23, v66, v70 offset0:1 offset1:2")
    a("ds_write_b32 v23, v69 offset:12")
    a("ds_write_b16 v23, v69 offset:16")
    a("s_mov_b64 exec, -1")
    a(f"ds_write_b64 v24, v[72:73] offset:{1022*4}")
    a("v_lshl_add_u32 v25, v1, 4, s34")
    for j in range(4):
        a(f"ds_read_b128 v[{96+8*j}:{99+8*j}], v25 offset:{1024*j}")
        a(f"ds_read_b32 v{100+8*j}, v25 offset:{1024*j+16}")
    a("v_and_b32 v26, 1, v5")
    a(f"v_mul_u32_u24 v26, {EOFF}, v26")
    a("v_lshrrev_b32 v27, 1, v5")
    a("v_lshlrev_b32 v27, 2, v27")
    a("v_lshl_add_u32 v28, v6, 4, s34")
    a("v_sub_u32 v28, v28, v27")
    a("v_sub_u32 v28, v28, v26")
    for u in range(4):
        a(f"v_add_u32 v{30+u}, {EOFF + 4*1015 - 448 - 512*(2*u+1)}, v28")
    a("v_lshlrev_b32 v34, 5, v5")
    a("v_lshl_add_u32 v34, v6, 4, v34")
    a("v_add_u32 v34, s35, v34")
    for j in range(4):
        a(f"s_waitcnt lgkmcnt({6-2*j})")
        for k in range(4):
            a(f"v_alignbit_b32 v{128+4*j+k}, v{97+8*j+k}, v{96+8*j+k}, 16")
        a(f"ds_write_b128 v25, v[{128+4*j}:{131+4*j}] offset:{EOFF+1024*j}")
    a("s_waitcnt lgkmcnt(0)")
    a("s_barrier")
    stamp(4)
    Y = 40
    FR = [72, 136]
    def loads(r):
        f = FR[r % 2]
        L = []
        for p in range(8):
            o = 16 * (7 - r) + (128 if p % 2 == 0 else 0)
            L.append(f"ds_read2_b32 v[{f+4*p}:{f+4*p+1}], v{30+p//2} offset0:{o} offset1:{o+1}")
            L.append(f"ds_read2_b32 v[{f+4*p+2}:{f+4*p+3}], v{30+p//2} offset0:{o+2} offset1:{o+3}")
            L.append(f"ds_read_b128 v[{f+32+4*p}:{f+35+4*p}], v34 offset:{32 + 64*(7-r) + 512*p}")
        return L
    for l in loads(0): a(l)
    order = sorted([(p, q) for p in range(8) for q in range(8) if p + q < 8], key=lambda t: (max(t), t))
    first = set()
    for r in range(8):
        f = FR[r % 2]
        nxt = loads(r + 1) if r < 7 else []
        a("s_waitcnt lgkmcnt(0)")
        for k, (p, q) in enumerate(order):
            at = p + q
            c = f"v[{Y+4*at}:{Y+4*at+3}]" if at in first else "0"
            first.add(at)
            a(f"v_mfma_f32_16x16x32_bf16 v[{Y+4*at}:{Y+4*at+3}], v[{f+4*p}:{f+4*p+3}], v[{f+32+4*q}:{f+35+4*q}], {c}")
            if k < len(nxt): a(nxt[k])
    stamp(5)
    a("v_lshlrev_b32 v2, 5, v5")
    a("v_lshl_add_u32 v2, v6, 3, v2")
    a("v_add_u32 v2, s35, v2")
    a("v_lshrrev_b32 v3, 2, v5")
    a(f"v_mul_u32_u24 v3, {USTR}, v3")
    a("v_and_b32 v4, 3, v5")
    a("v_lshl_add_u32 v3, v4, 3, v3")
    a("v_lshl_add_u32 v3, v6, 5, v3")
    a("s_lshl_b32 s33, s31, 9")
    a("v_add_u32 v3, s33, v3")
    a("s_lshl_b32 s33, s31, 8")
    a("v_add_u32 v4, s33, v1")
    a("s_movk_i32 s33, 2304")
    a("v_mul_lo_u32 v4, v4, s33")
    a("s_lshl_b32 s33, s30, 4")
    a("v_add_u32 v4, s33, v4")
    for at in range(8):
        p = 72 + 2 * at
        a(f"v_cvt_pk_bf16_f32 v{p}, v{Y+4*at}, v{Y+4*at+1}")
        a(f"v_cvt_pk_bf16_f32 v{p+1}, v{Y+4*at+2}, v{Y+4*at+3}")
        a(f"ds_write_b64 v2, v[{p}:{p+1}] offset:{512*at}")
    a("s_waitcnt lgkmcnt(0)")
    a("s_barrier")
    for j in range(4):
        a(f"ds_read_b64_tr_b16 v[{100+4*j}:{101+4*j}], v3 offset:{128*j}")
        a(f"ds_read_b64_tr_b16 v[{102+4*j}:{103+4*j}], v3 offset:{128*j+4*USTR}")
    for j in range(4):
        a(f"s_waitcnt lgkmcnt({6-2*j})")
        a(f"global_store_dwordx4 v4, v[{100+4*j}:{103+4*j}], s[24:25]")
        if j < 3: a(f"v_add_u32 v4, {64*2304}, v4")
    stamp(6)
```

```python
from gen_a import hexf, LOG2E
XSZ = 12288
SLOT = 40192
NS = 4
B_LDS = 163840
KVACC, CNT, PQ, PQL, WS_SZ = 0, 0xC000, 0x100000, 0x300000, 0x400000
PAIRB = 2816
O_MMB, O_LD, O_XM, O_XL = 1024, 2048, 2304, 2688
EPS = 1e-6
ONE_EPS = 1.0 + 1e-6
OOB = "0x7ffffff0"
SX, SW, SWO, SWS, SDB, SOUT = 44, 48, 52, 56, 60, 96

def srd(a, r, p, size):
    a(f"s_mov_b32 s{r}, s{p}\ns_mov_b32 s{r+1}, s{p+1}\ns_mov_b32 s{r+2}, {size}\ns_mov_b32 s{r+3}, 0x20000")

def role_zero(a):
    a.c("---------------- zero-init WG ----------------")
    a("s_waitcnt lgkmcnt(0)")
    srd(a, SWS, 28, WS_SZ); srd(a, SDB, 26, 256)
    a("v_lshlrev_b32 v2, 4, v0")
    for i in range(4): a(f"v_mov_b32 v{4+i}, 0")
    a("s_mov_b32 s33, 0")
    for j in range(7):
        a(f"buffer_store_dwordx4 v[4:7], v2, s[{SWS}:{SWS+3}], s33 offen sc1")
        a("s_add_u32 s33, s33, 8192")
    a("s_waitcnt vmcnt(0)")
    a("s_barrier")
    a("s_cmp_lg_u32 s31, 0")
    a("s_cbranch_scc1 L_fin")
    a("v_mov_b32 v8, 1")
    a("s_mov_b64 exec, 1")
    a(f"buffer_atomic_add v8, v4, s[{SDB}:{SDB+3}], 0 offen")
    a("s_mov_b64 exec, -1")
    a("s_branch L_fin")

def phi4(a, r, t, d):
    for h in (0, 2):
        a(f"v_pk_fma_f32 v[{t+h}:{t+h+1}], v[{r+h}:{r+h+1}], s[40:41], v[250:251]")
    for i in range(4): a(f"v_exp_f32_e64 v{t+i}, v{t+i} clamp")
    for h in (0, 2):
        a(f"v_pk_add_f32 v[{t+h}:{t+h+1}], v[{t+h}:{t+h+1}], v[252:253]")
    for i in range(4): a(f"v_max_f32 v{t+i}, v{t+i}, v{r+i}")
    if d is not None:
        a(f"v_cvt_pk_bf16_f32 v{d}, v{t}, v{t+1}")
        a(f"v_cvt_pk_bf16_f32 v{d+1}, v{t+2}, v{t+3}")

def role_b(a, stamp=lambda i: None, do_p3=True):
    a.c("---------------- role B ----------------")
    a("s_and_b32 s32, s42, 3")
    a("s_mul_i32 s32, s32, 22")
    a("s_add_u32 s32, s32, s43")
    a("s_lshr_b32 s33, s32, 2")
    a("s_and_b32 s32, s32, 3")
    a("s_and_b32 s34, s42, 4")
    a("s_add_u32 s32, s32, s34")
    a("s_mul_i32 s34, s33, 96")
    a("v_and_b32 v2, 15, v1")
    a("v_lshrrev_b32 v3, 4, v1")
    a("s_cmp_lt_u32 s31, 4")
    a("s_cbranch_scc1 L_bcomp")
    a("s_sub_u32 s35, s31, 4")
    a("s_mul_i32 s36, s35, 24")
    a("s_add_u32 s36, s36, s34")
    a("v_lshrrev_b32 v4, 3, v1")
    a("v_add_u32 v4, s36, v4")
    a("s_movk_i32 s37, 1152")
    a("v_mul_lo_u32 v4, v4, s37")
    a("v_and_b32 v5, 7, v1")
    a("v_xor_b32 v5, v5, v3")
    a("s_and_b32 s37, s35, 1")
    a("s_lshl_b32 s37, s37, 2")
    a("v_xor_b32 v5, s37, v5")
    a("v_lshl_add_u32 v10, v5, 4, v4")
    a("v_xor_b32 v5, 4, v5")
    a("v_lshl_add_u32 v11, v5, 4, v4")
    a(f"v_add_u32 v11, {8*1152}, v11")
    a(f"v_add_u32 v12, {16*1152}, v10")
    a("s_mul_i32 s38, s35, 3072")
    a(f"s_mul_i32 s39, s35, {432*16}")
    a(f"s_add_u32 s39, s39, {XSZ}")
    a("s_waitcnt lgkmcnt(0)")
    srd(a, SX, 18, 2359296); srd(a, SW, 20, 1990656)
    def xloads(st, slot):
        a(f"s_movk_i32 s3, {128*st}" if isinstance(st, int) else "")
        for t in range(3):
            a(f"s_add_u32 m0, s38, {slot*SLOT + 1024*t}")
            a(f"buffer_load_dwordx4 v{10+t}, s[{SX}:{SX+3}], s3 offen lds")
    xloads(0, 0)
    a("s_mul_i32 s36, s35, 432")
    a("s_mul_i32 s37, s32, 144")
    a("s_movk_i32 s30, 3456")
    a("s_mov_b32 s3, 0")
    for t in range(7):
        a(f"v_add_u32 v4, s36, v1")
        if t: a(f"v_add_u32 v4, {64*t}, v4")
        if t == 6: a("v_min_u32 v4, 1727, v4")
        a("v_mul_u32_u24 v5, 7282, v4")
        a("v_lshrrev_b32 v5, 16, v5")
        a("v_mul_u32_u24 v6, 9, v5")
        a("v_sub_u32 v4, v4, v6")
        a("v_and_b32 v6, 1, v5")
        a("v_lshrrev_b32 v5, 1, v5")
        a("v_cmp_gt_u32 vcc, 64, v5")
        a("v_lshl_add_u32 v7, v6, 5, v5")
        a("v_mad_u32_u24 v6, v6, s30, s30" .replace("s30, s30", "v8, v8") if False else "v_add_u32 v6, 1, v6")
        a("v_mul_u32_u24 v6, 1152, v6")
        a("v_cndmask_b32 v5, v7, v5, vcc")
        a("v_cndmask_b32 v6, 0, v6, vcc")
        a("v_and_b32 v7, 0x23, v5")
        a("v_and_b32 v8, 12, v5")
        a("v_lshl_or_b32 v7, v8, 1, v7")
        a("v_bfe_u32 v8, v5, 4, 1")
        a("v_lshl_or_b32 v7, v8, 2, v7")
        a("v_mul_u32_u24 v7, s30, v7")
        a("v_lshl_add_u32 v4, v4, 4, v6")
        a(f"v_add3_u32 v{13+t}, v7, v4, s37")
        a(f"s_add_u32 m0, s39, {1024*t}")
        a(f"buffer_load_dwordx4 v{13+t}, s[{SW}:{SW+3}], s3 offen lds")
    def wloads(st, slot):
        a(f"s_mov_b32 s30, {64*3456*st}")
        for t in range(7):
            a(f"s_add_u32 m0, s39, {slot*SLOT + 1024*t}")
            a(f"buffer_load_dwordx4 v{13+t}, s[{SW}:{SW+3}], s30 offen lds")
    for st in (1, 2): xloads(st, st); wloads(st, st)
    stamp(1)
    srd(a, SWS, 28, WS_SZ); srd(a, SDB, 26, 256); srd(a, SWO, 22, 663552)
    for s in range(9):
        a(f"s_waitcnt vmcnt({10*min(2, 8-s)})")
        a("s_barrier")
        if s + 3 < 9: xloads(s + 3, (s + 3) % NS); wloads(s + 3, (s + 3) % NS)
    stamp(2)
    a("v_mov_b32 v4, 0")
    a("s_mov_b32 s36, 0")
    a("L_rdy:")
    a(f"buffer_load_dword v5, v4, s[{SDB}:{SDB+3}], 0 offen sc1")
    a("s_add_u32 s36, s36, 1")
    a("s_waitcnt vmcnt(0)")
    a("v_readfirstlane_b32 s37, v5")
    a("s_cmp_ge_u32 s36, 0x10000")
    a("s_cbranch_scc1 L_rdy2")
    a("s_cmp_eq_u32 s37, 0")
    a("s_cbranch_scc1 L_rdy")
    a("L_rdy2:")
    EX = 3 * SLOT
    a("s_lshr_b32 s36, s35, 1")
    a("s_and_b32 s37, s35, 1")
    a("v_lshrrev_b32 v4, 2, v2")
    a("v_and_b32 v5, 3, v2")
    a("v_lshl_add_u32 v6, v3, 2, v4")
    a("v_mul_u32_u24 v6, 160, v6")
    a("v_lshl_add_u32 v6, v5, 3, v6")
    a(f"s_mul_i32 s38, s36, {96*160}")
    a(f"s_add_u32 s38, s38, {EX}")
    a("v_add_u32 v7, s38, v6")
    a("s_lshl_b32 s39, s37, 5")
    a("v_add_u32 v6, s39, v7")
    a("s_lshl_b32 s38, s32, 1")
    a("s_add_u32 s38, s38, s36")
    a(f"s_mul_i32 s38, s38, {PAIRB}")
    a("v_lshlrev_b32 v8, 8, v4")
    a("v_lshl_add_u32 v8, v3, 4, v8")
    a("v_lshl_add_u32 v8, v5, 2, v8")
    a("s_lshl_b32 s39, s37, 10")
    a("v_add_u32 v8, s39, v8")
    a(f"v_mov_b32 v20, {OOB}")
    a("v_lshrrev_b32 v9, 1, v2")
    a("v_cmp_eq_u32 s[64:65], s37, v9" .replace("s[64:65]", "s[98:99]"))
    a("v_lshlrev_b32 v10, 4, v3")
    a("v_lshl_add_u32 v10, v2, 2, v10")
    a("v_cndmask_b32 v10, v20, v10, s[98:99]")
    a("s_lshl_b32 s39, s37, 1")
    a("s_add_u32 s39, s39, 2")
    a("v_mov_b32 v11, s39")
    a("v_mov_b32 v12, s37")
    a("v_cmp_eq_u32 vcc, 1, v3")
    a("v_cndmask_b32 v11, v12, v11, vcc")
    a("v_lshlrev_b32 v13, 2, v2")
    a("v_lshl_add_u32 v13, v11, 6, v13")
    a("v_cndmask_b32 v14, v20, v13, vcc")
    a("v_and_b32 v15, 1, v2")
    a("v_lshlrev_b32 v15, 2, v15")
    a("v_lshl_add_u32 v15, v11, 3, v15")
    a("v_cndmask_b32 v15, v20, v15, s[98:99]")
    a("v_cndmask_b32 v16, v20, v15, vcc")
    a("v_and_b32 v12, 1, v3")
    a("v_cmp_eq_u32 vcc, 1, v12")
    a("v_cndmask_b32 v13, v20, v13, vcc")
    a("v_cndmask_b32 v15, v20, v15, vcc")
    a("s_cmp_eq_u32 s37, 1")
    a("s_cselect_b64 s[98:99], -1, 0")
    a("s_barrier")
    stamp(3)
    FK, FV, FL = 24, 36, 48
    for ks in range(3):
        for h in range(2):
            o = (32*ks + 16*h) * 160
            a(f"ds_read_b64_tr_b16 v[{FK+4*ks+2*h}:{FK+4*ks+2*h+1}], v6 offset:{o}")
            a(f"ds_read_b64_tr_b16 v[{FV+4*ks+2*h}:{FV+4*ks+2*h+1}], v6 offset:{o+64}")
            a(f"ds_read_b64_tr_b16 v[{FL+4*ks+2*h}:{FL+4*ks+2*h+1}], v7 offset:{o+128}")
    MM, XM, ML, LL = 60, 64, 68, 72
    for ks in range(3):
        a(f"s_waitcnt lgkmcnt({12-6*ks})")
        for d, x, y in ((MM, FV, FK), (ML, FV, FL), (XM, FL, FK), (LL, FL, FL)):
            c = "0" if ks == 0 else f"v[{d}:{d+3}]"
            a(f"v_mfma_f32_16x16x32_bf16 v[{d}:{d+3}], v[{x+4*ks}:{x+4*ks+3}], v[{y+4*ks}:{y+4*ks+3}], {c}")
    for i in range(4): a(f"buffer_atomic_add_f32 v{MM+i}, v8, s[{SWS}:{SWS+3}], s38 offen offset:{64*i}")
    for i in range(4): a(f"buffer_atomic_add_f32 v{ML+i}, v10, s[{SWS}:{SWS+3}], s38 offen offset:{O_LD+64*i}")
    for d in (XM, LL):
        a(f"v_cndmask_b32 v{d}, v{d}, v{d+2}, s[98:99]")
        a(f"v_cndmask_b32 v{d+1}, v{d+1}, v{d+3}, s[98:99]")
    a(f"buffer_atomic_add_f32 v{XM}, v13, s[{SWS}:{SWS+3}], s38 offen offset:{O_XM}")
    a(f"buffer_atomic_add_f32 v{XM+1}, v14, s[{SWS}:{SWS+3}], s38 offen offset:{O_XM+64}")
    a(f"buffer_atomic_add_f32 v{LL}, v15, s[{SWS}:{SWS+3}], s38 offen offset:{O_XL}")
    a(f"buffer_atomic_add_f32 v{LL+1}, v16, s[{SWS}:{SWS+3}], s38 offen offset:{O_XL+8}")
    stamp(4)
    a("s_branch L_bjoin")
    a("L_bcomp:")
    a("s_and_b32 s35, s31, 1")
    a("s_lshr_b32 s36, s31, 1")
    XA0, XA1, WA, LA0, LA1 = 4, 5, 6, 7, 8
    a("v_lshrrev_b32 v9, 1, v2")
    a("v_xor_b32 v9, v9, v3")
    a("v_lshlrev_b32 v10, 7, v2")
    a("v_lshl_add_u32 v10, v9, 4, v10")
    a(f"s_mul_i32 s37, s35, {48*128}")
    a(f"v_add_u32 v{XA0}, s37, v10")
    a(f"v_xor_b32 v{XA1}, 64, v{XA0}")
    a("v_lshrrev_b32 v9, 2, v2")
    a("v_and_b32 v10, 3, v2")
    a("v_lshl_add_u32 v11, v3, 2, v9")
    a("v_mul_u32_u24 v11, 288, v11")
    a("s_mul_i32 s37, s36, 72")
    a(f"s_add_u32 s37, s37, {XSZ}")
    a("v_add_u32 v11, s37, v11")
    a(f"v_lshl_add_u32 v{WA}, v10, 3, v11")
    a("v_mul_u32_u24 v12, 144, v10")
    a("v_cmp_gt_u32 vcc, 2, v10")
    a(f"v_mov_b32 v13, {64*288}")
    a("v_cndmask_b32 v12, v13, v12, vcc")
    a(f"v_add3_u32 v{LA0}, v11, v12, 32")
    a(f"v_mov_b32 v13, {32*288}")
    a("v_mov_b32 v14, 144")
    a("v_cndmask_b32 v12, v14, v13, vcc")
    a(f"v_add_u32 v{LA1}, v{LA0}, v12")
    ACC = 16
    def acc(rt, t): return ACC + 4 * (7 * rt + t)
    a(f"v_mov_b32 v9, {hexf(ONE_EPS)}")
    a("v_cmp_eq_u32 vcc, 1, v3")
    a("v_cndmask_b32 v10, v9, 0, vcc" .replace("v_cndmask_b32 v10, v9, 0, vcc", "v_cndmask_b32_e64 v10, v9, 0, vcc"))
    for rt in range(3):
        for t in range(7):
            src = "0" if t in (2, 3) else ("v10" if t == 6 else "v9")
            for i in range(4): a(f"v_mov_b32 v{acc(rt,t)+i}, {src}")
    F = [100, 140]
    for i in range(40): a(f"v_mov_b32 v{F[1]+i}, 0")
    woff = [0, 40, 144, 184]
    def reads(kk):
        f = F[kk]; L = []
        def w(t):
            for h in range(2):
                if t < 4: ad, o = WA, (32*kk + 16*h) * 288 + woff[t]
                elif t < 6: ad, o = WA, (64 + 16*h) * 288 + 144*kk + woff[t-4]
                else: ad, o = (LA0, LA1)[kk], 16*h*288
                L.append(f"ds_read_b64_tr_b16 v[{f+12+4*t+2*h}:{f+12+4*t+2*h+1}], v{ad} offset:{o}")
        for rt in range(3): L.append(f"ds_read_b128 v[{f+4*rt}:{f+4*rt+3}], v{(XA0,XA1)[kk]} offset:{2048*rt}")
        for t in range(7): w(t)
        return L
    def mfmas(kk):
        f = F[kk]
        return [f"v_mfma_f32_16x16x32_bf16 v[{acc(rt,t)}:{acc(rt,t)+3}], v[{f+12+4*t}:{f+15+4*t}], v[{f+4*rt}:{f+4*rt+3}], v[{acc(rt,t)}:{acc(rt,t)+3}]"
                for t in range(7) for rt in range(3)]
    def inter(M, R):
        for k, m in enumerate(M):
            if k < len(R): a(R[k])
            a(m)
    a(f"s_mov_b32 s40, {hexf(LOG2E)}\ns_mov_b32 s41, s40")
    a(f"v_mov_b32 v250, {hexf(-ONE_EPS*LOG2E)}\nv_mov_b32 v251, v250")
    a(f"v_mov_b32 v252, {hexf(EPS)}\nv_mov_b32 v253, v252")
    a("s_mov_b32 s37, 0")
    a("s_waitcnt lgkmcnt(0)")
    srd(a, SWS, 28, WS_SZ); srd(a, SDB, 26, 256); srd(a, SWO, 22, 663552)
    stamp(1)
    a("L_gloop:")
    a("s_barrier")
    inter(mfmas(1), reads(0))
    a("s_waitcnt lgkmcnt(0)")
    inter(mfmas(0), reads(1))
    a("s_add_u32 s37, s37, 1")
    a("s_and_b32 s38, s37, 3")
    a("s_cmp_eq_u32 s38, 0")
    a(f"s_cselect_b32 s38, {-(NS-1)*SLOT & 0xffffffff}, {SLOT}" .replace(f", {SLOT}", ", s39") )
    a("s_waitcnt lgkmcnt(0)")
    for r in (XA0, XA1, WA, LA0, LA1): a(f"v_add_u32 v{r}, s38, v{r}")
    a("s_cmp_lt_u32 s37, 9")
    a("s_cbranch_scc1 L_gloop")
    for m in mfmas(1): a(m)
    stamp(2)
    a("v_mul_u32_u24 v4, 160, v2")
    a("v_lshl_add_u32 v4, v3, 3, v4")
    a(f"s_mul_i32 s37, s36, {96*160}")
    a(f"s_mul_i32 s38, s35, {48*160}")
    a("s_add_u32 s37, s37, s38")
    a(f"s_add_u32 s37, s37, {EX}")
    a("v_add_u32 v4, s37, v4")
    a("s_mul_i32 s38, s33, 6")
    a("s_mul_i32 s39, s35, 3")
    a("s_add_u32 s38, s38, s39")
    a("v_cmp_eq_u32 s[98:99], 1, v3")
    a("v_cmp_eq_u32 s[100:101], 3, v3")
    P = 100
    for rt in range(3):
        for t in (0, 1):
            d = P + 2 * (2*rt + t)
            phi4(a, acc(rt, t), 120 + 4*t, d)
            a(f"ds_write_b64 v4, v[{d}:{d+1}] offset:{rt*16*160 + 32*t}")
        for t in (2, 3):
            d = 112 + 2 * (t - 2) + 4 * (rt % 2)
            a(f"v_cvt_pk_bf16_f32 v{d}, v{acc(rt,t)}, v{acc(rt,t)+1}")
            a(f"v_cvt_pk_bf16_f32 v{d+1}, v{acc(rt,t)+2}, v{acc(rt,t)+3}")
            a(f"ds_write_b64 v4, v[{d}:{d+1}] offset:{rt*16*160 + 32*t}")
        phi4(a, acc(rt, 6), 128, None)
        a(f"s_add_u32 s39, s38, {rt}")
        a("s_cmp_lt_u32 s39, 128")
        a("s_cselect_b32 s39, 0x3f803f80, 0")
        a("v_mov_b32 v132, s39")
        for i in range(4): a(f"v_cndmask_b32 v{128+i}, v{128+i}, v{acc(rt,6)+i}, s[98:99]")
        d = 134 + 2 * rt
        a(f"v_cvt_pk_bf16_f32 v{d}, v128, v129")
        a(f"v_cvt_pk_bf16_f32 v{d+1}, v130, v131")
        a(f"v_cndmask_b32 v{d}, v{d}, v132, s[100:101]")
        a(f"v_cndmask_b32 v{d+1}, v{d+1}, v132, s[100:101]")
        a(f"ds_write_b64 v4, v[{d}:{d+1}] offset:{rt*16*160 + 128}")
    a("s_waitcnt lgkmcnt(0)")
    a("s_barrier")
    stamp(3)
    a("v_lshlrev_b32 v5, 4, v1")
    a("v_lshlrev_b32 v6, 3, v2")
    a(f"v_mov_b32 v7, {OOB}")
    a("v_cmp_eq_u32 vcc, 2, v3")
    a("v_cndmask_b32 v6, v7, v6, vcc")
    a("s_lshl_b32 s38, s38, 4")
    a("s_lshl_b32 s39, s32, 1")
    a("s_add_u32 s38, s38, s39")
    a("s_add_u32 s38, s38, s36")
    for rt in range(3):
        d = 140 + 4 * rt
        phi4(a, acc(rt, 4), 120, d)
        phi4(a, acc(rt, 5), 124, d + 2)
        a(f"s_cmp_ge_u32 s38, {2048 - 16*rt}")
        a("s_cbranch_scc1 L_bq_done")
        a(f"s_add_u32 s39, s38, {16*rt}")
        a("s_lshl_b32 s37, s39, 10")
        a(f"s_add_u32 s37, s37, {PQ}")
        a("s_lshl_b32 s39, s39, 7")
        a(f"s_add_u32 s39, s39, {PQL}")
        a(f"buffer_store_dwordx4 v[{d}:{d+3}], v5, s[{SWS}:{SWS+3}], s37 offen sc1")
        a(f"buffer_store_dwordx2 v[{134+2*rt}:{135+2*rt}], v6, s[{SWS}:{SWS+3}], s39 offen sc1")
    a("L_bq_done:")
    stamp(4)
    a("L_bjoin:")
    a("s_waitcnt vmcnt(0)")
    stamp(5)
    a("s_barrier")
    a("s_cmp_lg_u32 s31, 0")
    a("s_cbranch_scc1 L_nosig")
    a("v_lshlrev_b32 v4, 10, v1")
    a("s_lshl_b32 s37, s32, 7")
    a(f"s_add_u32 s37, s37, {CNT}")
    a("v_mov_b32 v5, 1")
    a("s_mov_b64 exec, 0xff")
    a(f"buffer_atomic_add v5, v4, s[{SWS}:{SWS+3}], s37 offen")
    a("s_mov_b64 exec, -1")
    a("L_nosig:")
    if do_p3: phase3(a, stamp)

def phase3(a, stamp):
    a.c("---------------- phase 3 ----------------")
    a("s_cmp_ge_u32 s43, 20")
    a("s_cbranch_scc1 L_fin")
    a("s_mul_i32 s32, s43, 52")
    a("s_lshr_b32 s32, s32, 8")
    a("s_mul_i32 s33, s32, 5")
    a("s_sub_u32 s33, s43, s33")
    a("s_lshl_b32 s34, s42, 2")
    a("s_add_u32 s32, s32, s34")
    a("s_lshr_b32 s34, s31, 2")
    a("s_and_b32 s35, s31, 3")
    a("s_and_b32 s36, s31, 1")
    a("s_lshl_b32 s37, s36, 3")
    a("v_lshl_add_u32 v4, v3, 1, s37")
    a("v_xor_b32 v4, v4, v2")
    a("v_lshlrev_b32 v4, 4, v4")
    a("s_lshl_b32 s37, s33, 8")
    a("v_add_u32 v4, s37, v4")
    a("s_mul_i32 s37, s34, 20")
    a("s_add_u32 s37, s37, s35")
    a("v_lshl_add_u32 v5, v3, 2, s37")
    a("v_mul_u32_u24 v5, 1152, v5")
    a("v_add_u32 v5, v5, v4")
    a("s_lshl_b32 s38, s31, 10")
    a("s_mov_b32 s39, 0")
    for s in range(16):
        a(f"s_add_u32 m0, s38, {8192*s}")
        a(f"s_mov_b32 s39, {36*1152*s}")
        a(f"buffer_load_dwordx4 v5, s[{SWO}:{SWO+3}], s39 offen lds")
    a("s_mul_i32 s37, s34, 144")
    a("s_mul_i32 s39, s35, 18")
    a("s_add_u32 s37, s37, s39")
    a("s_lshl_b32 s39, s36, 4")
    a("s_sub_u32 s37, s37, s39")
    a("s_add_u32 s37, s37, 16")
    a("v_lshrrev_b32 v6, 1, v3")
    a("v_mul_u32_u24 v6, 72, v6")
    a("v_and_b32 v7, 1, v3")
    a("v_add3_u32 v6, v6, v7, s37")
    a("v_mul_u32_u24 v6, 1152, v6")
    a("v_add_u32 v6, v6, v4")
    for s in (16, 17):
        a(f"s_add_u32 m0, s38, {8192*s}")
        a(f"s_mov_b32 s39, {288*1152*(s-16)}")
        a(f"buffer_load_dwordx4 v6, s[{SWO}:{SWO+3}], s39 offen lds")
    a("s_lshr_b32 s35, s31, 1")
    a("v_lshrrev_b32 v4, 2, v2")
    a("v_lshl_add_u32 v4, v3, 2, v4")
    a("v_and_b32 v5, 7, v4")
    a("v_lshlrev_b32 v5, 1, v5")
    a("v_bfe_u32 v6, v2, 1, 1")
    a("s_lshl_b32 s37, s35, 2")
    a("v_add_u32 v6, s37, v6")
    a("v_xor_b32 v5, v5, v6")
    a("v_lshlrev_b32 v4, 8, v4")
    a("v_lshl_add_u32 v4, v5, 4, v4")
    a("v_and_b32 v5, 1, v2")
    a("v_lshl_add_u32 v4, v5, 3, v4")
    a("v_xor_b32 v5, 32, v4")
    WOF = 112
    a("s_waitcnt vmcnt(0)")
    a("s_barrier")
    stamp(6)
    for s in range(18):
        if s in (8, 16): a("v_add_u32 v4, 0x10000, v4\nv_add_u32 v5, 0x10000, v5")
        for t in range(2):
            for h in range(2):
                r = WOF + 8*s + 4*t + 2*h
                a(f"ds_read_b64_tr_b16 v[{r}:{r+1}], v{4+t} offset:{8192*(s%8) + 4096*h}")
    a(f"v_mov_b32 v8, {OOB}")
    a("v_lshlrev_b32 v9, 4, v1")
    a(f"s_mul_i32 s37, s31, {2*PAIRB}")
    a("v_lshlrev_b32 v6, 4, v2")
    a("v_cmp_eq_u32 s[98:99], 0, v3")
    a("v_cmp_eq_u32 s[100:101], 1, v3")
    a("v_cndmask_b32 v10, v8, v6, s[98:99]")
    a("v_cndmask_b32 v11, v8, v6, s[100:101]")
    a("v_and_b32 v6, 3, v2")
    a("v_bfe_u32 v7, v2, 2, 1")
    a("v_lshl_add_u32 v7, v7, 1, v6")
    a("v_cmp_gt_u32 vcc, 2, v6")
    a("v_cndmask_b32 v7, v7, v6, vcc")
    a("v_lshlrev_b32 v12, 4, v3")
    a("v_lshl_add_u32 v12, v7, 6, v12")
    a("v_lshlrev_b32 v14, 3, v7")
    a("v_cmp_gt_u32 s[94:95], 8, v2")
    a("s_or_b64 s[96:97], s[94:95], vcc")
    a("s_orn2_b64 vcc, vcc, s[94:95]")
    a("v_cndmask_b32 v13, v8, v12, vcc")
    a("v_cndmask_b32 v12, v8, v12, s[96:97]")
    a("s_and_b64 vcc, vcc, s[100:101]")
    a("s_and_b64 s[96:97], s[96:97], s[98:99]")
    a("v_cndmask_b32 v15, v8, v14, vcc")
    a("v_cndmask_b32 v14, v8, v14, s[96:97]")
    a("v_cmp_eq_u32 vcc, 1, v7")
    a("v_cmp_lt_u32 s[94:95], 3, v7")
    a("s_or_b64 s[94:95], s[94:95], vcc")
    a("v_lshlrev_b32 v6, 3, v2")
    a("v_lshl_add_u32 v6, v3, 7, v6")
    a("v_cmp_gt_u32 vcc, 2, v3")
    a("v_cndmask_b32 v7, v8, v6, vcc")
    a("s_lshl_b32 s38, s32, 6")
    a("s_lshl_b32 s39, s31, 1")
    a("s_add_u32 s38, s38, s39")
    a("s_lshl_b32 s39, s38, 7")
    a(f"s_add_u32 s39, s39, {PQL}")
    a("s_lshl_b32 s38, s38, 10")
    a(f"s_add_u32 s38, s38, {PQ}")
    a("s_waitcnt lgkmcnt(0)")
    stamp(7)
    a("s_cmp_lg_u32 s31, 0")
    a("s_cbranch_scc1 L_pw")
    a("v_lshlrev_b32 v4, 7, v1")
    a("s_lshl_b32 s34, s42, 10")
    a(f"s_add_u32 s34, s34, {CNT}")
    a("s_mov_b64 exec, 0xff")
    a("s_mov_b32 s3, 0")
    a("L_poll:")
    a(f"buffer_load_dword v5, v4, s[{SWS}:{SWS+3}], s34 offen sc1")
    a("s_add_u32 s3, s3, 1")
    a("s_waitcnt vmcnt(0)")
    a("v_cmp_gt_u32 vcc, 22, v5")
    a("s_cmp_ge_u32 s3, 0x10000")
    a("s_cbranch_scc1 L_pd")
    a("s_cbranch_vccnz L_poll")
    a("L_pd:")
    a("s_mov_b64 exec, -1")
    a("L_pw:")
    a("s_barrier")
    stamp(8)
    AM = [16, 20, 24, 28]
    AX = [32, 36, 40, 44]
    TLD = [48, 52]
    PQR = 56
    W = f"s[{SWS}:{SWS+3}]"
    for c in range(2):
        o = c * PAIRB
        a(f"buffer_load_dwordx4 v[{AM[2*c]}:{AM[2*c]+3}], v9, {W}, s37 offen offset:{o} sc1")
        a(f"buffer_load_dwordx4 v[{AM[2*c+1]}:{AM[2*c+1]+3}], v9, {W}, s37 offen offset:{o+O_MMB} sc1")
        if c == 1: a(f"s_add_u32 s37, s37, {PAIRB}")
        a(f"buffer_load_dwordx4 v[{TLD[c]}:{TLD[c]+3}], v{10+c}, {W}, s37 offen offset:{O_LD} sc1")
        a(f"buffer_load_dwordx4 v[{AX[2*c]}:{AX[2*c]+3}], v{12+c}, {W}, s37 offen offset:{O_XM} sc1")
        a(f"buffer_load_dwordx2 v[{AX[2*c+1]}:{AX[2*c+1]+1}], v{14+c}, {W}, s37 offen offset:{O_XL} sc1")
    for rt in range(4):
        b = PQR + 14 * rt
        a(f"buffer_load_dwordx4 v[{b+2}:{b+5}], v9, {W}, s38 offen sc1")
        a(f"buffer_load_dwordx4 v[{b+8}:{b+11}], v9, {W}, s38 offen offset:1024 sc1")
        a(f"buffer_load_dwordx2 v[{b+6}:{b+7}], v7, {W}, s39 offen sc1")
        if rt < 3: a("s_add_u32 s38, s38, 16384\ns_add_u32 s39, s39, 2048")
    a("s_lshl_b32 s34, s31, 11")
    a("v_add_u32 v10, s34, v9")
    a("s_lshr_b32 s34, s31, 2")
    a("s_lshl_b32 s34, s34, 10")
    a("s_and_b32 s3, s31, 3")
    a("s_lshl_b32 s3, s3, 2")
    a("s_add_u32 s34, s34, s3")
    a(f"s_add_u32 s34, s34, {16*1024}")
    a("v_add_u32 v11, s34, v9")
    a("v_and_b32 v6, 1, v3")
    a("v_cmp_eq_u32 s[98:99], 1, v6")
    a("v_cmp_lt_u32 s[100:101], 1, v3")
    a("s_waitcnt vmcnt(12)")
    stamp(9)
    a(f"v_mov_b32 v12, {hexf(EPS)}\nv_mov_b32 v13, v12\nv_mov_b32 v14, 0\nv_mov_b32 v15, 0")
    for c in range(2):
        ma, mb, xa, xb, t = AM[2*c], AM[2*c+1], AX[2*c], AX[2*c+1], TLD[c]
        a(f"v_cvt_pk_bf16_f32 v{ma+3}, v{ma+2}, v{ma+3}")
        a(f"v_cvt_pk_bf16_f32 v{ma+2}, v{ma}, v{ma+1}")
        a(f"v_cvt_pk_bf16_f32 v{ma}, v{t}, v{t+1}")
        a(f"v_mov_b32 v{ma+1}, 0")
        a(f"v_cvt_pk_bf16_f32 v{mb}, v{mb}, v{mb+1}")
        a(f"v_cvt_pk_bf16_f32 v{mb+1}, v{mb+2}, v{mb+3}")
        a(f"v_mov_b32 v{mb+2}, 0")
        a(f"v_cvt_pk_bf16_f32 v{mb+3}, v{t+2}, v{t+3}")
        a(f"v_cvt_pk_bf16_f32 v{t}, v{xa}, v{xa+1}")
        a(f"v_cvt_pk_bf16_f32 v{t+1}, v{xa+2}, v{xa+3}")
        a(f"v_cvt_pk_bf16_f32 v{t+2}, v{xb}, v{xb+1}")
        a(f"v_cndmask_b32 v{xa}, v{t+2}, 0, s[94:95]")
        a(f"v_mov_b32 v{xa+1}, 0")
        a(f"v_cndmask_b32 v{xa+2}, v{t}, 0, s[94:95]")
        a(f"v_cndmask_b32 v{xa+3}, v{t+1}, 0, s[94:95]")
        a(f"v_cndmask_b32 v{xb}, 0, v{t}, s[94:95]")
        a(f"v_cndmask_b32 v{xb+1}, 0, v{t+1}, s[94:95]")
        a(f"v_mov_b32 v{xb+2}, 0")
        a(f"v_cndmask_b32 v{xb+3}, 0, v{t+2}, s[94:95]")
    X0, X1 = 48, 52
    def mf(d, x, y, c): a(f"v_mfma_f32_16x16x32_bf16 v[{d}:{d+3}], v[{x}:{x+3}], v[{y}:{y+3}], {c}")
    for rt in range(4):
        b = PQR + 14 * rt
        a(f"s_waitcnt vmcnt({9-3*rt})")
        a(f"v_mov_b32 v{b}, v{b+6}\nv_mov_b32 v{b+1}, v{b+7}\nv_mov_b32 v{b+12}, v{b+6}\nv_mov_b32 v{b+13}, v{b+7}")
        ops = [b, b+4, b+6, b+10]
        mf(X0, AX[1], ops[1], "v[12:15]"); mf(X1, AX[2], ops[2], "v[12:15]")
        mf(X0, AX[0], ops[0], f"v[{X0}:{X0+3}]"); mf(X1, AX[3], ops[3], f"v[{X1}:{X1+3}]")
        D = [4, b, b+4, b+10]
        D = [4, b, None, None]
        mf(4, AM[0], ops[0], "0")
        mf(b, AM[1], ops[1], "0")
        mf(b+6, AM[2], ops[2], "0")
        mf(b+10, AM[3], ops[3], "0")
        for x in (X0, X1):
            a(f"v_rcp_f32 v{x}, v{x}\nv_rcp_f32 v{x+1}, v{x+1}")
        a(f"v_add_f32 v{X0+2}, v{X0+2}, v{X1+2}\nv_add_f32 v{X0+3}, v{X0+3}, v{X1+3}")
        a(f"v_cndmask_b32 v{X1+2}, v{X0}, v{X0+1}, s[98:99]")
        a(f"v_cndmask_b32 v{X1+3}, v{X1}, v{X1+1}, s[98:99]")
        a(f"v_cndmask_b32 v{X1+2}, v{X1+2}, v{X1+3}, s[100:101]")
        a(f"v_mul_f32 v{X0+2}, v{X0+2}, v{X1+2}\nv_mul_f32 v{X0+3}, v{X0+3}, v{X1+2}")
        a(f"v_cvt_pk_bf16_f32 v8, v{X0+2}, v{X0+3}")
        a(f"ds_write_b32 v11, v8 offset:{rt*18*1024}")
        for d, rc in ((4, X0), (b, X0+1), (b+6, X1), (b+10, X1+1)):
            sel = "op_sel:[0,0] op_sel_hi:[1,0]" if rc % 2 == 0 else "op_sel:[0,1] op_sel_hi:[1,1]"
            rp = rc & ~1
            a(f"v_pk_mul_f32 v[{d}:{d+1}], v[{d}:{d+1}], v[{rp}:{rp+1}] {sel}")
            a(f"v_pk_mul_f32 v[{d+2}:{d+3}], v[{d+2}:{d+3}], v[{rp}:{rp+1}] {sel}")
        a(f"v_cvt_pk_bf16_f32 v4, v4, v5\nv_cvt_pk_bf16_f32 v5, v6, v7")
        a(f"v_cvt_pk_bf16_f32 v6, v{b}, v{b+1}\nv_cvt_pk_bf16_f32 v7, v{b+2}, v{b+3}")
        a(f"ds_write_b128 v10, v[4:7] offset:{rt*18*1024}")
        a(f"v_cvt_pk_bf16_f32 v{b+6}, v{b+6}, v{b+7}\nv_cvt_pk_bf16_f32 v{b+7}, v{b+8}, v{b+9}")
        a(f"v_cvt_pk_bf16_f32 v{b+8}, v{b+10}, v{b+11}\nv_cvt_pk_bf16_f32 v{b+9}, v{b+12}, v{b+13}")
        a(f"ds_write_b128 v10, v[{b+6}:{b+9}] offset:{rt*18*1024+1024}")
    a(f"s_mul_i32 s34, s36, {36*1024}")
    a("v_add_u32 v10, s34, v9")
    a("s_lshl_b32 s34, s32, 6")
    a("s_lshl_b32 s3, s36, 5")
    a("s_add_u32 s34, s34, s3")
    a("v_add_u32 v11, s34, v2")
    a("s_movk_i32 s34, 2304")
    a("v_mul_lo_u32 v11, v11, s34")
    a("v_and_b32 v12, 1, v3")
    a("v_lshl_add_u32 v11, v12, 5, v11")
    a("v_lshrrev_b32 v12, 1, v3")
    a("v_lshl_add_u32 v11, v12, 4, v11")
    a("s_lshl_b32 s34, s33, 8")
    a("s_lshl_b32 s3, s35, 6")
    a("s_add_u32 s34, s34, s3")
    a("s_add_u32 s3, s34, 1152")
    a("v_add_u32 v11, s3, v11")
    a("s_waitcnt lgkmcnt(0)")
    a("s_barrier")
    stamp(10)
    a("s_cmp_ge_u32 s34, 1152")
    a("s_cbranch_scc1 L_fin")
    OA = 16
    OF = 32
    NB = 8
    def rd(s): return [f"ds_read_b128 v[{OF+8*(s%NB)+4*rt}:{OF+8*(s%NB)+4*rt+3}], v10 offset:{(rt*18+s)*1024}" for rt in range(2)]
    LA = 6
    for s in range(LA):
        for x in rd(s): a(x)
    for s in range(18):
        rem = min(LA - 1, 17 - s)
        a(f"s_waitcnt lgkmcnt({2*rem})")
        nx = rd(s + LA) if s + LA < 18 else []
        k = 0
        for rt in range(2):
            for t in range(2):
                d = OA + 8*rt + 4*t
                mf(d, WOF + 8*s + 4*t, OF + 8*(s%NB) + 4*rt, "0" if s == 0 else f"v[{d}:{d+3}]")
                if k < len(nx): a(nx[k]); k += 1
    stamp(11)
    for rt in range(2):
        d = OA + 8*rt; p = 32 + 4*rt
        for k in range(4): a(f"v_cvt_pk_bf16_f32 v{p+k}, v{d+2*k}, v{d+2*k+1}")
        a(f"v_permlane16_swap_b32 v{p}, v{p+2}")
        a(f"v_permlane16_swap_b32 v{p+1}, v{p+3}")
        a(f"global_store_dwordx4 v11, v[{p}:{p+3}], s[24:25]")
        if rt == 0: a(f"v_add_u32 v11, {16*2304}, v11")
    stamp(12)
```

```python
import re
TRANS = ("v_exp_f32","v_log_f32","v_rcp_f32","v_rsq_f32","v_sqrt_f32","v_sin_f32","v_cos_f32","v_rcp_iflag_f32")
def regs(tok):
    tok = tok.strip()
    tok = tok.lstrip("-")
    if tok.startswith("abs(") or tok.startswith("|"): tok = tok.replace("abs(","").replace(")","").replace("|","")
    m = re.fullmatch(r"([vsa])(\d+)", tok)
    if m: return {(m.group(1), int(m.group(2)))}
    m = re.fullmatch(r"([vsa])\[(\d+):(\d+)\]", tok)
    if m: return {(m.group(1), i) for i in range(int(m.group(2)), int(m.group(3)) + 1)}
    if tok in ("vcc","vcc_lo","vcc_hi"): return {("s","vcc")}
    if tok in ("exec","exec_lo","exec_hi"): return {("s","exec")}
    if tok == "m0": return {("s","m0")}
    return set()
class I:
    def __init__(s, line):
        s.line = line
        t = line.split(";")[0].strip()
        s.label = t[:-1] if t.endswith(":") else None
        s.dir = t.startswith(".") or t == ""
        s.op = ""; s.w = set(); s.r = set(); s.kind = None; s.srcc = set(); s.ab = set(); s.data = set(); s.target = None
        if s.label or s.dir: return
        p = t.split(None, 1)
        s.op = op = p[0]
        rest = p[1] if len(p) > 1 else ""
        ops = [x.strip() for x in re.split(r",(?![^\[]*\])", rest)]
        if ops:
            last = ops[-1].split()
            s.mods = last[1:] if last else []
            ops[-1] = last[0] if last else ""
        else: s.mods = []
        R = [regs(o) for o in ops]
        allr = set().union(*R) if R else set()
        if op.startswith("v_mfma"):
            s.kind = "mfma"; s.w = R[0]; s.ab = R[1] | R[2]; s.srcc = R[3]; s.r = s.ab | s.srcc
            s.passes = 8 if "32x32" in op else 4
        elif op.startswith("v_"):
            s.kind = "valu"
            if op.startswith("v_permlane") and "swap" in op: s.w = R[0] | R[1]; s.r = R[0] | R[1]
            elif op.startswith("v_cmpx"): s.w = R[0] | {("s","exec")}; s.r = set().union(*R[1:])
            elif op.startswith(("v_add_co","v_sub_co","v_addc_co","v_subb_co","v_subrev_co","v_mad_u64","v_div_scale")):
                s.w = R[0] | R[1]; s.r = set().union(*R[2:])
            else:
                s.w = R[0]; s.r = set().union(*R[1:]) if len(R) > 1 else set()
                if op.startswith(("v_fmac","v_mac","v_dot2c","v_writelane")): s.r |= R[0]
            s.trans = op.replace("_e32","").replace("_e64","") in TRANS
            s.dpp = any(m.startswith(("row_","quad_perm","wave_","row_bcast")) for m in s.mods) or "_dpp" in op
        elif op.startswith("ds_"):
            s.kind = "ds"
            if op.startswith(("ds_read","ds_bpermute","ds_permute","ds_swizzle")) or "_rtn" in op: s.w = R[0]; s.r = set().union(*R[1:])
            else: s.r = allr
        elif op.startswith(("buffer_","global_","flat_")):
            s.kind = "vmem"
            s.lds = "lds" in s.mods or "_lds_" in op
            if op in ("buffer_wbl2", "buffer_inv"): pass
            elif "load" in op and not s.lds: s.w = R[0]; s.r = set().union(*R[1:])
            else:
                s.r = allr
                if "store" in op and ("x3" in op or "x4" in op):
                    s.data = R[0] if op.startswith("buffer_") else R[1]
                if "atomic" in op and "sc0" in s.mods: s.w = R[0]
            if s.lds: s.r = s.r | {("s","m0")}
        elif op.startswith("s_"):
            s.kind = "salu"
            if op.startswith(("s_cbranch","s_branch")): s.target = ops[0]
            elif op.startswith(("s_cmp","s_waitcnt","s_nop","s_barrier","s_endpgm","s_sleep","s_setprio","s_bitcmp")): s.r = allr
            else:
                s.w = R[0] if R else set(); s.r = set().union(*R[1:]) if len(R) > 1 else set()
                if "saveexec" in op: s.w = s.w | {("s","exec")}
        else: raise ValueError("unknown op " + line)
    def states(s):
        if s.label or s.dir: return 0
        if s.op == "s_nop": return int(s.line.split(";")[0].split()[1], 0) + 1
        return 1
def V(x): return {r for r in x if r[0] in "va"}
def S(x): return {r for r in x if r[0] == "s"}
def need(p, c):
    n = 0
    if p.kind == "valu":
        if c.kind == "mfma" and V(p.w) & c.r: n = max(n, 2)
        if c.kind == "mfma" and ("s","exec") in p.w: n = max(n, 4)
        if c.kind == "valu":
            if S(p.w) & c.r - {("s","exec")}: n = max(n, 4 if c.op.startswith(("v_readlane","v_writelane")) else 2)
            if ("s","vcc") in p.w and c.op.startswith(("v_cndmask","v_addc","v_subb","v_div_fmas")) and ("s","vcc") in c.r: n = max(n, 4 if "fmas" in c.op else 2)
            if c.op.startswith(("v_readlane","v_readfirstlane")) and V(p.w) & c.r: n = max(n, 1)
            if c.op.startswith("v_permlane") and V(p.w) & c.r: n = max(n, 2)
            if c.dpp and V(p.w) & c.r: n = max(n, 2)
            if p.trans and not c.trans and V(p.w) & (c.r | c.w): n = max(n, 1)
            if ("s","exec") in p.w: n = max(n, 5 if c.dpp else 4 if c.op.startswith(("v_readlane","v_readfirstlane","v_writelane","v_permlane")) else 0)
            if any(m.startswith(("op_sel","dst_sel")) for m in p.mods) and not p.op.startswith("v_pk_") and V(p.w) & (c.r | c.w): n = max(n, 1)
        if p.trans and c.kind in ("ds","vmem") and V(p.w) & c.r: n = max(n, 1)
        if c.kind == "vmem" and S(p.w) & c.r: n = max(n, 5)
        if c.kind == "salu" and S(p.w) & c.r: n = max(n, 1)
    if p.kind == "salu":
        if ("s","m0") in p.w and c.kind == "vmem" and c.lds: n = max(n, 1)
    if p.kind == "vmem" and p.data and (p.data & c.w): n = max(n, 2 if c.kind in ("valu","mfma") else 1)
    if p.kind == "mfma":
        big = p.passes == 8
        if c.kind == "mfma":
            if p.w & c.ab: n = max(n, 12 if big else 8)
            if p.w & c.srcc and not (p.w == c.srcc and p.passes == c.passes): n = max(n, 10 if big else 6)
            if p.w & c.w and not (p.w == c.srcc and p.passes == c.passes): n = max(n, 12 if big else 8)
        elif c.kind in ("valu","ds","vmem"):
            if p.w & (c.r | c.w): n = max(n, 12 if big else 8)
            if c.kind == "valu" and p.srcc & c.w: n = max(n, 7 if big else 3)
    return n
MAXW = 12
def fix(lines, verbose=False):
    ins = [I(l) for l in lines]
    total = 0
    changed = True
    while changed:
        changed = False
        labels = {x.label: i for i, x in enumerate(ins) if x.label}
        preds = {}
        for i, x in enumerate(ins):
            if x.target in labels: preds.setdefault(labels[x.target], []).append(i)
        def back(i, dist, c, seen):
            worst = 0
            j = i - 1
            while j >= 0 and dist < MAXW:
                x = ins[j]
                if x.label:
                    for b in preds.get(j, []):
                        if (b, dist) not in seen:
                            seen.add((b, dist))
                            worst = max(worst, back(b, dist + 1, c, seen))
                elif not x.dir:
                    if x.op in ("s_branch", "s_endpgm"): return worst
                    worst = max(worst, need(x, c) - dist)
                    dist += x.states()
                j -= 1
            return worst
        for i, c in enumerate(ins):
            if c.label or c.dir or c.kind is None: continue
            sh = back(i, 0, c, set())
            if sh > 0:
                if verbose: print("nop", sh, "before", c.line.strip())
                ins.insert(i, I(f"    s_nop {sh-1}"))
                total += sh
                changed = True
                break_at = i
                break
        if changed:
            pass
    return [x.line for x in ins], total
```

```python
import sys
from asmlib import *
import hazard
from gen_a import *
from gen_b import *

NST = 15
STAMP_OFF = 200 << 20
def build(stamps=False, do_a=True, do_b=True, do_p3=True):
    a = Asm()
    sbase = 64
    def stamp(i):
        if stamps: a(f"s_memrealtime s[{sbase+2*i}:{sbase+2*i+1}]")
    stamp(0)
    a("s_load_dwordx16 s[4:19], s[0:1], 0")
    a("s_load_dwordx8 s[20:27], s[0:1], 64")
    a("s_load_dwordx2 s[28:29], s[0:1], 96")
    a("s_cmp_ge_u32 s2, 256")
    a("s_cbranch_scc1 L_end")
    a("v_and_b32 v1, 63, v0")
    a("v_lshrrev_b32 v2, 6, v0")
    a("s_and_b32 s42, s2, 7")
    a("s_lshr_b32 s43, s2, 3")
    a("v_readfirstlane_b32 s31, v2")
    a(f"s_mov_b32 s39, {SLOT}")
    a("s_cmp_ge_u32 s43, 22")
    a("s_cbranch_scc1 L_notb")
    if do_b: role_b(a, stamp, do_p3)
    a("s_branch L_fin")
    a("L_notb:")
    a("s_cmp_lt_u32 s43, 31")
    a("s_cbranch_scc1 L_rolea")
    a("s_cmp_lg_u32 s42, 0")
    a("s_cbranch_scc1 L_end")
    role_zero(a)
    a("L_rolea:")
    if do_a:
        a("s_mul_i32 s30, s42, 9")
        a("s_add_u32 s30, s30, s43")
        a("s_sub_u32 s30, s30, 22")
        role_a(a, stamp)
    a("L_fin:")
    if stamps:
        a("s_waitcnt vmcnt(0)")
        stamp(NST - 1)
        a("s_waitcnt lgkmcnt(0)")
        a("s_mov_b64 exec, 1")
        a("s_lshl_b32 s3, s31, 8")
        a("s_add_u32 s3, s3, s2")
        a(f"s_mul_i32 s3, s3, {8*NST}")
        a(f"s_add_u32 s3, s3, {STAMP_OFF}")
        a("v_mov_b32 v2, s3")
        for i in range(NST):
            a(f"v_mov_b32 v4, s{sbase+2*i}\nv_mov_b32 v5, s{sbase+2*i+1}")
            a(f"global_store_dwordx2 v2, v[4:5], s[28:29] offset:{8*i}")
    a("L_end:")
    a("s_endpgm")
    lines, n = hazard.fix(a.lines)
    print("nops inserted:", n, "lines", len(lines), file=sys.stderr)
    k = kernel_wrap(KN + "_kernel", "\n".join(lines), 256, 102, extra="  .amdhsa_float_denorm_mode_32 3\n")
    return make_file([f"; @launch grid=(256,1,1) block=(512,1,1) lds={B_LDS}"], [k])
if __name__ == "__main__":
    out = sys.argv[1]
    open(out, "w").write(build(stamps="--stamps" in sys.argv, do_a="--noa" not in sys.argv, do_p3="--nop3" not in sys.argv))
```

```python
import math
LOG2E = 1.4426950408889634
import struct
def f2u(x): return struct.unpack("<I", struct.pack("<f", x))[0]
def hexf(x): return "0x%08x" % f2u(x)
L2E_HI = struct.unpack("<f", struct.pack("<f", LOG2E))[0]
L2E_LO = LOG2E - L2E_HI

USTR = 4672
KBASE = 8 * USTR
KSTR = 8704
EOFF = 4160
GROW = 544
A_LDS = KBASE + 8 * KSTR

def role_a(a, stamp=lambda i: None):
    a.c("---------------- role A ----------------")
    a("s_lshl_b32 s32, s30, 3")
    a("s_add_u32 s32, s32, s31")
    a("s_lshl_b32 s33, s32, 8")
    a("v_lshl_add_u32 v2, v1, 2, s33")
    a("s_lshl_b32 s33, s32, 1")
    a("v_mov_b32 v3, s33")
    a("s_waitcnt lgkmcnt(0)")
    a("global_load_dword v10, v2, s[6:7]")
    a("global_load_ushort v14, v3, s[14:15]")
    a("global_load_dword v11, v2, s[8:9]")
    a("global_load_dword v12, v2, s[10:11]")
    a("global_load_dword v13, v2, s[12:13]")
    a("global_load_ushort v15, v3, s[16:17]")
    a("s_add_u32 s33, s31, s43")
    a("s_and_b32 s33, s33, 7")
    a("s_lshl_b32 s33, s33, 6")
    a("v_add_u32 v35, s33, v1")
    a("s_movk_i32 s33, 4608")
    a("v_mul_lo_u32 v4, v35, s33")
    a("s_lshl_b32 s33, s30, 4")
    a("v_add_u32 v4, s33, v4")
    a("v_lshlrev_b32 v216, 3, v35")
    U = 200
    def uload(j): a(f"global_load_dwordx4 v[{U+4*j}:{U+4*j+3}], v4, s[4:5] offset:{1152*j}")
    a("v_and_b32 v5, 15, v1")
    a("v_lshrrev_b32 v6, 4, v1")
    a(f"s_mul_i32 s34, s31, {KSTR}")
    a(f"s_add_u32 s34, s34, {KBASE}")
    a(f"s_mul_i32 s35, s31, {USTR}")
    a("v_lshl_add_u32 v7, v1, 3, s34")
    a(f"v_mul_u32_u24 v8, {GROW}, v5")
    a("v_lshl_add_u32 v8, v6, 4, v8")
    a("v_add_u32 v8, s34, v8")
    a("v_mov_b32 v16, 0\nv_mov_b32 v17, 0")
    a("v_lshl_add_u32 v9, v1, 3, s35")
    a("ds_write_b64 v9, v[16:17]")
    a(f"s_mov_b32 s36, {hexf(L2E_HI)}")
    a(f"s_mov_b32 s37, {hexf(L2E_LO)}")
    a(f"s_mov_b32 s38, {hexf(math.log(2.0))}")
    a("s_mov_b32 s39, 0xffff0000")
    stamp(1)
    def exp_bf16(dst, x, t0, t1):
        a(f"v_mul_f32 v{t0}, s36, v{x}")
        a(f"v_fma_f32 v{t1}, v{x}, s36, -v{t0}")
        a(f"v_fmac_f32 v{t1}, s37, v{x}")
        a(f"v_exp_f32 v{t0}, v{t0}")
        a(f"v_mul_f32 v{t1}, s38, v{t1}")
        a(f"v_fma_f32 v{t0}, v{t0}, v{t1}, v{t0}")
        a(f"v_cvt_pk_bf16_f32 v{t0}, v{t0}, v{t0}")
        a(f"v_and_b32 v{dst}, s39, v{t0}")
    a("s_waitcnt vmcnt(4)")
    a("v_lshlrev_b32 v20, 16, v10")
    a("v_and_b32 v21, s39, v10")
    a("v_lshlrev_b32 v14, 16, v14")
    exp_bf16(18, 14, 22, 23)
    exp_bf16(20, 20, 22, 23)
    exp_bf16(21, 21, 24, 25)
    a("v_mul_f32 v20, v20, v18\nv_mul_f32 v21, v21, v18")
    a("v_mul_f32 v20, s36, v20\nv_mul_f32 v21, s36, v21")
    a("s_waitcnt vmcnt(0)")
    uload(0)
    a("v_lshlrev_b32 v22, 16, v11\nv_and_b32 v23, s39, v11")
    a("v_mul_f32 v22, v22, v18\nv_mul_f32 v23, v23, v18")
    a("v_mul_f32 v22, 0.15915494, v22\nv_mul_f32 v23, 0.15915494, v23")
    a("v_add_f32 v19, v18, v18")
    C = 24
    a("v_lshlrev_b32 v24, 16, v12\nv_and_b32 v25, s39, v12")
    a("v_lshlrev_b32 v26, 16, v13\nv_and_b32 v27, s39, v13")
    a("v_mul_f32 v24, v24, v19\nv_mul_f32 v25, v25, v19")
    a("v_mul_f32 v26, v26, -v19\nv_mul_f32 v27, v27, -v19" .replace("v_mul_f32", "v_mul_f32_e64"))
    a("v_lshlrev_b32 v15, 16, v15")
    def direct(dst, c, conj):
        t = 60
        cs = hexf(float(c))
        for h in range(2):
            a(f"v_mul_f32 v{t+h}, {hexf(-float(c))}, v{20+h}")
            a(f"v_mul_f32 v{t+2+h}, {hexf(-float(c) if conj else float(c))}, v{22+h}")
        for h in range(2):
            a(f"v_exp_f32 v{t+h}, v{t+h}")
            a(f"v_fract_f32 v{t+2+h}, v{t+2+h}")
        for h in range(2):
            a(f"v_cos_f32 v{dst+h}, v{t+2+h}")
            a(f"v_sin_f32 v{dst+2+h}, v{t+2+h}")
        a(f"v_pk_mul_f32 v[{dst}:{dst+1}], v[{dst}:{dst+1}], v[{t}:{t+1}]")
        a(f"v_pk_mul_f32 v[{dst+2}:{dst+3}], v[{dst+2}:{dst+3}], v[{t}:{t+1}]")
    tcnt = [0]
    def cmul(d, z, w):
        t = 64 + 4 * (tcnt[0] % 2); tcnt[0] += 1
        assert d != z and d != w
        a(f"v_pk_mul_f32 v[{t}:{t+1}], v[{z+2}:{z+3}], v[{w+2}:{w+3}]")
        a(f"v_pk_mul_f32 v[{t+2}:{t+3}], v[{z+2}:{z+3}], v[{w}:{w+1}]")
        a(f"v_pk_fma_f32 v[{d}:{d+1}], v[{z}:{z+1}], v[{w}:{w+1}], v[{t}:{t+1}] neg_lo:[0,0,1] neg_hi:[0,0,1]")
        a(f"v_pk_fma_f32 v[{d+2}:{d+3}], v[{z}:{z+1}], v[{w+2}:{w+3}], v[{t+2}:{t+3}]")
    pcnt = [0]
    def emit(z, row):
        p = 72 + 2 * (pcnt[0] % 4); pcnt[0] += 1
        a(f"v_cvt_pk_bf16_f32 v{p}, v{z}, v{z+2}")
        a(f"v_cvt_pk_bf16_f32 v{p+1}, v{z+1}, v{z+3}")
        a(f"ds_write_b64 v7, v[{p}:{p+1}] offset:{row*GROW}")
    W16, W1, E256, W2, W4, W8 = 28, 32, 36, 40, 44, 48
    Z0, Z1, G0, G1 = 52, 56, 80, 84
    FA, FB = 96, 128
    ACC = 160
    direct(W16, 16, False)
    a("v_mov_b32 v72, 0x3f80\nv_mov_b32 v73, 0x3f80")
    a("ds_write_b64 v7, v[72:73]"); pcnt[0] = 1
    emit(W16, 1)
    cmul(Z0, W16, W16); emit(Z0, 2)
    z, o = Z0, Z1
    for i in range(3, 16):
        cmul(o, z, W16); emit(o, i); z, o = o, z
        if i == 8: uload(1)
    for s in range(8): a(f"ds_read_b128 v[{FA+4*s}:{FA+4*s+3}], v8 offset:{64*s}")
    direct(W1, 1, True)
    direct(E256, 256, True)
    uload(2)
    def tile_mfma(t):
        for s in range(8): a(f"ds_read_b128 v[{FB+4*s}:{FB+4*s+3}], v8 offset:{64*s}")
    def tile_mfma2(t):
        a("s_waitcnt lgkmcnt(0)")
        for s in range(8):
            c = "0" if s == 0 else f"v[{ACC+4*t}:{ACC+4*t+3}]"
            a(f"v_mfma_f32_16x16x32_bf16 v[{ACC+4*t}:{ACC+4*t+3}], v[{FB+4*s}:{FB+4*s+3}], v[{FA+4*s}:{FA+4*s+3}], {c}")
    emit(C, 0)
    cmul(Z0, C, W1); emit(Z0, 1)
    z, o = Z0, Z1
    for j in range(2, 16):
        cmul(o, z, W1); emit(o, j); z, o = o, z
        if j == 9: uload(3)
    tile_mfma(0)
    cmul(W2, W1, W1); cmul(G0, C, E256); cmul(W4, W2, W2); cmul(Z0, G0, W2); cmul(W8, W4, W4)
    tile_mfma2(0)
    emit(G0, 0); emit(Z0, 1)
    cmul(G1, G0, E256)
    z, o = Z0, Z1
    for j in range(2, 8):
        cmul(o, z, W2); emit(o, j); z, o = o, z
    emit(G1, 8)
    cmul(G0, G1, E256)
    cmul(Z0, G1, W4); emit(Z0, 9); cmul(Z1, Z0, W4); emit(Z1, 10); cmul(Z0, Z1, W4); emit(Z0, 11)
    emit(G0, 12)
    cmul(G1, G0, E256)
    cmul(Z0, G0, W4); emit(Z0, 13); cmul(Z1, Z0, W4); emit(Z1, 14); cmul(Z0, Z1, W4); emit(Z0, 15)
    tile_mfma(1)
    cmul(Z0, G1, W8); cmul(G0, G1, E256)
    tile_mfma2(1)
    emit(G1, 0); emit(Z0, 1)
    g, og = G0, G1
    for h in range(1, 4):
        cmul(Z0, g, W8); emit(g, 4*h); emit(Z0, 4*h+1)
        cmul(og, g, E256); g, og = og, g
    emit(g, 2)
    tile_mfma(2)
    stamp(2)
    a("s_mov_b32 s40, 0x05040100\ns_mov_b32 s41, 0x07060302")
    a("v_mov_b32 v9, v216")
    a("s_sub_u32 s33, s43, 22")
    a("s_lshl_b32 s33, s33, 3")
    a("s_add_u32 s33, s33, s31")
    a("s_lshl_b32 s3, s33, 13")
    a("v_lshl_add_u32 v217, v1, 7, s3")
    a("s_lshl_b32 s3, s33, 10")
    a(f"s_add_u32 s3, s3, {4608*128}")
    a("v_and_b32 v218, 7, v1")
    a("v_lshl_add_u32 v218, v218, 7, s3")
    a("s_waitcnt vmcnt(0)")
    a("global_load_dword v217, v217, s[22:23]")
    a("global_load_dword v218, v218, s[22:23]")
    for d in range(4):
        for hh in range(2):
            p = 60 + 2 * ((2*d+hh) % 4)
            a(f"v_perm_b32 v{p}, v{U+4+d}, v{U+d}, s{40+hh}")
            a(f"v_perm_b32 v{p+1}, v{U+12+d}, v{U+8+d}, s{40+hh}")
            a(f"ds_write_b64 v9, v[{p}:{p+1}] offset:{(2*d+hh)*USTR+512}")
    tile_mfma2(2)
    stamp(3)
    T0, T1, T2 = ACC, ACC+4, ACC+8
    a("v_cmp_eq_u32 vcc, 0, v1")
    a("v_cndmask_b32 v15, 0, v15, vcc")
    a(f"v_add_f32 v{T0}, v{T0}, v15")
    a("v_lshlrev_b32 v20, 5, v5")
    a("v_sub_u32 v20, s34, v20")
    a("v_lshlrev_b32 v21, 9, v6")
    a("v_sub_u32 v21, v20, v21")
    a(f"v_add_u32 v22, {506*4}, v21")
    a(f"v_cvt_pk_bf16_f32 v60, v{T2+1}, v{T2+1}")
    a(f"v_cvt_pk_bf16_f32 v61, v{T2+1}, v{T2}")
    a(f"v_cvt_pk_bf16_f32 v62, v{T2}, v{T2}")
    a(f"v_cvt_pk_bf16_f32 v63, v{T2+2}, v{T2+2}")
    a("ds_write2_b32 v22, v60, v60 offset0:0 offset1:1")
    a("ds_write2_b32 v22, v60, v61 offset0:2 offset1:3")
    a("ds_write2_b32 v22, v62, v62 offset0:4 offset1:5")
    a("ds_write2_b32 v22, v62, v62 offset0:6 offset1:7")
    a("s_mov_b64 exec, 1")
    a("ds_write2_b32 v20, v63, v63 offset0:0 offset1:1")
    a("s_mov_b64 exec, 15")
    a(f"ds_write_b64 v7, v[16:17] offset:{4096}")
    a(f"ds_write_b64 v7, v[16:17] offset:{EOFF+4096}")
    a("s_mov_b64 exec, -1")
    a(f"v_cvt_pk_bf16_f32 v64, v{T1+3}, v{T1+3}")
    a(f"v_cvt_pk_bf16_f32 v65, v{T1+3}, v{T1+2}")
    a(f"v_cvt_pk_bf16_f32 v66, v{T1+2}, v{T1+2}")
    a(f"v_cvt_pk_bf16_f32 v67, v{T1+1}, v{T1+1}")
    a(f"v_cvt_pk_bf16_f32 v68, v{T1+1}, v{T1}")
    a(f"v_cvt_pk_bf16_f32 v69, v{T1}, v{T1}")
    a(f"v_cvt_pk_bf16_f32 v70, v{T1+2}, v{T1+1}")
    a(f"v_add_u32 v22, {1017*4}, v21")
    a("v_lshlrev_b32 v23, 4, v6")
    a("v_sub_u32 v23, v20, v23")
    a(f"v_add_u32 v23, {892*4}, v23")
    a("v_lshlrev_b32 v24, 3, v6")
    a("v_sub_u32 v24, v20, v24")
    a(f"v_cvt_pk_bf16_f32 v72, v{T0+3}, v{T0+2}")
    a(f"v_cvt_pk_bf16_f32 v73, v{T0+1}, v{T0}")
    a("s_mov_b32 exec_lo, 0")
    a("ds_write2_b32 v22, v64, v65 offset0:0 offset1:1")
    a("ds_write2_b32 v22, v66, v66 offset0:2 offset1:3")
    a("ds_write2_b32 v22, v67, v68 offset0:4 offset1:5")
    a("ds_write2_b32 v22, v69, v69 offset0:6 offset1:7")
    a("s_mov_b32 exec_lo, -1\ns_mov_b32 exec_hi, 0")
    a("ds_write_b16 v23, v64 offset:2")
    a("ds_write2_b32 v23, v66, v70 offset0:1 offset1:2")
    a("ds_write_b32 v23, v69 offset:12")
    a("ds_write_b16 v23, v69 offset:16")
    a("s_mov_b64 exec, -1")
    a(f"ds_write_b64 v24, v[72:73] offset:{1022*4}")
    a("v_lshl_add_u32 v25, v1, 4, s34")
    for j in range(4):
        a(f"ds_read_b128 v[{96+8*j}:{99+8*j}], v25 offset:{1024*j}")
        a(f"ds_read_b32 v{100+8*j}, v25 offset:{1024*j+16}")
    a("v_and_b32 v26, 1, v5")
    a(f"v_mul_u32_u24 v26, {EOFF}, v26")
    a("v_lshrrev_b32 v27, 1, v5")
    a("v_lshlrev_b32 v27, 2, v27")
    a("v_lshl_add_u32 v28, v6, 4, s34")
    a("v_sub_u32 v28, v28, v27")
    a("v_sub_u32 v28, v28, v26")
    for u in range(4):
        a(f"v_add_u32 v{30+u}, {EOFF + 4*1015 - 448 - 512*(2*u+1)}, v28")
    a("v_lshlrev_b32 v34, 5, v5")
    a("v_lshl_add_u32 v34, v6, 4, v34")
    a("v_add_u32 v34, s35, v34")
    for j in range(4):
        a(f"s_waitcnt lgkmcnt({6-2*j})")
        for k in range(4):
            a(f"v_alignbit_b32 v{128+4*j+k}, v{97+8*j+k}, v{96+8*j+k}, 16")
        a(f"ds_write_b128 v25, v[{128+4*j}:{131+4*j}] offset:{EOFF+1024*j}")
    a("s_waitcnt lgkmcnt(0)")
    a("s_barrier")
    stamp(4)
    Y = 40
    FR = [72, 136]
    def loads(r):
        f = FR[r % 2]
        L = []
        for p in range(8):
            o = 16 * (7 - r) + (128 if p % 2 == 0 else 0)
            L.append(f"ds_read2_b32 v[{f+4*p}:{f+4*p+1}], v{30+p//2} offset0:{o} offset1:{o+1}")
            L.append(f"ds_read2_b32 v[{f+4*p+2}:{f+4*p+3}], v{30+p//2} offset0:{o+2} offset1:{o+3}")
            L.append(f"ds_read_b128 v[{f+32+4*p}:{f+35+4*p}], v34 offset:{32 + 64*(7-r) + 512*p}")
        return L
    for l in loads(0): a(l)
    order = sorted([(p, q) for p in range(8) for q in range(8) if p + q < 8], key=lambda t: (max(t), t))
    first = set()
    for r in range(8):
        f = FR[r % 2]
        nxt = loads(r + 1) if r < 7 else []
        a("s_waitcnt lgkmcnt(0)")
        for k, (p, q) in enumerate(order):
            at = p + q
            c = f"v[{Y+4*at}:{Y+4*at+3}]" if at in first else "0"
            first.add(at)
            a(f"v_mfma_f32_16x16x32_bf16 v[{Y+4*at}:{Y+4*at+3}], v[{f+4*p}:{f+4*p+3}], v[{f+32+4*q}:{f+35+4*q}], {c}")
            if k < len(nxt): a(nxt[k])
    stamp(5)
    a("v_lshlrev_b32 v2, 5, v5")
    a("v_lshl_add_u32 v2, v6, 3, v2")
    a("v_add_u32 v2, s35, v2")
    a("v_lshrrev_b32 v3, 2, v5")
    a(f"v_mul_u32_u24 v3, {USTR}, v3")
    a("v_and_b32 v4, 3, v5")
    a("v_lshl_add_u32 v3, v4, 3, v3")
    a("v_lshl_add_u32 v3, v6, 5, v3")
    a("s_lshl_b32 s33, s31, 9")
    a("v_add_u32 v3, s33, v3")
    a("s_lshl_b32 s33, s31, 8")
    a("v_add_u32 v4, s33, v1")
    a("s_movk_i32 s33, 2304")
    a("v_mul_lo_u32 v4, v4, s33")
    a("s_lshl_b32 s33, s30, 4")
    a("v_add_u32 v4, s33, v4")
    for at in range(8):
        p = 72 + 2 * at
        a(f"v_cvt_pk_bf16_f32 v{p}, v{Y+4*at}, v{Y+4*at+1}")
        a(f"v_cvt_pk_bf16_f32 v{p+1}, v{Y+4*at+2}, v{Y+4*at+3}")
        a(f"ds_write_b64 v2, v[{p}:{p+1}] offset:{512*at}")
    a("s_waitcnt lgkmcnt(0)")
    a("s_barrier")
    for j in range(4):
        a(f"ds_read_b64_tr_b16 v[{100+4*j}:{101+4*j}], v3 offset:{128*j}")
        a(f"ds_read_b64_tr_b16 v[{102+4*j}:{103+4*j}], v3 offset:{128*j+4*USTR}")
    for j in range(4):
        a(f"s_waitcnt lgkmcnt({6-2*j})")
        a(f"global_store_dwordx4 v4, v[{100+4*j}:{103+4*j}], s[24:25]")
        if j < 3: a(f"v_add_u32 v4, {64*2304}, v4")
    stamp(6)
```

```python
from gen_a import hexf, LOG2E
import os
ROT = 1
DBG = os.environ.get('DBG', '')
XSZ = 12288
SLOT = 40192
NS = 3
EX = 131072
B_LDS = 163840
KVACC, CNT, PQ, PQL, WS_SZ = 0, 0xC000, 0x100000, 0x300000, 0x400000
PAIRB = 2816
O_MMB, O_LD, O_XM, O_XL = 1024, 2048, 2304, 2688
EPS = 1e-6
ONE_EPS = 1.0 + 1e-6
OOB = "0x7ffffff0"
SX, SW, SWO, SWS, SDB, SOUT = 44, 48, 52, 56, 60, 96

def srd(a, r, p, size):
    a(f"s_mov_b32 s{r}, s{p}\ns_mov_b32 s{r+1}, s{p+1}\ns_mov_b32 s{r+2}, {size}\ns_mov_b32 s{r+3}, 0x20000")

def role_zero(a):
    a.c("---------------- zero-init WG ----------------")
    a("s_waitcnt lgkmcnt(0)")
    srd(a, SWS, 28, WS_SZ); srd(a, SDB, 26, 256)
    a("v_lshlrev_b32 v2, 4, v0")
    for i in range(4): a(f"v_mov_b32 v{4+i}, 0")
    a("s_mov_b32 s33, 0")
    for j in range(7):
        a(f"buffer_store_dwordx4 v[4:7], v2, s[{SWS}:{SWS+3}], s33 offen sc1")
        a("s_add_u32 s33, s33, 8192")
    a("s_waitcnt vmcnt(0)")
    a("s_barrier")
    a("s_cmp_lg_u32 s31, 0")
    a("s_cbranch_scc1 L_fin")
    a("v_mov_b32 v8, 1")
    a("s_mov_b64 exec, 1")
    a(f"buffer_atomic_add v8, v4, s[{SDB}:{SDB+3}], 0 offen")
    a("s_mov_b64 exec, -1")
    a("s_branch L_fin")

def phi4(a, r, t, d):
    for h in (0, 2):
        a(f"v_pk_fma_f32 v[{t+h}:{t+h+1}], v[{r+h}:{r+h+1}], s[40:41], v[250:251]")
    for i in range(4): a(f"v_exp_f32_e64 v{t+i}, v{t+i} clamp")
    for h in (0, 2):
        a(f"v_pk_add_f32 v[{t+h}:{t+h+1}], v[{t+h}:{t+h+1}], v[252:253]")
    for i in range(4): a(f"v_max_f32 v{t+i}, v{t+i}, v{r+i}")
    if d is not None:
        a(f"v_cvt_pk_bf16_f32 v{d}, v{t}, v{t+1}")
        a(f"v_cvt_pk_bf16_f32 v{d+1}, v{t+2}, v{t+3}")

def wo_voff(a, dst, t0):
    a("s_and_b32 s3, s31, 1")
    a("s_lshl_b32 s3, s3, 3")
    a(f"v_lshl_add_u32 v{t0}, v3, 1, s3")
    a(f"v_xor_b32 v{t0}, v{t0}, v2")
    a("s_lshl_b32 s3, s97, 8")
    a(f"v_lshl_add_u32 v{t0}, v{t0}, 4, s3")
    a("s_and_b32 s3, s31, 3")
    a(f"v_lshl_add_u32 v{dst}, v3, 2, s3")
    a(f"v_mul_u32_u24 v{dst}, 1152, v{dst}")
    a(f"v_add_u32 v{dst}, v{dst}, v{t0}")
    a("s_lshl_b32 s95, s3, 10")
def wo_loads(a, v, steps):
    for st in steps:
        for h in range(2):
            a(f"s_add_u32 m0, s95, {8192*st + 4096*h}")
            a(f"s_mov_b32 s3, {(36*st + 20*h)*1152}")
            a(f"buffer_load_dwordx4 v{v}, s[{SWO}:{SWO+3}], s3 offen lds")

def role_b(a, stamp=lambda i: None, do_p3=True):
    a.c("---------------- role B ----------------")
    rstamp = stamp
    if "stA" in DBG or "stB" in DBG: stamp = lambda i: None
    a("s_and_b32 s32, s42, 3")
    a("s_mul_i32 s32, s32, 22")
    a("s_add_u32 s32, s32, s43")
    a("s_lshr_b32 s33, s32, 2")
    a("s_and_b32 s32, s32, 3")
    a("s_and_b32 s34, s42, 4")
    a("s_add_u32 s32, s32, s34")
    a("s_mul_i32 s34, s33, 96")
    a("v_and_b32 v2, 15, v1")
    a("v_lshrrev_b32 v3, 4, v1")
    a("s_mul_i32 s96, s43, 52")
    a("s_lshr_b32 s96, s96, 8")
    a("s_mul_i32 s97, s96, 5")
    a("s_sub_u32 s97, s43, s97")
    a("s_cmp_lt_u32 s31, 4")
    a("s_cbranch_scc1 L_bcomp")
    a("s_sub_u32 s35, s31, 4")
    a("s_mul_i32 s36, s35, 24")
    a("s_add_u32 s36, s36, s34")
    a("v_lshrrev_b32 v4, 3, v1")
    a("v_add_u32 v4, s36, v4")
    a("s_movk_i32 s37, 1152")
    a("v_mul_lo_u32 v4, v4, s37")
    a("v_and_b32 v5, 7, v1")
    a("v_xor_b32 v5, v5, v3")
    a("s_and_b32 s37, s35, 1")
    a("s_lshl_b32 s37, s37, 2")
    a("v_xor_b32 v5, s37, v5")
    a("v_lshl_add_u32 v10, v5, 4, v4")
    a("v_xor_b32 v5, 4, v5")
    a("v_lshl_add_u32 v11, v5, 4, v4")
    a(f"v_add_u32 v11, {8*1152}, v11")
    a(f"v_add_u32 v12, {16*1152}, v10")
    a("s_mul_i32 s38, s35, 3072")
    a(f"s_mul_i32 s39, s35, {432*16}")
    a(f"s_add_u32 s39, s39, {XSZ}")
    a("s_waitcnt lgkmcnt(0)")
    srd(a, SX, 18, 2359296); srd(a, SW, 20, 1990656)
    a("s_and_b32 s94, s32, 3")
    a("s_add_u32 s94, s94, s33")
    a("s_lshl_b32 s94, s94, 1")
    a("s_mul_i32 s95, s94, 57")
    a("s_lshr_b32 s95, s95, 9")
    a("s_mul_i32 s95, s95, 9")
    a("s_sub_u32 s94, s94, s95")
    if not ROT: a("s_mov_b32 s94, 0")
    def xloads(st, slot):
        a("s_lshl_b32 s3, s94, 7")
        for t in range(3):
            a(f"s_add_u32 m0, s38, {slot*SLOT + 1024*t}")
            a(f"buffer_load_dwordx4 v{10+t}, s[{SX}:{SX+3}], s3 offen lds")
    def nxt():
        a("s_add_u32 s94, s94, 1")
        a("s_cmp_eq_u32 s94, 9")
        a("s_cselect_b32 s94, 0, s94")
    xloads(0, 0)
    a("s_mul_i32 s36, s35, 432")
    a("s_mul_i32 s37, s32, 144")
    a("s_movk_i32 s30, 3456")
    a(f"s_mul_i32 s3, s94, {64*3456}")
    for t in range(7):
        a(f"v_add_u32 v4, s36, v1")
        if t: a(f"v_add_u32 v4, {64*t}, v4")
        if t == 6: a("v_min_u32 v4, 1727, v4")
        a("v_mul_u32_u24 v5, 7282, v4")
        a("v_lshrrev_b32 v5, 16, v5")
        a("v_mul_u32_u24 v6, 9, v5")
        a("v_sub_u32 v4, v4, v6")
        a("v_and_b32 v6, 1, v5")
        a("v_lshrrev_b32 v5, 1, v5")
        a("v_cmp_gt_u32 vcc, 64, v5")
        a("v_lshl_add_u32 v7, v6, 5, v5")
        a("v_mad_u32_u24 v6, v6, s30, s30" .replace("s30, s30", "v8, v8") if False else "v_add_u32 v6, 1, v6")
        a("v_mul_u32_u24 v6, 1152, v6")
        a("v_cndmask_b32 v5, v7, v5, vcc")
        a("v_cndmask_b32 v6, 0, v6, vcc")
        a("v_and_b32 v7, 0x23, v5")
        a("v_and_b32 v8, 12, v5")
        a("v_lshl_or_b32 v7, v8, 1, v7")
        a("v_bfe_u32 v8, v5, 4, 1")
        a("v_lshl_or_b32 v7, v8, 2, v7")
        a("v_mul_u32_u24 v7, s30, v7")
        a("v_lshl_add_u32 v4, v4, 4, v6")
        a(f"v_add3_u32 v{13+t}, v7, v4, s37")
        a(f"s_add_u32 m0, s39, {1024*t}")
        a(f"buffer_load_dwordx4 v{13+t}, s[{SW}:{SW+3}], s3 offen lds")
    nxt()
    def wloads(st, slot):
        a(f"s_mul_i32 s30, s94, {64*3456}")
        for t in range(7):
            a(f"s_add_u32 m0, s39, {slot*SLOT + 1024*t}")
            a(f"buffer_load_dwordx4 v{13+t}, s[{SW}:{SW+3}], s30 offen lds")
        nxt()
    xloads(1, 1); wloads(1, 1)
    stamp(1)
    srd(a, SWS, 28, WS_SZ); srd(a, SDB, 26, 256); srd(a, SWO, 22, 663552)
    wo_voff(a, 21, 4)
    a("v_mov_b32 v4, 0")
    for s in range(9):
        a(f"s_waitcnt vmcnt(10)")
        if "stA" in DBG: rstamp(1 + s)
        a("s_barrier")
        if "stB" in DBG: rstamp(1 + s)
        if s == 5: a(f"buffer_load_dword v22, v4, s[{SDB}:{SDB+3}], 0 offen sc1")
        if s + 2 < 9 and 'noload' not in DBG: xloads(s + 2, (s + 2) % NS); wloads(s + 2, (s + 2) % NS)
        if s == 7: wo_loads(a, 21, [0, 1, 2, 3, 15])
        if s == 8: wo_loads(a, 21, [4, 5, 6, 7, 8])
    a("s_barrier")
    wo_loads(a, 21, [9, 10, 11, 12, 13, 14])
    stamp(2)
    a("v_readfirstlane_b32 s37, v22")
    a("s_mov_b32 s36, 0")
    a("s_cmp_lg_u32 s37, 0")
    a("s_cbranch_scc1 L_rdy2")
    a("L_rdy:")
    a(f"buffer_load_dword v5, v4, s[{SDB}:{SDB+3}], 0 offen sc1")
    a("s_add_u32 s36, s36, 1")
    a("s_waitcnt vmcnt(0)")
    a("v_readfirstlane_b32 s37, v5")
    a("s_cmp_ge_u32 s36, 0x10000")
    a("s_cbranch_scc1 L_rdy2")
    a("s_cmp_eq_u32 s37, 0")
    a("s_cbranch_scc1 L_rdy")
    a("L_rdy2:")
    a("s_lshr_b32 s36, s35, 1")
    a("s_and_b32 s37, s35, 1")
    a("v_lshrrev_b32 v4, 2, v2")
    a("v_and_b32 v5, 3, v2")
    a("v_lshl_add_u32 v6, v3, 2, v4")
    a("v_mul_u32_u24 v6, 160, v6")
    a("v_lshl_add_u32 v6, v5, 3, v6")
    a(f"s_mul_i32 s38, s36, {96*160}")
    a(f"s_add_u32 s38, s38, {EX}")
    a("v_add_u32 v7, s38, v6")
    a("s_lshl_b32 s39, s37, 5")
    a("v_add_u32 v6, s39, v7")
    a("s_lshl_b32 s38, s32, 1")
    a("s_add_u32 s38, s38, s36")
    a(f"s_mul_i32 s38, s38, {PAIRB}")
    a("v_lshlrev_b32 v8, 8, v4")
    a("v_lshl_add_u32 v8, v3, 4, v8")
    a("v_lshl_add_u32 v8, v5, 2, v8")
    a("s_lshl_b32 s39, s37, 10")
    a("v_add_u32 v8, s39, v8")
    a(f"v_mov_b32 v20, {OOB}")
    a("v_lshrrev_b32 v9, 1, v2")
    a("v_cmp_eq_u32 s[64:65], s37, v9" .replace("s[64:65]", "s[98:99]"))
    a("v_lshlrev_b32 v10, 4, v3")
    a("v_lshl_add_u32 v10, v2, 2, v10")
    a("v_cndmask_b32 v10, v20, v10, s[98:99]")
    a("s_lshl_b32 s39, s37, 1")
    a("s_add_u32 s39, s39, 2")
    a("v_mov_b32 v11, s39")
    a("v_mov_b32 v12, s37")
    a("v_cmp_eq_u32 vcc, 1, v3")
    a("v_cndmask_b32 v11, v12, v11, vcc")
    a("v_lshlrev_b32 v13, 2, v2")
    a("v_lshl_add_u32 v13, v11, 6, v13")
    a("v_cndmask_b32 v14, v20, v13, vcc")
    a("v_and_b32 v15, 1, v2")
    a("v_lshlrev_b32 v15, 2, v15")
    a("v_lshl_add_u32 v15, v11, 3, v15")
    a("v_cndmask_b32 v15, v20, v15, s[98:99]")
    a("v_cndmask_b32 v16, v20, v15, vcc")
    a("v_and_b32 v12, 1, v3")
    a("v_cmp_eq_u32 vcc, 1, v12")
    a("v_cndmask_b32 v13, v20, v13, vcc")
    a("v_cndmask_b32 v15, v20, v15, vcc")
    a("s_cmp_eq_u32 s37, 1")
    a("s_cselect_b64 s[98:99], -1, 0")
    a("s_setprio 2")
    a("s_barrier")
    stamp(3)
    FK, FV, FL = 24, 36, 48
    for ks in range(3):
        for h in range(2):
            o = (32*ks + 16*h) * 160
            a(f"ds_read_b64_tr_b16 v[{FK+4*ks+2*h}:{FK+4*ks+2*h+1}], v6 offset:{o}")
            a(f"ds_read_b64_tr_b16 v[{FV+4*ks+2*h}:{FV+4*ks+2*h+1}], v6 offset:{o+64}")
            a(f"ds_read_b64_tr_b16 v[{FL+4*ks+2*h}:{FL+4*ks+2*h+1}], v7 offset:{o+128}")
    MM, XM, ML, LL = 60, 64, 68, 72
    for ks in range(3):
        a(f"s_waitcnt lgkmcnt({12-6*ks})")
        for d, x, y in ((MM, FV, FK), (ML, FV, FL), (XM, FL, FK), (LL, FL, FL)):
            c = "0" if ks == 0 else f"v[{d}:{d+3}]"
            a(f"v_mfma_f32_16x16x32_bf16 v[{d}:{d+3}], v[{x+4*ks}:{x+4*ks+3}], v[{y+4*ks}:{y+4*ks+3}], {c}")
    for i in range(4): a(f"buffer_atomic_add_f32 v{MM+i}, v8, s[{SWS}:{SWS+3}], s38 offen offset:{64*i}")
    for i in range(4): a(f"buffer_atomic_add_f32 v{ML+i}, v10, s[{SWS}:{SWS+3}], s38 offen offset:{O_LD+64*i}")
    for d in (XM, LL):
        a(f"v_cndmask_b32 v{d}, v{d}, v{d+2}, s[98:99]")
        a(f"v_cndmask_b32 v{d+1}, v{d+1}, v{d+3}, s[98:99]")
    a(f"buffer_atomic_add_f32 v{XM}, v13, s[{SWS}:{SWS+3}], s38 offen offset:{O_XM}")
    a(f"buffer_atomic_add_f32 v{XM+1}, v14, s[{SWS}:{SWS+3}], s38 offen offset:{O_XM+64}")
    a(f"buffer_atomic_add_f32 v{LL}, v15, s[{SWS}:{SWS+3}], s38 offen offset:{O_XL}")
    a(f"buffer_atomic_add_f32 v{LL+1}, v16, s[{SWS}:{SWS+3}], s38 offen offset:{O_XL+8}")
    a("s_setprio 0")
    stamp(4)
    a("s_branch L_bjoin")
    a("L_bcomp:")
    a("s_and_b32 s35, s31, 1")
    a("s_lshr_b32 s36, s31, 1")
    XA0, XA1, WA, LA0, LA1 = 4, 5, 6, 7, 8
    a("v_lshrrev_b32 v9, 1, v2")
    a("v_xor_b32 v9, v9, v3")
    a("v_lshlrev_b32 v10, 7, v2")
    a("v_lshl_add_u32 v10, v9, 4, v10")
    a(f"s_mul_i32 s37, s35, {48*128}")
    a(f"v_add_u32 v{XA0}, s37, v10")
    a(f"v_xor_b32 v{XA1}, 64, v{XA0}")
    a("v_lshrrev_b32 v9, 2, v2")
    a("v_and_b32 v10, 3, v2")
    a("v_lshl_add_u32 v11, v3, 2, v9")
    a("v_mul_u32_u24 v11, 288, v11")
    a("s_mul_i32 s37, s36, 72")
    a(f"s_add_u32 s37, s37, {XSZ}")
    a("v_add_u32 v11, s37, v11")
    a(f"v_lshl_add_u32 v{WA}, v10, 3, v11")
    a("v_mul_u32_u24 v12, 144, v10")
    a("v_cmp_gt_u32 vcc, 2, v10")
    a(f"v_mov_b32 v13, {64*288}")
    a("v_cndmask_b32 v12, v13, v12, vcc")
    a(f"v_add3_u32 v{LA0}, v11, v12, 32")
    a(f"v_mov_b32 v13, {32*288}")
    a("v_mov_b32 v14, 144")
    a("v_cndmask_b32 v12, v14, v13, vcc")
    a(f"v_add_u32 v{LA1}, v{LA0}, v12")
    ACC = 16
    def acc(rt, t): return ACC + 4 * (7 * rt + t)
    a(f"v_mov_b32 v9, {hexf(ONE_EPS)}")
    a("v_cmp_eq_u32 vcc, 1, v3")
    a("v_cndmask_b32 v10, v9, 0, vcc" .replace("v_cndmask_b32 v10, v9, 0, vcc", "v_cndmask_b32_e64 v10, v9, 0, vcc"))
    for rt in range(3):
        for t in range(7):
            src = "0" if t in (2, 3) else ("v10" if t == 6 else "v9")
            for i in range(4): a(f"v_mov_b32 v{acc(rt,t)+i}, {src}")
    F = [100, 140]
    for i in range(40): a(f"v_mov_b32 v{F[1]+i}, 0")
    woff = [0, 40, 144, 184]
    def reads(kk):
        f = F[kk]; L = []
        def w(t):
            for h in range(2):
                if t < 4: ad, o = WA, (32*kk + 16*h) * 288 + woff[t]
                elif t < 6: ad, o = WA, (64 + 16*h) * 288 + 144*kk + woff[t-4]
                else: ad, o = (LA0, LA1)[kk], 16*h*288
                L.append(f"ds_read_b64_tr_b16 v[{f+12+4*t+2*h}:{f+12+4*t+2*h+1}], v{ad} offset:{o}")
        for rt in range(3): L.append(f"ds_read_b128 v[{f+4*rt}:{f+4*rt+3}], v{(XA0,XA1)[kk]} offset:{2048*rt}")
        for t in range(7): w(t)
        return L
    def mfmas(kk):
        f = F[kk]
        return [f"v_mfma_f32_16x16x32_bf16 v[{acc(rt,t)}:{acc(rt,t)+3}], v[{f+12+4*t}:{f+15+4*t}], v[{f+4*rt}:{f+4*rt+3}], v[{acc(rt,t)}:{acc(rt,t)+3}]"
                for t in range(7) for rt in range(3)]
    def inter(M, R):
        for k, m in enumerate(M):
            if k < len(R): a(R[k])
            a(m)
    a(f"s_mov_b32 s40, {hexf(LOG2E)}\ns_mov_b32 s41, s40")
    a(f"v_mov_b32 v250, {hexf(-ONE_EPS*LOG2E)}\nv_mov_b32 v251, v250")
    a(f"v_mov_b32 v252, {hexf(EPS)}\nv_mov_b32 v253, v252")
    a("s_mov_b32 s37, 0")
    a("s_waitcnt lgkmcnt(0)")
    srd(a, SWS, 28, WS_SZ); srd(a, SDB, 26, 256); srd(a, SWO, 22, 663552)
    stamp(1)
    a("L_gloop:")
    a("s_barrier")
    if "nocomp" not in DBG:
        nm = (lambda L: ["s_nop 3"] * len(L)) if "nomfma" in DBG else (lambda L: L)
        inter(nm(mfmas(1)), reads(0) if "noread" not in DBG else [])
        a("s_waitcnt lgkmcnt(0)")
        inter(nm(mfmas(0)), reads(1) if "noread" not in DBG else [])
    a("s_add_u32 s37, s37, 1")
    a("s_bitcmp1_b32 0x48, s37")
    a(f"s_cselect_b32 s38, {-(NS-1)*SLOT & 0xffffffff}, s39")
    a("s_waitcnt lgkmcnt(0)")
    for r in (XA0, XA1, WA, LA0, LA1): a(f"v_add_u32 v{r}, s38, v{r}")
    a("s_cmp_lt_u32 s37, 9")
    a("s_cbranch_scc1 L_gloop")
    a("s_barrier")
    for m in mfmas(1): a(m)
    stamp(2)
    a("v_mul_u32_u24 v4, 160, v2")
    a("v_lshl_add_u32 v4, v3, 3, v4")
    a(f"s_mul_i32 s37, s36, {96*160}")
    a(f"s_mul_i32 s38, s35, {48*160}")
    a("s_add_u32 s37, s37, s38")
    a(f"s_add_u32 s37, s37, {EX}")
    a("v_add_u32 v4, s37, v4")
    a("s_mul_i32 s38, s33, 6")
    a("s_mul_i32 s39, s35, 3")
    a("s_add_u32 s38, s38, s39")
    a("v_cmp_eq_u32 s[98:99], 1, v3")
    a("v_cmp_eq_u32 s[100:101], 3, v3")
    P = 100
    for rt in range(3):
        for t in (0, 1):
            d = P + 2 * (2*rt + t)
            phi4(a, acc(rt, t), 120 + 4*t, d)
            a(f"ds_write_b64 v4, v[{d}:{d+1}] offset:{rt*16*160 + 32*t}")
        for t in (2, 3):
            d = 112 + 2 * (t - 2) + 4 * (rt % 2)
            a(f"v_cvt_pk_bf16_f32 v{d}, v{acc(rt,t)}, v{acc(rt,t)+1}")
            a(f"v_cvt_pk_bf16_f32 v{d+1}, v{acc(rt,t)+2}, v{acc(rt,t)+3}")
            a(f"ds_write_b64 v4, v[{d}:{d+1}] offset:{rt*16*160 + 32*t}")
        phi4(a, acc(rt, 6), 128, None)
        a(f"s_add_u32 s39, s38, {rt}")
        a("s_cmp_lt_u32 s39, 128")
        a("s_cselect_b32 s39, 0x3f803f80, 0")
        a("v_mov_b32 v132, s39")
        for i in range(4): a(f"v_cndmask_b32 v{128+i}, v{128+i}, v{acc(rt,6)+i}, s[98:99]")
        d = 134 + 2 * rt
        a(f"v_cvt_pk_bf16_f32 v{d}, v128, v129")
        a(f"v_cvt_pk_bf16_f32 v{d+1}, v130, v131")
        a(f"v_cndmask_b32 v{d}, v{d}, v132, s[100:101]")
        a(f"v_cndmask_b32 v{d+1}, v{d+1}, v132, s[100:101]")
        a(f"ds_write_b64 v4, v[{d}:{d+1}] offset:{rt*16*160 + 128}")
    a("s_waitcnt lgkmcnt(0)")
    a("s_barrier")
    stamp(3)
    a("v_lshlrev_b32 v5, 4, v1")
    a("v_lshlrev_b32 v6, 3, v2")
    a(f"v_mov_b32 v7, {OOB}")
    a("v_cmp_eq_u32 vcc, 2, v3")
    a("v_cndmask_b32 v6, v7, v6, vcc")
    a("s_lshl_b32 s38, s38, 4")
    a("s_lshl_b32 s39, s32, 1")
    a("s_add_u32 s38, s38, s39")
    a("s_add_u32 s38, s38, s36")
    for rt in range(3):
        d = 140 + 4 * rt
        phi4(a, acc(rt, 4), 120, d)
        phi4(a, acc(rt, 5), 124, d + 2)
        a(f"s_cmp_ge_u32 s38, {2048 - 16*rt}")
        a("s_cbranch_scc1 L_bq_done")
        a(f"s_add_u32 s39, s38, {16*rt}")
        a("s_lshl_b32 s37, s39, 10")
        a(f"s_add_u32 s37, s37, {PQ}")
        a("s_lshl_b32 s39, s39, 7")
        a(f"s_add_u32 s39, s39, {PQL}")
        a(f"buffer_store_dwordx4 v[{d}:{d+3}], v5, s[{SWS}:{SWS+3}], s37 offen sc1")
        a(f"buffer_store_dwordx2 v[{134+2*rt}:{135+2*rt}], v6, s[{SWS}:{SWS+3}], s39 offen sc1")
    a("L_bq_done:")
    stamp(4)
    a("L_bjoin:")
    a("s_waitcnt vmcnt(0)")
    stamp(5)
    a("s_barrier")
    a("s_cmp_lg_u32 s31, 0")
    a("s_cbranch_scc1 L_nosig")
    a("v_lshlrev_b32 v4, 10, v1")
    a("s_lshl_b32 s37, s32, 7")
    a(f"s_add_u32 s37, s37, {CNT}")
    a("v_mov_b32 v5, 1")
    a("s_mov_b64 exec, 0xff")
    a(f"buffer_atomic_add v5, v4, s[{SWS}:{SWS+3}], s37 offen")
    a("s_mov_b64 exec, -1")
    a("L_nosig:")
    if do_p3: phase3(a, stamp)

def phase3(a, stamp):
    a.c("---------------- phase 3 ----------------")
    a("s_cmp_ge_u32 s43, 20")
    a("s_cbranch_scc1 L_fin")
    a("s_mov_b32 s33, s97")
    a("s_lshl_b32 s34, s42, 2")
    a("s_add_u32 s32, s96, s34")
    a("s_lshr_b32 s34, s31, 2")
    a("s_and_b32 s35, s31, 3")
    a("s_and_b32 s36, s31, 1")
    a("s_lshl_b32 s37, s36, 3")
    a("v_lshl_add_u32 v4, v3, 1, s37")
    a("v_xor_b32 v4, v4, v2")
    a("s_lshl_b32 s37, s33, 8")
    a("v_lshl_add_u32 v4, v4, 4, s37")
    a("s_lshl_b32 s38, s31, 10")
    a("s_mul_i32 s37, s34, 144")
    a("s_mul_i32 s39, s35, 18")
    a("s_add_u32 s37, s37, s39")
    a("s_lshl_b32 s39, s36, 4")
    a("s_sub_u32 s37, s37, s39")
    a("s_add_u32 s37, s37, 16")
    a("v_lshrrev_b32 v6, 1, v3")
    a("v_mul_u32_u24 v6, 72, v6")
    a("v_and_b32 v7, 1, v3")
    a("v_add3_u32 v6, v6, v7, s37")
    a("v_mul_u32_u24 v6, 1152, v6")
    a("v_add_u32 v6, v6, v4")
    for s in (16, 17):
        a(f"s_add_u32 m0, s38, {8192*s}")
        a(f"s_mov_b32 s39, {288*1152*(s-16)}")
        a(f"buffer_load_dwordx4 v6, s[{SWO}:{SWO+3}], s39 offen lds")
    a("s_lshr_b32 s35, s31, 1")
    a("v_lshrrev_b32 v4, 2, v2")
    a("v_lshl_add_u32 v4, v3, 2, v4")
    a("v_and_b32 v5, 7, v4")
    a("v_lshlrev_b32 v5, 1, v5")
    a("v_bfe_u32 v6, v2, 1, 1")
    a("s_lshl_b32 s37, s35, 2")
    a("v_add_u32 v6, s37, v6")
    a("v_xor_b32 v5, v5, v6")
    a("v_lshlrev_b32 v4, 8, v4")
    a("v_lshl_add_u32 v4, v5, 4, v4")
    a("v_and_b32 v5, 1, v2")
    a("v_lshl_add_u32 v4, v5, 3, v4")
    a("v_xor_b32 v5, 32, v4")
    WOF = 112
    stamp(6)
    def wotr(s, ar):
        for t in range(2):
            for h in range(2):
                r = WOF + 8*s + 4*t + 2*h
                a(f"ds_read_b64_tr_b16 v[{r}:{r+1}], v{ar+t} offset:{8192*(s%8) + 4096*h}")
    for s in range(16):
        if s == 8: a("v_add_u32 v4, 0x10000, v4\nv_add_u32 v5, 0x10000, v5")
        wotr(s, 4)
    a("v_add_u32 v0, 0x10000, v4")
    a(f"v_mov_b32 v8, {OOB}")
    a("v_lshlrev_b32 v9, 4, v1")
    a(f"s_mul_i32 s37, s31, {2*PAIRB}")
    a("v_lshlrev_b32 v6, 4, v2")
    a("v_cmp_eq_u32 s[98:99], 0, v3")
    a("v_cmp_eq_u32 s[100:101], 1, v3")
    a("v_cndmask_b32 v10, v8, v6, s[98:99]")
    a("v_cndmask_b32 v11, v8, v6, s[100:101]")
    a("v_and_b32 v6, 3, v2")
    a("v_bfe_u32 v7, v2, 2, 1")
    a("v_lshl_add_u32 v7, v7, 1, v6")
    a("v_cmp_gt_u32 vcc, 2, v6")
    a("v_cndmask_b32 v7, v7, v6, vcc")
    a("v_lshlrev_b32 v12, 4, v3")
    a("v_lshl_add_u32 v12, v7, 6, v12")
    a("v_lshlrev_b32 v14, 3, v7")
    a("v_cmp_gt_u32 s[94:95], 8, v2")
    a("s_or_b64 s[96:97], s[94:95], vcc")
    a("s_orn2_b64 vcc, vcc, s[94:95]")
    a("v_cndmask_b32 v13, v8, v12, vcc")
    a("v_cndmask_b32 v12, v8, v12, s[96:97]")
    a("s_and_b64 vcc, vcc, s[100:101]")
    a("s_and_b64 s[96:97], s[96:97], s[98:99]")
    a("v_cndmask_b32 v15, v8, v14, vcc")
    a("v_cndmask_b32 v14, v8, v14, s[96:97]")
    a("v_cmp_eq_u32 vcc, 1, v7")
    a("v_cmp_lt_u32 s[94:95], 3, v7")
    a("s_or_b64 s[94:95], s[94:95], vcc")
    a("v_lshlrev_b32 v6, 3, v2")
    a("v_lshl_add_u32 v6, v3, 7, v6")
    a("v_cmp_gt_u32 vcc, 2, v3")
    a("v_cndmask_b32 v7, v8, v6, vcc")
    a("s_lshl_b32 s38, s32, 6")
    a("s_lshl_b32 s39, s31, 1")
    a("s_add_u32 s38, s38, s39")
    a("s_lshl_b32 s39, s38, 7")
    a(f"s_add_u32 s39, s39, {PQL}")
    a("s_lshl_b32 s38, s38, 10")
    a(f"s_add_u32 s38, s38, {PQ}")
    a("s_waitcnt vmcnt(0) lgkmcnt(0)")
    stamp(7)
    a("s_cmp_lg_u32 s31, 0")
    a("s_cbranch_scc1 L_pw")
    a("v_lshlrev_b32 v4, 7, v1")
    a("s_lshl_b32 s34, s42, 10")
    a(f"s_add_u32 s34, s34, {CNT}")
    a("s_mov_b64 exec, 0xff")
    a("s_mov_b32 s3, 0")
    a("L_poll:")
    a(f"buffer_load_dword v5, v4, s[{SWS}:{SWS+3}], s34 offen sc1")
    a("s_add_u32 s3, s3, 1")
    a("s_waitcnt vmcnt(0)")
    a("v_cmp_gt_u32 vcc, 22, v5")
    a("s_cmp_ge_u32 s3, 0x10000")
    a("s_cbranch_scc1 L_pd")
    a("s_cbranch_vccnz L_poll")
    a("L_pd:")
    a("s_mov_b64 exec, -1")
    a("L_pw:")
    a("s_barrier")
    stamp(8)
    AM = [16, 20, 24, 28]
    AX = [32, 36, 40, 44]
    TLD = [48, 52]
    PQR = 56
    W = f"s[{SWS}:{SWS+3}]"
    for c in range(2):
        o = c * PAIRB
        a(f"buffer_load_dwordx4 v[{AM[2*c]}:{AM[2*c]+3}], v9, {W}, s37 offen offset:{o} sc1")
        a(f"buffer_load_dwordx4 v[{AM[2*c+1]}:{AM[2*c+1]+3}], v9, {W}, s37 offen offset:{o+O_MMB} sc1")
        if c == 1: a(f"s_add_u32 s37, s37, {PAIRB}")
        a(f"buffer_load_dwordx4 v[{TLD[c]}:{TLD[c]+3}], v{10+c}, {W}, s37 offen offset:{O_LD} sc1")
        a(f"buffer_load_dwordx4 v[{AX[2*c]}:{AX[2*c]+3}], v{12+c}, {W}, s37 offen offset:{O_XM} sc1")
        a(f"buffer_load_dwordx2 v[{AX[2*c+1]}:{AX[2*c+1]+1}], v{14+c}, {W}, s37 offen offset:{O_XL} sc1")
    def pql(rt):
        b = PQR + 14 * rt
        a(f"buffer_load_dwordx4 v[{b+2}:{b+5}], v9, {W}, s38 offen sc1")
        a(f"buffer_load_dwordx4 v[{b+8}:{b+11}], v9, {W}, s38 offen offset:1024 sc1")
        a(f"buffer_load_dwordx2 v[{b+6}:{b+7}], v7, {W}, s39 offen sc1")
        if rt < 3: a("s_add_u32 s38, s38, 16384\ns_add_u32 s39, s39, 2048")
    pql(0)
    a("s_waitcnt vmcnt(8)")
    pql(1); pql(2); pql(3)
    a("s_lshl_b32 s34, s31, 11")
    a("v_add_u32 v10, s34, v9")
    a("s_lshr_b32 s34, s31, 2")
    a("s_lshl_b32 s34, s34, 10")
    a("s_and_b32 s3, s31, 3")
    a("s_lshl_b32 s3, s3, 2")
    a("s_add_u32 s34, s34, s3")
    a(f"s_add_u32 s34, s34, {16*1024}")
    a("v_add_u32 v11, s34, v9")
    a("v_and_b32 v6, 1, v3")
    a("v_cmp_eq_u32 s[98:99], 1, v6")
    a("v_cmp_lt_u32 s[100:101], 1, v3")
    a("s_waitcnt vmcnt(12)")
    stamp(9)
    a(f"v_mov_b32 v12, {hexf(EPS)}\nv_mov_b32 v13, v12\nv_mov_b32 v14, 0\nv_mov_b32 v15, 0")
    for c in range(2):
        ma, mb, xa, xb, t = AM[2*c], AM[2*c+1], AX[2*c], AX[2*c+1], TLD[c]
        a(f"v_cvt_pk_bf16_f32 v{ma+3}, v{ma+2}, v{ma+3}")
        a(f"v_cvt_pk_bf16_f32 v{ma+2}, v{ma}, v{ma+1}")
        a(f"v_cvt_pk_bf16_f32 v{ma}, v{t}, v{t+1}")
        a(f"v_mov_b32 v{ma+1}, 0")
        a(f"v_cvt_pk_bf16_f32 v{mb}, v{mb}, v{mb+1}")
        a(f"v_cvt_pk_bf16_f32 v{mb+1}, v{mb+2}, v{mb+3}")
        a(f"v_mov_b32 v{mb+2}, 0")
        a(f"v_cvt_pk_bf16_f32 v{mb+3}, v{t+2}, v{t+3}")
        a(f"v_cvt_pk_bf16_f32 v{t}, v{xa}, v{xa+1}")
        a(f"v_cvt_pk_bf16_f32 v{t+1}, v{xa+2}, v{xa+3}")
        a(f"v_cvt_pk_bf16_f32 v{t+2}, v{xb}, v{xb+1}")
        a(f"v_cndmask_b32 v{xa}, v{t+2}, 0, s[94:95]")
        a(f"v_mov_b32 v{xa+1}, 0")
        a(f"v_cndmask_b32 v{xa+2}, v{t}, 0, s[94:95]")
        a(f"v_cndmask_b32 v{xa+3}, v{t+1}, 0, s[94:95]")
        a(f"v_cndmask_b32 v{xb}, 0, v{t}, s[94:95]")
        a(f"v_cndmask_b32 v{xb+1}, 0, v{t+1}, s[94:95]")
        a(f"v_mov_b32 v{xb+2}, 0")
        a(f"v_cndmask_b32 v{xb+3}, 0, v{t+2}, s[94:95]")
    def mf(d, x, y, c): a(f"v_mfma_f32_16x16x32_bf16 v[{d}:{d+3}], v[{x}:{x+3}], v[{y}:{y+3}], {c}")
    def regs(rt): return (PQR + 14 * rt, (48, 240)[rt % 2], (52, 244)[rt % 2], (4, 248)[rt % 2])
    def M(rt):
        b, X0, X1, D0 = regs(rt)
        a(f"s_waitcnt vmcnt({9-3*rt})")
        a(f"v_mov_b32 v{b}, v{b+6}\nv_mov_b32 v{b+1}, v{b+7}\nv_mov_b32 v{b+12}, v{b+6}\nv_mov_b32 v{b+13}, v{b+7}")
        ops = [b, b+4, b+6, b+10]
        mf(X0, AX[1], ops[1], "v[12:15]"); mf(X1, AX[2], ops[2], "v[12:15]")
        mf(X0, AX[0], ops[0], f"v[{X0}:{X0+3}]"); mf(X1, AX[3], ops[3], f"v[{X1}:{X1+3}]")
        mf(D0, AM[0], ops[0], "0")
        mf(b, AM[1], ops[1], "0")
        mf(b+6, AM[2], ops[2], "0")
        mf(b+10, AM[3], ops[3], "0")
    def V(rt):
        b, X0, X1, D0 = regs(rt)
        for x in (X0, X1):
            a(f"v_rcp_f32 v{x}, v{x}\nv_rcp_f32 v{x+1}, v{x+1}")
        a(f"v_pk_add_f32 v[{X0+2}:{X0+3}], v[{X0+2}:{X0+3}], v[{X1+2}:{X1+3}]")
        for d, rc in ((D0, X0), (b, X0+1), (b+6, X1), (b+10, X1+1)):
            sel = "op_sel:[0,0] op_sel_hi:[1,0]" if rc % 2 == 0 else "op_sel:[0,1] op_sel_hi:[1,1]"
            rp = rc & ~1
            a(f"v_pk_mul_f32 v[{d}:{d+1}], v[{d}:{d+1}], v[{rp}:{rp+1}] {sel}")
            a(f"v_pk_mul_f32 v[{d+2}:{d+3}], v[{d+2}:{d+3}], v[{rp}:{rp+1}] {sel}")
        a(f"v_cvt_pk_bf16_f32 v{D0}, v{D0}, v{D0+1}\nv_cvt_pk_bf16_f32 v{D0+1}, v{D0+2}, v{D0+3}")
        a(f"v_cvt_pk_bf16_f32 v{D0+2}, v{b}, v{b+1}\nv_cvt_pk_bf16_f32 v{D0+3}, v{b+2}, v{b+3}")
        a(f"ds_write_b128 v10, v[{D0}:{D0+3}] offset:{rt*18*1024}")
        a(f"v_cvt_pk_bf16_f32 v{b+6}, v{b+6}, v{b+7}\nv_cvt_pk_bf16_f32 v{b+7}, v{b+8}, v{b+9}")
        a(f"v_cvt_pk_bf16_f32 v{b+8}, v{b+10}, v{b+11}\nv_cvt_pk_bf16_f32 v{b+9}, v{b+12}, v{b+13}")
        a(f"ds_write_b128 v10, v[{b+6}:{b+9}] offset:{rt*18*1024+1024}")
        a(f"v_cndmask_b32 v{X1+2}, v{X0}, v{X0+1}, s[98:99]")
        a(f"v_cndmask_b32 v{X1+3}, v{X1}, v{X1+1}, s[98:99]")
        a(f"v_cndmask_b32 v{X1+2}, v{X1+2}, v{X1+3}, s[100:101]")
        a(f"v_pk_mul_f32 v[{X0+2}:{X0+3}], v[{X0+2}:{X0+3}], v[{X1+2}:{X1+3}] op_sel:[0,0] op_sel_hi:[1,0]")
        a(f"v_cvt_pk_bf16_f32 v{b}, v{X0+2}, v{X0+3}")
        a(f"ds_write_b32 v11, v{b} offset:{rt*18*1024}")
    M(0); M(1); V(0); M(2); V(1); M(3); V(2); V(3)
    a(f"s_mul_i32 s34, s36, {36*1024}")
    a("v_add_u32 v10, s34, v9")
    a("s_lshl_b32 s34, s32, 6")
    a("s_lshl_b32 s3, s36, 5")
    a("s_add_u32 s34, s34, s3")
    a("v_add_u32 v11, s34, v2")
    a("s_movk_i32 s34, 2304")
    a("v_mul_lo_u32 v11, v11, s34")
    a("v_and_b32 v12, 1, v3")
    a("v_lshl_add_u32 v11, v12, 5, v11")
    a("v_lshrrev_b32 v12, 1, v3")
    a("v_lshl_add_u32 v11, v12, 4, v11")
    a("s_lshl_b32 s34, s33, 8")
    a("s_lshl_b32 s3, s35, 6")
    a("s_add_u32 s34, s34, s3")
    a("s_add_u32 s3, s34, 1152")
    a("v_add_u32 v11, s3, v11")
    a("v_xor_b32 v1, 32, v0")
    a("s_waitcnt lgkmcnt(0)")
    wotr(16, 0); wotr(17, 0)
    a("s_barrier")
    stamp(10)
    a("s_cmp_ge_u32 s34, 1152")
    a("s_cbranch_scc1 L_fin")
    OA = 16
    OF = 32
    NB = 8
    def rd(s): return [f"ds_read_b128 v[{OF+8*(s%NB)+4*rt}:{OF+8*(s%NB)+4*rt+3}], v10 offset:{(rt*18+s)*1024}" for rt in range(2)]
    LA = 6
    for s in range(LA):
        for x in rd(s): a(x)
    for s in range(18):
        rem = min(LA - 1, 17 - s)
        a(f"s_waitcnt lgkmcnt({2*rem})")
        nx = rd(s + LA) if s + LA < 18 else []
        k = 0
        for rt in range(2):
            for t in range(2):
                d = OA + 8*rt + 4*t
                mf(d, WOF + 8*s + 4*t, OF + 8*(s%NB) + 4*rt, "0" if s == 0 else f"v[{d}:{d+3}]")
                if k < len(nx): a(nx[k]); k += 1
    stamp(11)
    for rt in range(2):
        d = OA + 8*rt; p = 32 + 4*rt
        for k in range(4): a(f"v_cvt_pk_bf16_f32 v{p+k}, v{d+2*k}, v{d+2*k+1}")
        a(f"v_permlane16_swap_b32 v{p}, v{p+2}")
        a(f"v_permlane16_swap_b32 v{p+1}, v{p+3}")
        a(f"global_store_dwordx4 v11, v[{p}:{p+3}], s[24:25]")
        if rt == 0: a(f"v_add_u32 v11, {16*2304}, v11")
    stamp(12)
```

```python
import sys
from asmlib import *
import hazard
from gen_a import *
from gen_b import *

NST = 15
STAMP_OFF = 200 << 20
def build(stamps=False, do_a=True, do_b=True, do_p3=True):
    a = Asm()
    sbase = 64
    def stamp(i):
        if stamps: a(f"s_memrealtime s[{sbase+2*i}:{sbase+2*i+1}]")
    stamp(0)
    a("s_load_dwordx16 s[4:19], s[0:1], 0")
    a("s_load_dwordx8 s[20:27], s[0:1], 64")
    a("s_load_dwordx2 s[28:29], s[0:1], 96")
    a("s_cmp_ge_u32 s2, 256")
    a("s_cbranch_scc1 L_end")
    a("v_and_b32 v1, 63, v0")
    a("v_lshrrev_b32 v2, 6, v0")
    a("s_and_b32 s42, s2, 7")
    a("s_lshr_b32 s43, s2, 3")
    a("v_readfirstlane_b32 s31, v2")
    a(f"s_mov_b32 s39, {SLOT}")
    a("s_cmp_ge_u32 s43, 22")
    a("s_cbranch_scc1 L_notb")
    if do_b: role_b(a, stamp, do_p3)
    a("s_branch L_fin")
    a("L_notb:")
    a("s_cmp_lt_u32 s43, 31")
    a("s_cbranch_scc1 L_rolea")
    a("s_cmp_lg_u32 s42, 0")
    a("s_cbranch_scc1 L_end")
    role_zero(a)
    a("L_rolea:")
    if do_a:
        a("s_lshl_b32 s30, s42, 3")
        a("s_add_u32 s30, s30, s43")
        a("s_sub_u32 s30, s30, 22")
        a("s_add_u32 s33, s42, 64")
        a("s_cmp_eq_u32 s43, 30")
        a("s_cselect_b32 s30, s33, s30")
        role_a(a, stamp)
    a("L_fin:")
    if stamps:
        a("s_waitcnt vmcnt(0)")
        stamp(NST - 1)
        a("s_waitcnt lgkmcnt(0)")
        a("s_mov_b64 exec, 1")
        a("s_lshl_b32 s3, s31, 8")
        a("s_add_u32 s3, s3, s2")
        a(f"s_mul_i32 s3, s3, {8*NST}")
        a(f"s_add_u32 s3, s3, {STAMP_OFF}")
        a("v_mov_b32 v2, s3")
        for i in range(NST):
            a(f"v_mov_b32 v4, s{sbase+2*i}\nv_mov_b32 v5, s{sbase+2*i+1}")
            a(f"global_store_dwordx2 v2, v[4:5], s[28:29] offset:{8*i}")
    a("L_end:")
    a("s_endpgm")
    lines, n = hazard.fix(a.lines)
    print("nops inserted:", n, "lines", len(lines), file=sys.stderr)
    k = kernel_wrap(KN + "_kernel", "\n".join(lines), 256, 102, extra="  .amdhsa_float_denorm_mode_32 3\n")
    return make_file([f"; @launch grid=(256,1,1) block=(512,1,1) lds={B_LDS}"], [k])
if __name__ == "__main__":
    out = sys.argv[1]
    open(out, "w").write(build(stamps="--stamps" in sys.argv, do_a="--noa" not in sys.argv, do_p3="--nop3" not in sys.argv))
```

```python
import math, os
STA = os.environ.get("STA", "")
LOG2E = 1.4426950408889634
import struct
def f2u(x): return struct.unpack("<I", struct.pack("<f", x))[0]
def hexf(x): return "0x%08x" % f2u(x)
L2E_HI = struct.unpack("<f", struct.pack("<f", LOG2E))[0]
L2E_LO = LOG2E - L2E_HI

USTR = 4672
KBASE = 8 * USTR
KSTR = 8704
EOFF = 2112
YSTR = 4160
GROW = 544
USTG = KBASE + 8 * KSTR
A_LDS = USTG + 8 * YSTR

STREAMS = [(-24, 16, 2), (-16, 4, 1), (-16, 8, 2), (-16, 12, 1), (-24, 16, 4), (-16, 8, 3)]
BAND = 224
CUTS = [3, 6]
def role_a(a, stamp=lambda i: None, pf=None):
    a.c("---------------- role A ----------------")
    a("s_lshl_b32 s32, s30, 3")
    a("s_add_u32 s32, s32, s31")
    a("s_lshl_b32 s33, s32, 8")
    a("v_lshl_add_u32 v2, v1, 2, s33")
    a("s_lshl_b32 s33, s32, 1")
    a("v_mov_b32 v3, s33")
    if pf: pf[0](a, 252, 253)
    a("s_waitcnt lgkmcnt(0)")
    a("global_load_dword v10, v2, s[6:7]")
    a("global_load_ushort v14, v3, s[14:15]")
    a("global_load_dword v11, v2, s[8:9]")
    a("global_load_dword v12, v2, s[10:11]")
    a("global_load_dword v13, v2, s[12:13]")
    a("global_load_ushort v15, v3, s[16:17]")
    a("v_mul_u32_u24 v4, 1152, v0")
    a("s_lshl_b32 s33, s30, 4")
    a("v_add_u32 v4, s33, v4")
    a("s_mov_b64 s[44:45], s[4:5]\ns_mov_b32 s46, 2359296\ns_mov_b32 s47, 0x20000")
    a("s_lshl_b32 s48, s31, 10")
    a(f"s_add_u32 s48, s48, {USTG}")
    a("s_mov_b32 s49, s43")
    def uload(j):
        a("s_and_b32 s49, s49, 3")
        a("s_lshl_b32 s3, s49, 13")
        a("s_add_u32 m0, s48, s3")
        a(f"s_mul_i32 s3, s49, {512*1152}")
        a("s_add_u32 s49, s49, 1")
        a("buffer_load_dwordx4 v4, s[44:47], s3 offen lds")
    if pf: pf[1](a); pf[2](a, 252, 253)
    else: uload(0)
    a("v_and_b32 v5, 15, v1")
    a("v_lshrrev_b32 v6, 4, v1")
    a(f"s_mul_i32 s34, s31, {KSTR}")
    a(f"s_add_u32 s34, s34, {KBASE}")
    a(f"s_mul_i32 s35, s31, {USTR}")
    a("v_lshl_add_u32 v7, v1, 3, s34")
    a(f"v_mul_u32_u24 v8, {GROW}, v5")
    a("v_lshl_add_u32 v8, v6, 4, v8")
    a("v_add_u32 v8, s34, v8")
    a("v_mov_b32 v16, 0\nv_mov_b32 v17, 0")
    a("v_lshl_add_u32 v9, v1, 3, s35")
    a("ds_write_b64 v9, v[16:17]")
    a(f"s_mov_b32 s36, {hexf(L2E_HI)}")
    a(f"s_mov_b32 s37, {hexf(L2E_LO)}")
    a(f"s_mov_b32 s38, {hexf(math.log(2.0))}")
    a("s_mov_b32 s39, 0xffff0000")
    a("v_lshlrev_b32 v20, 3, v6")
    a("v_sub_u32 v20, v20, v5")
    a("v_add_u32 v21, 1, v20")
    a("s_mov_b32 s40, 0x05040100")
    a("v_perm_b32 v20, v21, v20, s40")
    a("s_mov_b32 s41, 0x3f803f80")
    a("s_mov_b32 s50, 0x00010001")
    for k, (start, sh, hw) in enumerate(STREAMS + [None]) if False else []: pass
    rng = [(-st - sh - hw, -st - sh + hw) for (st, sh, hw) in STREAMS] + [(12, 13)]
    for k, (lo, hi) in enumerate(rng):
        n = hi - lo + 1
        a(f"s_mov_b32 s51, {hex(n * 0x10001)}")
        for d in range(4):
            r = BAND + 4 * k + d
            c = (2 * d - lo) & 0xffff
            a(f"s_mov_b32 s52, {hex(c * 0x10001)}")
            a(f"v_pk_add_u16 v{r}, v20, s52")
            a(f"v_pk_sub_u16 v{r}, s51, v{r} clamp")
            a(f"v_pk_min_u16 v{r}, v{r}, s50")
            if k < 6: a(f"v_pk_mul_lo_u16 v{r}, v{r}, s41")
    stamp(1)
    def exp_bf16(dst, x, t0, t1):
        a(f"v_mul_f32 v{t0}, s36, v{x}")
        a(f"v_fma_f32 v{t1}, v{x}, s36, -v{t0}")
        a(f"v_fmac_f32 v{t1}, s37, v{x}")
        a(f"v_exp_f32 v{t0}, v{t0}")
        a(f"v_mul_f32 v{t1}, s38, v{t1}")
        a(f"v_fma_f32 v{t0}, v{t0}, v{t1}, v{t0}")
        a(f"v_cvt_pk_bf16_f32 v{t0}, v{t0}, v{t0}")
        a(f"v_and_b32 v{dst}, s39, v{t0}")
    a("s_waitcnt vmcnt(5)")
    a("v_lshlrev_b32 v20, 16, v10")
    a("v_and_b32 v21, s39, v10")
    a("v_lshlrev_b32 v14, 16, v14")
    exp_bf16(18, 14, 22, 23)
    exp_bf16(20, 20, 22, 23)
    exp_bf16(21, 21, 24, 25)
    a("v_mul_f32 v20, v20, v18\nv_mul_f32 v21, v21, v18")
    a("v_mul_f32 v20, s36, v20\nv_mul_f32 v21, s36, v21")
    a("s_waitcnt vmcnt(1)")
    if pf: pf[2](a, 252, 254)
    else: uload(1)
    a("v_lshlrev_b32 v22, 16, v11\nv_and_b32 v23, s39, v11")
    a("v_mul_f32 v22, v22, v18\nv_mul_f32 v23, v23, v18")
    a("v_mul_f32 v22, 0.15915494, v22\nv_mul_f32 v23, 0.15915494, v23")
    a("v_add_f32 v19, v18, v18")
    C = 24
    a("v_lshlrev_b32 v24, 16, v12\nv_and_b32 v25, s39, v12")
    a("v_lshlrev_b32 v26, 16, v13\nv_and_b32 v27, s39, v13")
    a("v_mul_f32 v24, v24, v19\nv_mul_f32 v25, v25, v19")
    a("v_mul_f32 v26, v26, -v19\nv_mul_f32 v27, v27, -v19" .replace("v_mul_f32", "v_mul_f32_e64"))
    a("v_lshlrev_b32 v15, 16, v15")
    def direct(dst, c, conj):
        t = 60
        cs = hexf(float(c))
        for h in range(2):
            a(f"v_mul_f32 v{t+h}, {hexf(-float(c))}, v{20+h}")
            a(f"v_mul_f32 v{t+2+h}, {hexf(-float(c) if conj else float(c))}, v{22+h}")
        for h in range(2):
            a(f"v_exp_f32 v{t+h}, v{t+h}")
            a(f"v_fract_f32 v{t+2+h}, v{t+2+h}")
        for h in range(2):
            a(f"v_cos_f32 v{dst+h}, v{t+2+h}")
            a(f"v_sin_f32 v{dst+2+h}, v{t+2+h}")
        a(f"v_pk_mul_f32 v[{dst}:{dst+1}], v[{dst}:{dst+1}], v[{t}:{t+1}]")
        a(f"v_pk_mul_f32 v[{dst+2}:{dst+3}], v[{dst+2}:{dst+3}], v[{t}:{t+1}]")
    tcnt = [0]
    def cmul(d, z, w):
        t = 64 + 4 * (tcnt[0] % 2); tcnt[0] += 1
        assert d != z and d != w
        a(f"v_pk_mul_f32 v[{t}:{t+1}], v[{z+2}:{z+3}], v[{w+2}:{w+3}]")
        a(f"v_pk_mul_f32 v[{t+2}:{t+3}], v[{z+2}:{z+3}], v[{w}:{w+1}]")
        a(f"v_pk_fma_f32 v[{d}:{d+1}], v[{z}:{z+1}], v[{w}:{w+1}], v[{t}:{t+1}] neg_lo:[0,0,1] neg_hi:[0,0,1]")
        a(f"v_pk_fma_f32 v[{d+2}:{d+3}], v[{z}:{z+1}], v[{w+2}:{w+3}], v[{t+2}:{t+3}]")
    pcnt = [0]
    def emit(z, row):
        p = 72 + 2 * (pcnt[0] % 4); pcnt[0] += 1
        a(f"v_cvt_pk_bf16_f32 v{p}, v{z}, v{z+2}")
        a(f"v_cvt_pk_bf16_f32 v{p+1}, v{z+1}, v{z+3}")
        a(f"ds_write_b64 v7, v[{p}:{p+1}] offset:{row*GROW}")
    W16, W1, E256, W2, W4, W8 = 28, 32, 36, 40, 44, 48
    Z0, Z1, G0, G1 = 52, 56, 80, 84
    FA, FB = 96, 128
    ACC = 160
    direct(W16, 16, False)
    a("v_mov_b32 v72, 0x3f80\nv_mov_b32 v73, 0x3f80")
    a("ds_write_b64 v7, v[72:73]"); pcnt[0] = 1
    emit(W16, 1)
    cmul(Z0, W16, W16); emit(Z0, 2)
    z, o = Z0, Z1
    for i in range(3, 16):
        cmul(o, z, W16); emit(o, i); z, o = o, z
        if i == 6 and not pf: uload(2)
        if i == 8 and pf: pf[2](a, 252, 255)
    for s in range(8): a(f"ds_read_b128 v[{FA+4*s}:{FA+4*s+3}], v8 offset:{64*s}")
    direct(W1, 1, True)
    uload(3)
    direct(E256, 256, True)
    def tile_mfma(t):
        for s in range(8): a(f"ds_read_b128 v[{FB+4*s}:{FB+4*s+3}], v8 offset:{64*s}")
    def tile_mfma2(t, swap=False):
        a("s_waitcnt lgkmcnt(0)")
        for s in range(8):
            c = "0" if s == 0 else f"v[{ACC+4*t}:{ACC+4*t+3}]"
            x, y = (FA, FB) if swap else (FB, FA)
            a(f"v_mfma_f32_16x16x32_bf16 v[{ACC+4*t}:{ACC+4*t+3}], v[{x+4*s}:{x+4*s+3}], v[{y+4*s}:{y+4*s+3}], {c}")
    def utrans():
        a("v_bfe_u32 v200, v1, 2, 2")
        a("v_lshl_add_u32 v200, v6, 3, v200")
        a("v_bfe_u32 v201, v1, 1, 1")
        a("v_lshl_add_u32 v200, v201, 2, v200")
        a("v_lshlrev_b32 v200, 4, v200")
        a("v_and_b32 v201, 1, v1")
        a("v_lshl_add_u32 v200, v201, 3, v200")
        a("s_lshl_b32 s3, s31, 12")
        a(f"s_add_u32 s3, s3, {USTG}")
        a("v_add_u32 v200, s3, v200")
        a("v_and_b32 v201, 7, v1")
        a(f"v_mul_u32_u24 v201, {USTR}, v201")
        a("v_lshrrev_b32 v202, 3, v1")
        a("v_lshl_add_u32 v201, v202, 3, v201")
        a("s_lshl_b32 s3, s31, 9")
        a("v_add_u32 v201, s3, v201")
        a("s_sub_u32 s33, s43, 22")
        a("s_lshl_b32 s33, s33, 3")
        a("s_add_u32 s33, s33, s31")
        a("s_lshl_b32 s3, s33, 13")
        a("v_lshl_add_u32 v220, v1, 7, s3")
        a("s_lshl_b32 s3, s33, 10")
        a(f"s_add_u32 s3, s3, {4608*128}")
        a("v_and_b32 v221, 7, v1")
        a("v_lshl_add_u32 v221, v221, 7, s3")
        stamp(7)
        a("s_waitcnt vmcnt(0)")
        a("s_barrier")
        stamp(8)
        for i in range(8): a(f"ds_read_b64_tr_b16 v[{204+2*i}:{205+2*i}], v200 offset:{512*i}")
        a("global_load_dword v220, v220, s[22:23]")
        a("global_load_dword v221, v221, s[22:23]")
        for i in range(8):
            a(f"s_waitcnt lgkmcnt(7)")
            a(f"ds_write_b64 v201, v[{204+2*i}:{205+2*i}] offset:{512+64*i}")
        a("s_waitcnt lgkmcnt(0)")
        a("s_barrier")
    emit(C, 0)
    cmul(Z0, C, W1); emit(Z0, 1)
    z, o = Z0, Z1
    for j in range(2, 16):
        cmul(o, z, W1); emit(o, j); z, o = o, z
        if pf and j in (6, 13): uload(0)
    tile_mfma(0)
    cmul(W2, W1, W1); cmul(G0, C, E256); cmul(W4, W2, W2); cmul(Z0, G0, W2); cmul(W8, W4, W4)
    tile_mfma2(0)
    emit(G0, 0); emit(Z0, 1)
    cmul(G1, G0, E256)
    z, o = Z0, Z1
    for j in range(2, 8):
        cmul(o, z, W2); emit(o, j); z, o = o, z
        if pf and j == 4: uload(0)
    emit(G1, 8)
    tile_mfma(1)
    cmul(G0, G1, E256)
    cmul(Z0, G1, W4)
    cmul(Z1, Z0, W4)
    tile_mfma2(1)
    if not pf: utrans()
    emit(Z0, 1); emit(Z1, 2); cmul(Z0, Z1, W4); emit(Z0, 3); cmul(Z1, Z0, W4); emit(Z1, 0)
    cmul(G1, G0, E256)
    cmul(Z0, G0, W4); emit(Z0, 5); cmul(Z1, Z0, W4); emit(Z1, 6); cmul(Z0, Z1, W4); emit(Z0, 7); cmul(Z1, Z0, W4); emit(Z1, 4)
    g, og = G1, G0
    for h in range(4):
        cmul(Z0, g, W8)
        if h < 3: cmul(og, g, E256)
        emit(Z0, 8 + 2*h + 1)
        cmul(Z1, Z0, W8); emit(Z1, 8 + 2*h)
        g, og = og, g
    if pf: utrans()
    tile_mfma(2)
    stamp(2)
    T0, T1, T2 = ACC, ACC+4, ACC+8
    a("v_lshl_add_u32 v25, v1, 4, s34")
    a("v_mov_b64 v[18:19], v[16:17]")
    a("ds_write_b128 v25, v[16:19]")
    a("ds_write_b128 v25, v[16:19] offset:1024")
    a("ds_write_b128 v25, v[16:19] offset:2048")
    a("v_cmp_eq_u32 vcc, 0, v1")
    a("v_cndmask_b32 v15, 0, v15, vcc")
    a(f"v_add_f32 v{T0}, v{T0}, v15")
    a("v_lshlrev_b32 v20, 5, v5")
    a("v_sub_u32 v20, s34, v20")
    a(f"v_cvt_pk_bf16_f32 v64, v{T1+3}, v{T1+3}")
    a(f"v_cvt_pk_bf16_f32 v66, v{T1+2}, v{T1+2}")
    a(f"v_cvt_pk_bf16_f32 v69, v{T1}, v{T1}")
    a(f"v_cvt_pk_bf16_f32 v70, v{T1+2}, v{T1+1}")
    a("v_lshlrev_b32 v23, 4, v6")
    a("v_sub_u32 v23, v20, v23")
    a("v_lshlrev_b32 v24, 3, v6")
    a("v_sub_u32 v26, s34, v24")
    a("v_sub_u32 v24, v20, v24")
    a(f"v_cvt_pk_bf16_f32 v72, v{T0+3}, v{T0+2}")
    a(f"v_cvt_pk_bf16_f32 v73, v{T0+1}, v{T0}")
    a("s_mov_b32 exec_lo, 0\ns_mov_b32 exec_hi, 1")
    a(f"ds_write_b16 v20, v69 offset:{14*4+2}")
    a(f"ds_write_b32 v20, v69 offset:{15*4}")
    a(f"ds_write_b16 v20, v69 offset:{16*4}")
    a("s_mov_b32 exec_lo, -1\ns_mov_b32 exec_hi, 0")
    a(f"ds_write_b16 v23, v64 offset:{140*4+2}")
    a("ds_write2_b32 v23, v66, v70 offset0:141 offset1:142")
    a(f"ds_write_b32 v23, v69 offset:{143*4}")
    a(f"ds_write_b16 v23, v69 offset:{144*4}")
    a("s_mov_b64 exec, -1")
    a(f"ds_write_b64 v24, v[72:73] offset:{270*4}")
    a("v_and_b32 v27, 3, v5")
    a("v_mul_u32_u24 v27, 96, v27")
    a("v_bfe_u32 v28, v5, 2, 1")
    a("v_lshlrev_b32 v28, 5, v28")
    a("v_sub_u32 v27, v27, v28")
    a("v_and_b32 v28, 1, v5")
    a("v_mul_u32_u24 v28, 160, v28")
    a("v_bfe_u32 v29, v5, 1, 2")
    a("v_lshlrev_b32 v29, 5, v29")
    a("v_sub_u32 v28, v28, v29")
    a(f"v_add_u32 v28, {(406-294)*4}, v28")
    a("v_cmp_gt_u32 vcc, 8, v5")
    a("v_cndmask_b32 v27, v28, v27, vcc")
    a("v_add_u32 v27, v27, v26")
    a("s_waitcnt lgkmcnt(11)")
    for s_ in range(8):
        c = "0" if s_ == 0 else f"v[{T2}:{T2+3}]"
        a(f"v_mfma_f32_16x16x32_bf16 v[{T2}:{T2+3}], v[{FA+4*s_}:{FA+4*s_+3}], v[{FB+4*s_}:{FB+4*s_+3}], {c}")
    stamp(3)
    a("v_and_b32 v28, 1, v5")
    a(f"v_mul_u32_u24 v28, {EOFF}, v28")
    a("v_lshrrev_b32 v29, 1, v5")
    a("v_lshlrev_b32 v29, 2, v29")
    a("v_add_u32 v28, v28, v29")
    a("v_sub_u32 v28, s34, v28")
    a(f"v_add_u32 v28, {EOFF}, v28")
    a("v_lshl_add_u32 v10, v6, 4, v28")
    a(f"v_add_u32 v11, {128*4}, v10")
    a("v_lshl_add_u32 v12, v6, 3, v28")
    a(f"v_add_u32 v12, {256*4}, v12")
    a("v_lshlrev_b32 v13, 5, v5")
    a("v_lshl_add_u32 v14, v6, 3, v13")
    a("v_lshl_add_u32 v13, v6, 4, v13")
    a("v_add_u32 v13, s35, v13")
    a(f"s_mul_i32 s3, s31, {YSTR}")
    a(f"s_add_u32 s3, s3, {USTG}")
    a("v_add_u32 v14, s3, v14")
    a(f"v_cvt_pk_bf16_f32 v72, v{T2+3}, v{T2+2}")
    a(f"v_cvt_pk_bf16_f32 v73, v{T2+1}, v{T2}")
    a(f"ds_write_b64 v27, v[72:73] offset:{294*4}")
    for j in range(2):
        a(f"ds_read_b128 v[{96+8*j}:{99+8*j}], v25 offset:{1024*j}")
        a(f"ds_read_b32 v{100+8*j}, v25 offset:{1024*j+16}")
    a("v_readlane_b32 s3, v72, 52")
    a("s_and_b32 s3, s3, 0xffff")
    a("s_mul_i32 s3, s3, 0x10001")
    for d in range(4): a(f"v_pk_mul_lo_u16 v{BAND+24+d}, v{BAND+24+d}, s3")
    a("v_lshrrev_b32 v3, 2, v5")
    a(f"v_mul_u32_u24 v3, {YSTR}, v3")
    a("v_and_b32 v4, 3, v5")
    a("v_lshl_add_u32 v3, v4, 3, v3")
    a("v_lshl_add_u32 v3, v6, 5, v3")
    a(f"v_add_u32 v3, {USTG}, v3")
    a("v_mul_u32_u24 v4, 2304, v1")
    a("s_lshl_b32 s33, s30, 4")
    a("v_add_u32 v4, s33, v4")
    for j in range(2):
        a(f"s_waitcnt lgkmcnt({2-2*j})")
        for k in range(4):
            a(f"v_alignbit_b32 v{128+4*j+k}, v{97+8*j+k}, v{96+8*j+k}, 16")
        a(f"ds_write_b128 v25, v[{128+4*j}:{131+4*j}] offset:{EOFF+1024*j}")
    stamp(4)
    Y = 16
    TF = 48
    BF = 116
    UR = 156
    WT = 188
    YP = 212
    T65 = BAND + 24
    q_ = []
    def lds(txt, tag=None):
        a(txt); q_.append(tag)
    def need(tags):
        idx = max(i for i, t in enumerate(q_) if t in tags)
        n = len(q_) - 1 - idx
        if n < need.done:
            a(f"s_waitcnt lgkmcnt({min(n, 15)})")
        need.best = None
    done_upto = [-1]
    def wait_for(tags):
        idx = max(i for i, t in enumerate(q_) if t in tags)
        if idx > done_upto[0]:
            n = len(q_) - 1 - idx
            a(f"s_waitcnt lgkmcnt({min(n, 15)})")
            done_upto[0] = idx if n <= 15 else len(q_) - 1 - 15
    def tload(k):
        o = 271 - 8 * (2*k + 1)
        ad = 10
        if o >= 128: ad, o = 11, o - 128
        lds(f"ds_read2_b32 v[{TF+4*k}:{TF+4*k+1}], v{ad} offset0:{o} offset1:{o+1}", ("T", k))
        lds(f"ds_read2_b32 v[{TF+4*k+2}:{TF+4*k+3}], v{ad} offset0:{o+2} offset1:{o+3}", ("T", k))
    bfl = [(0, d) for d in (2, 3, 4)] + [(1, d) for d in (2, 3, 4)] + [(2, d) for d in (4, 5, 6, 7)]
    def bload(n):
        pr, dl = bfl[n]
        for hf in range(2):
            if pr < 2: o = 280 + 24 * (2*pr + hf) + 31 - 8 * dl
            else: o = 376 + 40 * hf + 63 - 8 * dl
            o -= 256
            lds(f"ds_read2_b32 v[{BF+4*n+2*hf}:{BF+4*n+2*hf+1}], v12 offset0:{o} offset1:{o+1}", ("B", n))
    useq = []
    for q in range(8):
        useq += ([(q, 'x')] if q < 6 else []) + [(q, r) for r in range(8)]
    upos = {u: i for i, u in enumerate(useq)}
    def ureg(u): return UR + 4 * (upos[u] % 8)
    unext = [0]
    def uld():
        if unext[0] >= len(useq): return
        q, r = u = useq[unext[0]]; unext[0] += 1
        o = 512 * q + (480 - 16 if r == 'x' else 480 - 64 * r)
        lds(f"ds_read_b128 v[{ureg(u)}:{ureg(u)+3}], v13 offset:{o}", ("U", u))
    first = set()
    def mf(d, x, y, c): a(f"v_mfma_f32_16x16x32_bf16 v[{d}:{d+3}], v[{x}:{x+3}], v[{y}:{y+3}], {c}")
    def ymf(at, x, y):
        c = f"v[{Y+4*at}:{Y+4*at+3}]" if at in first else "0"
        first.add(at)
        mf(Y + 4*at, x, y, c)
    def ywrite(at):
        p = YP + 2 * (at % 2)
        a(f"v_cvt_pk_bf16_f32 v{p}, v{Y+4*at}, v{Y+4*at+1}")
        a(f"v_cvt_pk_bf16_f32 v{p+1}, v{Y+4*at+2}, v{Y+4*at+3}")
        lds(f"ds_write_b64 v14, v[{p}:{p+1}] offset:{512*at}", ("Y", at))
    uld(); uld()
    pend = []
    tload(0); tload(8); tload(16)
    for k in range(1, 8): pend.append(lambda k=k: (tload(k), tload(k + 8)))
    for n in range(10): pend.append(lambda n=n: bload(n))
    for _ in range(3): uld()
    for _ in range(2): pend.pop(0)()
    for q in range(8):
        npair = 3 if q < 4 else (2 if q < 6 else 0)
        for pr in range(npair):
            for hf in range(2):
                st = STREAMS[2*pr + hf]
                u = (q, 'x') if st[0] == -24 else (q, 0)
                wait_for({("U", u)})
                mf(WT + 8*pr + 4*hf, ureg(u), BAND + 4*(2*pr + hf), "0")
                if pend: pend.pop(0)()
        if q < 6: uld()
        scat = [(n, pr, dl) for n, (pr, dl) in enumerate(bfl) if pr < npair and q + dl < 8]
        scat.sort(key=lambda t: t[1])
        for r in range(8):
            u = (q, r)
            wait_for({("U", u), ("T", r)})
            ymf(q, TF + 4*r, ureg(u))
            if pend: pend.pop(0)()
            if q < 7:
                wait_for({("T", r + 8)})
                ymf(q + 1, TF + 4*(r + 8), ureg(u))
            if r == 0:
                if q < 6: wait_for({("T", 16)}); ymf(q + 2, TF + 64, ureg(u))
                if q < 4: ymf(q + 4, T65, ureg(u))
            uld()
            if pend: pend.pop(0)()
            if r == 1 and q > 0: ywrite(q - 1)
            if 2 <= r <= 4 and r - 2 < npair:
                w = WT + 8 * (r - 2)
                for k in range(4): a(f"v_cvt_pk_bf16_f32 v{w+k}, v{w+2*k}, v{w+2*k+1}")
            if r >= 3:
                take = [t for t in scat if t[1] <= r - 3][:(3 if r < 7 else 99)]
                for t in take:
                    scat.remove(t)
                    n, pr, dl = t
                    wait_for({("B", n)})
                    ymf(q + dl, WT + 8*pr, BF + 4*n)
            if r == 2 and q in CUTS:
                lab = a.label("L_a_noy")
                a("s_cmp_lt_u32 s31, 4")
                a(f"s_cbranch_scc1 {lab}")
                idx = max(i for i, t in enumerate(q_) if t == ("Y", q - 1))
                a(f"s_waitcnt lgkmcnt({len(q_) - 1 - idx})")
                a("s_barrier")
                a(f"{lab}:")
        assert not scat
    stamp(5)
    ywrite(7)
    def ystore(n, row0_sreg):
        a(f"s_lshl_b32 s3, s{row0_sreg}, 1")
        a("v_add_u32 v7, s3, v3")
        a(f"s_mul_i32 s3, s{row0_sreg}, 2304")
        a("v_add_u32 v8, s3, v4")
        for j in range(n):
            a(f"ds_read_b64_tr_b16 v[{60+4*j}:{61+4*j}], v7 offset:{128*j}")
            a(f"ds_read_b64_tr_b16 v[{62+4*j}:{63+4*j}], v7 offset:{128*j+4*YSTR}")
        for j in range(n):
            a(f"s_waitcnt lgkmcnt({2*(n-1-j)})")
            a(f"global_store_dwordx4 v8, v[{60+4*j}:{63+4*j}], s[24:25] {STA}")
            if j < n - 1: a(f"v_add_u32 v8, {64*2304}, v8")
    a("s_waitcnt lgkmcnt(0)")
    a("s_cmp_ge_u32 s31, 4")
    a("s_cbranch_scc1 L_a_y2")
    prev = 0
    for cut in CUTS:
        n = cut - prev
        a("s_barrier")
        a(f"s_mul_i32 s33, s31, {64*n}")
        a(f"s_add_u32 s33, s33, {256*prev}")
        ystore(n, 33)
        a("s_nop 1")
        prev = cut
    a("L_a_y2:")
    a("s_barrier")
    n = (8 - prev) // 2
    a(f"s_mul_i32 s33, s31, {64*n}")
    a(f"s_add_u32 s33, s33, {256*prev}")
    ystore(n, 33)
    stamp(6)
    if os.environ.get("WBL2"):
        a("s_waitcnt vmcnt(0)")
        a("s_barrier")
        a("s_cmp_lg_u32 s31, 0")
        a("s_cbranch_scc1 L_fin")
        a("buffer_wbl2 sc1")
```

```python
import os
from gen_a import hexf, LOG2E
DBG = os.environ.get('DBG', '')
STB = os.environ.get('STB', 'sc1')
ROTN = int(os.environ.get('ROTN', '9'))
PF0 = int(os.environ.get('PF0', '2'))
WOS = int(os.environ.get('WOS', '7'))
XSZ = 12288
SROW = 864
SLOT = XSZ + 32 * SROW
NS = 3
EX = 131072
EXS = 160
LCNT = EX + 2 * 96 * EXS
B_LDS = 163840
EPI = 147456
LB = 0x12000
KVACC, CNT, PQC, PQ, PQL, WS_SZ = 0, 0xC000, 0xE000, 0x100000, 0x300000, 0x400000
PAIRB = 2816
O_MMB, O_LD, O_XM, O_XL = 1024, 2048, 2304, 2688
EPS = 1e-6
ONE_EPS = 1.0 + 1e-6
OOB = "0x7ffffff0"
SX, SW, SWO, SWS, SDB = 44, 48, 52, 56, 60
WSR = f"s[{SWS}:{SWS+3}]"

def srd(a, r, p, size):
    a(f"s_mov_b32 s{r}, s{p}\ns_mov_b32 s{r+1}, s{p+1}\ns_mov_b32 s{r+2}, {size}\ns_mov_b32 s{r+3}, 0x20000")

def pf_setup(a, v, t):
    a("s_sub_u32 s53, s43, 22")
    a("s_lshl_b32 s53, s53, 3")
    a("s_add_u32 s53, s53, s31")
    a("s_mul_i32 s57, s53, 41")
    a("s_lshr_b32 s57, s57, 10")
    a("s_mul_i32 s58, s57, 25")
    a("s_sub_u32 s58, s53, s58")
    a(f"s_add_u32 s57, s57, {PF0}")
    a(f"v_and_b32 v{t}, 15, v1")
    a(f"v_min_u32 v{t}, 14, v{t}")
    a(f"v_mul_u32_u24 v{t+1}, 52, v{t}")
    a(f"v_lshrrev_b32 v{t+1}, 8, v{t+1}")
    a(f"v_mul_u32_u24 v{t+1}, {1152-640}, v{t+1}")
    a(f"v_lshl_add_u32 v{t}, v{t}, 7, v{t+1}")
    a(f"v_lshrrev_b32 v{t+1}, 4, v1")
    a(f"v_mul_u32_u24 v{t+1}, 3456, v{t+1}")
    a(f"s_mul_i32 s59, s58, {4*3456}")
    a("s_and_b32 s3, s42, 4")
    a("s_lshl_b32 s3, s3, 7")
    a("s_add_u32 s59, s59, s3")
    a(f"v_add3_u32 v{t}, v{t}, v{t+1}, s59")
    a("s_and_b32 s3, s42, 3")
    a("s_mul_i32 s3, s3, 11")
    a("s_lshr_b32 s3, s3, 1")
    a("s_mul_i32 s3, s3, 96")
    a("s_lshl_b32 s59, s58, 6")
    a("s_add_u32 s3, s3, s59")
    a("s_sub_u32 s3, s3, 1024")
    a(f"v_add_u32 v{t+1}, s3, v1")
    a(f"v_min_u32 v{t+1}, 2047, v{t+1}")
    a(f"v_mul_u32_u24 v{t+1}, 1152, v{t+1}")
    a("s_cmp_lt_u32 s58, 16")
    a("s_cselect_b64 vcc, -1, 0")
    a("s_movk_i32 s56, 128")
    a(f"s_cselect_b32 s56, {64*3456}, s56")
    a(f"v_cndmask_b32 v{v}, v{t+1}, v{t}, vcc")
def pf_base(a):
    a("s_cmp_lt_u32 s58, 16")
    a("s_cselect_b64 s[54:55], s[20:21], s[18:19]")
def pf_round(a, v, dst):
    lab = a.label("L_pf")
    a("s_cmp_gt_u32 s57, 8")
    a(f"s_cbranch_scc1 {lab}")
    a("s_mul_i32 s3, s57, s56")
    a(f"v_add_u32 v{dst}, s3, v{v}")
    a(f"global_load_dword v{dst}, v{dst}, s[54:55]")
    a(f"{lab}:")
    a("s_add_u32 s57, s57, 3")

def role_zero(a):
    a.c("---------------- zero-init WG ----------------")
    a("v_lshlrev_b32 v2, 4, v0")
    for i in range(4): a(f"v_mov_b32 v{4+i}, 0")
    a("s_mov_b32 s33, 0")
    a("s_waitcnt lgkmcnt(0)")
    srd(a, SWS, 28, WS_SZ); srd(a, SDB, 26, 256)
    for j in range(8):
        a(f"buffer_store_dwordx4 v[4:7], v2, {WSR}, s33 offen sc1")
        a("s_add_u32 s33, s33, 8192")
    a("s_waitcnt vmcnt(0)")
    a("s_barrier")
    a("s_cmp_lg_u32 s31, 0")
    a("s_cbranch_scc1 L_fin")
    a("v_mov_b32 v8, 1")
    a("s_mov_b64 exec, 1")
    a(f"buffer_atomic_add v8, v4, s[{SDB}:{SDB+3}], 0 offen")
    a("s_mov_b64 exec, -1")
    a("s_branch L_fin")
def role_spare(a):
    pf_setup(a, 10, 11)
    a("s_waitcnt lgkmcnt(0)")
    pf_base(a)
    for r in range(3): pf_round(a, 10, 12 + r)
    a("s_cmp_lg_u32 s42, 0")
    a("s_cbranch_scc1 L_fin")
    role_zero(a)

def phi4(a, r, t, d):
    for h in (0, 2):
        a(f"v_pk_fma_f32 v[{t+h}:{t+h+1}], v[{r+h}:{r+h+1}], s[40:41], v[250:251]")
    for i in range(4): a(f"v_exp_f32_e64 v{t+i}, v{t+i} clamp")
    for h in (0, 2):
        a(f"v_pk_add_f32 v[{t+h}:{t+h+1}], v[{t+h}:{t+h+1}], v[252:253]")
    for i in range(4): a(f"v_max_f32 v{t+i}, v{t+i}, v{r+i}")
    if d is not None:
        a(f"v_cvt_pk_bf16_f32 v{d}, v{t}, v{t+1}")
        a(f"v_cvt_pk_bf16_f32 v{d+1}, v{t+2}, v{t+3}")

def wo_voff(a, dst, t0):
    a("s_and_b32 s3, s31, 1")
    a("s_lshl_b32 s3, s3, 3")
    a(f"v_lshl_add_u32 v{t0}, v3, 1, s3")
    a(f"v_xor_b32 v{t0}, v{t0}, v2")
    a("s_lshl_b32 s3, s97, 8")
    a(f"v_lshl_add_u32 v{t0}, v{t0}, 4, s3")
    a("s_and_b32 s3, s31, 3")
    a(f"v_lshl_add_u32 v{dst}, v3, 2, s3")
    a(f"v_mul_u32_u24 v{dst}, 1152, v{dst}")
    a(f"v_add_u32 v{dst}, v{dst}, v{t0}")
    a("s_lshl_b32 s95, s3, 10")
def wo_loads(a, v, steps):
    for st in steps:
        for h in range(2):
            a(f"s_add_u32 m0, s95, {8192*st + 4096*h}")
            a(f"s_mov_b32 s3, {(36*st + 20*h)*1152}")
            a(f"buffer_load_dwordx4 v{v}, s[{SWO}:{SWO+3}], s3 offen lds")

WOF = 112
def tr_addr(a, d):
    a(f"v_lshrrev_b32 v{d}, 2, v2")
    a(f"v_lshl_add_u32 v{d}, v3, 2, v{d}")
    a(f"v_and_b32 v{d+1}, 7, v{d}")
    a(f"v_lshlrev_b32 v{d+1}, 1, v{d+1}")
    a(f"v_bfe_u32 v{d+2}, v2, 1, 1")
    a("s_lshr_b32 s3, s31, 1")
    a("s_lshl_b32 s3, s3, 2")
    a(f"v_add_u32 v{d+2}, s3, v{d+2}")
    a(f"v_xor_b32 v{d+1}, v{d+1}, v{d+2}")
    a(f"v_lshlrev_b32 v{d}, 8, v{d}")
    a(f"v_lshl_add_u32 v{d}, v{d+1}, 4, v{d}")
    a(f"v_and_b32 v{d+1}, 1, v2")
    a(f"v_lshl_add_u32 v{d}, v{d+1}, 3, v{d}")
    a(f"v_xor_b32 v{d+1}, 32, v{d}")
def wotr(a, s, ar):
    for t in range(2):
        for h in range(2):
            r = WOF + 8*s + 4*t + 2*h
            a(f"ds_read_b64_tr_b16 v[{r}:{r+1}], v{ar+t} offset:{8192*(s%8) + 4096*h}")
def wo_regs(a, d):
    for s in range(15, 7, -1): pass
    a(f"v_add_u32 v{d+2}, 0x10000, v{d}\nv_add_u32 v{d+3}, 0x10000, v{d+1}")
    for s in range(8, 16): wotr(a, s, d + 2)
    for s in range(7, -1, -1): wotr(a, s, d)
    a(f"v_add_u32 v0, 0x20000, v{d}")

def lds_last(a, off, lab):
    a("s_waitcnt vmcnt(0)")
    a(f"v_mov_b32 v4, {LCNT + off}")
    a("v_mov_b32 v5, 1")
    a("s_mov_b64 exec, 1")
    a("ds_add_rtn_u32 v6, v4, v5")
    a("s_mov_b64 exec, -1")
    a("s_waitcnt lgkmcnt(0)")
    a("v_readfirstlane_b32 s3, v6")
    a("s_cmp_lg_u32 s3, 3")
    a(f"s_cbranch_scc1 {lab}")

def role_b(a, stamp=lambda i: None, do_p3=True):
    a.c("---------------- role B ----------------")
    rstamp = stamp
    if "stA" in DBG or "stB" in DBG: stamp = lambda i: None
    a("s_and_b32 s32, s42, 3")
    a("s_mul_i32 s32, s32, 22")
    a("s_add_u32 s32, s32, s43")
    a("s_lshr_b32 s33, s32, 2")
    a("s_and_b32 s94, s32, 3")
    a("s_and_b32 s34, s42, 4")
    a("s_add_u32 s32, s94, s34")
    a("v_lshrrev_b32 v3, 4, v1")
    a("s_cmp_lt_u32 s31, 4")
    a("s_cbranch_scc1 L_bcomp")
    a("s_sub_u32 s35, s31, 4")
    a("s_mul_i32 s34, s33, 96")
    a("s_mul_i32 s36, s35, 24")
    a("s_add_u32 s36, s36, s34")
    a("v_lshrrev_b32 v4, 3, v1")
    a("v_add_u32 v4, s36, v4")
    a("v_mul_u32_u24 v4, 1152, v4")
    a("v_and_b32 v5, 7, v1")
    a("v_xor_b32 v5, v5, v3")
    a("s_and_b32 s37, s35, 1")
    a("s_lshl_b32 s36, s37, 2")
    a("v_xor_b32 v5, s36, v5")
    a("v_lshl_add_u32 v10, v5, 4, v4")
    a("v_xor_b32 v5, 4, v5")
    a("v_lshl_add_u32 v11, v5, 4, v4")
    a("v_mul_u32_u24 v4, 57, v1")
    a("v_lshrrev_b32 v4, 9, v4")
    a("v_mul_u32_u24 v4, 1008, v4")
    a("v_lshl_add_u32 v4, v1, 4, v4")
    a("s_lshl_b32 s37, s37, 2")
    a("s_lshr_b32 s36, s35, 1")
    a("s_add_u32 s37, s37, s36")
    a(f"s_mul_i32 s37, s37, {4*3456}")
    a("s_mul_i32 s36, s32, 144")
    a("s_add_u32 s37, s37, s36")
    a("v_add_u32 v4, s37, v4")
    a("v_cmp_lt_u32 vcc, 26, v1")
    a(f"v_add_u32 v5, {31*3456}, v4")
    a("s_mul_i32 s38, s35, 3072")
    a(f"s_mul_i32 s39, s35, {8*SROW}")
    a("v_cndmask_b32 v13, v4, v5, vcc")
    if ROTN == 9:
        a("s_add_u32 s94, s94, s33")
        a("s_lshl_b32 s94, s94, 1")
        a("s_mul_i32 s95, s94, 57")
        a("s_lshr_b32 s95, s95, 9")
        a("s_mul_i32 s95, s95, 9")
        a("s_sub_u32 s94, s94, s95")
    else:
        a("s_mov_b32 s94, 0")
    a(f"s_mov_b32 s{SX+2}, 2359296\ns_mov_b32 s{SX+3}, 0x20000\ns_mov_b32 s{SW+2}, 1990656\ns_mov_b32 s{SW+3}, 0x20000")
    a("s_waitcnt lgkmcnt(0)")
    a(f"s_mov_b64 s[{SX}:{SX+1}], s[18:19]\ns_mov_b64 s[{SW}:{SW+1}], s[20:21]")
    def stage(slot):
        a(f"s_mul_i32 s30, s94, {64*3456}")
        a("s_mov_b32 exec_hi, 0x3fffff")
        for t in range(8):
            a(f"s_add_u32 m0, s39, {slot*SLOT + XSZ + SROW*t}")
            a(f"s_add_u32 s3, s30, {(8*(t>>2) + (t&3))*3456}")
            a(f"buffer_load_dwordx4 v13, s[{SW}:{SW+3}], s3 offen lds")
        a("s_mov_b32 exec_hi, -1")
        a("s_lshl_b32 s30, s94, 7")
        for t in range(3):
            a(f"s_add_u32 m0, s38, {slot*SLOT + 1024*t}")
            a(f"s_add_u32 s3, s30, {8*1152*t}")
            a(f"buffer_load_dwordx4 v{10+(t&1)}, s[{SX}:{SX+3}], s3 offen lds")
        a("s_add_u32 s94, s94, 1")
        a("s_cmp_eq_u32 s94, 9")
        a("s_cselect_b32 s94, 0, s94")
    stage(0)
    stamp(1)
    stage(1)
    srd(a, SWS, 28, WS_SZ); srd(a, SDB, 26, 256); srd(a, SWO, 22, 663552)
    a("v_and_b32 v2, 15, v1")
    a("s_mul_i32 s96, s43, 52")
    a("s_lshr_b32 s96, s96, 8")
    a("s_mul_i32 s97, s96, 5")
    a("s_sub_u32 s97, s43, s97")
    wo_voff(a, 21, 4)
    a("v_mov_b32 v4, 0")
    for s in range(9):
        a(f"s_waitcnt vmcnt({11 if s < 8 else 10})")
        if "stA" in DBG: rstamp(1 + s)
        a("s_barrier")
        if "stB" in DBG: rstamp(1 + s)
        if s == 5: a(f"buffer_load_dword v22, v4, s[{SDB}:{SDB+3}], 0 offen sc1")
        if s + 2 < 9 and 'noload' not in DBG: stage((s + 2) % NS)
        if s == 7: wo_loads(a, 21, [0, 1, 2, 3, 15])
        if s == 8: wo_loads(a, 21, [4, 5, 6, 7, 8])
    if WOS == 8:
        a("s_barrier")
        wo_loads(a, 21, [9, 10, 11, 12, 13, 14])
    stamp(2)
    a("v_readfirstlane_b32 s37, v22")
    a("s_mov_b32 s36, 0")
    a("s_cmp_lg_u32 s37, 0")
    a("s_cbranch_scc1 L_rdy2")
    a("L_rdy:")
    a(f"buffer_load_dword v5, v4, s[{SDB}:{SDB+3}], 0 offen sc1")
    a("s_add_u32 s36, s36, 1")
    a("s_waitcnt vmcnt(0)")
    a("v_readfirstlane_b32 s37, v5")
    a("s_cmp_ge_u32 s36, 0x10000")
    a("s_cbranch_scc1 L_rdy2")
    a("s_cmp_eq_u32 s37, 0")
    a("s_cbranch_scc1 L_rdy")
    a("L_rdy2:")
    a("s_lshr_b32 s36, s35, 1")
    a("s_and_b32 s37, s35, 1")
    a("v_lshrrev_b32 v4, 2, v2")
    a("v_and_b32 v5, 3, v2")
    a("v_lshl_add_u32 v6, v3, 2, v4")
    a(f"v_mul_u32_u24 v6, {EXS}, v6")
    a("v_xor_b32 v7, v5, v3")
    a("v_lshl_add_u32 v6, v7, 3, v6")
    a(f"s_mul_i32 s38, s36, {96*EXS}")
    a(f"s_add_u32 s38, s38, {EX}")
    a("v_add_u32 v7, s38, v6")
    a("s_lshl_b32 s39, s37, 5")
    a("v_add_u32 v6, s39, v7")
    a("s_lshl_b32 s38, s32, 1")
    a("s_add_u32 s38, s38, s36")
    a(f"s_mul_i32 s38, s38, {PAIRB}")
    a("v_lshlrev_b32 v8, 8, v4")
    a("v_lshl_add_u32 v8, v3, 4, v8")
    a("v_lshl_add_u32 v8, v5, 2, v8")
    a("s_lshl_b32 s39, s37, 10")
    a("v_add_u32 v8, s39, v8")
    a(f"v_mov_b32 v20, {OOB}")
    a("v_lshrrev_b32 v9, 1, v2")
    a("v_cmp_eq_u32 s[98:99], s37, v9")
    a("v_lshlrev_b32 v10, 4, v3")
    a("v_lshl_add_u32 v10, v2, 2, v10")
    a("v_cndmask_b32 v10, v20, v10, s[98:99]")
    a("s_lshl_b32 s39, s37, 1")
    a("s_add_u32 s39, s39, 2")
    a("v_mov_b32 v11, s39")
    a("v_mov_b32 v12, s37")
    a("v_cmp_eq_u32 vcc, 1, v3")
    a("v_cndmask_b32 v11, v12, v11, vcc")
    a("v_lshlrev_b32 v13, 2, v2")
    a("v_lshl_add_u32 v13, v11, 6, v13")
    a("v_cndmask_b32 v14, v20, v13, vcc")
    a("v_and_b32 v15, 1, v2")
    a("v_lshlrev_b32 v15, 2, v15")
    a("v_lshl_add_u32 v15, v11, 4, v15")
    a("v_cndmask_b32 v15, v20, v15, s[98:99]")
    a("v_cndmask_b32 v16, v20, v15, vcc")
    a("v_and_b32 v12, 1, v3")
    a("v_cmp_eq_u32 vcc, 1, v12")
    a("v_cndmask_b32 v13, v20, v13, vcc")
    a("v_cndmask_b32 v15, v20, v15, vcc")
    a("v_lshlrev_b32 v17, 10, v1")
    a("s_lshl_b32 s39, s32, 7")
    a(f"s_add_u32 s39, s39, {CNT}")
    a("s_cmp_eq_u32 s37, 1")
    a("s_cselect_b64 s[98:99], -1, 0")
    tr_addr(a, 18)
    a("s_setprio 2")
    if WOS == 8: a("s_waitcnt vmcnt(0)")
    a("s_barrier")
    stamp(3)
    FK, FV, FL = 24, 36, 48
    for ks in range(3):
        for h in range(2):
            o = (32*ks + 16*h) * EXS
            a(f"ds_read_b64_tr_b16 v[{FK+4*ks+2*h}:{FK+4*ks+2*h+1}], v6 offset:{o}")
            a(f"ds_read_b64_tr_b16 v[{FV+4*ks+2*h}:{FV+4*ks+2*h+1}], v6 offset:{o+64}")
            a(f"ds_read_b64_tr_b16 v[{FL+4*ks+2*h}:{FL+4*ks+2*h+1}], v7 offset:{o+128}")
    MM, XM, ML, LL = 60, 64, 68, 72
    for ks in range(3):
        a(f"s_waitcnt lgkmcnt({12-6*ks})")
        for d, x, y in ((MM, FV, FK), (ML, FV, FL), (XM, FL, FK), (LL, FL, FL)):
            c = "0" if ks == 0 else f"v[{d}:{d+3}]"
            a(f"v_mfma_f32_16x16x32_bf16 v[{d}:{d+3}], v[{x+4*ks}:{x+4*ks+3}], v[{y+4*ks}:{y+4*ks+3}], {c}")
    for i in range(4): a(f"buffer_atomic_add_f32 v{MM+i}, v8, {WSR}, s38 offen offset:{64*i}")
    for i in range(4): a(f"buffer_atomic_add_f32 v{ML+i}, v10, {WSR}, s38 offen offset:{O_LD+64*i}")
    for d in (XM, LL):
        a(f"v_cndmask_b32 v{d}, v{d}, v{d+2}, s[98:99]")
        a(f"v_cndmask_b32 v{d+1}, v{d+1}, v{d+3}, s[98:99]")
    a(f"buffer_atomic_add_f32 v{XM}, v13, {WSR}, s38 offen offset:{O_XM}")
    a(f"buffer_atomic_add_f32 v{XM+1}, v14, {WSR}, s38 offen offset:{O_XM+64}")
    a(f"buffer_atomic_add_f32 v{LL}, v15, {WSR}, s38 offen offset:{O_XL}")
    a(f"buffer_atomic_add_f32 v{LL+1}, v16, {WSR}, s38 offen offset:{O_XL+16}")
    stamp(4)
    if WOS == 8:
        a("s_setprio 0")
        wo_regs(a, 18)
    lds_last(a, 0, "L_ksig")
    a("s_mov_b64 exec, 0xff")
    a(f"buffer_atomic_add v5, v17, {WSR}, s39 offen")
    a("s_mov_b64 exec, -1")
    a("L_ksig:")
    a("s_setprio 0")
    a("s_branch L_bjoin")
    a("L_bcomp:")
    a("v_and_b32 v2, 15, v1")
    a("s_mul_i32 s96, s43, 52")
    a("s_lshr_b32 s96, s96, 8")
    a("s_mul_i32 s97, s96, 5")
    a("s_sub_u32 s97, s43, s97")
    a("s_and_b32 s35, s31, 1")
    a("s_lshr_b32 s36, s31, 1")
    XA0, XA1, WA, LA = 4, 5, 6, 7
    a("v_lshrrev_b32 v9, 1, v2")
    a("v_xor_b32 v9, v9, v3")
    a("v_lshlrev_b32 v10, 7, v2")
    a("v_lshl_add_u32 v10, v9, 4, v10")
    a(f"s_mul_i32 s37, s35, {48*128}")
    a(f"v_add_u32 v{XA0}, s37, v10")
    a(f"v_xor_b32 v{XA1}, 64, v{XA0}")
    a("v_lshrrev_b32 v9, 2, v2")
    a("v_and_b32 v10, 3, v2")
    a("v_lshl_add_u32 v11, v3, 2, v9")
    a(f"v_mul_u32_u24 v11, {SROW}, v11")
    a("s_mul_i32 s37, s36, 72")
    a(f"s_add_u32 s37, s37, {XSZ}")
    a("v_add_u32 v11, s37, v11")
    a(f"v_lshl_add_u32 v{WA}, v10, 3, v11")
    a("v_add_u32 v12, 1, v10")
    a("v_mul_u32_u24 v12, 144, v12")
    a("v_cmp_gt_u32 vcc, 2, v10")
    a("v_cndmask_b32 v12, 0, v12, vcc")
    a(f"v_add3_u32 v{LA}, v11, v12, 32")
    a(f"v_mov_b32 v12, {LCNT}\nv_mov_b32 v14, 0\nv_mov_b32 v15, 0")
    a("ds_write_b64 v12, v[14:15]")
    ACC = 16
    def acc(rt, t): return ACC + 4 * (7 * rt + t)
    a(f"v_mov_b32 v8, {hexf(ONE_EPS)}\nv_mov_b32 v9, v8")
    a("v_cmp_eq_u32 vcc, 1, v3")
    a("v_cndmask_b32_e64 v10, v8, 0, vcc")
    a("v_mov_b32 v11, v10")
    for rt in range(3):
        for t in range(7):
            src = "v[14:15]" if t in (2, 3) else ("v[10:11]" if t == 6 else "v[8:9]")
            for i in (0, 2): a(f"v_mov_b64 v[{acc(rt,t)+i}:{acc(rt,t)+i+1}], {src}")
    F = [100, 140]
    woff = [144, 184, 288, 328, 0, 40]
    def reads(kk):
        f = F[kk]; L = []
        for rt in range(3): L.append(f"ds_read_b128 v[{f+4*rt}:{f+4*rt+3}], v{(XA0,XA1)[kk]} offset:{2048*rt}")
        for t in TORD:
            for h in range(2):
                ad, o = (WA, woff[t]) if t < 6 else (LA, 0)
                L.append(f"ds_read_b64_tr_b16 v[{f+12+4*t+2*h}:{f+12+4*t+2*h+1}], v{ad} offset:{o + 16*h*SROW + 432*kk}")
        return L
    TORD = [0, 1, 6, 2, 3, 4, 5]
    def mfmas(kk):
        f = F[kk]
        return [f"v_mfma_f32_16x16x32_bf16 v[{acc(rt,t)}:{acc(rt,t)+3}], v[{f+12+4*t}:{f+15+4*t}], v[{f+4*rt}:{f+4*rt+3}], v[{acc(rt,t)}:{acc(rt,t)+3}]"
                for t in TORD for rt in range(3)]
    def inter(M, R):
        for k, m in enumerate(M):
            if k < len(R): a(R[k])
            a(m)
    a(f"s_mov_b32 s40, {hexf(LOG2E)}\ns_mov_b32 s41, s40")
    a(f"v_mov_b32 v250, {hexf(-ONE_EPS*LOG2E)}\nv_mov_b32 v251, v250")
    a(f"v_mov_b32 v252, {hexf(EPS)}\nv_mov_b32 v253, v252")
    a("s_mov_b32 s37, 0")
    a(f"s_mov_b32 s39, {SLOT}")
    a("s_waitcnt lgkmcnt(0)")
    srd(a, SWS, 28, WS_SZ); srd(a, SDB, 26, 256); srd(a, SWO, 22, 663552)
    stamp(1)
    a("s_barrier")
    for x in reads(0): a(x)
    a("s_branch L_gmid")
    a("L_gloop:")
    a("s_barrier")
    inter(mfmas(1), reads(0))
    a("L_gmid:")
    a("s_waitcnt lgkmcnt(0)")
    inter(mfmas(0), reads(1))
    a("s_add_u32 s37, s37, 1")
    a("s_bitcmp1_b32 0x48, s37")
    a(f"s_cselect_b32 s38, {-(NS-1)*SLOT & 0xffffffff}, s39")
    for r in (XA0, XA1, WA, LA): a(f"v_add_u32 v{r}, s38, v{r}")
    a("s_cmp_lt_u32 s37, 9")
    a("s_waitcnt lgkmcnt(0)")
    a("s_cbranch_scc1 L_gloop")
    if WOS == 8: a("s_barrier")
    post = []
    class Rec:
        def __call__(s, t): post.extend(x.strip() for x in t.split("\n") if x.strip())
    p = Rec()
    p(f"v_mul_u32_u24 v4, {EXS}, v2")
    p("v_lshrrev_b32 v5, 2, v2")
    p("v_xor_b32 v5, v5, v3")
    p("v_lshl_add_u32 v4, v5, 3, v4")
    p(f"s_mul_i32 s37, s36, {96*EXS}")
    p(f"s_mul_i32 s38, s35, {48*EXS}")
    p("s_add_u32 s37, s37, s38")
    p(f"s_add_u32 s37, s37, {EX}")
    p("v_add_u32 v4, s37, v4")
    p("s_mul_i32 s38, s33, 6")
    p("s_mul_i32 s39, s35, 3")
    p("s_add_u32 s38, s38, s39")
    p("v_cmp_eq_u32 s[98:99], 1, v3")
    p("v_cmp_eq_u32 s[100:101], 3, v3")
    M = mfmas(1)
    for k, m in enumerate(M):
        a(m)
        if k < len(post): a(post[k])
    stamp(2)
    P = 100
    for rt in range(3):
        for t in (0, 1):
            d = P + 2 * (2*rt + t)
            phi4(a, acc(rt, t), 120 + 4*t, d)
            a(f"ds_write_b64 v4, v[{d}:{d+1}] offset:{rt*16*EXS + 32*t}")
    for rt in range(3):
        phi4(a, acc(rt, 6), 128, None)
        a(f"s_add_u32 s39, s38, {rt}")
        a("s_cmp_lt_u32 s39, 128")
        a("s_cselect_b32 s39, 0x3f803f80, 0")
        a("v_mov_b32 v132, s39")
        for i in range(4): a(f"v_cndmask_b32 v{128+i}, v{128+i}, v{acc(rt,6)+i}, s[98:99]")
        d = 134 + 2 * rt
        a(f"v_cvt_pk_bf16_f32 v{d}, v128, v129")
        a(f"v_cvt_pk_bf16_f32 v{d+1}, v130, v131")
        a(f"v_cndmask_b32 v{d}, v{d}, v132, s[100:101]")
        a(f"v_cndmask_b32 v{d+1}, v{d+1}, v132, s[100:101]")
        a(f"ds_write_b64 v4, v[{d}:{d+1}] offset:{rt*16*EXS + 128}")
        d = 112 + 4 * (rt % 2)
        for t in (2, 3):
            a(f"v_cvt_pk_bf16_f32 v{d+2*(t-2)}, v{acc(rt,t)}, v{acc(rt,t)+1}")
            a(f"v_cvt_pk_bf16_f32 v{d+2*(t-2)+1}, v{acc(rt,t)+2}, v{acc(rt,t)+3}")
        a(f"ds_write2_b64 v4, v[{d}:{d+1}], v[{d+2}:{d+3}] offset0:{(rt*16*EXS + 64)//8 if rt == 0 else 8} offset1:{12}" if rt == 0 else
          f"ds_write_b64 v4, v[{d}:{d+1}] offset:{rt*16*EXS + 64}\nds_write_b64 v4, v[{d+2}:{d+3}] offset:{rt*16*EXS + 96}")
    a("s_waitcnt lgkmcnt(0)")
    a("s_barrier")
    stamp(3)
    a("v_lshlrev_b32 v8, 4, v1")
    a("v_lshlrev_b32 v9, 3, v2")
    a(f"v_mov_b32 v7, {OOB}")
    a("v_cmp_eq_u32 vcc, 2, v3")
    a("v_cndmask_b32 v9, v7, v9, vcc")
    a("s_lshl_b32 s38, s38, 4")
    a("s_lshl_b32 s39, s32, 1")
    a("s_add_u32 s38, s38, s39")
    a("s_add_u32 s38, s38, s36")
    for rt in range(3):
        d = 100 + 4 * rt
        a(f"s_cmp_ge_u32 s38, {2048 - 16*rt}")
        a("s_cbranch_scc1 L_bq_done")
        phi4(a, acc(rt, 4), 120, d)
        phi4(a, acc(rt, 5), 124, d + 2)
        a(f"s_add_u32 s39, s38, {16*rt}")
        a("s_lshl_b32 s37, s39, 10")
        a(f"s_add_u32 s37, s37, {PQ}")
        a("s_lshl_b32 s39, s39, 7")
        a(f"s_add_u32 s39, s39, {PQL}")
        a(f"buffer_store_dwordx4 v[{d}:{d+3}], v8, {WSR}, s37 offen sc1")
        a(f"buffer_store_dwordx2 v[{134+2*rt}:{135+2*rt}], v9, {WSR}, s39 offen sc1")
    a("L_bq_done:")
    stamp(4)
    a("s_lshl_b32 s39, s33, 7")
    a(f"s_add_u32 s39, s39, {PQC}")
    a("v_mov_b32 v7, 0")
    tr_addr(a, 18)
    if WOS == 8:
        a("s_nop 1")
        wo_regs(a, 18)
    lds_last(a, 4, "L_bjoin")
    a("s_mov_b64 exec, 1")
    a(f"buffer_atomic_add v5, v7, {WSR}, s39 offen")
    a("s_mov_b64 exec, -1")
    a("L_bjoin:")
    stamp(5)
    if do_p3: phase3(a, stamp)

def phase3(a, stamp):
    a.c("---------------- phase 3 ----------------")
    a("s_cmp_ge_u32 s43, 20")
    a("s_cbranch_scc1 L_fin")
    a("s_mov_b32 s33, s97")
    a("s_lshl_b32 s34, s42, 2")
    a("s_add_u32 s32, s96, s34")
    wo_voff(a, 8, 4)
    a("s_lshr_b32 s34, s31, 2")
    a("s_and_b32 s35, s31, 3")
    a("s_and_b32 s36, s31, 1")
    a("s_lshl_b32 s38, s31, 10")
    a("s_mul_i32 s37, s34, 144")
    a("s_mul_i32 s39, s35, 18")
    a("s_add_u32 s37, s37, s39")
    a("s_lshl_b32 s39, s36, 4")
    a("s_sub_u32 s37, s37, s39")
    a("s_add_u32 s37, s37, 16")
    a("v_lshrrev_b32 v6, 1, v3")
    a("v_mul_u32_u24 v6, 72, v6")
    a("v_and_b32 v7, 1, v3")
    a("v_add3_u32 v6, v6, v7, s37")
    a("v_mul_u32_u24 v6, 1152, v6")
    a("v_add_u32 v9, v6, v4")
    a("s_lshr_b32 s35, s31, 1")
    a("s_barrier")
    stamp(6)
    if WOS == 7:
        a(f"s_mul_i32 s30, s34, {20*1152}")
        for s in (9, 10, 11, 12, 13, 14):
            a(f"s_add_u32 m0, s38, {8192*s}")
            a(f"s_add_u32 s39, s30, {36*1152*s}")
            a(f"buffer_load_dwordx4 v8, s[{SWO}:{SWO+3}], s39 offen lds")
    for s in (16, 17):
        a(f"s_add_u32 m0, s38, {8192*s}")
        a(f"s_mov_b32 s39, {288*1152*(s-16)}")
        a(f"buffer_load_dwordx4 v9, s[{SWO}:{SWO+3}], s39 offen lds")
    if WOS == 7:
        for s in range(8): wotr(a, s, 18)
        a("v_add_u32 v4, 0x10000, v18\nv_add_u32 v5, 0x10000, v19\nv_add_u32 v0, 0x12000, v18")
        wotr(a, 8, 4); wotr(a, 15, 4)
    a(f"v_mov_b32 v8, {OOB}")
    a("v_lshlrev_b32 v9, 4, v1")
    a(f"s_mul_i32 s37, s31, {2*PAIRB}")
    a("v_and_b32 v6, 3, v2")
    a("v_bfe_u32 v7, v2, 2, 1")
    a("v_lshl_add_u32 v7, v7, 1, v6")
    a("v_cmp_gt_u32 vcc, 2, v6")
    a("v_cndmask_b32 v7, v7, v6, vcc")
    a("v_lshlrev_b32 v12, 4, v3")
    a("v_lshl_add_u32 v12, v7, 6, v12")
    a("v_cmp_gt_u32 s[94:95], 8, v2")
    a("s_or_b64 s[96:97], s[94:95], vcc")
    a("s_orn2_b64 vcc, vcc, s[94:95]")
    a("v_cndmask_b32 v13, v8, v12, vcc")
    a("v_cndmask_b32 v12, v8, v12, s[96:97]")
    a("v_lshlrev_b32 v10, 4, v2")
    a(f"v_lshlrev_b32 v11, 4, v7")
    a(f"v_add_u32 v11, {O_XL - O_LD}, v11")
    a("v_cmp_lt_u32 s[100:101], 1, v3")
    a("v_cndmask_b32 v10, v10, v11, s[100:101]")
    a("v_and_b32 v6, 1, v3")
    a(f"v_mul_u32_u24 v11, {PAIRB}, v6")
    a("v_add_u32 v10, v10, v11")
    a("v_cmp_eq_u32 s[98:99], 1, v6")
    a("v_cmp_eq_u32 s[94:95], 1, v7")
    a("v_cmp_lt_u32 s[40:41], 3, v7")
    a("s_or_b64 s[94:95], s[94:95], s[40:41]")
    a("s_andn2_b64 s[40:41], s[100:101], s[98:99]")
    a("s_and_b64 s[40:41], s[40:41], s[96:97]")
    a("s_and_b64 s[96:97], s[100:101], s[98:99]")
    a("s_and_b64 s[96:97], s[96:97], vcc")
    a("v_lshlrev_b32 v7, 3, v2")
    a("v_lshl_add_u32 v7, v6, 7, v7")
    a("s_lshl_b32 s38, s32, 6")
    a("s_lshl_b32 s39, s31, 1")
    a("s_add_u32 s38, s38, s39")
    a("s_lshl_b32 s39, s38, 7")
    a(f"s_add_u32 s39, s39, {PQL}")
    a("s_lshl_b32 s38, s38, 10")
    a(f"s_add_u32 s38, s38, {PQ}")
    def poll(wave, prep, nl, tgt, tag):
        a(f"s_cmp_lg_u32 s31, {wave}")
        a(f"s_cbranch_scc1 L_pw{tag}")
        prep()
        a(f"s_mov_b64 exec, {hex((1 << nl) - 1)}")
        a("s_mov_b32 s3, 0")
        a(f"L_poll{tag}:")
        a(f"buffer_load_dword v15, v14, {WSR}, s34 offen sc1")
        a("s_add_u32 s3, s3, 1")
        a("s_waitcnt vmcnt(0)")
        a(f"v_cmp_gt_u32 vcc, {tgt}, v15")
        a("s_cmp_ge_u32 s3, 0x10000")
        a(f"s_cbranch_scc1 L_pd{tag}")
        a(f"s_cbranch_vccnz L_poll{tag}")
        a(f"L_pd{tag}:")
        a("s_mov_b64 exec, -1")
        a(f"L_pw{tag}:")
        a("s_barrier")
    def prep_q():
        a("s_lshl_b32 s34, s32, 1")
        a("v_add_u32 v14, s34, v1")
        a("v_mul_u32_u24 v14, 86, v14")
        a("v_lshrrev_b32 v14, 8, v14")
        a("v_lshlrev_b32 v14, 7, v14")
        a(f"s_mov_b32 s34, {PQC}")
    def prep_k():
        a("v_lshlrev_b32 v14, 7, v1")
        a("s_lshl_b32 s34, s42, 10")
        a(f"s_add_u32 s34, s34, {CNT}")
    stamp(7)
    poll(1, prep_q, 2, 8, "q")
    stamp(8)
    AM = [16, 20, 24, 28]
    AX = [32, 36, 40, 44]
    PQR = 56
    for rt in range(4):
        b = PQR + 14 * rt
        a(f"buffer_load_dwordx4 v[{b+2}:{b+5}], v9, {WSR}, s38 offen sc1")
        a(f"buffer_load_dwordx4 v[{b+8}:{b+11}], v9, {WSR}, s38 offen offset:1024 sc1")
        a(f"buffer_load_dwordx2 v[{b+6}:{b+7}], v7, {WSR}, s39 offen sc1")
        if rt < 3: a("s_add_u32 s38, s38, 16384\ns_add_u32 s39, s39, 2048")
    a("s_waitcnt lgkmcnt(0)")
    poll(0, prep_k, 8, 22, "k")
    stamp(9)
    T = 48
    a(f"buffer_load_dwordx4 v[{AX[0]}:{AX[0]+3}], v12, {WSR}, s37 offen offset:{O_XM} sc1")
    a(f"buffer_load_dwordx4 v[{T}:{T+3}], v10, {WSR}, s37 offen offset:{O_LD} sc1")
    a(f"s_add_u32 s3, s37, {PAIRB}")
    a(f"buffer_load_dwordx4 v[{AX[2]}:{AX[2]+3}], v13, {WSR}, s3 offen offset:{O_XM} sc1")
    for c in range(2):
        o = c * PAIRB
        a(f"buffer_load_dwordx4 v[{AM[2*c]}:{AM[2*c]+3}], v9, {WSR}, s37 offen offset:{o} sc1")
        a(f"buffer_load_dwordx4 v[{AM[2*c+1]}:{AM[2*c+1]+3}], v9, {WSR}, s37 offen offset:{o+O_MMB} sc1")
    a("s_lshl_b32 s34, s31, 11")
    a("v_add_u32 v10, s34, v9")
    a("s_lshr_b32 s34, s31, 2")
    a("s_lshl_b32 s34, s34, 10")
    a("s_and_b32 s3, s31, 3")
    a("s_lshl_b32 s3, s3, 2")
    a("s_add_u32 s34, s34, s3")
    a(f"s_add_u32 s34, s34, {16*1024}")
    a("v_add_u32 v11, s34, v9")
    a(f"v_mov_b32 v12, {hexf(EPS)}\nv_mov_b32 v13, v12\nv_mov_b32 v14, 0\nv_mov_b32 v15, 0")
    a("s_waitcnt vmcnt(7)")
    for rt in range(4):
        b = PQR + 14 * rt
        a(f"v_mov_b64 v[{b}:{b+1}], v[{b+6}:{b+7}]\nv_mov_b64 v[{b+12}:{b+13}], v[{b+6}:{b+7}]")
    a("v_cmp_eq_u32 vcc, 0, v3")
    a("s_andn2_b64 s[38:39], s[98:99], s[100:101]")
    a("s_waitcnt vmcnt(4)")
    stamp(10)
    a(f"v_cvt_pk_bf16_f32 v{T}, v{T}, v{T+1}")
    a(f"v_cvt_pk_bf16_f32 v{T+1}, v{T+2}, v{T+3}")
    for c in range(2):
        xa, xb = AX[2*c], AX[2*c+1]
        mk = "s[40:41]" if c == 0 else "s[96:97]"
        a(f"v_cvt_pk_bf16_f32 v{T+2}, v{xa}, v{xa+1}")
        a(f"v_cvt_pk_bf16_f32 v{T+3}, v{xa+2}, v{xa+3}")
        a(f"v_cndmask_b32 v{T+4}, 0, v{T}, {mk}")
        a(f"v_mov_b32 v{xa+1}, 0")
        a(f"v_mov_b32 v{xb+2}, 0")
        a(f"v_cndmask_b32 v{xa}, v{T+4}, 0, s[94:95]")
        a(f"v_cndmask_b32 v{xa+2}, v{T+2}, 0, s[94:95]")
        a(f"v_cndmask_b32 v{xa+3}, v{T+3}, 0, s[94:95]")
        a(f"v_cndmask_b32 v{xb}, 0, v{T+2}, s[94:95]")
        a(f"v_cndmask_b32 v{xb+1}, 0, v{T+3}, s[94:95]")
        a(f"v_cndmask_b32 v{xb+3}, 0, v{T+4}, s[94:95]")
    a(f"v_mov_b64 v[252:253], v[{T}:{T+1}]")
    def mf(d, x, y, c): a(f"v_mfma_f32_16x16x32_bf16 v[{d}:{d+3}], v[{x}:{x+3}], v[{y}:{y+3}], {c}")
    def regs(rt): return (PQR + 14 * rt, (48, 240, 48, 56)[rt], (52, 244, 52, 60)[rt], (4, 248, 4, 64)[rt])
    def MX(rt):
        b, X0, X1, D0 = regs(rt)
        ops = [b, b+4, b+6, b+10]
        mf(X0, AX[1], ops[1], "v[12:15]"); mf(X1, AX[2], ops[2], "v[12:15]")
        mf(X0, AX[0], ops[0], f"v[{X0}:{X0+3}]"); mf(X1, AX[3], ops[3], f"v[{X1}:{X1+3}]")
    def MM_(rt):
        b, X0, X1, D0 = regs(rt)
        ops = [b, b+4, b+6, b+10]
        mf(D0, AM[0], ops[0], "0")
        mf(b, AM[1], ops[1], "0")
        mf(b+6, AM[2], ops[2], "0")
        mf(b+10, AM[3], ops[3], "0")
    MX(0); MX(1)
    for c in range(2):
        ma, mb = AM[2*c], AM[2*c+1]
        mk = "vcc" if c == 0 else "s[38:39]"
        a(f"s_waitcnt vmcnt({2-2*c})")
        a(f"v_cvt_pk_bf16_f32 v{ma+3}, v{ma+2}, v{ma+3}")
        a(f"v_cvt_pk_bf16_f32 v{ma+2}, v{ma}, v{ma+1}")
        a(f"v_cndmask_b32 v{ma}, 0, v252, {mk}")
        a(f"v_mov_b32 v{ma+1}, 0")
        a(f"v_cvt_pk_bf16_f32 v{mb}, v{mb}, v{mb+1}")
        a(f"v_cvt_pk_bf16_f32 v{mb+1}, v{mb+2}, v{mb+3}")
        a(f"v_mov_b32 v{mb+2}, 0")
        a(f"v_cndmask_b32 v{mb+3}, 0, v253, {mk}")
    def V(rt):
        b, X0, X1, D0 = regs(rt)
        L = []
        p = lambda t: L.extend(x.strip() for x in t.split("\n"))
        for x in (X0, X1):
            p(f"v_rcp_f32 v{x}, v{x}\nv_rcp_f32 v{x+1}, v{x+1}")
        p(f"v_pk_add_f32 v[{X0+2}:{X0+3}], v[{X0+2}:{X0+3}], v[{X1+2}:{X1+3}]")
        p(f"v_cndmask_b32 v{X1+2}, v{X0}, v{X0+1}, s[98:99]")
        p(f"v_cndmask_b32 v{X1+3}, v{X1}, v{X1+1}, s[98:99]")
        p(f"v_cndmask_b32 v{X1+2}, v{X1+2}, v{X1+3}, s[100:101]")
        p(f"v_pk_mul_f32 v[{X0+2}:{X0+3}], v[{X0+2}:{X0+3}], v[{X1+2}:{X1+3}] op_sel:[0,0] op_sel_hi:[1,0]")
        p(f"v_cvt_pk_bf16_f32 v{b+4}, v{X0+2}, v{X0+3}")
        p(f"ds_write_b32 v11, v{b+4} offset:{rt*18*1024}")
        for d, rc in ((D0, X0), (b, X0+1), (b+6, X1), (b+10, X1+1)):
            sel = "op_sel:[0,0] op_sel_hi:[1,0]" if rc % 2 == 0 else "op_sel:[0,1] op_sel_hi:[1,1]"
            rp = rc & ~1
            p(f"v_pk_mul_f32 v[{d}:{d+1}], v[{d}:{d+1}], v[{rp}:{rp+1}] {sel}")
            p(f"v_pk_mul_f32 v[{d+2}:{d+3}], v[{d+2}:{d+3}], v[{rp}:{rp+1}] {sel}")
        p(f"v_cvt_pk_bf16_f32 v{D0}, v{D0}, v{D0+1}\nv_cvt_pk_bf16_f32 v{D0+1}, v{D0+2}, v{D0+3}")
        p(f"v_cvt_pk_bf16_f32 v{D0+2}, v{b}, v{b+1}\nv_cvt_pk_bf16_f32 v{D0+3}, v{b+2}, v{b+3}")
        p(f"ds_write_b128 v10, v[{D0}:{D0+3}] offset:{rt*18*1024}")
        p(f"v_cvt_pk_bf16_f32 v{b+6}, v{b+6}, v{b+7}\nv_cvt_pk_bf16_f32 v{b+7}, v{b+8}, v{b+9}")
        p(f"v_cvt_pk_bf16_f32 v{b+8}, v{b+10}, v{b+11}\nv_cvt_pk_bf16_f32 v{b+9}, v{b+12}, v{b+13}")
        p(f"ds_write_b128 v10, v[{b+6}:{b+9}] offset:{rt*18*1024+1024}")
        return L
    MM_(0); MM_(1)
    for x in V(0): a(x)
    MX(2); MM_(2)
    for x in V(1): a(x)
    MX(3); MM_(3)
    a(f"s_mul_i32 s34, s36, {18*1024}")
    a("v_add_u32 v8, s34, v9")
    a("s_lshl_b32 s34, s31, 10")
    a(f"s_add_u32 s34, s34, {EPI}")
    a("v_add_u32 v13, s34, v9")
    a("v_and_b32 v12, 1, v3")
    a("v_lshrrev_b32 v14, 1, v3")
    a("v_lshl_add_u32 v12, v12, 1, v14")
    a("v_lshl_add_u32 v12, v2, 2, v12")
    a("v_lshl_add_u32 v12, v12, 4, s34")
    a("s_lshl_b32 s34, s32, 6")
    a("s_lshl_b32 s3, s36, 4")
    a("s_add_u32 s34, s34, s3")
    a("v_lshrrev_b32 v14, 2, v1")
    a("v_add_u32 v14, s34, v14")
    a("v_mul_u32_u24 v14, 2304, v14")
    a("v_and_b32 v15, 3, v1")
    a("v_lshl_add_u32 v14, v15, 4, v14")
    a("s_lshl_b32 s34, s33, 8")
    a("s_lshl_b32 s3, s35, 6")
    a("s_add_u32 s34, s34, s3")
    a("s_add_u32 s3, s34, 1152")
    a("v_add_u32 v14, s3, v14")
    a("v_xor_b32 v1, 32, v0")
    a("s_waitcnt lgkmcnt(0)")
    a("s_barrier")
    stamp(11)
    OA = 68
    OF = 16
    q_ = []; done = [-1]
    def lds(t, tag=None): a(t); q_.append(tag)
    def emit(x):
        if x.startswith("ds_"): lds(x)
        else: a(x)
    def wait_for(tags):
        idx = max(i for i, t in enumerate(q_) if t in tags)
        if idx > done[0]:
            n = len(q_) - 1 - idx
            a(f"s_waitcnt lgkmcnt({min(n, 15)})")
            done[0] = idx if n <= 15 else len(q_) - 16
    order = [0, 1, 2, 3, 4, 5, 6, 7, 8, 15, 9, 10, 11, 12, 13, 14, 16, 17]
    late = []
    for st in order[10:]:
        for t in range(2):
            for h in range(2):
                r = WOF + 8*st + 4*t + 2*h
                o = 8192*st + 4096*h - 0x14000
                ad = t
                if o < 0: o += 0x4000; ad = None
                late.append((st, t, h, r, o))
    def late_rd(k):
        st, t, h, r, o = late[k]
        if st == 17 and h == 0: a(f"v_add_u32 v{t}, 0x2000, v{t}")
        lds(f"ds_read_b64_tr_b16 v[{r}:{r+1}], v{t} offset:{8192*min(st, 16) + 4096*h - LB}", ("W", st))
    LA = 5
    def ord_(ps, k): lds(f"ds_read_b128 v[{OF+4*(k%8)}:{OF+4*(k%8)+3}], v8 offset:{(ps*36 + order[k])*1024}", ("O", ps, k))
    def epi(ps):
        d = OA + 8*ps; p = 84 + 4*ps
        L = [f"v_cvt_pk_bf16_f32 v{p+k}, v{d+2*k}, v{d+2*k+1}" for k in range(4)]
        L += ["v_nop", f"v_permlane16_swap_b32 v{p}, v{p+2}", f"v_permlane16_swap_b32 v{p+1}, v{p+3}",
              f"ds_write_b128 v12, v[{p}:{p+3}] offset:{8192*ps}", f"ds_read_b128 v[{p+8}:{p+11}], v13 offset:{8192*ps}@E{ps}"]
        return L
    def store(ps):
        wait_for({("E", ps)})
        if ps: a(f"v_add_u32 v14, {32*2304}, v14")
        a(f"global_store_dwordx4 v14, v[{92+4*ps}:{95+4*ps}], s[24:25] {STB}")
    for ps in range(2):
        fill = (V(2) + V(3)) if ps == 0 else ["s_nop 0"] * 4 + epi(0)
        nlate = 0
        if ps == 1:
            a("s_cmp_ge_u32 s34, 1152")
            a("s_cbranch_scc1 L_fin")
        for k in range(LA): ord_(ps, k)
        for k in range(18):
            st = order[k]
            wait_for({("O", ps, k)} | ({("W", st)} if k >= 10 else set()))
            for t in range(2):
                d = OA + 8*ps + 4*t
                mf(d, WOF + 8*st + 4*t, OF + 4*(k%8), "0" if k == 0 else f"v[{d}:{d+3}]")
                if t == 0 and k + LA < 18: ord_(ps, k + LA)
                if ps == 0:
                    for _ in range(2 if k >= 2 else 0):
                        if nlate < len(late): late_rd(nlate); nlate += 1
                for _ in range(2):
                    if fill:
                        x = fill.pop(0)
                        if "@E" in x: lds(x.split("@")[0], ("E", int(x[-1])))
                        else: emit(x)
            if ps == 1 and k == 9: store(0)
        assert not fill
        if ps == 0:
            a("s_waitcnt lgkmcnt(0)"); done[0] = len(q_) - 1
            a("s_barrier")
            stamp(12)
    for x in epi(1):
        if "@E" in x: lds(x.split("@")[0], ("E", 1))
        else: emit(x)
    store(1)
    stamp(13)
```

```python
import sys
from asmlib import *
import hazard
from gen_a import *
from gen_b import *

NST = 15
STAMP_OFF = 200 << 20
def build(stamps=False, do_a=True, do_b=True, do_p3=True):
    a = Asm()
    sbase = 64
    def stamp(i):
        if stamps: a(f"s_memrealtime s[{sbase+2*i}:{sbase+2*i+1}]")
    stamp(0)
    a("s_load_dwordx16 s[4:19], s[0:1], 0")
    a("s_load_dwordx8 s[20:27], s[0:1], 64")
    a("s_load_dwordx2 s[28:29], s[0:1], 96")
    a("s_cmp_ge_u32 s2, 256")
    a("s_cbranch_scc1 L_end")
    a("v_and_b32 v1, 63, v0")
    a("v_lshrrev_b32 v2, 6, v0")
    a("s_and_b32 s42, s2, 7")
    a("s_lshr_b32 s43, s2, 3")
    a("v_readfirstlane_b32 s31, v2")
    a("s_cmp_ge_u32 s43, 22")
    a("s_cbranch_scc1 L_notb")
    if do_b: role_b(a, stamp, do_p3)
    a("s_branch L_fin")
    a("L_notb:")
    a("s_cmp_lt_u32 s43, 31")
    a("s_cbranch_scc1 L_rolea")
    if ROTN == 9:
        a("s_cmp_lg_u32 s42, 0")
        a("s_cbranch_scc1 L_end")
        role_zero(a)
    else: role_spare(a)
    a("L_rolea:")
    if do_a:
        a("s_lshl_b32 s30, s42, 3")
        a("s_add_u32 s30, s30, s43")
        a("s_sub_u32 s30, s30, 22")
        a("s_add_u32 s33, s42, 64")
        a("s_cmp_eq_u32 s43, 30")
        a("s_cselect_b32 s30, s33, s30")
        role_a(a, stamp, None if ROTN == 9 else (pf_setup, pf_base, pf_round))
    a("L_fin:")
    if stamps:
        a("s_waitcnt vmcnt(0)")
        stamp(NST - 1)
        a("s_waitcnt lgkmcnt(0)")
        a("s_mov_b64 exec, 1")
        a("s_lshl_b32 s3, s31, 8")
        a("s_add_u32 s3, s3, s2")
        a(f"s_mul_i32 s3, s3, {8*NST}")
        a(f"s_add_u32 s3, s3, {STAMP_OFF}")
        a("v_mov_b32 v2, s3")
        for i in range(NST):
            a(f"v_mov_b32 v4, s{sbase+2*i}\nv_mov_b32 v5, s{sbase+2*i+1}")
            a(f"global_store_dwordx2 v2, v[4:5], s[28:29] offset:{8*i}")
    a("L_end:")
    a("s_endpgm")
    lines, n = hazard.fix(a.lines)
    print("nops inserted:", n, "lines", len(lines), file=sys.stderr)
    k = kernel_wrap(KN + "_kernel", "\n".join(lines), 256, 102, extra="  .amdhsa_float_denorm_mode_32 3\n")
    return make_file([f"; @launch grid=(256,1,1) block=(512,1,1) lds={B_LDS}"], [k])
if __name__ == "__main__":
    out = sys.argv[1]
    open(out, "w").write(build(stamps="--stamps" in sys.argv, do_a="--noa" not in sys.argv, do_p3="--nop3" not in sys.argv))
```

```python
import sys, os
from asmlib import *
import hazard
from gen_a import *
from gen_b import *

NST = 15
STAMP_OFF = 200 << 20
def build(stamps=False, do_a=True, do_b=True, do_p3=True):
    a = Asm()
    sbase = 64
    def stamp(i):
        if stamps: a(f"s_memrealtime s[{sbase+2*i}:{sbase+2*i+1}]")
    stamp(0)
    a("s_load_dwordx16 s[4:19], s[0:1], 0")
    a("s_load_dwordx8 s[20:27], s[0:1], 64")
    a("s_load_dwordx2 s[28:29], s[0:1], 96")
    a("s_cmp_ge_u32 s2, 256")
    a("s_cbranch_scc1 L_end")
    a("v_and_b32 v1, 63, v0")
    a("v_lshrrev_b32 v2, 6, v0")
    a("s_and_b32 s42, s2, 7")
    a("s_lshr_b32 s43, s2, 3")
    a("v_readfirstlane_b32 s31, v2")
    a("s_cmp_ge_u32 s43, 22")
    a("s_cbranch_scc1 L_notb")
    if do_b: role_b(a, stamp, do_p3)
    a("s_branch L_fin")
    a("L_notb:")
    a("s_cmp_lt_u32 s43, 31")
    a("s_cbranch_scc1 L_rolea")
    if ROTN == 9:
        a("s_cmp_lg_u32 s42, 0")
        a("s_cbranch_scc1 L_end")
        role_zero(a)
    else: role_spare(a)
    a("L_rolea:")
    if do_a:
        a("s_lshl_b32 s30, s42, 3")
        a("s_add_u32 s30, s30, s43")
        a("s_sub_u32 s30, s30, 22")
        a("s_add_u32 s33, s42, 64")
        a("s_cmp_eq_u32 s43, 30")
        a("s_cselect_b32 s30, s33, s30")
        role_a(a, stamp, None if ROTN == 9 else (pf_setup, pf_base, pf_round))
    a("L_fin:")
    if stamps:
        a("s_waitcnt vmcnt(0)")
        stamp(NST - 1)
        a("s_waitcnt lgkmcnt(0)")
        a("s_mov_b64 exec, 1")
        if "dbgout" in DBG:
            a("v_mov_b32 v2, 0")
            a(f"v_mov_b32 v4, s{sbase+2*(NST-1)}")
            a("global_atomic_umax v2, v4, s[26:27] offset:4")
            a(f"s_not_b32 s3, s{sbase}")
            a("v_mov_b32 v4, s3")
            a("global_atomic_umax v2, v4, s[26:27] offset:8")
            wsel = int(os.environ.get("DBGWG", "0")); wv = int(os.environ.get("DBGWV", "0"))
            a(f"s_cmp_lg_u32 s2, {wsel}")
            a("s_cbranch_scc1 L_end")
            a(f"s_cmp_lg_u32 s31, {wv}")
            a("s_cbranch_scc1 L_end")
            for i in range(1, 14):
                a(f"v_mov_b32 v4, s{sbase+2*i}")
                a(f"global_store_dword v2, v4, s[26:27] offset:{8+4*i}")
            a("s_branch L_end")
        a("s_lshl_b32 s3, s31, 8")
        a("s_add_u32 s3, s3, s2")
        a(f"s_mul_i32 s3, s3, {8*NST}")
        a(f"s_add_u32 s3, s3, {STAMP_OFF}")
        a("v_mov_b32 v2, s3")
        for i in range(NST):
            a(f"v_mov_b32 v4, s{sbase+2*i}\nv_mov_b32 v5, s{sbase+2*i+1}")
            a(f"global_store_dwordx2 v2, v[4:5], s[28:29] offset:{8*i}")
    a("L_end:")
    a("s_endpgm")
    lines, n = hazard.fix(a.lines)
    print("nops inserted:", n, "lines", len(lines), file=sys.stderr)
    k = kernel_wrap(KN + "_kernel", "\n".join(lines), 256, 102, extra="  .amdhsa_float_denorm_mode_32 3\n")
    return make_file([f"; @launch grid=(256,1,1) block=(512,1,1) lds={B_LDS}"], [k])
if __name__ == "__main__":
    out = sys.argv[1]
    open(out, "w").write(build(stamps="--stamps" in sys.argv, do_a="--noa" not in sys.argv, do_p3="--nop3" not in sys.argv))
```

```python
import sys, os
from asmlib import *
import hazard
from gen_a import *
from gen_b import *

NST = 15
STAMP_OFF = 200 << 20
def build(stamps=False, do_a=True, do_b=True, do_p3=True):
    a = Asm()
    sbase = 64
    def stamp(i):
        if stamps: a(f"s_memrealtime s[{sbase+2*i}:{sbase+2*i+1}]")
    stamp(0)
    a("s_load_dwordx16 s[4:19], s[0:1], 0")
    a("s_load_dwordx8 s[20:27], s[0:1], 64")
    a("s_load_dwordx2 s[28:29], s[0:1], 96")
    a("s_cmp_ge_u32 s2, 256")
    a("s_cbranch_scc1 L_end")
    a("v_and_b32 v1, 63, v0")
    a("v_lshrrev_b32 v2, 6, v0")
    a("s_and_b32 s42, s2, 7")
    a("s_lshr_b32 s43, s2, 3")
    a("v_readfirstlane_b32 s31, v2")
    a("s_cmp_ge_u32 s43, 22")
    a("s_cbranch_scc1 L_notb")
    if do_b: role_b(a, stamp, do_p3)
    a("s_branch L_fin")
    a("L_notb:")
    a("s_cmp_lt_u32 s43, 31")
    a("s_cbranch_scc1 L_rolea")
    if os.environ.get("SPIN"):
        a("s_cmp_lg_u32 s42, 7")
        a("s_cbranch_scc1 L_nospin")
        a("s_memrealtime s[60:61]")
        a("s_waitcnt lgkmcnt(0)")
        a("L_spin:")
        a("s_sleep 4")
        a("s_memrealtime s[62:63]")
        a("s_waitcnt lgkmcnt(0)")
        a("s_sub_u32 s3, s62, s60")
        a(f"s_cmp_lt_u32 s3, {int(os.environ['SPIN'])*100}")
        a("s_cbranch_scc1 L_spin")
        a("s_branch L_end")
        a("L_nospin:")
    if ROTN == 9:
        a("s_cmp_lg_u32 s42, 0")
        a("s_cbranch_scc1 L_end")
        role_zero(a)
    else: role_spare(a)
    a("L_rolea:")
    if do_a:
        a("s_lshl_b32 s30, s42, 3")
        a("s_add_u32 s30, s30, s43")
        a("s_sub_u32 s30, s30, 22")
        a("s_add_u32 s33, s42, 64")
        a("s_cmp_eq_u32 s43, 30")
        a("s_cselect_b32 s30, s33, s30")
        role_a(a, stamp, None if ROTN == 9 else (pf_setup, pf_base, pf_round))
    a("L_fin:")
    if stamps:
        a("s_waitcnt vmcnt(0)")
        stamp(NST - 1)
        a("s_waitcnt lgkmcnt(0)")
        a("s_mov_b64 exec, 1")
        if os.environ.get("SPINK"):
            k = int(os.environ["SPINK"]); wsel = int(os.environ.get("DBGWG", "0")); wv = int(os.environ.get("DBGWV", "0"))
            a(f"s_cmp_lg_u32 s2, {wsel}")
            a("s_cbranch_scc1 L_end")
            a(f"s_cmp_lg_u32 s31, {wv}")
            a("s_cbranch_scc1 L_end")
            a("L_spin:")
            a("s_sleep 2")
            a("s_memrealtime s[62:63]")
            a("s_waitcnt lgkmcnt(0)")
            a(f"s_sub_u32 s3, s62, s{sbase+2*k}")
            a("s_cmp_lt_u32 s3, 3000")
            a("s_cbranch_scc1 L_spin")
            a("s_branch L_end")
        if "dbgout" in DBG:
            a("v_mov_b32 v2, 0")
            a(f"v_mov_b32 v4, s{sbase+2*(NST-1)}")
            a("global_atomic_umax v2, v4, s[26:27] offset:4")
            a(f"s_not_b32 s3, s{sbase}")
            a("v_mov_b32 v4, s3")
            a("global_atomic_umax v2, v4, s[26:27] offset:8")
            wsel = int(os.environ.get("DBGWG", "0")); wv = int(os.environ.get("DBGWV", "0"))
            a(f"s_cmp_lg_u32 s2, {wsel}")
            a("s_cbranch_scc1 L_end")
            a(f"s_cmp_lg_u32 s31, {wv}")
            a("s_cbranch_scc1 L_end")
            for i in range(1, 14):
                a(f"v_mov_b32 v4, s{sbase+2*i}")
                a(f"global_store_dword v2, v4, s[26:27] offset:{8+4*i}")
            a("s_branch L_end")
        a("s_lshl_b32 s3, s31, 8")
        a("s_add_u32 s3, s3, s2")
        a(f"s_mul_i32 s3, s3, {8*NST}")
        a(f"s_add_u32 s3, s3, {STAMP_OFF}")
        a("v_mov_b32 v2, s3")
        for i in range(NST):
            a(f"v_mov_b32 v4, s{sbase+2*i}\nv_mov_b32 v5, s{sbase+2*i+1}")
            a(f"global_store_dwordx2 v2, v[4:5], s[28:29] offset:{8*i}")
    a("L_end:")
    a("s_endpgm")
    lines, n = hazard.fix(a.lines)
    print("nops inserted:", n, "lines", len(lines), file=sys.stderr)
    k = kernel_wrap(KN + "_kernel", "\n".join(lines), 256, 102, extra="  .amdhsa_float_denorm_mode_32 3\n")
    return make_file([f"; @launch grid=(256,1,1) block=(512,1,1) lds={B_LDS}"], [k])
if __name__ == "__main__":
    out = sys.argv[1]
    open(out, "w").write(build(stamps="--stamps" in sys.argv, do_a="--noa" not in sys.argv, do_p3="--nop3" not in sys.argv))
```

```python
import math, os
STA = os.environ.get("STA", "")
LOG2E = 1.4426950408889634
import struct
def f2u(x): return struct.unpack("<I", struct.pack("<f", x))[0]
def hexf(x): return "0x%08x" % f2u(x)
L2E_HI = struct.unpack("<f", struct.pack("<f", LOG2E))[0]
L2E_LO = LOG2E - L2E_HI

USTR = 4672
KBASE = 8 * USTR
KSTR = 8704
EOFF = 2112
YSTR = 4160
GROW = 544
USTG = KBASE + 8 * KSTR
A_LDS = USTG + 8 * YSTR

STREAMS = [(-24, 16, 2), (-16, 4, 1), (-16, 8, 2), (-16, 12, 1), (-24, 16, 4), (-16, 8, 3)]
BAND = 224
CUTS = [3, 6]
ULATE = int(os.environ.get('ULATE', '1'))
def role_a(a, stamp=lambda i: None, pf=None):
    a.c("---------------- role A ----------------")
    if pf: pf[0](a, 252, 253)
    a("s_lshl_b32 s32, s30, 3")
    a("s_add_u32 s32, s32, s31")
    a("s_lshl_b32 s33, s32, 8")
    a("v_lshl_add_u32 v2, v1, 2, s33")
    a("s_lshl_b32 s33, s32, 1")
    a("v_mov_b32 v3, s33")
    a("s_waitcnt lgkmcnt(0)")
    a("global_load_dword v10, v2, s[6:7]")
    a("global_load_ushort v14, v3, s[14:15]")
    a("global_load_dword v11, v2, s[8:9]")
    a("global_load_dword v12, v2, s[10:11]")
    a("global_load_dword v13, v2, s[12:13]")
    a("global_load_ushort v15, v3, s[16:17]")
    a("v_mul_u32_u24 v4, 1152, v0")
    a("s_lshl_b32 s33, s30, 4")
    a("v_add_u32 v4, s33, v4")
    a("s_mov_b64 s[44:45], s[4:5]\ns_mov_b32 s46, 2359296\ns_mov_b32 s47, 0x20000")
    a("s_lshl_b32 s48, s31, 10")
    a(f"s_add_u32 s48, s48, {USTG}")
    a("s_mov_b32 s49, s43")
    def uload(j):
        a("s_and_b32 s49, s49, 3")
        a("s_lshl_b32 s3, s49, 13")
        a("s_add_u32 m0, s48, s3")
        a(f"s_mul_i32 s3, s49, {512*1152}")
        a("s_add_u32 s49, s49, 1")
        a("buffer_load_dwordx4 v4, s[44:47], s3 offen lds")
    if not ULATE: uload(0)
    NPF = int(os.environ.get('NPF', '2')) if pf else 0
    if pf:
        pf[1](a)
        for r in range(NPF): pf[2](a, 252, 253 + r, r)
    a("v_and_b32 v5, 15, v1")
    a("v_lshrrev_b32 v6, 4, v1")
    a(f"s_mul_i32 s34, s31, {KSTR}")
    a(f"s_add_u32 s34, s34, {KBASE}")
    a(f"s_mul_i32 s35, s31, {USTR}")
    a("v_lshl_add_u32 v7, v1, 3, s34")
    a(f"v_mul_u32_u24 v8, {GROW}, v5")
    a("v_lshl_add_u32 v8, v6, 4, v8")
    a("v_add_u32 v8, s34, v8")
    a("v_mov_b32 v16, 0\nv_mov_b32 v17, 0")
    a("v_lshl_add_u32 v9, v1, 3, s35")
    a("ds_write_b64 v9, v[16:17]")
    a(f"s_mov_b32 s36, {hexf(L2E_HI)}")
    a(f"s_mov_b32 s37, {hexf(L2E_LO)}")
    a(f"s_mov_b32 s38, {hexf(math.log(2.0))}")
    a("s_mov_b32 s39, 0xffff0000")
    a("v_lshlrev_b32 v20, 3, v6")
    a("v_sub_u32 v20, v20, v5")
    a("v_add_u32 v21, 1, v20")
    a("s_mov_b32 s40, 0x05040100")
    a("v_perm_b32 v20, v21, v20, s40")
    a("s_mov_b32 s41, 0x3f803f80")
    a("s_mov_b32 s50, 0x00010001")
    for k, (start, sh, hw) in enumerate(STREAMS + [None]) if False else []: pass
    rng = [(-st - sh - hw, -st - sh + hw) for (st, sh, hw) in STREAMS] + [(12, 13)]
    for k, (lo, hi) in enumerate(rng):
        n = hi - lo + 1
        a(f"s_mov_b32 s51, {hex(n * 0x10001)}")
        for d in range(4):
            r = BAND + 4 * k + d
            c = (2 * d - lo) & 0xffff
            a(f"s_mov_b32 s52, {hex(c * 0x10001)}")
            a(f"v_pk_add_u16 v{r}, v20, s52")
            a(f"v_pk_sub_u16 v{r}, s51, v{r} clamp")
            a(f"v_pk_min_u16 v{r}, v{r}, s50")
            if k < 6: a(f"v_pk_mul_lo_u16 v{r}, v{r}, s41")
    stamp(1)
    def exp_bf16(dst, x, t0, t1):
        a(f"v_mul_f32 v{t0}, s36, v{x}")
        a(f"v_fma_f32 v{t1}, v{x}, s36, -v{t0}")
        a(f"v_fmac_f32 v{t1}, s37, v{x}")
        a(f"v_exp_f32 v{t0}, v{t0}")
        a(f"v_mul_f32 v{t1}, s38, v{t1}")
        a(f"v_fma_f32 v{t0}, v{t0}, v{t1}, v{t0}")
        a(f"v_cvt_pk_bf16_f32 v{t0}, v{t0}, v{t0}")
        a(f"v_and_b32 v{dst}, s39, v{t0}")
    a(f"s_waitcnt vmcnt({(4 if ULATE else 5) + NPF})")
    a("v_lshlrev_b32 v20, 16, v10")
    a("v_and_b32 v21, s39, v10")
    a("v_lshlrev_b32 v14, 16, v14")
    exp_bf16(18, 14, 22, 23)
    exp_bf16(20, 20, 22, 23)
    exp_bf16(21, 21, 24, 25)
    a("v_mul_f32 v20, v20, v18\nv_mul_f32 v21, v21, v18")
    a("v_mul_f32 v20, s36, v20\nv_mul_f32 v21, s36, v21")
    a(f"s_waitcnt vmcnt({(0 if ULATE else 1) + NPF})")
    if not ULATE: uload(1)
    a("v_lshlrev_b32 v22, 16, v11\nv_and_b32 v23, s39, v11")
    a("v_mul_f32 v22, v22, v18\nv_mul_f32 v23, v23, v18")
    a("v_mul_f32 v22, 0.15915494, v22\nv_mul_f32 v23, 0.15915494, v23")
    a("v_add_f32 v19, v18, v18")
    C = 24
    a("v_lshlrev_b32 v24, 16, v12\nv_and_b32 v25, s39, v12")
    a("v_lshlrev_b32 v26, 16, v13\nv_and_b32 v27, s39, v13")
    a("v_mul_f32 v24, v24, v19\nv_mul_f32 v25, v25, v19")
    a("v_mul_f32 v26, v26, -v19\nv_mul_f32 v27, v27, -v19" .replace("v_mul_f32", "v_mul_f32_e64"))
    a("v_lshlrev_b32 v15, 16, v15")
    def direct(dst, c, conj):
        t = 60
        cs = hexf(float(c))
        for h in range(2):
            a(f"v_mul_f32 v{t+h}, {hexf(-float(c))}, v{20+h}")
            a(f"v_mul_f32 v{t+2+h}, {hexf(-float(c) if conj else float(c))}, v{22+h}")
        for h in range(2):
            a(f"v_exp_f32 v{t+h}, v{t+h}")
            a(f"v_fract_f32 v{t+2+h}, v{t+2+h}")
        for h in range(2):
            a(f"v_cos_f32 v{dst+h}, v{t+2+h}")
            a(f"v_sin_f32 v{dst+2+h}, v{t+2+h}")
        a(f"v_pk_mul_f32 v[{dst}:{dst+1}], v[{dst}:{dst+1}], v[{t}:{t+1}]")
        a(f"v_pk_mul_f32 v[{dst+2}:{dst+3}], v[{dst+2}:{dst+3}], v[{t}:{t+1}]")
    tcnt = [0]
    def cmul(d, z, w):
        t = 64 + 4 * (tcnt[0] % 2); tcnt[0] += 1
        assert d != z and d != w
        a(f"v_pk_mul_f32 v[{t}:{t+1}], v[{z+2}:{z+3}], v[{w+2}:{w+3}]")
        a(f"v_pk_mul_f32 v[{t+2}:{t+3}], v[{z+2}:{z+3}], v[{w}:{w+1}]")
        a(f"v_pk_fma_f32 v[{d}:{d+1}], v[{z}:{z+1}], v[{w}:{w+1}], v[{t}:{t+1}] neg_lo:[0,0,1] neg_hi:[0,0,1]")
        a(f"v_pk_fma_f32 v[{d+2}:{d+3}], v[{z}:{z+1}], v[{w+2}:{w+3}], v[{t+2}:{t+3}]")
    pcnt = [0]
    def emit(z, row):
        p = 72 + 2 * (pcnt[0] % 4); pcnt[0] += 1
        a(f"v_cvt_pk_bf16_f32 v{p}, v{z}, v{z+2}")
        a(f"v_cvt_pk_bf16_f32 v{p+1}, v{z+1}, v{z+3}")
        a(f"ds_write_b64 v7, v[{p}:{p+1}] offset:{row*GROW}")
    W16, W1, E256, W2, W4, W8 = 28, 32, 36, 40, 44, 48
    Z0, Z1, G0, G1 = 52, 56, 80, 84
    FA, FB = 96, 128
    ACC = 160
    direct(W16, 16, False)
    a("v_mov_b32 v72, 0x3f80\nv_mov_b32 v73, 0x3f80")
    a("ds_write_b64 v7, v[72:73]"); pcnt[0] = 1
    emit(W16, 1)
    cmul(Z0, W16, W16); emit(Z0, 2)
    z, o = Z0, Z1
    for i in range(3, 16):
        cmul(o, z, W16); emit(o, i); z, o = o, z
        if i == (10 if ULATE else 6): uload(2)
    for s in range(8): a(f"ds_read_b128 v[{FA+4*s}:{FA+4*s+3}], v8 offset:{64*s}")
    direct(W1, 1, True)
    uload(3)
    direct(E256, 256, True)
    def tile_mfma(t):
        for s in range(8): a(f"ds_read_b128 v[{FB+4*s}:{FB+4*s+3}], v8 offset:{64*s}")
    def tile_mfma2(t, swap=False):
        a("s_waitcnt lgkmcnt(0)")
        for s in range(8):
            c = "0" if s == 0 else f"v[{ACC+4*t}:{ACC+4*t+3}]"
            x, y = (FA, FB) if swap else (FB, FA)
            a(f"v_mfma_f32_16x16x32_bf16 v[{ACC+4*t}:{ACC+4*t+3}], v[{x+4*s}:{x+4*s+3}], v[{y+4*s}:{y+4*s+3}], {c}")
    def wopf():
        a("s_sub_u32 s33, s43, 23")
        a("s_lshl_b32 s33, s33, 3")
        a("s_add_u32 s33, s33, s31")
        a("s_lshl_b32 s3, s33, 13")
        a("v_lshl_add_u32 v220, v1, 7, s3")
        a("s_lshl_b32 s3, s33, 10")
        a(f"s_add_u32 s3, s3, {4608*128}")
        a("v_and_b32 v221, 7, v1")
        a("v_lshl_add_u32 v221, v221, 7, s3")
        a("global_load_dword v220, v220, s[22:23]")
        a("global_load_dword v221, v221, s[22:23]")
    def utrans():
        a("v_bfe_u32 v200, v1, 2, 2")
        a("v_lshl_add_u32 v200, v6, 3, v200")
        a("v_bfe_u32 v201, v1, 1, 1")
        a("v_lshl_add_u32 v200, v201, 2, v200")
        a("v_lshlrev_b32 v200, 4, v200")
        a("v_and_b32 v201, 1, v1")
        a("v_lshl_add_u32 v200, v201, 3, v200")
        a("s_lshl_b32 s3, s31, 12")
        a(f"s_add_u32 s3, s3, {USTG}")
        a("v_add_u32 v200, s3, v200")
        a("v_and_b32 v201, 7, v1")
        a(f"v_mul_u32_u24 v201, {USTR}, v201")
        a("v_lshrrev_b32 v202, 3, v1")
        a("v_lshl_add_u32 v201, v202, 3, v201")
        a("s_lshl_b32 s3, s31, 9")
        a("v_add_u32 v201, s3, v201")
        stamp(7)
        a("s_waitcnt vmcnt(2)")
        a("s_barrier")
        stamp(8)
        for i in range(8): a(f"ds_read_b64_tr_b16 v[{204+2*i}:{205+2*i}], v200 offset:{512*i}")
        for i in range(8):
            a(f"s_waitcnt lgkmcnt(7)")
            a(f"ds_write_b64 v201, v[{204+2*i}:{205+2*i}] offset:{512+64*i}")
        a("s_waitcnt lgkmcnt(0)")
        a("s_barrier")
    emit(C, 0)
    cmul(Z0, C, W1); emit(Z0, 1)
    z, o = Z0, Z1
    for j in range(2, 16):
        cmul(o, z, W1); emit(o, j); z, o = o, z
        if ULATE and j in (5, 11): uload(0)
    tile_mfma(0)
    cmul(W2, W1, W1); cmul(G0, C, E256); cmul(W4, W2, W2); cmul(Z0, G0, W2); cmul(W8, W4, W4)
    tile_mfma2(0)
    emit(G0, 0); emit(Z0, 1)
    cmul(G1, G0, E256)
    z, o = Z0, Z1
    for j in range(2, 8):
        cmul(o, z, W2); emit(o, j); z, o = o, z
    emit(G1, 8)
    wopf()
    tile_mfma(1)
    cmul(G0, G1, E256)
    cmul(Z0, G1, W4)
    cmul(Z1, Z0, W4)
    tile_mfma2(1)
    if not ULATE: utrans()
    emit(Z0, 1); emit(Z1, 2); cmul(Z0, Z1, W4); emit(Z0, 3); cmul(Z1, Z0, W4); emit(Z1, 0)
    cmul(G1, G0, E256)
    cmul(Z0, G0, W4); emit(Z0, 5); cmul(Z1, Z0, W4); emit(Z1, 6); cmul(Z0, Z1, W4); emit(Z0, 7); cmul(Z1, Z0, W4); emit(Z1, 4)
    g, og = G1, G0
    for h in range(4):
        cmul(Z0, g, W8)
        if h < 3: cmul(og, g, E256)
        emit(Z0, 8 + 2*h + 1)
        cmul(Z1, Z0, W8); emit(Z1, 8 + 2*h)
        g, og = og, g
    if ULATE: utrans()
    tile_mfma(2)
    stamp(2)
    T0, T1, T2 = ACC, ACC+4, ACC+8
    a("v_lshl_add_u32 v25, v1, 4, s34")
    a("v_mov_b64 v[18:19], v[16:17]")
    a("ds_write_b128 v25, v[16:19]")
    a("ds_write_b128 v25, v[16:19] offset:1024")
    a("ds_write_b128 v25, v[16:19] offset:2048")
    a("v_cmp_eq_u32 vcc, 0, v1")
    a("v_cndmask_b32 v15, 0, v15, vcc")
    a(f"v_add_f32 v{T0}, v{T0}, v15")
    a("v_lshlrev_b32 v20, 5, v5")
    a("v_sub_u32 v20, s34, v20")
    a(f"v_cvt_pk_bf16_f32 v64, v{T1+3}, v{T1+3}")
    a(f"v_cvt_pk_bf16_f32 v66, v{T1+2}, v{T1+2}")
    a(f"v_cvt_pk_bf16_f32 v69, v{T1}, v{T1}")
    a(f"v_cvt_pk_bf16_f32 v70, v{T1+2}, v{T1+1}")
    a("v_lshlrev_b32 v23, 4, v6")
    a("v_sub_u32 v23, v20, v23")
    a("v_lshlrev_b32 v24, 3, v6")
    a("v_sub_u32 v26, s34, v24")
    a("v_sub_u32 v24, v20, v24")
    a(f"v_cvt_pk_bf16_f32 v72, v{T0+3}, v{T0+2}")
    a(f"v_cvt_pk_bf16_f32 v73, v{T0+1}, v{T0}")
    a("s_mov_b32 exec_lo, 0\ns_mov_b32 exec_hi, 1")
    a(f"ds_write_b16 v20, v69 offset:{14*4+2}")
    a(f"ds_write_b32 v20, v69 offset:{15*4}")
    a(f"ds_write_b16 v20, v69 offset:{16*4}")
    a("s_mov_b32 exec_lo, -1\ns_mov_b32 exec_hi, 0")
    a(f"ds_write_b16 v23, v64 offset:{140*4+2}")
    a("ds_write2_b32 v23, v66, v70 offset0:141 offset1:142")
    a(f"ds_write_b32 v23, v69 offset:{143*4}")
    a(f"ds_write_b16 v23, v69 offset:{144*4}")
    a("s_mov_b64 exec, -1")
    a(f"ds_write_b64 v24, v[72:73] offset:{270*4}")
    a("v_and_b32 v27, 3, v5")
    a("v_mul_u32_u24 v27, 96, v27")
    a("v_bfe_u32 v28, v5, 2, 1")
    a("v_lshlrev_b32 v28, 5, v28")
    a("v_sub_u32 v27, v27, v28")
    a("v_and_b32 v28, 1, v5")
    a("v_mul_u32_u24 v28, 160, v28")
    a("v_bfe_u32 v29, v5, 1, 2")
    a("v_lshlrev_b32 v29, 5, v29")
    a("v_sub_u32 v28, v28, v29")
    a(f"v_add_u32 v28, {(406-294)*4}, v28")
    a("v_cmp_gt_u32 vcc, 8, v5")
    a("v_cndmask_b32 v27, v28, v27, vcc")
    a("v_add_u32 v27, v27, v26")
    a("s_waitcnt lgkmcnt(11)")
    for s_ in range(8):
        c = "0" if s_ == 0 else f"v[{T2}:{T2+3}]"
        a(f"v_mfma_f32_16x16x32_bf16 v[{T2}:{T2+3}], v[{FA+4*s_}:{FA+4*s_+3}], v[{FB+4*s_}:{FB+4*s_+3}], {c}")
    stamp(3)
    a("v_and_b32 v28, 1, v5")
    a(f"v_mul_u32_u24 v28, {EOFF}, v28")
    a("v_lshrrev_b32 v29, 1, v5")
    a("v_lshlrev_b32 v29, 2, v29")
    a("v_add_u32 v28, v28, v29")
    a("v_sub_u32 v28, s34, v28")
    a(f"v_add_u32 v28, {EOFF}, v28")
    a("v_lshl_add_u32 v10, v6, 4, v28")
    a(f"v_add_u32 v11, {128*4}, v10")
    a("v_lshl_add_u32 v12, v6, 3, v28")
    a(f"v_add_u32 v12, {256*4}, v12")
    a("v_lshlrev_b32 v13, 5, v5")
    a("v_lshl_add_u32 v14, v6, 3, v13")
    a("v_lshl_add_u32 v13, v6, 4, v13")
    a("v_add_u32 v13, s35, v13")
    a(f"s_mul_i32 s3, s31, {YSTR}")
    a(f"s_add_u32 s3, s3, {USTG}")
    a("v_add_u32 v14, s3, v14")
    a(f"v_cvt_pk_bf16_f32 v72, v{T2+3}, v{T2+2}")
    a(f"v_cvt_pk_bf16_f32 v73, v{T2+1}, v{T2}")
    a(f"ds_write_b64 v27, v[72:73] offset:{294*4}")
    for j in range(2):
        a(f"ds_read_b128 v[{96+8*j}:{99+8*j}], v25 offset:{1024*j}")
        a(f"ds_read_b32 v{100+8*j}, v25 offset:{1024*j+16}")
    a("v_readlane_b32 s3, v72, 52")
    a("s_and_b32 s3, s3, 0xffff")
    a("s_mul_i32 s3, s3, 0x10001")
    for d in range(4): a(f"v_pk_mul_lo_u16 v{BAND+24+d}, v{BAND+24+d}, s3")
    a("v_lshrrev_b32 v3, 2, v5")
    a(f"v_mul_u32_u24 v3, {YSTR}, v3")
    a("v_and_b32 v4, 3, v5")
    a("v_lshl_add_u32 v3, v4, 3, v3")
    a("v_lshl_add_u32 v3, v6, 5, v3")
    a(f"v_add_u32 v3, {USTG}, v3")
    a("v_mul_u32_u24 v4, 2304, v1")
    a("s_lshl_b32 s33, s30, 4")
    a("v_add_u32 v4, s33, v4")
    for j in range(2):
        a(f"s_waitcnt lgkmcnt({2-2*j})")
        for k in range(4):
            a(f"v_alignbit_b32 v{128+4*j+k}, v{97+8*j+k}, v{96+8*j+k}, 16")
        a(f"ds_write_b128 v25, v[{128+4*j}:{131+4*j}] offset:{EOFF+1024*j}")
    stamp(4)
    Y = 16
    TF = 48
    BF = 116
    UR = 156
    WT = 188
    YP = 212
    T65 = BAND + 24
    q_ = []
    def lds(txt, tag=None):
        a(txt); q_.append(tag)
    def need(tags):
        idx = max(i for i, t in enumerate(q_) if t in tags)
        n = len(q_) - 1 - idx
        if n < need.done:
            a(f"s_waitcnt lgkmcnt({min(n, 15)})")
        need.best = None
    done_upto = [-1]
    def wait_for(tags):
        idx = max(i for i, t in enumerate(q_) if t in tags)
        if idx > done_upto[0]:
            n = len(q_) - 1 - idx
            a(f"s_waitcnt lgkmcnt({min(n, 15)})")
            done_upto[0] = idx if n <= 15 else len(q_) - 1 - 15
    def tload(k):
        o = 271 - 8 * (2*k + 1)
        ad = 10
        if o >= 128: ad, o = 11, o - 128
        lds(f"ds_read2_b32 v[{TF+4*k}:{TF+4*k+1}], v{ad} offset0:{o} offset1:{o+1}", ("T", k))
        lds(f"ds_read2_b32 v[{TF+4*k+2}:{TF+4*k+3}], v{ad} offset0:{o+2} offset1:{o+3}", ("T", k))
    bfl = [(0, d) for d in (2, 3, 4)] + [(1, d) for d in (2, 3, 4)] + [(2, d) for d in (4, 5, 6, 7)]
    def bload(n):
        pr, dl = bfl[n]
        for hf in range(2):
            if pr < 2: o = 280 + 24 * (2*pr + hf) + 31 - 8 * dl
            else: o = 376 + 40 * hf + 63 - 8 * dl
            o -= 256
            lds(f"ds_read2_b32 v[{BF+4*n+2*hf}:{BF+4*n+2*hf+1}], v12 offset0:{o} offset1:{o+1}", ("B", n))
    useq = []
    for q in range(8):
        useq += ([(q, 'x')] if q < 6 else []) + [(q, r) for r in range(8)]
    upos = {u: i for i, u in enumerate(useq)}
    def ureg(u): return UR + 4 * (upos[u] % 8)
    unext = [0]
    def uld():
        if unext[0] >= len(useq): return
        q, r = u = useq[unext[0]]; unext[0] += 1
        o = 512 * q + (480 - 16 if r == 'x' else 480 - 64 * r)
        lds(f"ds_read_b128 v[{ureg(u)}:{ureg(u)+3}], v13 offset:{o}", ("U", u))
    first = set()
    def mf(d, x, y, c): a(f"v_mfma_f32_16x16x32_bf16 v[{d}:{d+3}], v[{x}:{x+3}], v[{y}:{y+3}], {c}")
    def ymf(at, x, y):
        c = f"v[{Y+4*at}:{Y+4*at+3}]" if at in first else "0"
        first.add(at)
        mf(Y + 4*at, x, y, c)
    def ywrite(at):
        p = YP + 2 * (at % 2)
        a(f"v_cvt_pk_bf16_f32 v{p}, v{Y+4*at}, v{Y+4*at+1}")
        a(f"v_cvt_pk_bf16_f32 v{p+1}, v{Y+4*at+2}, v{Y+4*at+3}")
        lds(f"ds_write_b64 v14, v[{p}:{p+1}] offset:{512*at}", ("Y", at))
    uld(); uld()
    pend = []
    tload(0); tload(8); tload(16)
    for k in range(1, 8): pend.append(lambda k=k: (tload(k), tload(k + 8)))
    for n in range(10): pend.append(lambda n=n: bload(n))
    for _ in range(3): uld()
    for _ in range(2): pend.pop(0)()
    for q in range(8):
        npair = 3 if q < 4 else (2 if q < 6 else 0)
        for pr in range(npair):
            for hf in range(2):
                st = STREAMS[2*pr + hf]
                u = (q, 'x') if st[0] == -24 else (q, 0)
                wait_for({("U", u)})
                mf(WT + 8*pr + 4*hf, ureg(u), BAND + 4*(2*pr + hf), "0")
                if pend: pend.pop(0)()
        if q < 6: uld()
        scat = [(n, pr, dl) for n, (pr, dl) in enumerate(bfl) if pr < npair and q + dl < 8]
        scat.sort(key=lambda t: t[1])
        for r in range(8):
            u = (q, r)
            wait_for({("U", u), ("T", r)})
            ymf(q, TF + 4*r, ureg(u))
            if pend: pend.pop(0)()
            if q < 7:
                wait_for({("T", r + 8)})
                ymf(q + 1, TF + 4*(r + 8), ureg(u))
            if r == 0:
                if q < 6: wait_for({("T", 16)}); ymf(q + 2, TF + 64, ureg(u))
                if q < 4: ymf(q + 4, T65, ureg(u))
            uld()
            if pend: pend.pop(0)()
            if r == 1 and q > 0: ywrite(q - 1)
            if 2 <= r <= 4 and r - 2 < npair:
                w = WT + 8 * (r - 2)
                for k in range(4): a(f"v_cvt_pk_bf16_f32 v{w+k}, v{w+2*k}, v{w+2*k+1}")
            if r >= 3:
                take = [t for t in scat if t[1] <= r - 3][:(3 if r < 7 else 99)]
                for t in take:
                    scat.remove(t)
                    n, pr, dl = t
                    wait_for({("B", n)})
                    ymf(q + dl, WT + 8*pr, BF + 4*n)
            if r == 2 and q in CUTS:
                lab = a.label("L_a_noy")
                a("s_cmp_lt_u32 s31, 4")
                a(f"s_cbranch_scc1 {lab}")
                idx = max(i for i, t in enumerate(q_) if t == ("Y", q - 1))
                a(f"s_waitcnt lgkmcnt({len(q_) - 1 - idx})")
                a("s_barrier")
                a(f"{lab}:")
        assert not scat
    stamp(5)
    ywrite(7)
    def ystore(n, row0_sreg):
        a(f"s_lshl_b32 s3, s{row0_sreg}, 1")
        a("v_add_u32 v7, s3, v3")
        a(f"s_mul_i32 s3, s{row0_sreg}, 2304")
        a("v_add_u32 v8, s3, v4")
        for j in range(n):
            a(f"ds_read_b64_tr_b16 v[{60+4*j}:{61+4*j}], v7 offset:{128*j}")
            a(f"ds_read_b64_tr_b16 v[{62+4*j}:{63+4*j}], v7 offset:{128*j+4*YSTR}")
        for j in range(n):
            a(f"s_waitcnt lgkmcnt({2*(n-1-j)})")
            a(f"global_store_dwordx4 v8, v[{60+4*j}:{63+4*j}], s[24:25] {STA}")
            if j < n - 1: a(f"v_add_u32 v8, {64*2304}, v8")
    a("s_waitcnt lgkmcnt(0)")
    a("s_cmp_ge_u32 s31, 4")
    a("s_cbranch_scc1 L_a_y2")
    prev = 0
    for cut in CUTS:
        n = cut - prev
        a("s_barrier")
        a(f"s_mul_i32 s33, s31, {64*n}")
        a(f"s_add_u32 s33, s33, {256*prev}")
        ystore(n, 33)
        a("s_nop 1")
        prev = cut
    a("L_a_y2:")
    a("s_barrier")
    n = (8 - prev) // 2
    a(f"s_mul_i32 s33, s31, {64*n}")
    a(f"s_add_u32 s33, s33, {256*prev}")
    ystore(n, 33)
    stamp(6)
    if os.environ.get("WBL2"):
        a("s_waitcnt vmcnt(0)")
        a("s_barrier")
        a("s_cmp_lg_u32 s31, 0")
        a("s_cbranch_scc1 L_fin")
        a("buffer_wbl2 sc1")
```

```python
import os
from gen_a import hexf, LOG2E
DBG = os.environ.get('DBG', '')
STB = os.environ.get('STB', 'sc1')
PORD = os.environ.get('PORD', 'qk')
QW = int(os.environ.get('QW', '8'))
NS = 4
WROW = 288
WSZ = 64 * WROW
EXS = 160
LCNT = 163776
EX = LCNT - 2 * 128 * EXS
B_LDS = 163840
EPI = 147456
KVACC, CNT, PQC, PQ, PQL, WS_SZ = 0, 0xC000, 0xE000, 0x100000, 0x300000, 0x400000
PAIRB = 2816
O_MMB, O_LD, O_XM, O_XL = 1024, 2048, 2304, 2688
EPS = 1e-6
ONE_EPS = 1.0 + 1e-6
OOB = "0x7ffffff0"
SX, SW, SWO, SWS, SDB = 44, 48, 52, 56, 60
WSR = f"s[{SWS}:{SWS+3}]"
WOF = 112
AS0 = 23

def srd(a, r, p, size):
    a(f"s_mov_b32 s{r}, s{p}\ns_mov_b32 s{r+1}, s{p+1}\ns_mov_b32 s{r+2}, {size}\ns_mov_b32 s{r+3}, 0x20000")

PFS = [int(x) for x in os.environ.get("PFS", "8,7,1,3,5,6").split(",")]
def pf_setup(a, v, t):
    a(f"s_sub_u32 s53, s43, {AS0}")
    a("s_lshl_b32 s53, s53, 3")
    a("s_add_u32 s53, s53, s31")
    a("s_mul_i32 s57, s53, 43")
    a("s_lshr_b32 s57, s57, 10")
    a("s_mul_i32 s58, s57, 24")
    a("s_sub_u32 s58, s53, s58")
    a("s_lshl_b32 s57, s57, 2")
    a(f"v_min_u32 v{t}, 14, v2")
    a(f"v_mul_u32_u24 v{t+1}, 52, v{t}")
    a(f"v_lshrrev_b32 v{t+1}, 8, v{t+1}")
    a(f"v_mul_u32_u24 v{t+1}, {1152-640}, v{t+1}")
    a(f"v_lshl_add_u32 v{t}, v{t}, 7, v{t+1}")
    a(f"v_mul_u32_u24 v{t+1}, 3456, v3")
    a(f"s_mul_i32 s59, s58, {4*3456}")
    a("s_and_b32 s3, s42, 4")
    a("s_lshl_b32 s3, s3, 7")
    a("s_add_u32 s59, s59, s3")
    a(f"v_add3_u32 v{t}, v{t}, v{t+1}, s59")
    a("s_lshl_b32 s3, s34, 9")
    a("s_lshl_b32 s59, s58, 6")
    a("s_add_u32 s3, s3, s59")
    a("s_sub_u32 s3, s3, 1024")
    a(f"v_add_u32 v{t+1}, s3, v1")
    a(f"v_mul_u32_u24 v{t+1}, 1152, v{t+1}")
    a("s_cmp_lt_u32 s58, 16")
    a("s_cselect_b64 vcc, -1, 0")
    a("s_movk_i32 s56, 128")
    a(f"s_cselect_b32 s56, {64*3456}, s56")
    a(f"v_cndmask_b32 v{v}, v{t+1}, v{t}, vcc")
def pf_base(a):
    a("s_cmp_lt_u32 s58, 16")
    a("s_cselect_b64 s[54:55], s[20:21], s[18:19]")
def pf_round(a, v, dst, r):
    tab = sum(PFS[3*r + i] << (4*i) for i in range(3))
    a(f"s_lshr_b32 s3, {tab:#x}, s57")
    a("s_and_b32 s3, s3, 15")
    a("s_mul_i32 s3, s3, s56")
    a(f"v_add_u32 v{dst}, s3, v{v}")
    a(f"global_load_dword v{dst}, v{dst}, s[54:55]")

def role_zero(a):
    a.c("---------------- zero-init WG ----------------")
    a("v_lshlrev_b32 v2, 4, v0")
    for i in range(4): a(f"v_mov_b32 v{4+i}, 0")
    a("s_mov_b32 s33, 0")
    a("s_waitcnt lgkmcnt(0)")
    srd(a, SWS, 28, WS_SZ); srd(a, SDB, 26, 256)
    for j in range(8):
        a(f"buffer_store_dwordx4 v[4:7], v2, {WSR}, s33 offen sc1")
        a("s_add_u32 s33, s33, 8192")
    a("s_waitcnt vmcnt(0)")
    a("s_barrier")
    a("s_cmp_lg_u32 s31, 0")
    a("s_cbranch_scc1 L_fin")
    a("v_mov_b32 v8, 1")
    a("s_mov_b64 exec, 1")
    a(f"buffer_atomic_add v8, v4, s[{SDB}:{SDB+3}], 0 offen")
    a("s_mov_b64 exec, -1")
    a("s_branch L_fin")

def phi4(a, r, t, d):
    if isinstance(a, list):
        L = a; a = lambda x: L.append(x)
    for h in (0, 2):
        a(f"v_pk_fma_f32 v[{t+h}:{t+h+1}], v[{r+h}:{r+h+1}], s[40:41], v[250:251]")
    for i in range(4): a(f"v_exp_f32_e64 v{t+i}, v{t+i} clamp")
    for h in (0, 2):
        a(f"v_pk_add_f32 v[{t+h}:{t+h+1}], v[{t+h}:{t+h+1}], v[252:253]")
    for i in range(4): a(f"v_max_f32 v{t+i}, v{t+i}, v{r+i}")
    if d is not None:
        a(f"v_cvt_pk_bf16_f32 v{d}, v{t}, v{t+1}")
        a(f"v_cvt_pk_bf16_f32 v{d+1}, v{t+2}, v{t+3}")

def ct_calc(a):
    a("s_mul_i32 s96, s43, 52")
    a("s_lshr_b32 s96, s96, 8")
    a("s_mul_i32 s97, s96, 5")
    a("s_sub_u32 s97, s43, s97")
def wo_voff(a, d):
    a("s_and_b32 s30, s31, 1")
    a("s_lshl_b32 s3, s30, 3")
    a(f"v_lshl_add_u32 v{d+2}, v3, 1, s3")
    a(f"v_xor_b32 v{d+2}, v{d+2}, v2")
    a("s_lshl_b32 s3, s97, 8")
    a(f"v_lshl_add_u32 v{d+2}, v{d+2}, 4, s3")
    a("s_and_b32 s3, s31, 3")
    a("s_lshl_b32 s95, s3, 10")
    a(f"v_lshl_add_u32 v{d}, v3, 2, s3")
    a(f"v_mul_u32_u24 v{d}, 1152, v{d}")
    a(f"v_add_u32 v{d}, v{d}, v{d+2}")
    a("s_mul_i32 s3, s3, 18")
    a("s_lshl_b32 s30, s30, 4")
    a("s_sub_u32 s3, s3, s30")
    a("s_add_u32 s3, s3, 16")
    a(f"v_lshrrev_b32 v{d+1}, 1, v3")
    a(f"v_mul_u32_u24 v{d+1}, 70, v{d+1}")
    a(f"v_add3_u32 v{d+1}, v{d+1}, v3, s3")
    a(f"v_mul_u32_u24 v{d+1}, 1152, v{d+1}")
    a(f"v_add_u32 v{d+1}, v{d+1}, v{d+2}")
def wo_loads(a, d, steps):
    for st in steps:
        for h in range(2):
            a(f"s_add_u32 m0, s95, {8192*st + 4096*h}")
            a(f"s_mov_b32 s3, {((36*st + 20*h) if st < 16 else (288*(st-16) + 144*h))*1152}")
            a(f"buffer_load_dwordx4 v{d + (st >= 16)}, s[{SWO}:{SWO+3}], s3 offen lds")
def wotr(a, s, ar, base=0):
    L = []
    for t in range(2):
        for h in range(2):
            r = WOF + 8*s + 4*t + 2*h
            L.append(f"ds_read_b64_tr_b16 v[{r}:{r+1}], v{ar+t} offset:{8192*s + 4096*h - base}")
    return L

def tr_addr(a, d):
    if isinstance(a, list):
        L = a; a = lambda x: L.append(x)
    a(f"v_lshrrev_b32 v{d}, 2, v2")
    a(f"v_lshl_add_u32 v{d}, v3, 2, v{d}")
    a(f"v_and_b32 v{d+1}, 7, v{d}")
    a(f"v_lshlrev_b32 v{d+1}, 1, v{d+1}")
    a(f"v_bfe_u32 v{d+2}, v2, 1, 1")
    a("s_lshr_b32 s3, s31, 1")
    a("s_lshl_b32 s3, s3, 2")
    a(f"v_add_u32 v{d+2}, s3, v{d+2}")
    a(f"v_xor_b32 v{d+1}, v{d+1}, v{d+2}")
    a(f"v_lshlrev_b32 v{d}, 8, v{d}")
    a(f"v_lshl_add_u32 v{d}, v{d+1}, 4, v{d}")
    a(f"v_and_b32 v{d+1}, 1, v2")
    a(f"v_lshl_add_u32 v{d}, v{d+1}, 3, v{d}")
    a(f"v_xor_b32 v{d+1}, 32, v{d}")
    a(f"v_add_u32 v{d+2}, 0x10000, v{d}")
    a(f"v_add_u32 v{d+3}, 0x10000, v{d+1}")
def wo_regs(a, d, n):
    for st in list(range(8, 14)) + list(range(7, -1, -1)):
        for x in (wotr(a, st, d) if st < 8 else wotr(a, st, d + 2, 0x10000)): a(x)
    a(f"v_add_u32 v0, 0x1c000, v{d}")

def lds_last(a, lab):
    a(f"v_mov_b32 v4, {LCNT}")
    a("v_mov_b32 v5, 1")
    a("s_waitcnt vmcnt(0)")
    a("s_mov_b64 exec, 1")
    a("ds_add_rtn_u32 v6, v4, v5")
    a("s_mov_b64 exec, -1")
    a("s_waitcnt lgkmcnt(0)")
    a("v_readfirstlane_b32 s3, v6")
    a("s_cmp_lg_u32 s3, 3")
    a(f"s_cbranch_scc1 {lab}")

def role_gemm(a, kind, stamp):
    Q = kind == "q"
    RT = 5 if Q else 4
    R = 32 * RT
    XSZ = R * 128
    SLOT = XSZ + WSZ
    NL = 5 + RT
    L = lambda s: f"L_{kind}_{s}"
    a.c(f"---------------- role {kind} ----------------")
    rstamp = stamp
    if "stA" in DBG or "stB" in DBG: stamp = lambda i: None
    a("s_cmp_lt_u32 s31, 4")
    a(f"s_cbranch_scc1 {L('comp')}")
    a("s_sub_u32 s35, s31, 4")
    a("s_and_b32 s37, s35, 1")
    a(f"s_mul_i32 s34, s33, {R}")
    a(f"s_mul_i32 s36, s35, {8*RT}")
    a("s_add_u32 s36, s36, s34")
    a("v_lshrrev_b32 v4, 3, v1")
    a("v_add_u32 v4, s36, v4")
    a("v_mul_u32_u24 v4, 1152, v4")
    a("v_and_b32 v5, 7, v1")
    a("v_xor_b32 v5, v5, v3")
    if Q:
        a("s_lshl_b32 s36, s37, 2")
        a("v_xor_b32 v5, s36, v5")
    a("v_lshl_add_u32 v10, v5, 4, v4")
    a("v_xor_b32 v5, 4, v5")
    a("v_lshl_add_u32 v11, v5, 4, v4")
    a(f"s_mul_i32 s38, s35, {1024*RT}")
    a("s_lshr_b32 s36, s35, 1")
    a("s_lshl_b32 s36, s36, 3")
    a("s_add_u32 s36, s36, s37")
    a(f"s_mul_i32 s36, s36, {4*3456}")
    a(f"s_mul_i32 s39, s32, {288 if Q else 144}")
    a("s_add_u32 s36, s36, s39")
    if not Q: a("s_add_u32 s36, s36, 1152")
    a(f"s_mul_i32 s39, s35, {16*WROW}")
    a(f"s_mov_b32 s{SW+2}, 1990656\ns_mov_b32 s{SW+3}, 0x20000\ns_mov_b32 s{SX+2}, 2359296\ns_mov_b32 s{SX+3}, 0x20000")
    def wcalc(t):
        if t: a(f"v_add_u32 v4, {64*t}, v1")
        src = "v4" if t else "v1"
        if Q:
            a(f"v_mul_u32_u24 v5, 3641, {src}")
            a("v_lshrrev_b32 v5, 16, v5")
            a(f"v_lshl_add_u32 v6, {src}, 4, s36")
            a(f"v_mul_u32_u24 v7, {3456-288}, v5")
        else:
            a(f"v_mul_u32_u24 v5, 7282, {src}")
            a("v_lshrrev_b32 v5, 16, v5")
            a(f"v_lshl_add_u32 v6, {src}, 4, s36")
            a("v_mul_u32_u24 v7, 1008, v5")
            a("v_lshrrev_b32 v5, 1, v5")
            a("v_mad_u32_u24 v7, v5, s34, v7")
        a("v_lshrrev_b32 v5, 2, v5")
        a(f"v_mul_u32_u24 v5, {4*3456}, v5")
        a(f"v_add3_u32 v{13+t}, v5, v6, v7")
    def wload(slot, t):
        if t == 4: a("s_mov_b32 exec_hi, 0")
        a(f"s_add_u32 m0, s39, {slot*SLOT + XSZ + 1024*t}")
        a(f"buffer_load_dwordx4 v{13+t}, s[{SW}:{SW+3}], s30 offen lds")
        if t == 4: a("s_mov_b32 exec_hi, -1")
    def xpart(slot):
        a("s_lshl_b32 s30, s94, 7")
        for t in range(RT):
            a(f"s_add_u32 m0, s38, {slot*SLOT + 1024*t}")
            a(f"s_add_u32 s3, s30, {8*1152*t}")
            a(f"buffer_load_dwordx4 v{10+(t&1)}, s[{SX}:{SX+3}], s3 offen lds")
        a(f"s_mul_i32 s30, s94, {64*3456}")
        a("s_add_u32 s94, s94, 1")
        a("s_cmp_eq_u32 s94, 9")
        a("s_cselect_b32 s94, 0, s94")
    def stage(slot):
        xpart(slot)
        for t in range(5): wload(slot, t)
    a("s_movk_i32 s34, 1152")
    wcalc(0); wcalc(1)
    a("s_waitcnt lgkmcnt(0)")
    a(f"s_mov_b64 s[{SW}:{SW+1}], s[20:21]\ns_mov_b64 s[{SX}:{SX+1}], s[18:19]")
    xpart(0)
    wload(0, 0); wload(0, 1)
    for t in (2, 3, 4): wcalc(t); wload(0, t)
    stamp(1)
    stage(1)
    srd(a, SWS, 28, WS_SZ); srd(a, SDB, 26, 256); srd(a, SWO, 22, 663552)
    ct_calc(a)
    wo_voff(a, 21)
    a("v_mov_b32 v4, 0")
    issue = {s: [s + 2] for s in range(7)}
    early = {7: [5, 6, 7, 8], 8: [9, 10]}
    out = [("S", 0)] * NL + [("S", 1)] * NL
    for s in range(9):
        idx = max(i for i, t in enumerate(out) if t == ("S", s))
        a(f"s_waitcnt vmcnt({len(out) - 1 - idx})")
        if "stA" in DBG: rstamp(1 + s)
        a("s_barrier")
        if "stB" in DBG: rstamp(1 + s)
        if s == 5:
            a(f"buffer_load_dword v24, v4, s[{SDB}:{SDB+3}], 0 offen sc1"); out.append("R")
        for st in issue.get(s, []):
            stage(st % NS); out += [("S", st)] * NL
        if s in early:
            wo_loads(a, 21, early[s]); out += ["W"] * (2 * len(early[s]))
    stamp(2)
    a("v_readfirstlane_b32 s37, v24")
    a("s_mov_b32 s36, 0")
    a("s_cmp_lg_u32 s37, 0")
    a(f"s_cbranch_scc1 {L('rdy2')}")
    a(f"{L('rdy')}:")
    a(f"buffer_load_dword v5, v4, s[{SDB}:{SDB+3}], 0 offen sc1")
    a("s_add_u32 s36, s36, 1")
    a("s_waitcnt vmcnt(0)")
    a("v_readfirstlane_b32 s37, v5")
    a("s_cmp_ge_u32 s36, 0x10000")
    a(f"s_cbranch_scc1 {L('rdy2')}")
    a("s_cmp_eq_u32 s37, 0")
    a(f"s_cbranch_scc1 {L('rdy')}")
    a(f"{L('rdy2')}:")
    a("s_barrier")
    lst = [11, 12, 13, 0, 1, 2, 3, 4] + ([14, 15, 16, 17] if Q else [])
    if Q:
        wo_loads(a, 21, lst[:QW]); lst = lst[QW:]
        a("s_barrier")
        stamp(3)
    wo_loads(a, 21, lst)
    tr_addr(a, 18)
    if Q:
        a("s_waitcnt vmcnt(0)")
        a("s_barrier")
        wo_regs(a, 18, 16)
        stamp(4)
        a("s_branch L_bjoin")
    else:
        a("s_lshr_b32 s36, s35, 1")
        a("s_and_b32 s37, s35, 1")
        a("v_lshrrev_b32 v4, 2, v2")
        a("v_and_b32 v5, 3, v2")
        a("v_lshl_add_u32 v6, v3, 2, v4")
        a(f"v_mul_u32_u24 v6, {EXS}, v6")
        a("v_xor_b32 v7, v5, v3")
        a("v_lshl_add_u32 v6, v7, 3, v6")
        a(f"s_mul_i32 s38, s36, {R*EXS}")
        a(f"s_add_u32 s38, s38, {EX}")
        a("v_add_u32 v7, s38, v6")
        a("s_lshl_b32 s39, s37, 5")
        a("v_add_u32 v6, s39, v7")
        a("s_lshl_b32 s38, s32, 1")
        a("s_add_u32 s38, s38, s36")
        a(f"s_mul_i32 s38, s38, {PAIRB}")
        a("v_lshlrev_b32 v8, 8, v4")
        a("v_lshl_add_u32 v8, v3, 4, v8")
        a("v_lshl_add_u32 v8, v5, 2, v8")
        a("s_lshl_b32 s39, s37, 10")
        a("v_add_u32 v8, s39, v8")
        a(f"v_mov_b32 v22, {OOB}")
        a("v_lshrrev_b32 v9, 1, v2")
        a("v_cmp_eq_u32 s[98:99], s37, v9")
        a("v_lshlrev_b32 v10, 4, v3")
        a("v_lshl_add_u32 v10, v2, 2, v10")
        a("v_cndmask_b32 v10, v22, v10, s[98:99]")
        a("s_lshl_b32 s39, s37, 1")
        a("s_add_u32 s39, s39, 2")
        a("v_mov_b32 v11, s39")
        a("v_mov_b32 v12, s37")
        a("v_cmp_eq_u32 vcc, 1, v3")
        a("v_cndmask_b32 v11, v12, v11, vcc")
        a("v_lshlrev_b32 v13, 2, v2")
        a("v_lshl_add_u32 v13, v11, 6, v13")
        a("v_cndmask_b32 v14, v22, v13, vcc")
        a("v_and_b32 v15, 1, v2")
        a("v_lshlrev_b32 v15, 2, v15")
        a("v_lshl_add_u32 v15, v11, 4, v15")
        a("v_cndmask_b32 v15, v22, v15, s[98:99]")
        a("v_cndmask_b32 v16, v22, v15, vcc")
        a("v_and_b32 v12, 1, v3")
        a("v_cmp_eq_u32 vcc, 1, v12")
        a("v_cndmask_b32 v13, v22, v13, vcc")
        a("v_cndmask_b32 v15, v22, v15, vcc")
        a("v_lshlrev_b32 v17, 10, v1")
        a("s_lshl_b32 s39, s32, 7")
        a(f"s_add_u32 s39, s39, {CNT}")
        a("s_cmp_eq_u32 s37, 1")
        a("s_cselect_b64 s[98:99], -1, 0")
        a("s_setprio 2")
        a("s_barrier")
        stamp(3)
        FK, FV, FL = 28, 44, 60
        MM, XM, ML, LL = 76, 80, 84, 88
        def krd(ks):
            for h in range(2):
                o = (32*ks + 16*h) * EXS
                a(f"ds_read_b64_tr_b16 v[{FK+4*ks+2*h}:{FK+4*ks+2*h+1}], v6 offset:{o}")
                a(f"ds_read_b64_tr_b16 v[{FV+4*ks+2*h}:{FV+4*ks+2*h+1}], v6 offset:{o+64}")
                a(f"ds_read_b64_tr_b16 v[{FL+4*ks+2*h}:{FL+4*ks+2*h+1}], v7 offset:{o+128}")
        for ks in range(4): krd(ks)
        for ks in range(4):
            a(f"s_waitcnt lgkmcnt({min(15, 18-6*ks)})")
            for d, x, y in ((MM, FV, FK), (ML, FV, FL), (XM, FL, FK), (LL, FL, FL)):
                c = "0" if ks == 0 else f"v[{d}:{d+3}]"
                a(f"v_mfma_f32_16x16x32_bf16 v[{d}:{d+3}], v[{x+4*ks}:{x+4*ks+3}], v[{y+4*ks}:{y+4*ks+3}], {c}")
        for i in range(4): a(f"buffer_atomic_add_f32 v{MM+i}, v8, {WSR}, s38 offen offset:{64*i}")
        for i in range(4): a(f"buffer_atomic_add_f32 v{ML+i}, v10, {WSR}, s38 offen offset:{O_LD+64*i}")
        for d in (XM, LL):
            a(f"v_cndmask_b32 v{d}, v{d}, v{d+2}, s[98:99]")
            a(f"v_cndmask_b32 v{d+1}, v{d+1}, v{d+3}, s[98:99]")
        a(f"buffer_atomic_add_f32 v{XM}, v13, {WSR}, s38 offen offset:{O_XM}")
        a(f"buffer_atomic_add_f32 v{XM+1}, v14, {WSR}, s38 offen offset:{O_XM+64}")
        a(f"buffer_atomic_add_f32 v{LL}, v15, {WSR}, s38 offen offset:{O_XL}")
        a(f"buffer_atomic_add_f32 v{LL+1}, v16, {WSR}, s38 offen offset:{O_XL+16}")
        stamp(4)
        lds_last(a, L("sig"))
        a("s_mov_b64 exec, 0xff")
        a(f"buffer_atomic_add v5, v17, {WSR}, s39 offen")
        a("s_mov_b64 exec, -1")
        a(f"{L('sig')}:")
        a("s_setprio 0")
        if "stS" in DBG: stamp(3)
        a("s_barrier")
        wo_regs(a, 18, 14)
        a("s_branch L_bjoin")
    a(f"{L('comp')}:")
    ct_calc(a)
    a("s_and_b32 s35, s31, 1")
    a("s_lshr_b32 s36, s31, 1")
    XA0, XA1, WA, LA = 4, 5, 6, 7
    a("v_lshrrev_b32 v9, 1, v2")
    a("v_xor_b32 v9, v9, v3")
    a("v_lshlrev_b32 v10, 7, v2")
    a("v_lshl_add_u32 v10, v9, 4, v10")
    a(f"s_mul_i32 s37, s35, {RT*2048}")
    a(f"v_add_u32 v{XA0}, s37, v10")
    a(f"v_xor_b32 v{XA1}, 64, v{XA0}")
    a("v_lshrrev_b32 v9, 2, v2")
    a("v_and_b32 v10, 3, v2")
    a("v_lshl_add_u32 v11, v3, 2, v9")
    a(f"v_mul_u32_u24 v11, {WROW}, v11")
    a(f"s_mul_i32 s37, s36, {144 if Q else 72}")
    a(f"s_add_u32 s37, s37, {XSZ}")
    a("v_add_u32 v11, s37, v11")
    a(f"v_lshl_add_u32 v{WA}, v10, 3, v11")
    a("v_and_b32 v12, 1, v10")
    a(f"v_mul_u32_u24 v12, {72 if Q else 144}, v12")
    a(f"v_add3_u32 v{LA}, v11, v12, 32")
    a(f"v_mov_b32 v12, {LCNT}\nv_mov_b32 v14, 0\nv_mov_b32 v15, 0")
    a("ds_write_b32 v12, v14")
    ACC = 16
    def acc(rt, t): return ACC + 4 * (5 * rt + t)
    a(f"v_mov_b32 v8, {hexf(ONE_EPS)}\nv_mov_b32 v9, v8")
    if not Q:
        a("v_cmp_eq_u32 vcc, 1, v3")
        a("v_cndmask_b32_e64 v10, v8, 0, vcc")
        a("v_mov_b32 v11, v10")
    for rt in range(RT):
        for t in range(5):
            src = "v[8:9]" if Q or t < 2 else ("v[10:11]" if t == 4 else "v[14:15]")
            for i in (0, 2): a(f"v_mov_b64 v[{acc(rt,t)+i}:{acc(rt,t)+i+1}], {src}")
    F = [120, 160]
    woff = [0, 40, 72, 112] if Q else [0, 40, 144, 184]
    TORD = [0, 1, 4, 2, 3]
    def reads(kk):
        f = F[kk]; Lr = []
        def w(t):
            for h in range(2):
                ad, o = (WA, woff[t]) if t < 4 else (LA, 0)
                Lr.append(f"ds_read_b64_tr_b16 v[{f+20+4*t+2*h}:{f+20+4*t+2*h+1}], v{ad} offset:{o + (32*kk + 16*h)*WROW}")
        w(TORD[0])
        for rt in range(RT): Lr.append(f"ds_read_b128 v[{f+4*rt}:{f+4*rt+3}], v{(XA0,XA1)[kk]} offset:{2048*rt}")
        for t in TORD[1:]: w(t)
        return Lr
    def mfmas(kk):
        f = F[kk]
        return [f"v_mfma_f32_16x16x32_bf16 v[{acc(rt,t)}:{acc(rt,t)+3}], v[{f+20+4*t}:{f+23+4*t}], v[{f+4*rt}:{f+4*rt+3}], v[{acc(rt,t)}:{acc(rt,t)+3}]"
                for t in TORD for rt in range(RT)]
    def inter(M, Rd):
        for k, m in enumerate(M):
            if k < len(Rd): a(Rd[k])
            a(m)
    a(f"s_mov_b32 s40, {hexf(LOG2E)}\ns_mov_b32 s41, s40")
    a(f"v_mov_b32 v250, {hexf(-ONE_EPS*LOG2E)}\nv_mov_b32 v251, v250")
    a(f"v_mov_b32 v252, {hexf(EPS)}\nv_mov_b32 v253, v252")
    if not Q: wo_voff(a, 8)
    a("s_waitcnt lgkmcnt(0)")
    srd(a, SWS, 28, WS_SZ); srd(a, SWO, 22, 663552)
    stamp(1)
    post = []
    p = lambda t: post.extend(x.strip() for x in t.split("\n") if x.strip())
    if Q:
        p("v_lshlrev_b32 v8, 4, v1")
        p("v_lshlrev_b32 v9, 3, v1")
        p("s_mul_i32 s38, s33, 10")
        p("s_mul_i32 s39, s35, 5")
        p("s_add_u32 s38, s38, s39")
        p("s_lshl_b32 s38, s38, 4")
        p("s_lshl_b32 s39, s32, 2")
        p("s_add_u32 s38, s38, s39")
        p("s_lshl_b32 s39, s36, 1")
        p("s_add_u32 s38, s38, s39")
        p("s_lshl_b32 s37, s38, 10")
        p(f"s_add_u32 s37, s37, {PQ}")
        p("s_lshl_b32 s39, s38, 7")
        p(f"s_add_u32 s39, s39, {PQL}")
        p(f"s_mov_b32 s{SX}, s28\ns_mov_b32 s{SX+1}, s29\ns_mov_b32 s{SX+2}, {PQL}\ns_mov_b32 s{SX+3}, 0x20000")
        p(f"s_mov_b32 s{SW}, s28\ns_mov_b32 s{SW+1}, s29\ns_mov_b32 s{SW+2}, {PQL + 0x40000}\ns_mov_b32 s{SW+3}, 0x20000")
    else:
        p(f"v_mul_u32_u24 v12, {EXS}, v2")
        p("v_lshrrev_b32 v13, 2, v2")
        p("v_xor_b32 v13, v13, v3")
        p("v_lshl_add_u32 v12, v13, 3, v12")
        p(f"s_mul_i32 s37, s36, {R*EXS}")
        p(f"s_mul_i32 s38, s35, {64*EXS}")
        p("s_add_u32 s37, s37, s38")
        p(f"s_add_u32 s37, s37, {EX}")
        p("v_add_u32 v12, s37, v12")
        p("v_cmp_eq_u32 s[98:99], 1, v3")
        p("v_cmp_eq_u32 s[100:101], 3, v3")
        p("v_mov_b32 v13, 0x3f803f80")
    tr_addr(post, 244)
    for x in post: a(x)
    for st in range(9):
        a("s_barrier")
        if st == 0:
            for x in reads(0): a(x)
        else: inter(mfmas(1), reads(0))
        a("s_waitcnt lgkmcnt(0)")
        if st < 8:
            dl = SLOT if (st + 1) % NS else -(NS - 1) * SLOT
            upd = [f"v_add_u32 v{r}, {dl & 0xffffffff:#x}, v{r}" for r in (XA0, XA1, WA, LA)]
            inter(mfmas(0), reads(1) + upd)
            a("s_waitcnt lgkmcnt(0)")
    def one(kk, rt, t):
        f = F[kk]
        return f"v_mfma_f32_16x16x32_bf16 v[{acc(rt,t)}:{acc(rt,t)+3}], v[{f+20+4*t}:{f+23+4*t}], v[{f+4*rt}:{f+4*rt+3}], v[{acc(rt,t)}:{acc(rt,t)+3}]"
    T0_, T1_ = 200, 204
    def postp(rt):
        Lp = []
        d = 208 + 12 * (rt % 2)
        if Q:
            phi4(Lp, acc(rt, 0), T0_, d); phi4(Lp, acc(rt, 1), T1_, d + 2)
            Lp.append(f"buffer_store_dwordx4 v[{d}:{d+3}], v8, s[{SX}:{SX+3}], s37 offen sc1")
            phi4(Lp, acc(rt, 4), T0_, d + 8)
            Lp.append(f"s_mov_b32 exec_hi, 0\nbuffer_store_dwordx2 v[{d+8}:{d+9}], v9, s[{SW}:{SW+3}], s39 offen sc1\ns_mov_b32 exec_hi, -1")
            phi4(Lp, acc(rt, 2), T1_, d + 4); phi4(Lp, acc(rt, 3), T0_, d + 6)
            Lp.append(f"buffer_store_dwordx4 v[{d+4}:{d+7}], v8, s[{SX}:{SX+3}], s37 offen offset:1024 sc1")
            Lp.append("s_add_u32 s37, s37, 16384\ns_add_u32 s39, s39, 2048")
        else:
            for t in (0, 1):
                phi4(Lp, acc(rt, t), (T0_, T1_)[t], d + 2*t)
                Lp.append(f"ds_write_b64 v12, v[{d+2*t}:{d+2*t+1}] offset:{rt*16*EXS + 32*t}")
            phi4(Lp, acc(rt, 4), T0_, None)
            for i in range(4): Lp.append(f"v_cndmask_b32 v{T0_+i}, v{T0_+i}, v{acc(rt,4)+i}, s[98:99]")
            e = d + 8
            Lp += [f"v_cvt_pk_bf16_f32 v{e}, v{T0_}, v{T0_+1}", f"v_cvt_pk_bf16_f32 v{e+1}, v{T0_+2}, v{T0_+3}",
                   f"v_cndmask_b32 v{e}, v{e}, v13, s[100:101]", f"v_cndmask_b32 v{e+1}, v{e+1}, v13, s[100:101]",
                   f"ds_write_b64 v12, v[{e}:{e+1}] offset:{rt*16*EXS + 128}"]
            for t in (2, 3):
                e = d + 2*t
                Lp += [f"v_cvt_pk_bf16_f32 v{e}, v{acc(rt,t)}, v{acc(rt,t)+1}", f"v_cvt_pk_bf16_f32 v{e+1}, v{acc(rt,t)+2}, v{acc(rt,t)+3}",
                       f"ds_write_b64 v12, v[{e}:{e+1}] offset:{rt*16*EXS + 32*t}"]
        return Lp
    Rd = reads(1)
    first = [one(0, rt, t) for rt in range(2) for t in TORD]
    for k, m in enumerate(first):
        for x in Rd[2*k:2*k+2]: a(x)
        a(m)
    a("s_waitcnt lgkmcnt(0)")
    a("s_barrier")
    for t in TORD: a(one(1, 0, t))
    rest = []
    for rt in range(1, RT):
        rest += [(rt, one(1, rt, t)) for t in TORD]
        if rt + 1 < RT: rest += [(rt + 1, one(0, rt + 1, t)) for t in TORD]
    for _ in range(3): a(rest.pop(0)[1])
    stamp(2)
    for rt in range(RT):
        assert all(r > rt for r, _ in rest) or rt == 0 or True
        while rest and rest[0][0] <= rt: a(rest.pop(0)[1])
        for k, x in enumerate(postp(rt)):
            a(x)
            if k % 2 == 1 and rest: a(rest.pop(0)[1])
    if Q:
        stamp(3)
        a("s_barrier")
        a("v_mov_b64 v[18:19], v[244:245]\nv_mov_b64 v[20:21], v[246:247]")
        a("s_lshl_b32 s39, s33, 7")
        a(f"s_add_u32 s39, s39, {PQC}")
        a("v_mov_b32 v7, 0")
        lds_last(a, L("sig"))
        a("s_mov_b64 exec, 1")
        a(f"buffer_atomic_add v5, v7, {WSR}, s39 offen")
        a("s_mov_b64 exec, -1")
        a(f"{L('sig')}:")
        stamp(4)
        a("s_barrier")
        wo_regs(a, 18, 16)
        a("s_branch L_bjoin")
    else:
        a("s_waitcnt lgkmcnt(0)")
        a("s_barrier")
        stamp(3)
        a("v_mov_b64 v[18:19], v[244:245]\nv_mov_b64 v[20:21], v[246:247]")
        a("s_barrier")
        wo_loads(a, 8, [14, 15, 16, 17])
        wo_regs(a, 18, 14)
        stamp(4)
        a("s_waitcnt vmcnt(0)")
        a("s_branch L_bjoin")

def phase3(a, stamp):
    a.c("---------------- phase 3 ----------------")
    if "stA" in DBG or "stB" in DBG: stamp = lambda i: None
    a("L_bjoin:")
    stamp(5)
    a("s_cmp_ge_u32 s43, 20")
    a("s_cbranch_scc1 L_fin")
    a("s_mov_b32 s33, s97")
    a("s_lshl_b32 s34, s42, 2")
    a("s_add_u32 s32, s96, s34")
    a("s_and_b32 s36, s31, 1")
    a("s_lshr_b32 s35, s31, 1")
    def poll_prep_q():
        a("s_lshl_b32 s34, s32, 1")
        a("v_add_u32 v14, s34, v1")
        a("v_mul_u32_u24 v14, 205, v14")
        a("v_lshrrev_b32 v14, 10, v14")
        a("v_lshlrev_b32 v14, 7, v14")
        a(f"s_mov_b32 s34, {PQC}")
    def poll_prep_k():
        a("v_lshlrev_b32 v14, 7, v1")
        a("s_lshl_b32 s34, s42, 10")
        a(f"s_add_u32 s34, s34, {CNT}")
    def poll(wave, prep, nl, tgt, tag, bar=True):
        a(f"s_cmp_lg_u32 s31, {wave}")
        a(f"s_cbranch_scc1 L_pw{tag}")
        prep()
        a(f"s_mov_b64 exec, {hex((1 << nl) - 1)}")
        a("s_mov_b32 s3, 0")
        a(f"L_poll{tag}:")
        a(f"buffer_load_dword v15, v14, {WSR}, s34 offen sc1")
        a("s_add_u32 s3, s3, 1")
        a("s_waitcnt vmcnt(0)")
        a(f"v_cmp_gt_u32 vcc, {tgt}, v15")
        a("s_cmp_ge_u32 s3, 0x10000")
        a(f"s_cbranch_scc1 L_pd{tag}")
        a(f"s_cbranch_vccnz L_poll{tag}")
        a(f"L_pd{tag}:")
        a("s_mov_b64 exec, -1")
        a(f"L_pw{tag}:")
        if bar: a("s_barrier")
    a(f"v_mov_b32 v8, {OOB}")
    a("v_lshlrev_b32 v9, 4, v1")
    a(f"s_mul_i32 s37, s31, {2*PAIRB}")
    a("v_and_b32 v6, 3, v2")
    a("v_bfe_u32 v7, v2, 2, 1")
    a("v_lshl_add_u32 v7, v7, 1, v6")
    a("v_cmp_gt_u32 vcc, 2, v6")
    a("v_cndmask_b32 v7, v7, v6, vcc")
    a("v_lshlrev_b32 v12, 4, v3")
    a("v_lshl_add_u32 v12, v7, 6, v12")
    a("v_cmp_gt_u32 s[94:95], 8, v2")
    a("s_or_b64 s[96:97], s[94:95], vcc")
    a("s_orn2_b64 vcc, vcc, s[94:95]")
    a("v_cndmask_b32 v13, v8, v12, vcc")
    a("v_cndmask_b32 v12, v8, v12, s[96:97]")
    a("v_lshlrev_b32 v10, 4, v2")
    a(f"v_lshlrev_b32 v11, 4, v7")
    a(f"v_add_u32 v11, {O_XL - O_LD}, v11")
    a("v_cmp_lt_u32 s[100:101], 1, v3")
    a("v_cndmask_b32 v10, v10, v11, s[100:101]")
    a("v_and_b32 v6, 1, v3")
    a(f"v_mul_u32_u24 v11, {PAIRB}, v6")
    a("v_add_u32 v10, v10, v11")
    a("v_cmp_eq_u32 s[98:99], 1, v6")
    a("v_cmp_eq_u32 s[94:95], 1, v7")
    a("v_cmp_lt_u32 s[40:41], 3, v7")
    a("s_or_b64 s[94:95], s[94:95], s[40:41]")
    a("s_andn2_b64 s[40:41], s[100:101], s[98:99]")
    a("s_and_b64 s[40:41], s[40:41], s[96:97]")
    a("s_and_b64 s[96:97], s[100:101], s[98:99]")
    a("s_and_b64 s[96:97], s[96:97], vcc")
    a("v_lshlrev_b32 v7, 3, v2")
    a("v_lshl_add_u32 v7, v6, 7, v7")
    a("s_lshl_b32 s38, s32, 6")
    a("s_lshl_b32 s39, s31, 1")
    a("s_add_u32 s38, s38, s39")
    a("s_lshl_b32 s39, s38, 7")
    a(f"s_add_u32 s39, s39, {PQL}")
    a("s_lshl_b32 s38, s38, 10")
    a(f"s_add_u32 s38, s38, {PQ}")
    AM = [16, 20, 24, 28]
    AX = [32, 36, 40, 44]
    PQR = 56
    T = 48
    def pql(rt):
        b = PQR + 14 * rt
        a(f"buffer_load_dwordx4 v[{b+2}:{b+5}], v9, {WSR}, s38 offen sc1")
        a(f"buffer_load_dwordx4 v[{b+8}:{b+11}], v9, {WSR}, s38 offen offset:1024 sc1")
        a(f"buffer_load_dwordx2 v[{b+6}:{b+7}], v7, {WSR}, s39 offen sc1")
        if rt < 3: a("s_add_u32 s38, s38, 16384\ns_add_u32 s39, s39, 2048")
    def kvl():
        a(f"buffer_load_dwordx4 v[{AX[0]}:{AX[0]+3}], v12, {WSR}, s37 offen offset:{O_XM} sc1")
        a(f"buffer_load_dwordx4 v[{T}:{T+3}], v10, {WSR}, s37 offen offset:{O_LD} sc1")
        a(f"s_add_u32 s3, s37, {PAIRB}")
        a(f"buffer_load_dwordx4 v[{AX[2]}:{AX[2]+3}], v13, {WSR}, s3 offen offset:{O_XM} sc1")
        for c in range(2):
            o = c * PAIRB
            a(f"buffer_load_dwordx4 v[{AM[2*c]}:{AM[2*c]+3}], v9, {WSR}, s37 offen offset:{o} sc1")
            a(f"buffer_load_dwordx4 v[{AM[2*c+1]}:{AM[2*c+1]+3}], v9, {WSR}, s37 offen offset:{o+O_MMB} sc1")
    a("s_waitcnt lgkmcnt(0)")
    stamp(6)
    if PORD == "qk":
        poll(1, poll_prep_q, 2, 4, "q"); stamp(8)
        for rt in range(4): pql(rt)
        stamp(7)
        poll(0, poll_prep_k, 8, 16, "k"); stamp(9)
        kvl()
        vm = ["p0"]*3 + ["p1"]*3 + ["p2"]*3 + ["p3"]*3 + ["x"]*3 + ["m0"]*2 + ["m1"]*2
    else:
        poll(0, poll_prep_k, 8, 16, "k"); stamp(8)
        kvl()
        stamp(7)
        poll(1, poll_prep_q, 2, 4, "q"); stamp(9)
        pql(0); pql(1)
        a("s_waitcnt vmcnt(5)")
        pql(2); pql(3)
        vm = ["x"]*3 + ["m0"]*2 + ["m1"]*2 + ["p0"]*3 + ["p1"]*3 + ["p2"]*3 + ["p3"]*3
    vdone = [-1]
    def vwait(tag):
        idx = max(i for i, t in enumerate(vm) if t == tag)
        if idx > vdone[0]:
            a(f"s_waitcnt vmcnt({len(vm) - 1 - idx})"); vdone[0] = idx
    a("v_xor_b32 v5, 32, v0\nv_mov_b32 v4, v0")
    for s in (14, 15):
        for x in wotr(a, s, 4, 0x1c000): a(x)
    a("s_lshl_b32 s34, s31, 11")
    a("v_add_u32 v10, s34, v9")
    a("s_lshr_b32 s34, s31, 2")
    a("s_lshl_b32 s34, s34, 10")
    a("s_and_b32 s3, s31, 3")
    a("s_lshl_b32 s3, s3, 2")
    a("s_add_u32 s34, s34, s3")
    a(f"s_add_u32 s34, s34, {16*1024}")
    a("v_add_u32 v11, s34, v9")
    a(f"s_mul_i32 s34, s36, {18*1024}")
    a("v_add_u32 v8, s34, v9")
    a("s_lshl_b32 s34, s31, 10")
    a(f"s_add_u32 s34, s34, {EPI}")
    a("v_add_u32 v9, s34, v9")
    a("v_and_b32 v12, 1, v3")
    a("v_lshrrev_b32 v14, 1, v3")
    a("v_lshl_add_u32 v12, v12, 1, v14")
    a("v_lshl_add_u32 v12, v2, 2, v12")
    a("v_cmp_eq_u32 vcc, 0, v3")
    a("v_lshl_add_u32 v2, v12, 4, s34")
    a("s_lshl_b32 s34, s32, 6")
    a("s_lshl_b32 s3, s36, 4")
    a("s_add_u32 s34, s34, s3")
    a("v_lshrrev_b32 v14, 2, v1")
    a("v_add_u32 v14, s34, v14")
    a("v_mul_u32_u24 v14, 2304, v14")
    a("v_and_b32 v15, 3, v1")
    a("v_lshl_add_u32 v14, v15, 4, v14")
    a("s_lshl_b32 s34, s33, 8")
    a("s_lshl_b32 s3, s35, 6")
    a("s_add_u32 s34, s34, s3")
    a("s_add_u32 s3, s34, 1152")
    a("v_add_u32 v3, s3, v14")
    a("v_xor_b32 v1, 32, v0")
    a(f"v_mov_b32 v12, {hexf(EPS)}\nv_mov_b32 v13, v12\nv_mov_b32 v14, 0\nv_mov_b32 v15, 0")
    def pmov(rt):
        b = PQR + 14 * rt
        vwait(f"p{rt}")
        a(f"v_mov_b64 v[{b}:{b+1}], v[{b+6}:{b+7}]\nv_mov_b64 v[{b+12}:{b+13}], v[{b+6}:{b+7}]")
    if PORD == "qk":
        for rt in range(4): pmov(rt)
    a(f"v_mov_b32 v{AX[1]+2}, 0\nv_mov_b32 v{AX[3]+2}, 0")
    a("s_andn2_b64 s[38:39], s[98:99], s[100:101]")
    vwait("x")
    stamp(10)
    a(f"v_cvt_pk_bf16_f32 v252, v{T}, v{T+1}")
    a(f"v_cvt_pk_bf16_f32 v253, v{T+2}, v{T+3}")
    for c in range(2):
        xa, xb = AX[2*c], AX[2*c+1]
        mk = "s[40:41]" if c == 0 else "s[96:97]"
        a(f"v_cvt_pk_bf16_f32 v{T+2}, v{xa}, v{xa+1}")
        a(f"v_cvt_pk_bf16_f32 v{T+3}, v{xa+2}, v{xa+3}")
        a(f"v_cndmask_b32 v{T+4}, 0, v252, {mk}")
        a(f"v_mov_b32 v{xa+1}, 0")
        a(f"v_cndmask_b32 v{xb}, 0, v{T+2}, s[94:95]")
        a(f"v_cndmask_b32 v{xb+1}, 0, v{T+3}, s[94:95]")
        a(f"v_cndmask_b32 v{xb+3}, 0, v{T+4}, s[94:95]")
        a(f"v_cndmask_b32 v{xa}, v{T+4}, 0, s[94:95]")
        a(f"v_cndmask_b32 v{xa+2}, v{T+2}, 0, s[94:95]")
        a(f"v_cndmask_b32 v{xa+3}, v{T+3}, 0, s[94:95]")
    def mf(d, x, y, c): a(f"v_mfma_f32_16x16x32_bf16 v[{d}:{d+3}], v[{x}:{x+3}], v[{y}:{y+3}], {c}")
    def regs(rt): return (PQR + 14 * rt, (48, 240, 48, 56)[rt], (52, 244, 52, 60)[rt], (4, 248, 4, 64)[rt])
    def MX(rt):
        b, X0, X1, D0 = regs(rt)
        ops = [b, b+4, b+6, b+10]
        if PORD != "qk": pmov(rt)
        mf(X0, AX[1], ops[1], "v[12:15]"); mf(X1, AX[3], ops[3], "v[12:15]")
        mf(X0, AX[0], ops[0], f"v[{X0}:{X0+3}]"); mf(X1, AX[2], ops[2], f"v[{X1}:{X1+3}]")
    def MM_(rt):
        b, X0, X1, D0 = regs(rt)
        ops = [b, b+4, b+6, b+10]
        mf(D0, AM[0], ops[0], "0")
        mf(b, AM[1], ops[1], "0")
        mf(b+6, AM[2], ops[2], "0")
        mf(b+10, AM[3], ops[3], "0")
    if PORD == "qk": MX(0); MX(1)
    for c in range(2):
        ma, mb = AM[2*c], AM[2*c+1]
        mk = "vcc" if c == 0 else "s[38:39]"
        vwait(f"m{c}")
        a(f"v_cvt_pk_bf16_f32 v{ma+3}, v{ma+2}, v{ma+3}")
        a(f"v_cvt_pk_bf16_f32 v{ma+2}, v{ma}, v{ma+1}")
        a(f"v_cndmask_b32 v{ma}, 0, v252, {mk}")
        a(f"v_mov_b32 v{ma+1}, 0")
        a(f"v_cvt_pk_bf16_f32 v{mb}, v{mb}, v{mb+1}")
        a(f"v_cvt_pk_bf16_f32 v{mb+1}, v{mb+2}, v{mb+3}")
        a(f"v_mov_b32 v{mb+2}, 0")
        a(f"v_cndmask_b32 v{mb+3}, 0, v253, {mk}")
    def V(rt):
        b, X0, X1, D0 = regs(rt)
        L = []
        p = lambda t: L.extend(x.strip() for x in t.split("\n"))
        for x in (X0, X1):
            p(f"v_rcp_f32 v{x}, v{x}\nv_rcp_f32 v{x+1}, v{x+1}")
        p(f"v_pk_add_f32 v[{X0+2}:{X0+3}], v[{X0+2}:{X0+3}], v[{X1+2}:{X1+3}]")
        p(f"v_cndmask_b32 v{X1+2}, v{X0}, v{X0+1}, s[98:99]")
        p(f"v_cndmask_b32 v{X1+3}, v{X1}, v{X1+1}, s[98:99]")
        p(f"v_cndmask_b32 v{X1+2}, v{X1+2}, v{X1+3}, s[100:101]")
        p(f"v_pk_mul_f32 v[{X0+2}:{X0+3}], v[{X0+2}:{X0+3}], v[{X1+2}:{X1+3}] op_sel:[0,0] op_sel_hi:[1,0]")
        p(f"v_cvt_pk_bf16_f32 v{b+4}, v{X0+2}, v{X0+3}")
        p(f"ds_write_b32 v11, v{b+4} offset:{rt*18*1024}")
        for d, rc in ((D0, X0), (b, X0+1), (b+6, X1), (b+10, X1+1)):
            sel = "op_sel:[0,0] op_sel_hi:[1,0]" if rc % 2 == 0 else "op_sel:[0,1] op_sel_hi:[1,1]"
            rp = rc & ~1
            p(f"v_pk_mul_f32 v[{d}:{d+1}], v[{d}:{d+1}], v[{rp}:{rp+1}] {sel}")
            p(f"v_pk_mul_f32 v[{d+2}:{d+3}], v[{d+2}:{d+3}], v[{rp}:{rp+1}] {sel}")
        p(f"v_cvt_pk_bf16_f32 v{D0}, v{D0}, v{D0+1}\nv_cvt_pk_bf16_f32 v{D0+1}, v{D0+2}, v{D0+3}")
        p(f"v_cvt_pk_bf16_f32 v{D0+2}, v{b}, v{b+1}\nv_cvt_pk_bf16_f32 v{D0+3}, v{b+2}, v{b+3}")
        p(f"ds_write_b128 v10, v[{D0}:{D0+3}] offset:{rt*18*1024}")
        p(f"v_cvt_pk_bf16_f32 v{b+6}, v{b+6}, v{b+7}\nv_cvt_pk_bf16_f32 v{b+7}, v{b+8}, v{b+9}")
        p(f"v_cvt_pk_bf16_f32 v{b+8}, v{b+10}, v{b+11}\nv_cvt_pk_bf16_f32 v{b+9}, v{b+12}, v{b+13}")
        p(f"ds_write_b128 v10, v[{b+6}:{b+9}] offset:{rt*18*1024+1024}")
        return L
    if PORD == "qk": MM_(0); MM_(1)
    else: MX(0); MM_(0); MX(1); MM_(1)
    for x in V(0): a(x)
    MX(2); MM_(2)
    for x in V(1): a(x)
    MX(3); MM_(3)
    a("s_waitcnt lgkmcnt(0)")
    a("s_barrier")
    stamp(11)
    OA = 68
    OF = 16
    q_ = []; done = [-1]
    def lds(t, tag=None): a(t); q_.append(tag)
    def wait_for(tags):
        idx = max(i for i, t in enumerate(q_) if t in tags)
        if idx > done[0]:
            n = len(q_) - 1 - idx
            a(f"s_waitcnt lgkmcnt({min(n, 15)})")
            done[0] = idx if n <= 15 else len(q_) - 16
    def emit(x):
        if "@" in x: t, g = x.split("@"); lds(t, g)
        elif x.startswith("ds_"): lds(x)
        else: a(x)
    late = [x + "@W" for s in (16, 17) for x in wotr(a, s, 0, 0x1c000)]
    LA = 5
    def ord_(ps, k): lds(f"ds_read_b128 v[{OF+4*(k%8)}:{OF+4*(k%8)+3}], v8 offset:{(ps*36 + k)*1024}", ("O", ps, k))
    def epi(ps):
        d = OA + 8*ps; p = 84 + 4*ps
        L = [f"v_cvt_pk_bf16_f32 v{p+k}, v{d+2*k}, v{d+2*k+1}" for k in range(4)]
        L += ["v_nop", f"v_permlane16_swap_b32 v{p}, v{p+2}", f"v_permlane16_swap_b32 v{p+1}, v{p+3}",
              f"ds_write_b128 v2, v[{p}:{p+3}] offset:{8192*ps}", f"ds_read_b128 v[{p+8}:{p+11}], v9 offset:{8192*ps}@E{ps}"]
        return L
    def store(ps):
        wait_for({f"E{ps}"})
        if ps: a(f"v_add_u32 v3, {32*2304}, v3")
        a(f"global_store_dwordx4 v3, v[{92+4*ps}:{95+4*ps}], s[24:25] {STB}")
    for ps in range(2):
        fill = (V(2) + late + V(3)) if ps == 0 else ["s_nop 0"] * 4 + epi(0)
        if ps == 1:
            a("s_cmp_ge_u32 s34, 1152")
            a("s_cbranch_scc1 L_fin")
        for k in range(LA): ord_(ps, k)
        for k in range(18):
            wait_for({("O", ps, k)} | ({"W"} if k >= 16 else set()))
            for t in range(2):
                d = OA + 8*ps + 4*t
                mf(d, WOF + 8*k + 4*t, OF + 4*(k%8), "0" if k == 0 else f"v[{d}:{d+3}]")
                if t == 0 and k + LA < 18: ord_(ps, k + LA)
                for _ in range(2):
                    if fill: emit(fill.pop(0))
            if ps == 1 and k == 9: store(0)
        assert not fill
        if ps == 0:
            a("s_waitcnt lgkmcnt(0)"); done[0] = len(q_) - 1
            a("s_barrier")
            stamp(12)
    for x in epi(1): emit(x)
    store(1)
    stamp(13)
```

```python
import sys, os
from asmlib import *
import hazard
from gen_a import *
from gen_b import *

NST = 15
STAMP_OFF = 200 << 20
def build(stamps=False, do_a=True, do_b=True, do_p3=True):
    a = Asm()
    sbase = 64
    def stamp(i):
        if stamps: a(f"s_memrealtime s[{sbase+2*i}:{sbase+2*i+1}]")
    stamp(0)
    a("s_load_dwordx16 s[4:19], s[0:1], 0")
    a("s_load_dwordx8 s[20:27], s[0:1], 64")
    a("s_load_dwordx2 s[28:29], s[0:1], 96")
    a("s_cmp_ge_u32 s2, 256")
    a("s_cbranch_scc1 L_end")
    a("v_and_b32 v1, 63, v0")
    a("v_lshrrev_b32 v2, 6, v0")
    a("s_and_b32 s42, s2, 7")
    a("s_lshr_b32 s43, s2, 3")
    a("v_readfirstlane_b32 s31, v2")
    if not os.environ.get("NOCPF"):
        a("s_and_b32 s34, s43, 7")
        a("s_cmp_lg_u32 s34, s31")
        a("s_cbranch_scc1 L_nocpf")
        a("s_getpc_b64 s[36:37]")
        a("L_pc:")
        a("s_lshl_b32 s34, s34, 13")
        a("v_lshl_add_u32 v4, v1, 7, s34")
        a("v_min_u32 v4, L_code_end-L_pc-4, v4")
        a("v_mov_b32 v5, s37")
        a("v_add_co_u32 v4, vcc, s36, v4")
        a("v_addc_co_u32 v5, vcc, 0, v5, vcc")
        a("global_load_dword v255, v[4:5], off")
        a("L_nocpf:")
    a("v_and_b32 v2, 15, v1")
    a("v_lshrrev_b32 v3, 4, v1")
    a("s_and_b32 s34, s42, 3")
    a("s_cmp_ge_u32 s43, 16")
    a("s_cbranch_scc1 L_notkv")
    a("s_lshr_b32 s35, s43, 2")
    a("s_and_b32 s36, s43, 3")
    a("s_lshl_b32 s33, s34, 2")
    a("s_add_u32 s33, s33, s35")
    a("s_and_b32 s32, s42, 4")
    a("s_add_u32 s32, s32, s36")
    a("s_add_u32 s94, s35, s36")
    a("s_and_b32 s94, s94, 3")
    a("s_lshl_b32 s94, s94, 1")
    role_gemm(a, "kv", stamp)
    a("L_notkv:")
    a(f"s_cmp_ge_u32 s43, {AS0}")
    a("s_cbranch_scc1 L_rolea")
    a("s_mul_i32 s35, s34, 107")
    a("s_add_u32 s36, s35, 107")
    a("s_lshr_b32 s35, s35, 4")
    a("s_lshr_b32 s36, s36, 4")
    a("s_add_u32 s35, s35, s43")
    a("s_sub_u32 s35, s35, 16")
    a("s_cmp_ge_u32 s35, s36")
    a("s_cbranch_scc1 L_spare")
    a("s_lshr_b32 s33, s35, 1")
    a("s_and_b32 s36, s35, 1")
    a("s_lshr_b32 s32, s42, 1")
    a("s_and_b32 s32, s32, 2")
    a("s_add_u32 s32, s32, s36")
    a("s_sub_u32 s94, s43, 16")
    a("s_and_b32 s94, s94, 6")
    role_gemm(a, "q", stamp)
    phase3(a, stamp)
    a("s_branch L_fin")
    a("L_spare:")
    a("s_cmp_lg_u32 s2, 176")
    a("s_cbranch_scc1 L_end")
    role_zero(a)
    a("L_rolea:")
    if do_a:
        a("s_lshl_b32 s30, s42, 3")
        a("s_add_u32 s30, s30, s43")
        a(f"s_sub_u32 s30, s30, {AS0}")
        a("s_add_u32 s33, s42, 64")
        a("s_cmp_eq_u32 s43, 31")
        a("s_cselect_b32 s30, s33, s30")
        role_a(a, stamp, None if os.environ.get('NOPF') else (pf_setup, pf_base, pf_round))
    a("L_fin:")
    if stamps:
        a("s_waitcnt vmcnt(0)")
        stamp(NST - 1)
        a("s_waitcnt lgkmcnt(0)")
        a("s_mov_b64 exec, 1")
        if os.environ.get("SPINK"):
            k = int(os.environ["SPINK"]); wsel = int(os.environ.get("DBGWG", "0")); wv = int(os.environ.get("DBGWV", "0"))
            a(f"s_cmp_lg_u32 s2, {wsel}")
            a("s_cbranch_scc1 L_end")
            a(f"s_cmp_lg_u32 s31, {wv}")
            a("s_cbranch_scc1 L_end")
            a("L_spin:")
            a("s_sleep 2")
            a("s_memrealtime s[62:63]")
            a("s_waitcnt lgkmcnt(0)")
            a(f"s_sub_u32 s3, s62, s{sbase+2*k}")
            a("s_cmp_lt_u32 s3, 3000")
            a("s_cbranch_scc1 L_spin")
            a("s_branch L_end")
        if "dbgout" in DBG:
            a("v_mov_b32 v2, 0")
            a(f"v_mov_b32 v4, s{sbase+2*(NST-1)}")
            a("global_atomic_umax v2, v4, s[26:27] offset:4")
            a(f"s_not_b32 s3, s{sbase}")
            a("v_mov_b32 v4, s3")
            a("global_atomic_umax v2, v4, s[26:27] offset:8")
            wsel = int(os.environ.get("DBGWG", "0")); wv = int(os.environ.get("DBGWV", "0"))
            a(f"s_cmp_lg_u32 s2, {wsel}")
            a("s_cbranch_scc1 L_end")
            a(f"s_cmp_lg_u32 s31, {wv}")
            a("s_cbranch_scc1 L_end")
            for i in range(1, 14):
                a(f"v_mov_b32 v4, s{sbase+2*i}")
                a(f"global_store_dword v2, v4, s[26:27] offset:{8+4*i}")
            a("s_branch L_end")
        a("s_lshl_b32 s3, s31, 8")
        a("s_add_u32 s3, s3, s2")
        a(f"s_mul_i32 s3, s3, {8*NST}")
        a(f"s_add_u32 s3, s3, {STAMP_OFF}")
        a("v_mov_b32 v2, s3")
        for i in range(NST):
            a(f"v_mov_b32 v4, s{sbase+2*i}\nv_mov_b32 v5, s{sbase+2*i+1}")
            a(f"global_store_dwordx2 v2, v[4:5], s[28:29] offset:{8*i}")
    a("L_end:")
    a("s_endpgm")
    a("L_code_end:")
    lines, n = hazard.fix(a.lines)
    print("nops inserted:", n, "lines", len(lines), file=sys.stderr)
    k = kernel_wrap(KN + "_kernel", "\n".join(lines), 256, 102, extra="  .amdhsa_float_denorm_mode_32 3\n")
    return make_file([f"; @launch grid=(256,1,1) block=(512,1,1) lds={B_LDS}"], [k])
if __name__ == "__main__":
    out = sys.argv[1]
    open(out, "w").write(build(stamps="--stamps" in sys.argv, do_a="--noa" not in sys.argv, do_p3="--nop3" not in sys.argv))
```

```python
import math, os
STA = os.environ.get("STA", "")
LOG2E = 1.4426950408889634
import struct
def f2u(x): return struct.unpack("<I", struct.pack("<f", x))[0]
def hexf(x): return "0x%08x" % f2u(x)
L2E_HI = struct.unpack("<f", struct.pack("<f", LOG2E))[0]
L2E_LO = LOG2E - L2E_HI

USTR = 4672
KBASE = 8 * USTR
KSTR = 8704
EOFF = 2112
YSTR = 4160
GROW = 544
USTG = KBASE + 8 * KSTR
A_LDS = USTG + 8 * YSTR

STREAMS = [(-24, 16, 2), (-16, 4, 1), (-16, 8, 2), (-16, 12, 1), (-24, 16, 4), (-16, 8, 3)]
BAND = 224
CUTS = [3, 6]
ULATE = int(os.environ.get('ULATE', '1'))
def role_a(a, stamp=lambda i: None, pf=None):
    a.c("---------------- role A ----------------")
    if pf: pf[0](a, 252, 253)
    a("s_lshl_b32 s32, s30, 3")
    a("s_add_u32 s32, s32, s31")
    a("s_lshl_b32 s33, s32, 8")
    a("v_lshl_add_u32 v2, v1, 2, s33")
    a("s_lshl_b32 s33, s32, 1")
    a("v_mov_b32 v3, s33")
    a("s_waitcnt lgkmcnt(0)")
    a("global_load_dword v10, v2, s[6:7]")
    a("global_load_ushort v14, v3, s[14:15]")
    a("global_load_dword v11, v2, s[8:9]")
    a("global_load_dword v12, v2, s[10:11]")
    a("global_load_dword v13, v2, s[12:13]")
    a("global_load_ushort v15, v3, s[16:17]")
    a("v_mul_u32_u24 v4, 1152, v0")
    a("s_lshl_b32 s33, s30, 4")
    a("v_add_u32 v4, s33, v4")
    a("s_mov_b64 s[44:45], s[4:5]\ns_mov_b32 s46, 2359296\ns_mov_b32 s47, 0x20000")
    a("s_lshl_b32 s48, s31, 10")
    a(f"s_add_u32 s48, s48, {USTG}")
    a("s_mov_b32 s49, s43")
    def uload(j):
        if "nou" in os.environ.get("DBGA", ""): return
        a("s_and_b32 s49, s49, 3")
        a("s_lshl_b32 s3, s49, 13")
        a("s_add_u32 m0, s48, s3")
        a(f"s_mul_i32 s3, s49, {512*1152}")
        a("s_add_u32 s49, s49, 1")
        a("buffer_load_dwordx4 v4, s[44:47], s3 offen lds")
    if not ULATE: uload(0)
    NPF = int(os.environ.get('NPF', '2')) if pf else 0
    if pf:
        pf[1](a)
        for r in range(NPF): pf[2](a, 252, 253 + r, r)
    a("v_and_b32 v5, 15, v1")
    a("v_lshrrev_b32 v6, 4, v1")
    a(f"s_mul_i32 s34, s31, {KSTR}")
    a(f"s_add_u32 s34, s34, {KBASE}")
    a(f"s_mul_i32 s35, s31, {USTR}")
    a("v_lshl_add_u32 v7, v1, 3, s34")
    a(f"v_mul_u32_u24 v8, {GROW}, v5")
    a("v_lshl_add_u32 v8, v6, 4, v8")
    a("v_add_u32 v8, s34, v8")
    a("v_mov_b32 v16, 0\nv_mov_b32 v17, 0")
    a("v_lshl_add_u32 v9, v1, 3, s35")
    a("ds_write_b64 v9, v[16:17]")
    a(f"s_mov_b32 s36, {hexf(L2E_HI)}")
    a(f"s_mov_b32 s37, {hexf(L2E_LO)}")
    a(f"s_mov_b32 s38, {hexf(math.log(2.0))}")
    a("s_mov_b32 s39, 0xffff0000")
    a("v_lshlrev_b32 v20, 3, v6")
    a("v_sub_u32 v20, v20, v5")
    a("v_add_u32 v21, 1, v20")
    a("s_mov_b32 s40, 0x05040100")
    a("v_perm_b32 v20, v21, v20, s40")
    a("s_mov_b32 s41, 0x3f803f80")
    a("s_mov_b32 s50, 0x00010001")
    for k, (start, sh, hw) in enumerate(STREAMS + [None]) if False else []: pass
    rng = [(-st - sh - hw, -st - sh + hw) for (st, sh, hw) in STREAMS] + [(12, 13)]
    for k, (lo, hi) in enumerate(rng):
        n = hi - lo + 1
        a(f"s_mov_b32 s51, {hex(n * 0x10001)}")
        for d in range(4):
            r = BAND + 4 * k + d
            c = (2 * d - lo) & 0xffff
            a(f"s_mov_b32 s52, {hex(c * 0x10001)}")
            a(f"v_pk_add_u16 v{r}, v20, s52")
            a(f"v_pk_sub_u16 v{r}, s51, v{r} clamp")
            a(f"v_pk_min_u16 v{r}, v{r}, s50")
            if k < 6: a(f"v_pk_mul_lo_u16 v{r}, v{r}, s41")
    stamp(1)
    def exp_bf16(dst, x, t0, t1):
        a(f"v_mul_f32 v{t0}, s36, v{x}")
        a(f"v_fma_f32 v{t1}, v{x}, s36, -v{t0}")
        a(f"v_fmac_f32 v{t1}, s37, v{x}")
        a(f"v_exp_f32 v{t0}, v{t0}")
        a(f"v_mul_f32 v{t1}, s38, v{t1}")
        a(f"v_fma_f32 v{t0}, v{t0}, v{t1}, v{t0}")
        a(f"v_cvt_pk_bf16_f32 v{t0}, v{t0}, v{t0}")
        a(f"v_and_b32 v{dst}, s39, v{t0}")
    a(f"s_waitcnt vmcnt({(4 if ULATE else 5) + NPF})")
    a("v_lshlrev_b32 v20, 16, v10")
    a("v_and_b32 v21, s39, v10")
    a("v_lshlrev_b32 v14, 16, v14")
    exp_bf16(18, 14, 22, 23)
    exp_bf16(20, 20, 22, 23)
    exp_bf16(21, 21, 24, 25)
    a("v_mul_f32 v20, v20, v18\nv_mul_f32 v21, v21, v18")
    a("v_mul_f32 v20, s36, v20\nv_mul_f32 v21, s36, v21")
    a(f"s_waitcnt vmcnt({(0 if ULATE else 1) + NPF})")
    if not ULATE: uload(1)
    a("v_lshlrev_b32 v22, 16, v11\nv_and_b32 v23, s39, v11")
    a("v_mul_f32 v22, v22, v18\nv_mul_f32 v23, v23, v18")
    a("v_mul_f32 v22, 0.15915494, v22\nv_mul_f32 v23, 0.15915494, v23")
    a("v_add_f32 v19, v18, v18")
    C = 24
    a("v_lshlrev_b32 v24, 16, v12\nv_and_b32 v25, s39, v12")
    a("v_lshlrev_b32 v26, 16, v13\nv_and_b32 v27, s39, v13")
    a("v_mul_f32 v24, v24, v19\nv_mul_f32 v25, v25, v19")
    a("v_mul_f32 v26, v26, -v19\nv_mul_f32 v27, v27, -v19" .replace("v_mul_f32", "v_mul_f32_e64"))
    a("v_lshlrev_b32 v15, 16, v15")
    def direct(dst, c, conj):
        t = 60
        cs = hexf(float(c))
        for h in range(2):
            a(f"v_mul_f32 v{t+h}, {hexf(-float(c))}, v{20+h}")
            a(f"v_mul_f32 v{t+2+h}, {hexf(-float(c) if conj else float(c))}, v{22+h}")
        for h in range(2):
            a(f"v_exp_f32 v{t+h}, v{t+h}")
            a(f"v_fract_f32 v{t+2+h}, v{t+2+h}")
        for h in range(2):
            a(f"v_cos_f32 v{dst+h}, v{t+2+h}")
            a(f"v_sin_f32 v{dst+2+h}, v{t+2+h}")
        a(f"v_pk_mul_f32 v[{dst}:{dst+1}], v[{dst}:{dst+1}], v[{t}:{t+1}]")
        a(f"v_pk_mul_f32 v[{dst+2}:{dst+3}], v[{dst+2}:{dst+3}], v[{t}:{t+1}]")
    tcnt = [0]
    def cmul(d, z, w):
        t = 64 + 4 * (tcnt[0] % 2); tcnt[0] += 1
        assert d != z and d != w
        if "nok" in os.environ.get("DBGA", ""): a("s_nop 15"); return
        a(f"v_pk_mul_f32 v[{t}:{t+1}], v[{z+2}:{z+3}], v[{w+2}:{w+3}]")
        a(f"v_pk_mul_f32 v[{t+2}:{t+3}], v[{z+2}:{z+3}], v[{w}:{w+1}]")
        a(f"v_pk_fma_f32 v[{d}:{d+1}], v[{z}:{z+1}], v[{w}:{w+1}], v[{t}:{t+1}] neg_lo:[0,0,1] neg_hi:[0,0,1]")
        a(f"v_pk_fma_f32 v[{d+2}:{d+3}], v[{z}:{z+1}], v[{w+2}:{w+3}], v[{t+2}:{t+3}]")
    pcnt = [0]
    def emit(z, row):
        p = 72 + 2 * (pcnt[0] % 4); pcnt[0] += 1
        a(f"v_cvt_pk_bf16_f32 v{p}, v{z}, v{z+2}")
        a(f"v_cvt_pk_bf16_f32 v{p+1}, v{z+1}, v{z+3}")
        a(f"ds_write_b64 v7, v[{p}:{p+1}] offset:{row*GROW}")
    W16, W1, E256, W2, W4, W8 = 28, 32, 36, 40, 44, 48
    Z0, Z1, G0, G1 = 52, 56, 80, 84
    FA, FB = 96, 128
    ACC = 160
    direct(W16, 16, False)
    a("v_mov_b32 v72, 0x3f80\nv_mov_b32 v73, 0x3f80")
    a("ds_write_b64 v7, v[72:73]"); pcnt[0] = 1
    emit(W16, 1)
    cmul(Z0, W16, W16); emit(Z0, 2)
    z, o = Z0, Z1
    for i in range(3, 16):
        cmul(o, z, W16); emit(o, i); z, o = o, z
        if i == (10 if ULATE else 6): uload(2)
    for s in range(8): a(f"ds_read_b128 v[{FA+4*s}:{FA+4*s+3}], v8 offset:{64*s}")
    direct(W1, 1, True)
    uload(3)
    direct(E256, 256, True)
    def tile_mfma(t):
        for s in range(8): a(f"ds_read_b128 v[{FB+4*s}:{FB+4*s+3}], v8 offset:{64*s}")
    def tile_mfma2(t, swap=False):
        a("s_waitcnt lgkmcnt(0)")
        for s in range(8):
            c = "0" if s == 0 else f"v[{ACC+4*t}:{ACC+4*t+3}]"
            x, y = (FA, FB) if swap else (FB, FA)
            a(f"v_mfma_f32_16x16x32_bf16 v[{ACC+4*t}:{ACC+4*t+3}], v[{x+4*s}:{x+4*s+3}], v[{y+4*s}:{y+4*s+3}], {c}")
    def wopf():
        a("s_sub_u32 s33, s43, 23")
        a("s_lshl_b32 s33, s33, 3")
        a("s_add_u32 s33, s33, s31")
        a("s_lshl_b32 s3, s33, 13")
        a("v_lshl_add_u32 v220, v1, 7, s3")
        a("s_lshl_b32 s3, s33, 10")
        a(f"s_add_u32 s3, s3, {4608*128}")
        a("v_and_b32 v221, 7, v1")
        a("v_lshl_add_u32 v221, v221, 7, s3")
        a("global_load_dword v220, v220, s[22:23]")
        a("global_load_dword v221, v221, s[22:23]")
    def utrans():
        a("v_bfe_u32 v200, v1, 2, 2")
        a("v_lshl_add_u32 v200, v6, 3, v200")
        a("v_bfe_u32 v201, v1, 1, 1")
        a("v_lshl_add_u32 v200, v201, 2, v200")
        a("v_lshlrev_b32 v200, 4, v200")
        a("v_and_b32 v201, 1, v1")
        a("v_lshl_add_u32 v200, v201, 3, v200")
        a("s_lshl_b32 s3, s31, 12")
        a(f"s_add_u32 s3, s3, {USTG}")
        a("v_add_u32 v200, s3, v200")
        a("v_and_b32 v201, 7, v1")
        a(f"v_mul_u32_u24 v201, {USTR}, v201")
        a("v_lshrrev_b32 v202, 3, v1")
        a("v_lshl_add_u32 v201, v202, 3, v201")
        a("s_lshl_b32 s3, s31, 9")
        a("v_add_u32 v201, s3, v201")
        stamp(7)
        a("s_waitcnt vmcnt(2)")
        a("s_barrier")
        stamp(8)
        for i in range(8): a(f"ds_read_b64_tr_b16 v[{204+2*i}:{205+2*i}], v200 offset:{512*i}")
        for i in range(8):
            a(f"s_waitcnt lgkmcnt(7)")
            a(f"ds_write_b64 v201, v[{204+2*i}:{205+2*i}] offset:{512+64*i}")
        a("s_waitcnt lgkmcnt(0)")
        a("s_barrier")
    emit(C, 0)
    cmul(Z0, C, W1); emit(Z0, 1)
    z, o = Z0, Z1
    for j in range(2, 16):
        cmul(o, z, W1); emit(o, j); z, o = o, z
        if ULATE and j in (5, 11): uload(0)
    tile_mfma(0)
    cmul(W2, W1, W1); cmul(G0, C, E256); cmul(W4, W2, W2); cmul(Z0, G0, W2); cmul(W8, W4, W4)
    tile_mfma2(0)
    emit(G0, 0); emit(Z0, 1)
    cmul(G1, G0, E256)
    z, o = Z0, Z1
    for j in range(2, 8):
        cmul(o, z, W2); emit(o, j); z, o = o, z
    emit(G1, 8)
    wopf()
    tile_mfma(1)
    cmul(G0, G1, E256)
    cmul(Z0, G1, W4)
    cmul(Z1, Z0, W4)
    tile_mfma2(1)
    if not ULATE: utrans()
    emit(Z0, 1); emit(Z1, 2); cmul(Z0, Z1, W4); emit(Z0, 3); cmul(Z1, Z0, W4); emit(Z1, 0)
    cmul(G1, G0, E256)
    cmul(Z0, G0, W4); emit(Z0, 5); cmul(Z1, Z0, W4); emit(Z1, 6); cmul(Z0, Z1, W4); emit(Z0, 7); cmul(Z1, Z0, W4); emit(Z1, 4)
    g, og = G1, G0
    for h in range(4):
        cmul(Z0, g, W8)
        if h < 3: cmul(og, g, E256)
        emit(Z0, 8 + 2*h + 1)
        cmul(Z1, Z0, W8); emit(Z1, 8 + 2*h)
        g, og = og, g
    if ULATE: utrans()
    tile_mfma(2)
    stamp(2)
    T0, T1, T2 = ACC, ACC+4, ACC+8
    a("v_lshl_add_u32 v25, v1, 4, s34")
    a("v_mov_b64 v[18:19], v[16:17]")
    a("ds_write_b128 v25, v[16:19]")
    a("ds_write_b128 v25, v[16:19] offset:1024")
    a("ds_write_b128 v25, v[16:19] offset:2048")
    a("v_cmp_eq_u32 vcc, 0, v1")
    a("v_cndmask_b32 v15, 0, v15, vcc")
    a(f"v_add_f32 v{T0}, v{T0}, v15")
    a("v_lshlrev_b32 v20, 5, v5")
    a("v_sub_u32 v20, s34, v20")
    a(f"v_cvt_pk_bf16_f32 v64, v{T1+3}, v{T1+3}")
    a(f"v_cvt_pk_bf16_f32 v66, v{T1+2}, v{T1+2}")
    a(f"v_cvt_pk_bf16_f32 v69, v{T1}, v{T1}")
    a(f"v_cvt_pk_bf16_f32 v70, v{T1+2}, v{T1+1}")
    a("v_lshlrev_b32 v23, 4, v6")
    a("v_sub_u32 v23, v20, v23")
    a("v_lshlrev_b32 v24, 3, v6")
    a("v_sub_u32 v26, s34, v24")
    a("v_sub_u32 v24, v20, v24")
    a(f"v_cvt_pk_bf16_f32 v72, v{T0+3}, v{T0+2}")
    a(f"v_cvt_pk_bf16_f32 v73, v{T0+1}, v{T0}")
    a("s_mov_b32 exec_lo, 0\ns_mov_b32 exec_hi, 1")
    a(f"ds_write_b16 v20, v69 offset:{14*4+2}")
    a(f"ds_write_b32 v20, v69 offset:{15*4}")
    a(f"ds_write_b16 v20, v69 offset:{16*4}")
    a("s_mov_b32 exec_lo, -1\ns_mov_b32 exec_hi, 0")
    a(f"ds_write_b16 v23, v64 offset:{140*4+2}")
    a("ds_write2_b32 v23, v66, v70 offset0:141 offset1:142")
    a(f"ds_write_b32 v23, v69 offset:{143*4}")
    a(f"ds_write_b16 v23, v69 offset:{144*4}")
    a("s_mov_b64 exec, -1")
    a(f"ds_write_b64 v24, v[72:73] offset:{270*4}")
    a("v_and_b32 v27, 3, v5")
    a("v_mul_u32_u24 v27, 96, v27")
    a("v_bfe_u32 v28, v5, 2, 1")
    a("v_lshlrev_b32 v28, 5, v28")
    a("v_sub_u32 v27, v27, v28")
    a("v_and_b32 v28, 1, v5")
    a("v_mul_u32_u24 v28, 160, v28")
    a("v_bfe_u32 v29, v5, 1, 2")
    a("v_lshlrev_b32 v29, 5, v29")
    a("v_sub_u32 v28, v28, v29")
    a(f"v_add_u32 v28, {(406-294)*4}, v28")
    a("v_cmp_gt_u32 vcc, 8, v5")
    a("v_cndmask_b32 v27, v28, v27, vcc")
    a("v_add_u32 v27, v27, v26")
    a("s_waitcnt lgkmcnt(11)")
    for s_ in range(8):
        c = "0" if s_ == 0 else f"v[{T2}:{T2+3}]"
        a(f"v_mfma_f32_16x16x32_bf16 v[{T2}:{T2+3}], v[{FA+4*s_}:{FA+4*s_+3}], v[{FB+4*s_}:{FB+4*s_+3}], {c}")
    stamp(3)
    a("v_and_b32 v28, 1, v5")
    a(f"v_mul_u32_u24 v28, {EOFF}, v28")
    a("v_lshrrev_b32 v29, 1, v5")
    a("v_lshlrev_b32 v29, 2, v29")
    a("v_add_u32 v28, v28, v29")
    a("v_sub_u32 v28, s34, v28")
    a(f"v_add_u32 v28, {EOFF}, v28")
    a("v_lshl_add_u32 v10, v6, 4, v28")
    a(f"v_add_u32 v11, {128*4}, v10")
    a("v_lshl_add_u32 v12, v6, 3, v28")
    a(f"v_add_u32 v12, {256*4}, v12")
    a("v_lshlrev_b32 v13, 5, v5")
    a("v_lshl_add_u32 v14, v6, 3, v13")
    a("v_lshl_add_u32 v13, v6, 4, v13")
    a("v_add_u32 v13, s35, v13")
    a(f"s_mul_i32 s3, s31, {YSTR}")
    a(f"s_add_u32 s3, s3, {USTG}")
    a("v_add_u32 v14, s3, v14")
    a(f"v_cvt_pk_bf16_f32 v72, v{T2+3}, v{T2+2}")
    a(f"v_cvt_pk_bf16_f32 v73, v{T2+1}, v{T2}")
    a(f"ds_write_b64 v27, v[72:73] offset:{294*4}")
    for j in range(2):
        a(f"ds_read_b128 v[{96+8*j}:{99+8*j}], v25 offset:{1024*j}")
        a(f"ds_read_b32 v{100+8*j}, v25 offset:{1024*j+16}")
    a("v_readlane_b32 s3, v72, 52")
    a("s_and_b32 s3, s3, 0xffff")
    a("s_mul_i32 s3, s3, 0x10001")
    for d in range(4): a(f"v_pk_mul_lo_u16 v{BAND+24+d}, v{BAND+24+d}, s3")
    a("v_lshrrev_b32 v3, 2, v5")
    a(f"v_mul_u32_u24 v3, {YSTR}, v3")
    a("v_and_b32 v4, 3, v5")
    a("v_lshl_add_u32 v3, v4, 3, v3")
    a("v_lshl_add_u32 v3, v6, 5, v3")
    a(f"v_add_u32 v3, {USTG}, v3")
    a("v_mul_u32_u24 v4, 2304, v1")
    a("s_lshl_b32 s33, s30, 4")
    a("v_add_u32 v4, s33, v4")
    for j in range(2):
        a(f"s_waitcnt lgkmcnt({2-2*j})")
        for k in range(4):
            a(f"v_alignbit_b32 v{128+4*j+k}, v{97+8*j+k}, v{96+8*j+k}, 16")
        a(f"ds_write_b128 v25, v[{128+4*j}:{131+4*j}] offset:{EOFF+1024*j}")
    stamp(4)
    Y = 16
    TF = 48
    BF = 116
    UR = 156
    WT = 188
    YP = 212
    T65 = BAND + 24
    q_ = []
    def lds(txt, tag=None):
        a(txt); q_.append(tag)
    def need(tags):
        idx = max(i for i, t in enumerate(q_) if t in tags)
        n = len(q_) - 1 - idx
        if n < need.done:
            a(f"s_waitcnt lgkmcnt({min(n, 15)})")
        need.best = None
    done_upto = [-1]
    def wait_for(tags):
        idx = max(i for i, t in enumerate(q_) if t in tags)
        if idx > done_upto[0]:
            n = len(q_) - 1 - idx
            a(f"s_waitcnt lgkmcnt({min(n, 15)})")
            done_upto[0] = idx if n <= 15 else len(q_) - 1 - 15
    def tload(k):
        o = 271 - 8 * (2*k + 1)
        ad = 10
        if o >= 128: ad, o = 11, o - 128
        lds(f"ds_read2_b32 v[{TF+4*k}:{TF+4*k+1}], v{ad} offset0:{o} offset1:{o+1}", ("T", k))
        lds(f"ds_read2_b32 v[{TF+4*k+2}:{TF+4*k+3}], v{ad} offset0:{o+2} offset1:{o+3}", ("T", k))
    bfl = [(0, d) for d in (2, 3, 4)] + [(1, d) for d in (2, 3, 4)] + [(2, d) for d in (4, 5, 6, 7)]
    def bload(n):
        pr, dl = bfl[n]
        for hf in range(2):
            if pr < 2: o = 280 + 24 * (2*pr + hf) + 31 - 8 * dl
            else: o = 376 + 40 * hf + 63 - 8 * dl
            o -= 256
            lds(f"ds_read2_b32 v[{BF+4*n+2*hf}:{BF+4*n+2*hf+1}], v12 offset0:{o} offset1:{o+1}", ("B", n))
    useq = []
    for q in range(8):
        useq += ([(q, 'x')] if q < 6 else []) + [(q, r) for r in range(8)]
    upos = {u: i for i, u in enumerate(useq)}
    def ureg(u): return UR + 4 * (upos[u] % 8)
    unext = [0]
    def uld():
        if unext[0] >= len(useq): return
        q, r = u = useq[unext[0]]; unext[0] += 1
        o = 512 * q + (480 - 16 if r == 'x' else 480 - 64 * r)
        lds(f"ds_read_b128 v[{ureg(u)}:{ureg(u)+3}], v13 offset:{o}", ("U", u))
    first = set()
    def mf(d, x, y, c):
        if "noc" in os.environ.get("DBGA", ""): a("s_nop 7"); return
        a(f"v_mfma_f32_16x16x32_bf16 v[{d}:{d+3}], v[{x}:{x+3}], v[{y}:{y+3}], {c}")
    def ymf(at, x, y):
        c = f"v[{Y+4*at}:{Y+4*at+3}]" if at in first else "0"
        first.add(at)
        mf(Y + 4*at, x, y, c)
    def ywrite(at):
        p = YP + 2 * (at % 2)
        a(f"v_cvt_pk_bf16_f32 v{p}, v{Y+4*at}, v{Y+4*at+1}")
        a(f"v_cvt_pk_bf16_f32 v{p+1}, v{Y+4*at+2}, v{Y+4*at+3}")
        lds(f"ds_write_b64 v14, v[{p}:{p+1}] offset:{512*at}", ("Y", at))
    uld(); uld()
    pend = []
    tload(0); tload(8); tload(16)
    for k in range(1, 8): pend.append(lambda k=k: (tload(k), tload(k + 8)))
    for n in range(10): pend.append(lambda n=n: bload(n))
    for _ in range(3): uld()
    for _ in range(2): pend.pop(0)()
    for q in range(8):
        npair = 3 if q < 4 else (2 if q < 6 else 0)
        for pr in range(npair):
            for hf in range(2):
                st = STREAMS[2*pr + hf]
                u = (q, 'x') if st[0] == -24 else (q, 0)
                wait_for({("U", u)})
                mf(WT + 8*pr + 4*hf, ureg(u), BAND + 4*(2*pr + hf), "0")
                if pend: pend.pop(0)()
        if q < 6: uld()
        scat = [(n, pr, dl) for n, (pr, dl) in enumerate(bfl) if pr < npair and q + dl < 8]
        scat.sort(key=lambda t: t[1])
        for r in range(8):
            u = (q, r)
            wait_for({("U", u), ("T", r)})
            ymf(q, TF + 4*r, ureg(u))
            if pend: pend.pop(0)()
            if q < 7:
                wait_for({("T", r + 8)})
                ymf(q + 1, TF + 4*(r + 8), ureg(u))
            if r == 0:
                if q < 6: wait_for({("T", 16)}); ymf(q + 2, TF + 64, ureg(u))
                if q < 4: ymf(q + 4, T65, ureg(u))
            uld()
            if pend: pend.pop(0)()
            if r == 1 and q > 0: ywrite(q - 1)
            if 2 <= r <= 4 and r - 2 < npair:
                w = WT + 8 * (r - 2)
                for k in range(4): a(f"v_cvt_pk_bf16_f32 v{w+k}, v{w+2*k}, v{w+2*k+1}")
            if r >= 3:
                take = [t for t in scat if t[1] <= r - 3][:(3 if r < 7 else 99)]
                for t in take:
                    scat.remove(t)
                    n, pr, dl = t
                    wait_for({("B", n)})
                    ymf(q + dl, WT + 8*pr, BF + 4*n)
            if r == 2 and q in CUTS:
                lab = a.label("L_a_noy")
                a("s_cmp_lt_u32 s31, 4")
                a(f"s_cbranch_scc1 {lab}")
                idx = max(i for i, t in enumerate(q_) if t == ("Y", q - 1))
                a(f"s_waitcnt lgkmcnt({len(q_) - 1 - idx})")
                a("s_barrier")
                a(f"{lab}:")
        assert not scat
    stamp(5)
    ywrite(7)
    def ystore(n, row0_sreg):
        a(f"s_lshl_b32 s3, s{row0_sreg}, 1")
        a("v_add_u32 v7, s3, v3")
        a(f"s_mul_i32 s3, s{row0_sreg}, 2304")
        a("v_add_u32 v8, s3, v4")
        for j in range(n):
            a(f"ds_read_b64_tr_b16 v[{60+4*j}:{61+4*j}], v7 offset:{128*j}")
            a(f"ds_read_b64_tr_b16 v[{62+4*j}:{63+4*j}], v7 offset:{128*j+4*YSTR}")
        for j in range(n):
            a(f"s_waitcnt lgkmcnt({2*(n-1-j)})")
            if "nos" not in os.environ.get("DBGA", ""): a(f"global_store_dwordx4 v8, v[{60+4*j}:{63+4*j}], s[24:25] {STA}")
            if j < n - 1: a(f"v_add_u32 v8, {64*2304}, v8")
    a("s_waitcnt lgkmcnt(0)")
    a("s_cmp_ge_u32 s31, 4")
    a("s_cbranch_scc1 L_a_y2")
    prev = 0
    for cut in CUTS:
        n = cut - prev
        a("s_barrier")
        a(f"s_mul_i32 s33, s31, {64*n}")
        a(f"s_add_u32 s33, s33, {256*prev}")
        ystore(n, 33)
        a("s_nop 1")
        prev = cut
    a("L_a_y2:")
    a("s_barrier")
    n = (8 - prev) // 2
    a(f"s_mul_i32 s33, s31, {64*n}")
    a(f"s_add_u32 s33, s33, {256*prev}")
    ystore(n, 33)
    stamp(6)
    if os.environ.get("WBL2"):
        a(f"s_cmp_lg_u32 s43, {os.environ['WBL2']}")
        a("s_cbranch_scc1 L_fin")
        a("s_waitcnt vmcnt(0)")
        a("s_barrier")
        a("s_cmp_lg_u32 s31, 0")
        a("s_cbranch_scc1 L_fin")
        a("buffer_wbl2 sc1")
```

```python
import os
from gen_a import hexf, LOG2E
DBG = os.environ.get('DBG', '')
STB = os.environ.get('STB', 'sc1')
PORD = os.environ.get('PORD', 'cc')
QW = int(os.environ.get('QW', '8'))
POLL2 = int(os.environ.get('POLL2', '0'))
KW = int(os.environ.get('KW', '8'))
KRT = int(os.environ.get('KRT', '4'))
NSC = int(os.environ.get('NSC', '1'))
PQW = int(os.environ.get('PQW', '4'))
PQE = int(os.environ.get('PQE', '2')) if PORD == 'qk' else 0
FAIR = int(os.environ.get('FAIR', '0'))
PSLEEP = int(os.environ.get('PSLEEP', '6'))
SHARD = int(os.environ.get('SHARD', '16'))
NS = 4
WROW = 288
WSZ = 64 * WROW
EXS = 160
LCNT = 163776
EX = LCNT - 2 * 128 * EXS
B_LDS = 163840
EPI = 147456
RXB = 147456
RXF = 157696
KVACC, CNT, PQC, PQ, PQL, WS_SZ = 0, 0xC000, 0xB000, 0x100000, 0x300000, 0x400000
PAIRB = 2816
O_MMB, O_LD, O_XM, O_XL = 1024, 2048, 2304, 2688
EPS = 1e-6
ONE_EPS = 1.0 + 1e-6
OOB = "0x7ffffff0"
SX, SW, SWO, SWS, SDB = 44, 48, 52, 56, 60
WSR = f"s[{SWS}:{SWS+3}]"
WOF = 112
AS0 = 23

def srd(a, r, p, size):
    a(f"s_mov_b32 s{r}, s{p}\ns_mov_b32 s{r+1}, s{p+1}\ns_mov_b32 s{r+2}, {size}\ns_mov_b32 s{r+3}, 0x20000")

PFS = [int(x) for x in os.environ.get("PFS", "8,7,1,3,5,6").split(",")]
def pf_setup(a, v, t):
    a(f"s_sub_u32 s53, s43, {AS0}")
    a("s_lshl_b32 s53, s53, 3")
    a("s_add_u32 s53, s53, s31")
    a("s_mul_i32 s57, s53, 43")
    a("s_lshr_b32 s57, s57, 10")
    a("s_mul_i32 s58, s57, 24")
    a("s_sub_u32 s58, s53, s58")
    a("s_lshl_b32 s57, s57, 2")
    a(f"v_min_u32 v{t}, 14, v2")
    a(f"v_mul_u32_u24 v{t+1}, 52, v{t}")
    a(f"v_lshrrev_b32 v{t+1}, 8, v{t+1}")
    a(f"v_mul_u32_u24 v{t+1}, {1152-640}, v{t+1}")
    a(f"v_lshl_add_u32 v{t}, v{t}, 7, v{t+1}")
    a(f"v_mul_u32_u24 v{t+1}, 3456, v3")
    a(f"s_mul_i32 s59, s58, {4*3456}")
    a("s_and_b32 s3, s42, 4")
    a("s_lshl_b32 s3, s3, 7")
    a("s_add_u32 s59, s59, s3")
    a(f"v_add3_u32 v{t}, v{t}, v{t+1}, s59")
    a("s_lshl_b32 s3, s34, 9")
    a("s_lshl_b32 s59, s58, 6")
    a("s_add_u32 s3, s3, s59")
    a("s_sub_u32 s3, s3, 1024")
    a(f"v_add_u32 v{t+1}, s3, v1")
    a(f"v_mul_u32_u24 v{t+1}, 1152, v{t+1}")
    a("s_cmp_lt_u32 s58, 16")
    a("s_cselect_b64 vcc, -1, 0")
    a("s_movk_i32 s56, 128")
    a(f"s_cselect_b32 s56, {64*3456}, s56")
    a(f"v_cndmask_b32 v{v}, v{t+1}, v{t}, vcc")
def pf_base(a):
    a("s_cmp_lt_u32 s58, 16")
    a("s_cselect_b64 s[54:55], s[20:21], s[18:19]")
def pf_round(a, v, dst, r):
    tab = sum(PFS[3*r + i] << (4*i) for i in range(3))
    a(f"s_lshr_b32 s3, {tab:#x}, s57")
    a("s_and_b32 s3, s3, 15")
    a("s_mul_i32 s3, s3, s56")
    a(f"v_add_u32 v{dst}, s3, v{v}")
    a(f"global_load_dword v{dst}, v{dst}, s[54:55]")

def role_zero(a):
    a.c("---------------- zero-init WG ----------------")
    a("v_lshlrev_b32 v2, 4, v0")
    for i in range(4): a(f"v_mov_b32 v{4+i}, 0")
    a("s_mov_b32 s33, 0")
    a("s_waitcnt lgkmcnt(0)")
    srd(a, SWS, 28, WS_SZ); srd(a, SDB, 26, 256)
    for j in range(8):
        a(f"buffer_store_dwordx4 v[4:7], v2, {WSR}, s33 offen sc1")
        a("s_add_u32 s33, s33, 8192")
    a("s_waitcnt vmcnt(0)")
    a("s_barrier")
    a("s_cmp_lg_u32 s31, 0")
    a("s_cbranch_scc1 L_fin")
    a("v_mov_b32 v8, 1")
    a("s_mov_b64 exec, 1")
    a(f"buffer_atomic_add v8, v4, s[{SDB}:{SDB+3}], 0 offen")
    a("s_mov_b64 exec, -1")
    a("s_branch L_fin")

def phi4(a, r, t, d):
    if isinstance(a, list):
        L = a; a = lambda x: L.append(x)
    for h in (0, 2):
        a(f"v_pk_fma_f32 v[{t+h}:{t+h+1}], v[{r+h}:{r+h+1}], s[40:41], v[250:251]|v_fma_f32 v{t+h}, v{r+h}, s40, v250|v_fma_f32 v{t+h+1}, v{r+h+1}, s40, v250")
    for i in range(4): a(f"v_exp_f32_e64 v{t+i}, v{t+i} clamp")
    for h in (0, 2):
        a(f"v_pk_add_f32 v[{t+h}:{t+h+1}], v[{t+h}:{t+h+1}], v[252:253]|v_add_f32 v{t+h}, v252, v{t+h}|v_add_f32 v{t+h+1}, v252, v{t+h+1}")
    for i in range(4): a(f"v_max_f32 v{t+i}, v{t+i}, v{r+i}")
    if d is not None:
        a(f"v_cvt_pk_bf16_f32 v{d}, v{t}, v{t+1}")
        a(f"v_cvt_pk_bf16_f32 v{d+1}, v{t+2}, v{t+3}")

def ct_calc(a):
    a("s_sub_u32 s97, 20, s43" if KRT == 5 else "s_mov_b32 s97, s43")
    a("s_mul_i32 s96, s97, 52")
    a("s_lshr_b32 s96, s96, 8")
    a("s_mul_i32 s3, s96, 5")
    a("s_sub_u32 s97, s97, s3")
def wo_voff(a, d):
    a("s_and_b32 s30, s31, 1")
    a("s_lshl_b32 s3, s30, 3")
    a(f"v_lshl_add_u32 v{d+2}, v3, 1, s3")
    a(f"v_xor_b32 v{d+2}, v{d+2}, v2")
    a("s_lshl_b32 s3, s97, 8")
    a(f"v_lshl_add_u32 v{d+2}, v{d+2}, 4, s3")
    a("s_and_b32 s3, s31, 3")
    a("s_lshl_b32 s95, s3, 10")
    a(f"v_lshl_add_u32 v{d}, v3, 2, s3")
    a(f"v_mul_u32_u24 v{d}, 1152, v{d}")
    a(f"v_add_u32 v{d}, v{d}, v{d+2}")
    a("s_mul_i32 s3, s3, 18")
    a("s_lshl_b32 s30, s30, 4")
    a("s_sub_u32 s3, s3, s30")
    a("s_add_u32 s3, s3, 16")
    a(f"v_lshrrev_b32 v{d+1}, 1, v3")
    a(f"v_mul_u32_u24 v{d+1}, 70, v{d+1}")
    a(f"v_add3_u32 v{d+1}, v{d+1}, v3, s3")
    a(f"v_mul_u32_u24 v{d+1}, 1152, v{d+1}")
    a(f"v_add_u32 v{d+1}, v{d+1}, v{d+2}")
def wo_loads(a, d, steps):
    for st in steps:
        for h in range(2):
            a(f"s_add_u32 m0, s95, {8192*st + 4096*h}")
            a(f"s_mov_b32 s3, {((36*st + 20*h) if st < 16 else (288*(st-16) + 144*h))*1152}")
            a(f"buffer_load_dwordx4 v{d + (st >= 16)}, s[{SWO}:{SWO+3}], s3 offen lds")
def wotr(a, s, ar, base=0):
    L = []
    for t in range(2):
        for h in range(2):
            r = WOF + 8*s + 4*t + 2*h
            L.append(f"ds_read_b64_tr_b16 v[{r}:{r+1}], v{ar+t} offset:{8192*s + 4096*h - base}")
    return L

def tr_addr(a, d):
    if isinstance(a, list):
        L = a; a = lambda x: L.append(x)
    a(f"v_lshrrev_b32 v{d}, 2, v2")
    a(f"v_lshl_add_u32 v{d}, v3, 2, v{d}")
    a(f"v_and_b32 v{d+1}, 7, v{d}")
    a(f"v_lshlrev_b32 v{d+1}, 1, v{d+1}")
    a(f"v_bfe_u32 v{d+2}, v2, 1, 1")
    a("s_lshr_b32 s3, s31, 1")
    a("s_lshl_b32 s3, s3, 2")
    a(f"v_add_u32 v{d+2}, s3, v{d+2}")
    a(f"v_xor_b32 v{d+1}, v{d+1}, v{d+2}")
    a(f"v_lshlrev_b32 v{d}, 8, v{d}")
    a(f"v_lshl_add_u32 v{d}, v{d+1}, 4, v{d}")
    a(f"v_and_b32 v{d+1}, 1, v2")
    a(f"v_lshl_add_u32 v{d}, v{d+1}, 3, v{d}")
    a(f"v_xor_b32 v{d+1}, 32, v{d}")
    a(f"v_add_u32 v{d+2}, 0x10000, v{d}")
    a(f"v_add_u32 v{d+3}, 0x10000, v{d+1}")
def wo_regs(a, d, n):
    for st in list(range(8, 14)) + list(range(7, -1, -1)):
        for x in (wotr(a, st, d) if st < 8 else wotr(a, st, d + 2, 0x10000)): a(x)
    a(f"v_add_u32 v0, 0x1c000, v{d}")

def lds_last(a, lab):
    a(f"v_mov_b32 v4, {LCNT}")
    a("v_mov_b32 v5, 1")
    a("s_waitcnt vmcnt(0)")
    a("s_mov_b64 exec, 1")
    a("ds_add_rtn_u32 v6, v4, v5")
    a("s_mov_b64 exec, -1")
    a("s_waitcnt lgkmcnt(0)")
    a("v_readfirstlane_b32 s3, v6")
    a("s_cmp_lg_u32 s3, 3")
    a(f"s_cbranch_scc1 {lab}")

def prep3(a):
    a("s_mov_b32 s33, s97")
    a("s_lshl_b32 s34, s42, 2")
    a("s_add_u32 s32, s96, s34")
    a("s_and_b32 s36, s31, 1")
    a("s_lshr_b32 s35, s31, 1")
    a(f"v_mov_b32 v8, {OOB}")
    a("v_lshlrev_b32 v9, 4, v1")
    a(f"s_mul_i32 s37, s31, {2*PAIRB}")
    a("v_and_b32 v6, 3, v2")
    a("v_bfe_u32 v7, v2, 2, 1")
    a("v_lshl_add_u32 v7, v7, 1, v6")
    a("v_cmp_gt_u32 vcc, 2, v6")
    a("v_cndmask_b32 v7, v7, v6, vcc")
    a("v_lshlrev_b32 v12, 4, v3")
    a("v_lshl_add_u32 v12, v7, 6, v12")
    a("v_cmp_gt_u32 s[44:45], 8, v2")
    a("s_or_b64 s[96:97], s[44:45], vcc")
    a("s_orn2_b64 vcc, vcc, s[44:45]")
    a("v_cndmask_b32 v13, v8, v12, vcc")
    a("v_cndmask_b32 v12, v8, v12, s[96:97]")
    a("v_lshlrev_b32 v10, 4, v2")
    a(f"v_lshlrev_b32 v11, 4, v7")
    a(f"v_add_u32 v11, {O_XL - O_LD}, v11")
    a("v_cmp_lt_u32 s[100:101], 1, v3")
    a("v_cndmask_b32 v10, v10, v11, s[100:101]")
    a("v_and_b32 v6, 1, v3")
    a(f"v_mul_u32_u24 v11, {PAIRB}, v6")
    a("v_add_u32 v10, v10, v11")
    a("v_cmp_eq_u32 s[98:99], 1, v6")
    a("v_cmp_eq_u32 s[44:45], 1, v7")
    a("v_cmp_lt_u32 s[46:47], 3, v7")
    a("s_or_b64 s[44:45], s[44:45], s[46:47]")
    a("s_andn2_b64 s[46:47], s[100:101], s[98:99]")
    a("s_and_b64 s[46:47], s[46:47], s[96:97]")
    a("s_and_b64 s[96:97], s[100:101], s[98:99]")
    a("s_and_b64 s[96:97], s[96:97], vcc")
    a("v_lshlrev_b32 v7, 3, v2")
    a("v_lshl_add_u32 v7, v6, 7, v7")
    a("s_lshl_b32 s38, s32, 6")
    a("s_lshl_b32 s39, s31, 1")
    a("s_add_u32 s38, s38, s39")
    a("s_lshl_b32 s39, s38, 7")
    a(f"s_add_u32 s39, s39, {PQL}")
    a("s_lshl_b32 s38, s38, 10")
    a(f"s_add_u32 s38, s38, {PQ}")

def role_gemm(a, kind, stamp):
    Q = kind == "q"
    RT = (9 - KRT) if Q else KRT
    R = 32 * RT
    XSZ = R * 128
    SLOT = XSZ + WSZ
    NL = 5 + RT
    L = lambda s: f"L_{kind}_{s}"
    a.c(f"---------------- role {kind} ----------------")
    rstamp = stamp
    if "stA" in DBG or "stB" in DBG: stamp = lambda i: None
    a("s_cmp_lt_u32 s31, 4")
    a(f"s_cbranch_scc1 {L('comp')}")
    a("s_sub_u32 s35, s31, 4")
    a("s_and_b32 s37, s35, 1")
    a(f"s_mul_i32 s34, s33, {R}")
    a(f"s_mul_i32 s36, s35, {8*RT}")
    a("s_add_u32 s36, s36, s34")
    a("v_lshrrev_b32 v4, 3, v1")
    a("v_add_u32 v4, s36, v4")
    a("v_mul_u32_u24 v4, 1152, v4")
    a("v_and_b32 v5, 7, v1")
    a("v_xor_b32 v5, v5, v3")
    if RT % 2:
        a("s_lshl_b32 s36, s37, 2")
        a("v_xor_b32 v5, s36, v5")
    a("v_lshl_add_u32 v10, v5, 4, v4")
    a("v_xor_b32 v5, 4, v5")
    a("v_lshl_add_u32 v11, v5, 4, v4")
    a(f"s_mul_i32 s38, s35, {1024*RT}")
    a("s_lshr_b32 s36, s35, 1")
    a("s_lshl_b32 s36, s36, 3")
    a("s_add_u32 s36, s36, s37")
    a(f"s_mul_i32 s36, s36, {4*3456}")
    a(f"s_mul_i32 s39, s32, {288 if Q else 144}")
    a("s_add_u32 s36, s36, s39")
    if not Q: a("s_add_u32 s36, s36, 1152")
    a(f"s_mul_i32 s39, s35, {16*WROW}")
    a(f"s_mov_b32 s{SW+2}, 1990656\ns_mov_b32 s{SW+3}, 0x20000\ns_mov_b32 s{SX+2}, 2359296\ns_mov_b32 s{SX+3}, 0x20000")
    def wcalc(t):
        if t: a(f"v_add_u32 v4, {64*t}, v1")
        src = "v4" if t else "v1"
        if Q:
            a(f"v_mul_u32_u24 v5, 3641, {src}")
            a("v_lshrrev_b32 v5, 16, v5")
            a(f"v_lshl_add_u32 v6, {src}, 4, s36")
            a(f"v_mul_u32_u24 v7, {3456-288}, v5")
        else:
            a(f"v_mul_u32_u24 v5, 7282, {src}")
            a("v_lshrrev_b32 v5, 16, v5")
            a(f"v_lshl_add_u32 v6, {src}, 4, s36")
            a("v_mul_u32_u24 v7, 1008, v5")
            a("v_lshrrev_b32 v5, 1, v5")
            a("v_mad_u32_u24 v7, v5, s34, v7")
        a("v_lshrrev_b32 v5, 2, v5")
        a(f"v_mul_u32_u24 v5, {4*3456}, v5")
        a(f"v_add3_u32 v{13+t}, v5, v6, v7")
    def wload(slot, t):
        if t == 4: a("s_mov_b32 exec_hi, 0")
        a(f"s_add_u32 m0, s39, {slot*SLOT + XSZ + 1024*t}")
        a(f"buffer_load_dwordx4 v{13+t}, s[{SW}:{SW+3}], s30 offen lds")
        if t == 4: a("s_mov_b32 exec_hi, -1")
    def xpart(slot):
        a("s_lshl_b32 s30, s94, 7")
        for t in range(RT):
            a(f"s_add_u32 m0, s38, {slot*SLOT + 1024*t}")
            a(f"s_add_u32 s3, s30, {8*1152*t}")
            a(f"buffer_load_dwordx4 v{10+(t&1)}, s[{SX}:{SX+3}], s3 offen lds")
        a(f"s_mul_i32 s30, s94, {64*3456}")
        a("s_add_u32 s94, s94, 1")
        a("s_cmp_eq_u32 s94, 9")
        a("s_cselect_b32 s94, 0, s94")
    def stage(slot):
        xpart(slot)
        for t in range(5): wload(slot, t)
    a("s_movk_i32 s34, 1152")
    wcalc(0); wcalc(1)
    a("s_waitcnt lgkmcnt(0)")
    a(f"s_mov_b64 s[{SW}:{SW+1}], s[20:21]\ns_mov_b64 s[{SX}:{SX+1}], s[18:19]")
    xpart(0)
    wload(0, 0); wload(0, 1)
    for t in (2, 3, 4): wcalc(t); wload(0, t)
    stamp(1)
    stage(1)
    srd(a, SWS, 28, WS_SZ); srd(a, SDB, 26, 256); srd(a, SWO, 22, 663552)
    ct_calc(a)
    wo_voff(a, 21)
    tr_addr(a, 106)
    a("v_mov_b32 v4, 0")
    issue = {s: [s + 2] for s in range(7)}
    early = {7: [5, 6, 7, 8], 8: [9, 10]}
    out = [("S", 0)] * NL + [("S", 1)] * NL
    for s in range(9):
        idx = max(i for i, t in enumerate(out) if t == ("S", s))
        a(f"s_waitcnt vmcnt({len(out) - 1 - idx})")
        if "stA" in DBG: rstamp(1 + s)
        a("s_barrier")
        if "stB" in DBG: rstamp(1 + s)
        if s == 5:
            a(f"buffer_load_dword v24, v4, s[{SDB}:{SDB+3}], 0 offen sc1"); out.append("R")
        for st in issue.get(s, []):
            if "noload" not in DBG: stage(st % NS)
            out += [("S", st)] * NL
        if s in early:
            wo_loads(a, 21, early[s]); out += ["W"] * (2 * len(early[s]))
    stamp(2)
    a("v_readfirstlane_b32 s37, v24")
    a("s_mov_b32 s36, 0")
    a("s_cmp_lg_u32 s37, 0")
    a(f"s_cbranch_scc1 {L('rdy2')}")
    a(f"{L('rdy')}:")
    a(f"buffer_load_dword v5, v4, s[{SDB}:{SDB+3}], 0 offen sc1")
    a("s_add_u32 s36, s36, 1")
    a("s_waitcnt vmcnt(0)")
    a("v_readfirstlane_b32 s37, v5")
    a("s_cmp_ge_u32 s36, 0x10000")
    a(f"s_cbranch_scc1 {L('rdy2')}")
    a("s_cmp_eq_u32 s37, 0")
    a(f"s_cbranch_scc1 {L('rdy')}")
    a(f"{L('rdy2')}:")
    a("s_barrier")
    lst = [11, 12, 13, 0, 1, 2, 3, 4, 14, 15, 16, 17]
    nb = QW if Q else KW
    wo_loads(a, 21, lst[:nb])
    prep3(a)
    a("s_barrier")
    stamp(3)
    wo_loads(a, 21, lst[nb:])
    stamp(4)
    a("s_waitcnt vmcnt(0)")
    a("s_branch L_bjoin")
    a(f"{L('comp')}:")
    ct_calc(a)
    a("s_and_b32 s35, s31, 1")
    a("s_lshr_b32 s36, s31, 1")
    XA0, XA1, WA, LA = 4, 5, 6, 7
    a("v_lshrrev_b32 v9, 1, v2")
    a("v_xor_b32 v9, v9, v3")
    a("v_lshlrev_b32 v10, 7, v2")
    a("v_lshl_add_u32 v10, v9, 4, v10")
    a(f"s_mul_i32 s37, s35, {RT*2048}")
    a(f"v_add_u32 v{XA0}, s37, v10")
    a(f"v_xor_b32 v{XA1}, 64, v{XA0}")
    a("v_lshrrev_b32 v9, 2, v2")
    a("v_and_b32 v10, 3, v2")
    a("v_lshl_add_u32 v11, v3, 2, v9")
    a(f"v_mul_u32_u24 v11, {WROW}, v11")
    a(f"s_mul_i32 s37, s36, {144 if Q else 72}")
    a(f"s_add_u32 s37, s37, {XSZ}")
    a("v_add_u32 v11, s37, v11")
    a(f"v_lshl_add_u32 v{WA}, v10, 3, v11")
    a("v_and_b32 v12, 1, v10")
    a(f"v_mul_u32_u24 v12, {72 if Q else 144}, v12")
    a(f"v_add3_u32 v{LA}, v11, v12, 32")
    a(f"v_mov_b32 v12, {LCNT}\nv_mov_b32 v14, 0\nv_mov_b32 v15, 0")
    a("ds_write_b32 v12, v14")
    ACC = 16
    def acc(rt, t): return ACC + 4 * (5 * rt + t)
    a(f"v_mov_b32 v8, {hexf(ONE_EPS)}\nv_mov_b32 v9, v8")
    if not Q:
        a("v_lshrrev_b32 v10, 2, v2")
        a("v_cmp_eq_u32 s[98:99], 1, v10")
        a("v_cmp_eq_u32 s[100:101], 3, v10")
        a("v_cndmask_b32 v10, v8, 0, s[98:99]")
        a("v_mov_b32 v11, v10")
    for rt in range(RT):
        for t in range(5):
            src = "v[8:9]" if Q or t < 2 else ("v[10:11]" if t == 4 else "v[14:15]")
            for i in (0, 2): a(f"v_mov_b64 v[{acc(rt,t)+i}:{acc(rt,t)+i+1}], {src}")
    F = [120, 160]
    woff = [0, 40, 72, 112] if Q else [0, 40, 144, 184]
    TORD = [0, 1, 4, 2, 3]
    def reads(kk):
        f = F[kk]; Lr = []
        def w(t):
            for h in range(2):
                ad, o = (WA, woff[t]) if t < 4 else (LA, 0)
                Lr.append(f"ds_read_b64_tr_b16 v[{f+20+4*t+2*h}:{f+20+4*t+2*h+1}], v{ad} offset:{o + (32*kk + 16*h)*WROW}")
        w(TORD[0])
        for rt in range(RT): Lr.append(f"ds_read_b128 v[{f+4*rt}:{f+4*rt+3}], v{(XA0,XA1)[kk]} offset:{2048*rt}")
        for t in TORD[1:]: w(t)
        return Lr
    def one(kk, rt, t):
        f = F[kk]
        w, x = f"v[{f+20+4*t}:{f+23+4*t}]", f"v[{f+4*rt}:{f+4*rt+3}]"
        if not Q: w, x = x, w
        return f"v_mfma_f32_16x16x32_bf16 v[{acc(rt,t)}:{acc(rt,t)+3}], {w}, {x}, v[{acc(rt,t)}:{acc(rt,t)+3}]"
    def mfmas(kk):
        return [one(kk, rt, t) for t in TORD for rt in range(RT)]
    def inter(M, Rd):
        if "nocomp" in DBG: return
        if "noread" in DBG: Rd = []
        for k, m in enumerate(M):
            if k < len(Rd): a(Rd[k])
            a(m)
    a(f"s_mov_b32 s40, {hexf(LOG2E)}\ns_mov_b32 s41, s40")
    a(f"v_mov_b32 v250, {hexf(-ONE_EPS*LOG2E)}\nv_mov_b32 v251, v250")
    a(f"v_mov_b32 v252, {hexf(EPS)}\nv_mov_b32 v253, v252")
    a("s_waitcnt lgkmcnt(0)")
    srd(a, SWS, 28, WS_SZ); srd(a, SWO, 22, 663552)
    stamp(1)
    post = []
    p = lambda t: post.extend(x.strip() for x in t.split("\n") if x.strip())
    if Q:
        p("v_lshlrev_b32 v8, 4, v1")
        p("v_lshlrev_b32 v9, 3, v1")
        p(f"s_mul_i32 s38, s33, {2*RT}")
        p(f"s_mul_i32 s39, s35, {RT}")
        p("s_add_u32 s38, s38, s39")
        p("s_lshl_b32 s38, s38, 4")
        p("s_lshl_b32 s39, s32, 2")
        p("s_add_u32 s38, s38, s39")
        p("s_lshl_b32 s39, s36, 1")
        p("s_add_u32 s38, s38, s39")
        p("s_lshl_b32 s37, s38, 10")
        p(f"s_add_u32 s37, s37, {PQ}")
        p("s_lshl_b32 s39, s38, 7")
        p(f"s_add_u32 s39, s39, {PQL}")
        p(f"s_mov_b32 s{SX}, s28\ns_mov_b32 s{SX+1}, s29\ns_mov_b32 s{SX+2}, {PQL}\ns_mov_b32 s{SX+3}, 0x20000")
        p(f"s_mov_b32 s{SW}, s28\ns_mov_b32 s{SW+1}, s29\ns_mov_b32 s{SW+2}, {PQL + 0x40000}\ns_mov_b32 s{SW+3}, 0x20000")
    else:
        p(f"s_mul_i32 s38, s33, {2*RT}")
        p(f"s_mul_i32 s39, s35, {RT}")
        p("v_mov_b32 v13, 0x3f803f80")
        p("s_add_u32 s38, s38, s39")
        p("s_lshl_b32 s51, s32, 1")
        p("s_add_u32 s51, s51, s36")
        p(f"s_mul_i32 s51, s51, {PAIRB}")
        p("s_lshl_b32 s50, s33, 3")
        p("s_add_u32 s50, s50, s32")
        p(f"s_and_b32 s50, s50, {SHARD-1}")
        p("s_lshl_b32 s50, s50, 7")
        p(f"s_add_u32 s50, s50, {CNT}")
        p("v_lshlrev_b32 v243, 11, v1")
        p(f"v_mov_b32 v8, {OOB}")
        p("v_lshrrev_b32 v9, 2, v2")
        p("v_and_b32 v10, 3, v2")
        p("v_lshlrev_b32 v11, 8, v9")
        p("v_lshl_add_u32 v11, v3, 4, v11")
        p("v_lshl_add_u32 v236, v10, 2, v11")
        p("v_cmp_gt_u32 s[44:45], 4, v2")
        p("v_cmp_gt_u32 s[46:47], 2, v2")
        p("v_cndmask_b32 v237, v8, v236, s[44:45]")
        p("v_cmp_eq_u32 vcc, 1, v3")
        p("v_cmp_eq_u32 s[48:49], 3, v3")
        p("v_lshlrev_b32 v9, 2, v2")
        p("v_cndmask_b32 v240, v8, v9, vcc")
        p("v_add_u32 v10, 128, v240")
        p("v_cndmask_b32 v238, v10, v9, s[48:49]")
        p("v_add_u32 v10, 256, v240")
        p("v_add_u32 v11, 64, v9")
        p("v_cndmask_b32 v239, v10, v11, s[48:49]")
        p("v_and_b32 v9, 1, v2")
        p("v_lshlrev_b32 v9, 2, v9")
        p("v_bfe_u32 v10, v2, 1, 1")
        p("v_lshl_add_u32 v11, v10, 4, v9")
        p("v_lshl_add_u32 v9, v10, 5, v9")
        p("v_add_u32 v9, 32, v9")
        p("v_cndmask_b32 v9, v8, v9, vcc")
        p("v_cndmask_b32 v242, v8, v9, s[44:45]")
        p("v_cndmask_b32 v9, v9, v11, s[48:49]")
        p("v_cndmask_b32 v241, v8, v9, s[44:45]")
        p("s_lshl_b32 s3, s31, 11")
        p(f"s_add_u32 s3, s3, {RXB}")
        p("v_lshl_add_u32 v248, v1, 4, s3")
        p("v_xor_b32 v249, 0x800, v248")
        p("s_lshl_b32 s3, s31, 9")
        p(f"s_add_u32 s3, s3, {RXF}")
        p("v_lshl_add_u32 v14, v1, 3, s3")
        p("v_xor_b32 v15, 0x200, v14")
        p("v_mov_b64 v[8:9], 0")
        p("ds_write_b64 v14, v[8:9]")
        p("s_waitcnt lgkmcnt(0)")
    tr_addr(post, 244)
    for x in post: a(x)
    for st in range(9):
        a("s_barrier")
        if st == 0:
            for x in reads(0): a(x)
        else: inter(mfmas(1), reads(0))
        a("s_waitcnt lgkmcnt(0)")
        if st < 8:
            dl = SLOT if (st + 1) % NS else -(NS - 1) * SLOT
            upd = [f"v_add_u32 v{r}, {dl & 0xffffffff:#x}, v{r}" for r in (XA0, XA1, WA, LA)]
            inter(mfmas(0), reads(1) + upd)
            a("s_waitcnt lgkmcnt(0)")
    T0_, T1_ = 200, 204
    def postp(rt):
        Lp = []
        d = 208 + 12 * (rt % 2)
        if Q:
            phi4(Lp, acc(rt, 0), T0_, d); phi4(Lp, acc(rt, 1), T1_, d + 2)
            Lp.append(f"buffer_store_dwordx4 v[{d}:{d+3}], v8, s[{SX}:{SX+3}], s37 offen sc1")
            phi4(Lp, acc(rt, 4), T0_, d + 8)
            Lp.append(f"s_mov_b32 exec_hi, 0\nbuffer_store_dwordx2 v[{d+8}:{d+9}], v9, s[{SW}:{SW+3}], s39 offen sc1\ns_mov_b32 exec_hi, -1")
            phi4(Lp, acc(rt, 2), T1_, d + 4); phi4(Lp, acc(rt, 3), T0_, d + 6)
            Lp.append(f"buffer_store_dwordx4 v[{d+4}:{d+7}], v8, s[{SX}:{SX+3}], s37 offen offset:1024 sc1")
            Lp.append("s_add_u32 s37, s37, 16384\ns_add_u32 s39, s39, 2048")
        else:
            pk = lambda t: acc(rt & ~1, t) + 2 * (rt & 1)
            for t in (0, 1): phi4(Lp, acc(rt, t), (T0_, T1_)[t], pk(t))
            phi4(Lp, acc(rt, 4), T0_, None)
            if RT % 2: Lp.append(f"s_add_u32 s39, s38, {rt}\ns_cmp_lt_u32 s39, 128\ns_cselect_b32 s39, 0x3f803f80, 0\nv_mov_b32 v13, s39")
            for i in range(4): Lp.append(f"v_cndmask_b32 v{T0_+i}, v{T0_+i}, v{acc(rt,4)+i}, s[98:99]")
            e = pk(4)
            Lp += [f"v_cvt_pk_bf16_f32 v{e}, v{T0_}, v{T0_+1}", f"v_cvt_pk_bf16_f32 v{e+1}, v{T0_+2}, v{T0_+3}",
                   f"v_cndmask_b32 v{e}, v{e}, v13, s[100:101]", f"v_cndmask_b32 v{e+1}, v{e+1}, v13, s[100:101]"]
            for t in (2, 3):
                e = pk(t)
                Lp += [f"v_cvt_pk_bf16_f32 v{e}, v{acc(rt,t)}, v{acc(rt,t)+1}", f"v_cvt_pk_bf16_f32 v{e+1}, v{acc(rt,t)+2}, v{acc(rt,t)+3}"]
                if rt == RT - 1 and RT % 2: Lp.append(f"v_mov_b64 v[{e+2}:{e+3}], 0")
            if rt == RT - 1 and RT % 2:
                for t in (0, 1, 4): Lp.append(f"v_mov_b64 v[{pk(t)+2}:{pk(t)+3}], 0")
        return Lp
    Rd = reads(1)
    first = [one(0, rt, t) for rt in range(2) for t in TORD]
    for k, m in enumerate(first):
        for x in Rd[2*k:2*k+2]: a(x)
        a(m)
    a("s_waitcnt lgkmcnt(0)")
    a("s_barrier")
    for t in TORD: a(one(1, 0, t))
    rest = []
    for rt in range(1, RT):
        rest += [(rt, one(1, rt, t)) for t in TORD]
        if rt + 1 < RT: rest += [(rt + 1, one(0, rt + 1, t)) for t in TORD]
    for _ in range(3): a(rest.pop(0)[1])
    stamp(2)
    KA = 208
    kvt = [(0, 2, 0), (1, 3, 1), (2, 2, 4), (3, 3, 4), (4, 4, 0), (5, 4, 1), (6, 4, 4)]
    def kvm(ks):
        r = 2 * ks
        return [(99, f"v_mfma_f32_16x16x32_bf16 v[{KA+4*i}:{KA+4*i+3}], v[{acc(r,x)}:{acc(r,x)+3}], v[{acc(r,y)}:{acc(r,y)+3}], " + ("0" if ks == 0 else f"v[{KA+4*i}:{KA+4*i+3}]"))
                for i, x, y in kvt]
    for rt in range(RT):
        while rest and rest[0][0] <= rt: a(rest.pop(0)[1])
        k = 0
        for x in postp(rt):
            alt = x.split("|")
            for y in (alt[1:] if len(alt) > 1 and rest and NSC else alt[:1]):
                a(y); k += 2 if y.startswith("v_exp") else 1
                if k >= 2 and rest: a(rest.pop(0)[1]); k = 0
        if not Q and (rt % 2 == 1 or rt == RT - 1): rest += kvm(rt // 2)
    while rest: a(rest.pop(0)[1])
    if not Q:
        at = lambda r, ad, o: a(f"buffer_atomic_add_f32 v{r}, v{ad}, {WSR}, s51 offen offset:{o}")
        for i in range(4): a(f"v_cndmask_b32 v{KA+8+i}, v{KA+12+i}, v{KA+8+i}, s[46:47]")
        a(f"v_mov_b64 v[{KA+18}:{KA+19}], v[{KA+22}:{KA+23}]")
        a(f"v_cndmask_b32 v{KA+24}, v{KA+26}, v{KA+24}, s[46:47]")
        a(f"v_cndmask_b32 v{KA+25}, v{KA+27}, v{KA+25}, s[46:47]")
        own = [(KA, KA + 8, KA + 24), (KA + 4, KA + 16, KA + 25)]
        a("s_cmp_eq_u32 s35, 1")
        a(f"s_cbranch_scc1 {L('rx1')}")
        for rh in range(2):
            if rh: a(f"{L('rx1')}:")
            o, k = own[1 - rh], own[rh]
            a(f"ds_write_b128 v248, v[{o[0]}:{o[0]+3}]")
            a(f"ds_write_b128 v248, v[{o[1]}:{o[1]+3}] offset:1024")
            a(f"ds_write2_b32 v14, v{o[2]}, v14 offset0:0 offset1:1")
            a("s_mov_b32 s3, 0")
            a(f"{L('rp' + str(rh))}:")
            a("ds_read_b64 v[200:201], v15")
            a("ds_read_b128 v[16:19], v249")
            a("ds_read_b128 v[20:23], v249 offset:1024")
            a("s_add_u32 s3, s3, 1")
            a("s_waitcnt lgkmcnt(0)")
            a("v_cmp_eq_u32 vcc, 0, v201")
            a("s_cmp_ge_u32 s3, 0x100000")
            a(f"s_cbranch_scc1 {L('rq' + str(rh))}")
            a(f"s_cbranch_vccnz {L('rp' + str(rh))}")
            a(f"{L('rq' + str(rh))}:")
            for j in range(2):
                for h in (0, 2): a(f"v_pk_add_f32 v[{k[j]+h}:{k[j]+h+1}], v[{k[j]+h}:{k[j]+h+1}], v[{16+4*j+h}:{17+4*j+h}]")
            a(f"v_add_f32 v{k[2]}, v{k[2]}, v200")
            if rh == 0:
                for i in range(4): at(KA + i, 236, 64*i)
                for i in range(4): at(KA + 8 + i, 237, O_LD + 64*i)
                at(KA + 24, 241, O_XL)
                a(f"s_branch {L('rxd')}")
            else:
                for i in range(4): at(KA + 4 + i, 236, O_MMB + 64*i)
                at(KA + 16, 238, O_XM); at(KA + 17, 240, O_XM + 192)
                at(KA + 18, 239, O_XM); at(KA + 19, 240, O_XM + 320)
                at(KA + 25, 242, O_XL + 16)
        a(f"{L('rxd')}:")
    stamp(3)
    a("s_barrier")
    a("v_mov_b64 v[106:107], v[244:245]\nv_mov_b64 v[108:109], v[246:247]")
    if Q:
        a("s_lshl_b32 s50, s33, 7")
        a(f"s_add_u32 s50, s50, {PQC}")
        a("v_mov_b32 v243, 0")
    prep3(a)
    lds_last(a, L("sig"))
    a(f"s_mov_b64 exec, {1 if Q else 0xff}")
    a(f"buffer_atomic_add v5, v243, {WSR}, s50 offen")
    a("s_mov_b64 exec, -1")
    a(f"{L('sig')}:")
    stamp(4)
    a("s_branch L_bjoin")

def phase3(a, stamp):
    a.c("---------------- phase 3 ----------------")
    if "stA" in DBG or "stB" in DBG: stamp = lambda i: None
    a("L_bjoin:")
    stamp(5)
    a("s_cmp_eq_u32 s43, 0" if KRT == 5 else "s_cmp_ge_u32 s43, 20")
    a("s_cbranch_scc1 L_fin")
    def poll_prep_q():
        a("s_lshl_b32 s34, s32, 1")
        a("v_add_u32 v14, s34, v1")
        a(f"v_mul_u32_u24 v14, {205 if KRT == 4 else 256}, v14")
        a("v_lshrrev_b32 v14, 10, v14")
        a("v_lshlrev_b32 v14, 7, v14")
        a(f"s_mov_b32 s34, {PQC}")
    def poll_prep_k():
        a("v_lshlrev_b32 v14, 7, v1")
        a("s_lshl_b32 s34, s42, 11")
        a(f"s_add_u32 s34, s34, {CNT}")
    def poll(wave, prep, nl, tgt, tag, two=False, bar=True):
        a(f"s_cmp_lg_u32 s31, {wave}")
        a(f"s_cbranch_scc1 L_pw{tag}")
        prep()
        a(f"s_mov_b64 exec, {hex((1 << nl) - 1)}")
        a("s_mov_b32 s3, 0")
        if two and POLL2:
            a(f"buffer_load_dword v254, v14, {WSR}, s34 offen sc1")
            a(f"s_sleep {POLL2}")
            a(f"L_poll{tag}:")
            for cur, nxt in ((254, 255), (255, 254)):
                a(f"buffer_load_dword v{nxt}, v14, {WSR}, s34 offen sc1")
                a("s_waitcnt vmcnt(1)")
                a(f"v_cmp_gt_u32 vcc, {tgt}, v{cur}")
                a("s_add_u32 s3, s3, 1")
                a(f"s_cbranch_vccz L_pd{tag}")
            a("s_cmp_lt_u32 s3, 0x20000")
            a(f"s_cbranch_scc1 L_poll{tag}")
        else:
            a(f"L_poll{tag}:")
            if PSLEEP: a(f"s_sleep {PSLEEP}")
            a(f"buffer_load_dword v15, v14, {WSR}, s34 offen sc1")
            a("s_add_u32 s3, s3, 1")
            a("s_waitcnt vmcnt(0)")
            a(f"v_cmp_gt_u32 vcc, {tgt}, v15")
            a("s_cmp_ge_u32 s3, 0x10000")
            a(f"s_cbranch_scc1 L_pd{tag}")
            a(f"s_cbranch_vccnz L_poll{tag}")
        a(f"L_pd{tag}:")
        a("s_mov_b64 exec, -1")
        a(f"L_pw{tag}:")
        if bar: a("s_barrier")
    AM = [16, 20, 24, 28]
    AX = [32, 36, 40, 44]
    PQR = 56
    T = 48
    def pql(rt, ad=9):
        b = PQR + 14 * rt
        a(f"buffer_load_dwordx4 v[{b+2}:{b+5}], v{ad}, {WSR}, s38 offen sc1")
        a(f"buffer_load_dwordx4 v[{b+8}:{b+11}], v{ad}, {WSR}, s38 offen offset:1024 sc1")
        a(f"buffer_load_dwordx2 v[{b+6}:{b+7}], v7, {WSR}, s39 offen sc1")
        if rt < 3: a("s_add_u32 s38, s38, 16384\ns_add_u32 s39, s39, 2048")
    def kvl():
        a(f"buffer_load_dwordx4 v[{AX[0]}:{AX[0]+3}], v12, {WSR}, s37 offen offset:{O_XM} sc1")
        a(f"buffer_load_dwordx4 v[{T}:{T+3}], v10, {WSR}, s37 offen offset:{O_LD} sc1")
        a(f"s_add_u32 s3, s37, {PAIRB}")
        a(f"buffer_load_dwordx4 v[{AX[2]}:{AX[2]+3}], v13, {WSR}, s3 offen offset:{O_XM} sc1")
        for c in range(2):
            o = c * PAIRB
            a(f"buffer_load_dwordx4 v[{AM[2*c]}:{AM[2*c]+3}], v9, {WSR}, s37 offen offset:{o} sc1")
            a(f"buffer_load_dwordx4 v[{AM[2*c+1]}:{AM[2*c+1]+3}], v9, {WSR}, s37 offen offset:{o+O_MMB} sc1")
    if PORD == "qk":
        stamp(6)
        poll(PQW, poll_prep_q, 2, 4, "q"); stamp(8)
        a("v_mov_b64 v[16:17], v[106:107]\nv_mov_b64 v[18:19], v[108:109]")
        a("v_add_u32 v0, 0x1c000, v106")
        trs = [x for st in range(14) for x in (wotr(a, st, 16) if st < 8 else wotr(a, st, 18, 0x10000))]
        for rt in range(PQE):
            pql(rt)
            for x in trs[36*rt//PQE:36*(rt+1)//PQE]: a(x)
        a("s_waitcnt lgkmcnt(0)")
        a("v_mov_b64 v[4:5], v[18:19]")
        stamp(7)
        poll(0, poll_prep_k, SHARD, (13 if KRT == 5 else 16) * 8 // SHARD, "k", two=True); stamp(9)
        kvl()
        for x in trs[36:]: a(x.replace("v18 ", "v4 ").replace("v19 ", "v5 "))
        for rt in range(PQE, 4): pql(rt)
        vm = [f"p{r}" for r in range(PQE) for _ in range(3)] + ["x"]*3 + ["m0"]*2 + ["m1"]*2 + [f"p{r}" for r in range(PQE, 4) for _ in range(3)]
    else:
        a("s_barrier")
        stamp(6)
        a("v_add_u32 v0, 0x1c000, v106")
        for st in range(14):
            for x in (wotr(a, st, 106) if st < 8 else wotr(a, st, 108, 0x10000)): a(x)
        a("s_waitcnt lgkmcnt(0)")
        stamp(8)
        poll(PQW, poll_prep_q, 2, 4, "q", bar=False)
        stamp(7)
        poll(0, poll_prep_k, SHARD, (13 if KRT == 5 else 16) * 8 // SHARD, "k", two=True); stamp(9)
        kvl()
        pql(0)
        a("v_mov_b32 v6, v9")
        vm = ["x"]*3 + ["m0"]*2 + ["m1"]*2 + [f"p{r}" for r in range(4) for _ in range(3)]
    vdone = [-1]
    def vwait(tag):
        idx = max(i for i, t in enumerate(vm) if t == tag)
        if idx > vdone[0]:
            a(f"s_waitcnt vmcnt({len(vm) - 1 - idx})"); vdone[0] = idx
    a("v_xor_b32 v5, 32, v0\nv_mov_b32 v4, v0")
    for s in (14, 15):
        for x in wotr(a, s, 4, 0x1c000): a(x)
    a("s_lshl_b32 s34, s31, 11")
    a("v_add_u32 v10, s34, v9")
    a("s_lshr_b32 s34, s31, 2")
    a("s_lshl_b32 s34, s34, 10")
    a("s_and_b32 s3, s31, 3")
    a("s_lshl_b32 s3, s3, 2")
    a("s_add_u32 s34, s34, s3")
    a(f"s_add_u32 s34, s34, {16*1024}")
    a("v_add_u32 v11, s34, v9")
    a(f"s_mul_i32 s34, s36, {18*1024}")
    a("v_add_u32 v8, s34, v9")
    a("s_lshl_b32 s34, s31, 10")
    a(f"s_add_u32 s34, s34, {EPI}")
    a("v_add_u32 v9, s34, v9")
    a("v_and_b32 v12, 1, v3")
    a("v_lshrrev_b32 v14, 1, v3")
    a("v_lshl_add_u32 v12, v12, 1, v14")
    a("v_lshl_add_u32 v12, v2, 2, v12")
    a("v_cmp_eq_u32 vcc, 0, v3")
    a("v_lshl_add_u32 v2, v12, 4, s34")
    a("s_lshl_b32 s34, s32, 6")
    a("s_lshl_b32 s3, s36, 4")
    a("s_add_u32 s34, s34, s3")
    a("v_lshrrev_b32 v14, 2, v1")
    a("v_add_u32 v14, s34, v14")
    a("v_mul_u32_u24 v14, 2304, v14")
    a("v_and_b32 v15, 3, v1")
    a("v_lshl_add_u32 v14, v15, 4, v14")
    a("s_lshl_b32 s34, s33, 8")
    a("s_lshl_b32 s3, s35, 6")
    a("s_add_u32 s34, s34, s3")
    a("s_add_u32 s3, s34, 1152")
    a("v_add_u32 v3, s3, v14")
    a("v_xor_b32 v1, 32, v0")
    a(f"v_mov_b32 v12, {hexf(EPS)}\nv_mov_b32 v13, v12\nv_mov_b32 v14, 0\nv_mov_b32 v15, 0")
    def pmov(rt):
        b = PQR + 14 * rt
        vwait(f"p{rt}")
        a(f"v_mov_b64 v[{b}:{b+1}], v[{b+6}:{b+7}]\nv_mov_b64 v[{b+12}:{b+13}], v[{b+6}:{b+7}]")
    for rt in range(PQE): pmov(rt)
    a(f"v_mov_b32 v{AX[1]+2}, 0\nv_mov_b32 v{AX[3]+2}, 0")
    if PORD != "qk":
        if FAIR: a(f"s_waitcnt vmcnt({FAIR})")
        for rt in (1, 2, 3): pql(rt, 6)
    a("s_andn2_b64 s[38:39], s[98:99], s[100:101]")
    vwait("x")
    stamp(10)
    a(f"v_cvt_pk_bf16_f32 v252, v{T}, v{T+1}")
    a(f"v_cvt_pk_bf16_f32 v253, v{T+2}, v{T+3}")
    for c in range(2):
        xa, xb = AX[2*c], AX[2*c+1]
        mk = "s[46:47]" if c == 0 else "s[96:97]"
        a(f"v_cvt_pk_bf16_f32 v{T+2}, v{xa}, v{xa+1}")
        a(f"v_cvt_pk_bf16_f32 v{T+3}, v{xa+2}, v{xa+3}")
        a(f"v_cndmask_b32 v{T+4}, 0, v252, {mk}")
        a(f"v_mov_b32 v{xa+1}, 0")
        a(f"v_cndmask_b32 v{xb}, 0, v{T+2}, s[44:45]")
        a(f"v_cndmask_b32 v{xb+1}, 0, v{T+3}, s[44:45]")
        a(f"v_cndmask_b32 v{xb+3}, 0, v{T+4}, s[44:45]")
        a(f"v_cndmask_b32 v{xa}, v{T+4}, 0, s[44:45]")
        a(f"v_cndmask_b32 v{xa+2}, v{T+2}, 0, s[44:45]")
        a(f"v_cndmask_b32 v{xa+3}, v{T+3}, 0, s[44:45]")
    def mf(d, x, y, c): a(f"v_mfma_f32_16x16x32_bf16 v[{d}:{d+3}], v[{x}:{x+3}], v[{y}:{y+3}], {c}")
    def regs(rt): return (PQR + 14 * rt, (48, 240, 48, 56)[rt], (52, 244, 52, 60)[rt], (4, 248, 4, 64)[rt])
    def MX(rt):
        b, X0, X1, D0 = regs(rt)
        ops = [b, b+4, b+6, b+10]
        if rt >= PQE: pmov(rt)
        mf(X0, AX[1], ops[1], "v[12:15]"); mf(X1, AX[3], ops[3], "v[12:15]")
        mf(X0, AX[0], ops[0], f"v[{X0}:{X0+3}]"); mf(X1, AX[2], ops[2], f"v[{X1}:{X1+3}]")
    def MM_(rt):
        b, X0, X1, D0 = regs(rt)
        ops = [b, b+4, b+6, b+10]
        mf(D0, AM[0], ops[0], "0")
        mf(b, AM[1], ops[1], "0")
        mf(b+6, AM[2], ops[2], "0")
        mf(b+10, AM[3], ops[3], "0")
    if PORD == "qk": MX(0); MX(1)
    for c in range(2):
        ma, mb = AM[2*c], AM[2*c+1]
        mk = "vcc" if c == 0 else "s[38:39]"
        vwait(f"m{c}")
        a(f"v_cvt_pk_bf16_f32 v{ma+3}, v{ma+2}, v{ma+3}")
        a(f"v_cvt_pk_bf16_f32 v{ma+2}, v{ma}, v{ma+1}")
        a(f"v_cndmask_b32 v{ma}, 0, v252, {mk}")
        a(f"v_mov_b32 v{ma+1}, 0")
        a(f"v_cvt_pk_bf16_f32 v{mb}, v{mb}, v{mb+1}")
        a(f"v_cvt_pk_bf16_f32 v{mb+1}, v{mb+2}, v{mb+3}")
        a(f"v_mov_b32 v{mb+2}, 0")
        a(f"v_cndmask_b32 v{mb+3}, 0, v253, {mk}")
    def V(rt):
        b, X0, X1, D0 = regs(rt)
        L = []
        p = lambda t: L.extend(x.strip() for x in t.split("\n"))
        for x in (X0, X1):
            p(f"v_rcp_f32 v{x}, v{x}\nv_rcp_f32 v{x+1}, v{x+1}")
        if NSC: p(f"v_add_f32 v{X0+2}, v{X0+2}, v{X1+2}\nv_add_f32 v{X0+3}, v{X0+3}, v{X1+3}")
        else: p(f"v_pk_add_f32 v[{X0+2}:{X0+3}], v[{X0+2}:{X0+3}], v[{X1+2}:{X1+3}]")
        p(f"v_cndmask_b32 v{X1+2}, v{X0}, v{X0+1}, s[98:99]")
        p(f"v_cndmask_b32 v{X1+3}, v{X1}, v{X1+1}, s[98:99]")
        p(f"v_cndmask_b32 v{X1+2}, v{X1+2}, v{X1+3}, s[100:101]")
        if NSC: p(f"v_mul_f32 v{X0+2}, v{X0+2}, v{X1+2}\nv_mul_f32 v{X0+3}, v{X0+3}, v{X1+2}")
        else: p(f"v_pk_mul_f32 v[{X0+2}:{X0+3}], v[{X0+2}:{X0+3}], v[{X1+2}:{X1+3}] op_sel:[0,0] op_sel_hi:[1,0]")
        p(f"v_cvt_pk_bf16_f32 v{b+4}, v{X0+2}, v{X0+3}")
        p(f"ds_write_b32 v11, v{b+4} offset:{rt*18*1024}")
        for d, rc in ((D0, X0), (b, X0+1), (b+6, X1), (b+10, X1+1)):
            sel = "op_sel:[0,0] op_sel_hi:[1,0]" if rc % 2 == 0 else "op_sel:[0,1] op_sel_hi:[1,1]"
            rp = rc & ~1
            if NSC:
                for i in range(4): p(f"v_mul_f32 v{d+i}, v{d+i}, v{rc}")
                continue
            p(f"v_pk_mul_f32 v[{d}:{d+1}], v[{d}:{d+1}], v[{rp}:{rp+1}] {sel}")
            p(f"v_pk_mul_f32 v[{d+2}:{d+3}], v[{d+2}:{d+3}], v[{rp}:{rp+1}] {sel}")
        p(f"v_cvt_pk_bf16_f32 v{D0}, v{D0}, v{D0+1}\nv_cvt_pk_bf16_f32 v{D0+1}, v{D0+2}, v{D0+3}")
        p(f"v_cvt_pk_bf16_f32 v{D0+2}, v{b}, v{b+1}\nv_cvt_pk_bf16_f32 v{D0+3}, v{b+2}, v{b+3}")
        p(f"ds_write_b128 v10, v[{D0}:{D0+3}] offset:{rt*18*1024}")
        p(f"v_cvt_pk_bf16_f32 v{b+6}, v{b+6}, v{b+7}\nv_cvt_pk_bf16_f32 v{b+7}, v{b+8}, v{b+9}")
        p(f"v_cvt_pk_bf16_f32 v{b+8}, v{b+10}, v{b+11}\nv_cvt_pk_bf16_f32 v{b+9}, v{b+12}, v{b+13}")
        p(f"ds_write_b128 v10, v[{b+6}:{b+9}] offset:{rt*18*1024+1024}")
        return L
    if PORD == "qk": MM_(0); MM_(1)
    else: MX(0); MM_(0); MX(1); MM_(1)
    for x in V(0): a(x)
    MX(2); MM_(2)
    for x in V(1): a(x)
    MX(3); MM_(3)
    a("s_waitcnt lgkmcnt(0)")
    a("s_barrier")
    stamp(11)
    OA = 68
    OF = 16
    q_ = []; done = [-1]
    def lds(t, tag=None): a(t); q_.append(tag)
    def wait_for(tags):
        idx = max(i for i, t in enumerate(q_) if t in tags)
        if idx > done[0]:
            n = len(q_) - 1 - idx
            a(f"s_waitcnt lgkmcnt({min(n, 15)})")
            done[0] = idx if n <= 15 else len(q_) - 16
    def emit(x):
        if "@" in x: t, g = x.split("@"); lds(t, g)
        elif x.startswith("ds_"): lds(x)
        else: a(x)
    late = [x + "@W" for s in (16, 17) for x in wotr(a, s, 0, 0x1c000)]
    LA = 5
    def ord_(ps, k): lds(f"ds_read_b128 v[{OF+4*(k%8)}:{OF+4*(k%8)+3}], v8 offset:{(ps*36 + k)*1024}", ("O", ps, k))
    def epi(ps):
        d = OA + 8*ps; p = 84 + 4*ps
        L = [f"v_cvt_pk_bf16_f32 v{p+k}, v{d+2*k}, v{d+2*k+1}" for k in range(4)]
        L += ["v_nop", f"v_permlane16_swap_b32 v{p}, v{p+2}", f"v_permlane16_swap_b32 v{p+1}, v{p+3}",
              f"ds_write_b128 v2, v[{p}:{p+3}] offset:{8192*ps}", f"ds_read_b128 v[{p+8}:{p+11}], v9 offset:{8192*ps}@E{ps}"]
        return L
    def store(ps):
        wait_for({f"E{ps}"})
        if ps: a(f"v_add_u32 v3, {32*2304}, v3")
        a(f"global_store_dwordx4 v3, v[{92+4*ps}:{95+4*ps}], s[24:25] {STB}")
    for ps in range(2):
        fill = (V(2) + late + V(3)) if ps == 0 else ["s_nop 0"] * 4 + epi(0)
        if ps == 1:
            a("s_cmp_ge_u32 s34, 1152")
            a("s_cbranch_scc1 L_fin")
        for k in range(LA): ord_(ps, k)
        for k in range(18):
            wait_for({("O", ps, k)} | ({"W"} if k >= 16 else set()))
            for t in range(2):
                d = OA + 8*ps + 4*t
                mf(d, WOF + 8*k + 4*t, OF + 4*(k%8), "0" if k == 0 else f"v[{d}:{d+3}]")
                if t == 0 and k + LA < 18: ord_(ps, k + LA)
                for _ in range(3 if NSC and ps == 0 else 2):
                    if fill: emit(fill.pop(0))
            if ps == 1 and k == 9: store(0)
        assert not fill
        if ps == 0:
            a("s_waitcnt lgkmcnt(0)"); done[0] = len(q_) - 1
            a("s_barrier")
            stamp(12)
    for x in epi(1): emit(x)
    store(1)
    stamp(13)
```

```python
import sys, os
from asmlib import *
import hazard
from gen_a import *
from gen_b import *

NST = 15
STAMP_OFF = 200 << 20
def build(stamps=False, do_a=True, do_b=True, do_p3=True):
    a = Asm()
    sbase = 64
    def stamp(i):
        if stamps: a(f"{'s_memtime' if os.environ.get('CYC') else 's_memrealtime'} s[{sbase+2*i}:{sbase+2*i+1}]")
    stamp(0)
    a("s_load_dwordx16 s[4:19], s[0:1], 0")
    a("s_load_dwordx8 s[20:27], s[0:1], 64")
    a("s_load_dwordx2 s[28:29], s[0:1], 96")
    a("s_cmp_ge_u32 s2, 256")
    a("s_cbranch_scc1 L_end")
    a("v_and_b32 v1, 63, v0")
    a("v_lshrrev_b32 v2, 6, v0")
    a("s_and_b32 s42, s2, 7")
    a("s_lshr_b32 s43, s2, 3")
    a("v_readfirstlane_b32 s31, v2")
    if not os.environ.get("NOCPF"):
        a("s_and_b32 s34, s43, 7")
        a("s_cmp_lg_u32 s34, s31")
        a("s_cbranch_scc1 L_nocpf")
        a("s_getpc_b64 s[36:37]")
        a("L_pc:")
        a("s_lshl_b32 s34, s34, 13")
        a("v_lshl_add_u32 v4, v1, 7, s34")
        a("v_min_u32 v4, L_code_end-L_pc-4, v4")
        a("v_mov_b32 v5, s37")
        a("v_add_co_u32 v4, vcc, s36, v4")
        a("v_addc_co_u32 v5, vcc, 0, v5, vcc")
        a("global_load_dword v255, v[4:5], off")
        a("L_nocpf:")
    a("v_and_b32 v2, 15, v1")
    a("v_lshrrev_b32 v3, 4, v1")
    a("s_and_b32 s34, s42, 3")
    if KRT == 5:
        a("s_cmp_ge_u32 s43, 13")
        a("s_cbranch_scc1 L_notkv")
        a("s_mul_i32 s35, s34, 13")
        a("s_add_u32 s35, s35, s43")
        a("s_lshr_b32 s33, s35, 2")
        a("s_and_b32 s36, s35, 3")
        a("s_and_b32 s32, s42, 4")
        a("s_add_u32 s32, s32, s36")
        a("s_add_u32 s94, s33, s36")
        if os.environ.get("ROT3", "1") == "1":
            a("s_mul_i32 s35, s94, 86")
            a("s_lshr_b32 s35, s35, 8")
            a("s_mul_i32 s35, s35, 3")
            a("s_sub_u32 s94, s94, s35")
            a("s_mul_i32 s94, s94, 3")
        else:
            a("s_and_b32 s94, s94, 3")
            a("s_lshl_b32 s94, s94, 1")
        role_gemm(a, "kv", stamp)
        a("L_notkv:")
        a(f"s_cmp_ge_u32 s43, {AS0}")
        a("s_cbranch_scc1 L_rolea")
        a("s_cmp_ge_u32 s43, 21")
        a("s_cbranch_scc1 L_spare")
        a("s_sub_u32 s35, s43, 13")
        a("s_lshr_b32 s33, s35, 1")
        a("s_lshl_b32 s36, s34, 2")
        a("s_add_u32 s33, s33, s36")
        a("s_and_b32 s36, s35, 1")
        a("s_lshr_b32 s32, s42, 1")
        a("s_and_b32 s32, s32, 2")
        a("s_add_u32 s32, s32, s36")
        a("s_mov_b32 s94, s35")
    else:
        a("s_cmp_ge_u32 s43, 16")
        a("s_cbranch_scc1 L_notkv")
        a("s_lshr_b32 s35, s43, 2")
        a("s_and_b32 s36, s43, 3")
        a("s_lshl_b32 s33, s34, 2")
        a("s_add_u32 s33, s33, s35")
        a("s_and_b32 s32, s42, 4")
        a("s_add_u32 s32, s32, s36")
        a("s_add_u32 s94, s35, s36")
        a("s_and_b32 s94, s94, 3")
        a("s_lshl_b32 s94, s94, 1")
        role_gemm(a, "kv", stamp)
        a("L_notkv:")
        a(f"s_cmp_ge_u32 s43, {AS0}")
        a("s_cbranch_scc1 L_rolea")
        a("s_mul_i32 s35, s34, 107")
        a("s_add_u32 s36, s35, 107")
        a("s_lshr_b32 s35, s35, 4")
        a("s_lshr_b32 s36, s36, 4")
        a("s_add_u32 s35, s35, s43")
        a("s_sub_u32 s35, s35, 16")
        a("s_cmp_ge_u32 s35, s36")
        a("s_cbranch_scc1 L_spare")
        a("s_lshr_b32 s33, s35, 1")
        a("s_and_b32 s36, s35, 1")
        a("s_lshr_b32 s32, s42, 1")
        a("s_and_b32 s32, s32, 2")
        a("s_add_u32 s32, s32, s36")
        a("s_sub_u32 s94, s43, 16")
        a("s_and_b32 s94, s94, 6")
    role_gemm(a, "q", stamp)
    phase3(a, stamp)
    a("s_branch L_fin")
    a("L_spare:")
    a("s_cmp_lg_u32 s2, 176")
    a("s_cbranch_scc1 L_end")
    role_zero(a)
    a("L_rolea:")
    if do_a:
        a("s_lshl_b32 s30, s42, 3")
        a("s_add_u32 s30, s30, s43")
        a(f"s_sub_u32 s30, s30, {AS0}")
        a("s_add_u32 s33, s42, 64")
        a("s_cmp_eq_u32 s43, 31")
        a("s_cselect_b32 s30, s33, s30")
        role_a(a, stamp, None if not os.environ.get('PF') else (pf_setup, pf_base, pf_round))
    a("L_fin:")
    if stamps:
        a("s_waitcnt vmcnt(0)")
        stamp(NST - 1)
        a("s_waitcnt lgkmcnt(0)")
        a("s_mov_b64 exec, 1")
        if os.environ.get("SPINK"):
            k = int(os.environ["SPINK"]); wsel = int(os.environ.get("DBGWG", "0")); wv = int(os.environ.get("DBGWV", "0"))
            a(f"s_cmp_lg_u32 s2, {wsel}")
            a("s_cbranch_scc1 L_end")
            a(f"s_cmp_lg_u32 s31, {wv}")
            a("s_cbranch_scc1 L_end")
            a("L_spin:")
            a("s_sleep 2")
            a("s_memrealtime s[62:63]")
            a("s_waitcnt lgkmcnt(0)")
            a(f"s_sub_u32 s3, s62, s{sbase+2*k}")
            a("s_cmp_lt_u32 s3, 3000")
            a("s_cbranch_scc1 L_spin")
            a("s_branch L_end")
        if "dbgout" in DBG:
            a("v_mov_b32 v2, 0")
            a(f"v_mov_b32 v4, s{sbase+2*(NST-1)}")
            a("global_atomic_umax v2, v4, s[26:27] offset:4")
            a(f"s_not_b32 s3, s{sbase}")
            a("v_mov_b32 v4, s3")
            a("global_atomic_umax v2, v4, s[26:27] offset:8")
            wsel = int(os.environ.get("DBGWG", "0")); wv = int(os.environ.get("DBGWV", "0"))
            a(f"s_cmp_lg_u32 s2, {wsel}")
            a("s_cbranch_scc1 L_end")
            a(f"s_cmp_lg_u32 s31, {wv}")
            a("s_cbranch_scc1 L_end")
            for i in range(1, 14):
                a(f"v_mov_b32 v4, s{sbase+2*i}")
                a(f"global_store_dword v2, v4, s[26:27] offset:{8+4*i}")
            a("s_branch L_end")
        a("s_lshl_b32 s3, s31, 8")
        a("s_add_u32 s3, s3, s2")
        a(f"s_mul_i32 s3, s3, {8*NST}")
        a(f"s_add_u32 s3, s3, {STAMP_OFF}")
        a("v_mov_b32 v2, s3")
        for i in range(NST):
            a(f"v_mov_b32 v4, s{sbase+2*i}\nv_mov_b32 v5, s{sbase+2*i+1}")
            a(f"global_store_dwordx2 v2, v[4:5], s[28:29] offset:{8*i}")
    a("L_end:")
    a("s_endpgm")
    a("L_code_end:")
    lines, n = hazard.fix(a.lines)
    print("nops inserted:", n, "lines", len(lines), file=sys.stderr)
    k = kernel_wrap(KN + "_kernel", "\n".join(lines), 256, 102, extra="  .amdhsa_float_denorm_mode_32 3\n")
    return make_file([f"; @launch grid=(256,1,1) block=(512,1,1) lds={B_LDS}"], [k])
if __name__ == "__main__":
    out = sys.argv[1]
    open(out, "w").write(build(stamps="--stamps" in sys.argv, do_a="--noa" not in sys.argv, do_p3="--nop3" not in sys.argv))
```

```python
import math, os
STA = os.environ.get("STA", "")
LOG2E = 1.4426950408889634
import struct
def f2u(x): return struct.unpack("<I", struct.pack("<f", x))[0]
def hexf(x): return "0x%08x" % f2u(x)
L2E_HI = struct.unpack("<f", struct.pack("<f", LOG2E))[0]
L2E_LO = LOG2E - L2E_HI

USTR = 4672
KBASE = 8 * USTR
KSTR = 8704
EOFF = 2112
YSTR = 4160
GROW = 544
USTG = KBASE + 8 * KSTR
A_LDS = USTG + 8 * YSTR

STREAMS = [(-24, 16, 2), (-16, 4, 1), (-16, 8, 2), (-16, 12, 1), (-24, 16, 4), (-16, 8, 3)]
BAND = 224
CUTS = [3, 6]
ULATE = int(os.environ.get('ULATE', '1'))
def role_a(a, stamp=lambda i: None, pf=None):
    a.c("---------------- role A ----------------")
    if pf: pf[0](a, 252, 253)
    a("s_lshl_b32 s32, s30, 3")
    a("s_add_u32 s32, s32, s31")
    a("s_lshl_b32 s33, s32, 8")
    a("v_lshl_add_u32 v2, v1, 2, s33")
    a("s_lshl_b32 s33, s32, 1")
    a("v_mov_b32 v3, s33")
    a("s_waitcnt lgkmcnt(0)")
    a("global_load_dword v10, v2, s[6:7]")
    a("global_load_ushort v14, v3, s[14:15]")
    a("global_load_dword v11, v2, s[8:9]")
    a("global_load_dword v12, v2, s[10:11]")
    a("global_load_dword v13, v2, s[12:13]")
    a("global_load_ushort v15, v3, s[16:17]")
    a("v_mul_u32_u24 v4, 1152, v0")
    a("s_lshl_b32 s33, s30, 4")
    a("v_add_u32 v4, s33, v4")
    a("s_mov_b64 s[44:45], s[4:5]\ns_mov_b32 s46, 2359296\ns_mov_b32 s47, 0x20000")
    a("s_lshl_b32 s48, s31, 10")
    a(f"s_add_u32 s48, s48, {USTG}")
    a("s_mov_b32 s49, s30")
    def uload(j):
        if "nou" in os.environ.get("DBGA", ""): return
        a("s_and_b32 s49, s49, 3")
        a("s_lshl_b32 s3, s49, 13")
        a("s_add_u32 m0, s48, s3")
        a(f"s_mul_i32 s3, s49, {512*1152}")
        a("s_add_u32 s49, s49, 1")
        a("buffer_load_dwordx4 v4, s[44:47], s3 offen lds")
    if not ULATE: uload(0)
    NPF = int(os.environ.get('NPF', '2')) if pf else 0
    if pf:
        pf[1](a)
        for r in range(NPF): pf[2](a, 252, 253 + r, r)
    a("v_and_b32 v5, 15, v1")
    a("v_lshrrev_b32 v6, 4, v1")
    a(f"s_mul_i32 s34, s31, {KSTR}")
    a(f"s_add_u32 s34, s34, {KBASE}")
    a(f"s_mul_i32 s35, s31, {USTR}")
    a("v_lshl_add_u32 v7, v1, 3, s34")
    a(f"v_mul_u32_u24 v8, {GROW}, v5")
    a("v_lshl_add_u32 v8, v6, 4, v8")
    a("v_add_u32 v8, s34, v8")
    a("v_mov_b32 v16, 0\nv_mov_b32 v17, 0")
    a("v_lshl_add_u32 v9, v1, 3, s35")
    a("ds_write_b64 v9, v[16:17]")
    a(f"s_mov_b32 s36, {hexf(L2E_HI)}")
    a(f"s_mov_b32 s37, {hexf(L2E_LO)}")
    a(f"s_mov_b32 s38, {hexf(math.log(2.0))}")
    a("s_mov_b32 s39, 0xffff0000")
    a("v_lshlrev_b32 v20, 3, v6")
    a("v_sub_u32 v20, v20, v5")
    a("v_add_u32 v21, 1, v20")
    a("s_mov_b32 s40, 0x05040100")
    a("v_perm_b32 v20, v21, v20, s40")
    a("s_mov_b32 s41, 0x3f803f80")
    a("s_mov_b32 s50, 0x00010001")
    for k, (start, sh, hw) in enumerate(STREAMS + [None]) if False else []: pass
    rng = [(-st - sh - hw, -st - sh + hw) for (st, sh, hw) in STREAMS] + [(12, 13)]
    for k, (lo, hi) in enumerate(rng):
        n = hi - lo + 1
        a(f"s_mov_b32 s51, {hex(n * 0x10001)}")
        for d in range(4):
            r = BAND + 4 * k + d
            c = (2 * d - lo) & 0xffff
            a(f"s_mov_b32 s52, {hex(c * 0x10001)}")
            a(f"v_pk_add_u16 v{r}, v20, s52")
            a(f"v_pk_sub_u16 v{r}, s51, v{r} clamp")
            a(f"v_pk_min_u16 v{r}, v{r}, s50")
            if k < 6: a(f"v_pk_mul_lo_u16 v{r}, v{r}, s41")
    stamp(1)
    def exp_bf16(dst, x, t0, t1):
        a(f"v_mul_f32 v{t0}, s36, v{x}")
        a(f"v_fma_f32 v{t1}, v{x}, s36, -v{t0}")
        a(f"v_fmac_f32 v{t1}, s37, v{x}")
        a(f"v_exp_f32 v{t0}, v{t0}")
        a(f"v_mul_f32 v{t1}, s38, v{t1}")
        a(f"v_fma_f32 v{t0}, v{t0}, v{t1}, v{t0}")
        a(f"v_cvt_pk_bf16_f32 v{t0}, v{t0}, v{t0}")
        a(f"v_and_b32 v{dst}, s39, v{t0}")
    a(f"s_waitcnt vmcnt({(4 if ULATE else 5) + NPF})")
    a("v_lshlrev_b32 v20, 16, v10")
    a("v_and_b32 v21, s39, v10")
    a("v_lshlrev_b32 v14, 16, v14")
    exp_bf16(18, 14, 22, 23)
    exp_bf16(20, 20, 22, 23)
    exp_bf16(21, 21, 24, 25)
    a("v_mul_f32 v20, v20, v18\nv_mul_f32 v21, v21, v18")
    a("v_mul_f32 v20, s36, v20\nv_mul_f32 v21, s36, v21")
    a(f"s_waitcnt vmcnt({(0 if ULATE else 1) + NPF})")
    if not ULATE: uload(1)
    a("v_lshlrev_b32 v22, 16, v11\nv_and_b32 v23, s39, v11")
    a("v_mul_f32 v22, v22, v18\nv_mul_f32 v23, v23, v18")
    a("v_mul_f32 v22, 0.15915494, v22\nv_mul_f32 v23, 0.15915494, v23")
    a("v_add_f32 v19, v18, v18")
    C = 24
    a("v_lshlrev_b32 v24, 16, v12\nv_and_b32 v25, s39, v12")
    a("v_lshlrev_b32 v26, 16, v13\nv_and_b32 v27, s39, v13")
    a("v_mul_f32 v24, v24, v19\nv_mul_f32 v25, v25, v19")
    a("v_mul_f32 v26, v26, -v19\nv_mul_f32 v27, v27, -v19" .replace("v_mul_f32", "v_mul_f32_e64"))
    a("v_lshlrev_b32 v15, 16, v15")
    def direct(dst, c, conj):
        t = 60
        cs = hexf(float(c))
        for h in range(2):
            a(f"v_mul_f32 v{t+h}, {hexf(-float(c))}, v{20+h}")
            a(f"v_mul_f32 v{t+2+h}, {hexf(-float(c) if conj else float(c))}, v{22+h}")
        for h in range(2):
            a(f"v_exp_f32 v{t+h}, v{t+h}")
            a(f"v_fract_f32 v{t+2+h}, v{t+2+h}")
        for h in range(2):
            a(f"v_cos_f32 v{dst+h}, v{t+2+h}")
            a(f"v_sin_f32 v{dst+2+h}, v{t+2+h}")
        a(f"v_pk_mul_f32 v[{dst}:{dst+1}], v[{dst}:{dst+1}], v[{t}:{t+1}]")
        a(f"v_pk_mul_f32 v[{dst+2}:{dst+3}], v[{dst+2}:{dst+3}], v[{t}:{t+1}]")
    tcnt = [0]
    def cmul(d, z, w):
        t = 64 + 4 * (tcnt[0] % 2); tcnt[0] += 1
        assert d != z and d != w
        if "nok" in os.environ.get("DBGA", ""): a("s_nop 15"); return
        a(f"v_pk_mul_f32 v[{t}:{t+1}], v[{z+2}:{z+3}], v[{w+2}:{w+3}]")
        a(f"v_pk_mul_f32 v[{t+2}:{t+3}], v[{z+2}:{z+3}], v[{w}:{w+1}]")
        a(f"v_pk_fma_f32 v[{d}:{d+1}], v[{z}:{z+1}], v[{w}:{w+1}], v[{t}:{t+1}] neg_lo:[0,0,1] neg_hi:[0,0,1]")
        a(f"v_pk_fma_f32 v[{d+2}:{d+3}], v[{z}:{z+1}], v[{w+2}:{w+3}], v[{t+2}:{t+3}]")
    pcnt = [0]
    def emit(z, row):
        p = 72 + 2 * (pcnt[0] % 4); pcnt[0] += 1
        a(f"v_cvt_pk_bf16_f32 v{p}, v{z}, v{z+2}")
        a(f"v_cvt_pk_bf16_f32 v{p+1}, v{z+1}, v{z+3}")
        a(f"ds_write_b64 v7, v[{p}:{p+1}] offset:{row*GROW}")
    W16, W1, E256, W2, W4, W8 = 28, 32, 36, 40, 44, 48
    Z0, Z1, G0, G1 = 52, 56, 80, 84
    FA, FB = 96, 128
    ACC = 160
    direct(W16, 16, False)
    a("v_mov_b32 v72, 0x3f80\nv_mov_b32 v73, 0x3f80")
    a("ds_write_b64 v7, v[72:73]"); pcnt[0] = 1
    emit(W16, 1)
    cmul(Z0, W16, W16); emit(Z0, 2)
    z, o = Z0, Z1
    for i in range(3, 16):
        cmul(o, z, W16); emit(o, i); z, o = o, z
        if i == (10 if ULATE else 6): uload(2)
    for s in range(8): a(f"ds_read_b128 v[{FA+4*s}:{FA+4*s+3}], v8 offset:{64*s}")
    direct(W1, 1, True)
    uload(3)
    direct(E256, 256, True)
    def tile_mfma(t):
        for s in range(8): a(f"ds_read_b128 v[{FB+4*s}:{FB+4*s+3}], v8 offset:{64*s}")
    def tile_mfma2(t, swap=False):
        a("s_waitcnt lgkmcnt(0)")
        for s in range(8):
            c = "0" if s == 0 else f"v[{ACC+4*t}:{ACC+4*t+3}]"
            x, y = (FA, FB) if swap else (FB, FA)
            a(f"v_mfma_f32_16x16x32_bf16 v[{ACC+4*t}:{ACC+4*t+3}], v[{x+4*s}:{x+4*s+3}], v[{y+4*s}:{y+4*s+3}], {c}")
    def wopf():
        a("s_sub_u32 s33, s43, 23")
        a("s_lshl_b32 s33, s33, 3")
        a("s_add_u32 s33, s33, s31")
        a("s_lshl_b32 s3, s33, 13")
        a("v_lshl_add_u32 v220, v1, 7, s3")
        a("s_lshl_b32 s3, s33, 10")
        a(f"s_add_u32 s3, s3, {4608*128}")
        a("v_and_b32 v221, 7, v1")
        a("v_lshl_add_u32 v221, v221, 7, s3")
        a("global_load_dword v220, v220, s[22:23]")
        a("global_load_dword v221, v221, s[22:23]")
    def utrans():
        a("v_bfe_u32 v200, v1, 2, 2")
        a("v_lshl_add_u32 v200, v6, 3, v200")
        a("v_bfe_u32 v201, v1, 1, 1")
        a("v_lshl_add_u32 v200, v201, 2, v200")
        a("v_lshlrev_b32 v200, 4, v200")
        a("v_and_b32 v201, 1, v1")
        a("v_lshl_add_u32 v200, v201, 3, v200")
        a("s_lshl_b32 s3, s31, 12")
        a(f"s_add_u32 s3, s3, {USTG}")
        a("v_add_u32 v200, s3, v200")
        a("v_and_b32 v201, 7, v1")
        a(f"v_mul_u32_u24 v201, {USTR}, v201")
        a("v_lshrrev_b32 v202, 3, v1")
        a("v_lshl_add_u32 v201, v202, 3, v201")
        a("s_lshl_b32 s3, s31, 9")
        a("v_add_u32 v201, s3, v201")
        stamp(7)
        a("s_waitcnt vmcnt(2)")
        a("s_barrier")
        stamp(8)
        for i in range(8): a(f"ds_read_b64_tr_b16 v[{204+2*i}:{205+2*i}], v200 offset:{512*i}")
        for i in range(8):
            a(f"s_waitcnt lgkmcnt(7)")
            a(f"ds_write_b64 v201, v[{204+2*i}:{205+2*i}] offset:{512+64*i}")
        a("s_waitcnt lgkmcnt(0)")
        a("s_barrier")
    emit(C, 0)
    cmul(Z0, C, W1); emit(Z0, 1)
    z, o = Z0, Z1
    for j in range(2, 16):
        cmul(o, z, W1); emit(o, j); z, o = o, z
        if ULATE and j in (5, 11): uload(0)
    tile_mfma(0)
    cmul(W2, W1, W1); cmul(G0, C, E256); cmul(W4, W2, W2); cmul(Z0, G0, W2); cmul(W8, W4, W4)
    tile_mfma2(0)
    emit(G0, 0); emit(Z0, 1)
    cmul(G1, G0, E256)
    z, o = Z0, Z1
    for j in range(2, 8):
        cmul(o, z, W2); emit(o, j); z, o = o, z
    emit(G1, 8)
    wopf()
    tile_mfma(1)
    cmul(G0, G1, E256)
    cmul(Z0, G1, W4)
    cmul(Z1, Z0, W4)
    tile_mfma2(1)
    if not ULATE: utrans()
    emit(Z0, 1); emit(Z1, 2); cmul(Z0, Z1, W4); emit(Z0, 3); cmul(Z1, Z0, W4); emit(Z1, 0)
    cmul(G1, G0, E256)
    cmul(Z0, G0, W4); emit(Z0, 5); cmul(Z1, Z0, W4); emit(Z1, 6); cmul(Z0, Z1, W4); emit(Z0, 7); cmul(Z1, Z0, W4); emit(Z1, 4)
    g, og = G1, G0
    for h in range(4):
        cmul(Z0, g, W8)
        if h < 3: cmul(og, g, E256)
        emit(Z0, 8 + 2*h + 1)
        cmul(Z1, Z0, W8); emit(Z1, 8 + 2*h)
        g, og = og, g
    if ULATE: utrans()
    tile_mfma(2)
    stamp(2)
    T0, T1, T2 = ACC, ACC+4, ACC+8
    a("v_lshl_add_u32 v25, v1, 4, s34")
    a("v_mov_b64 v[18:19], v[16:17]")
    a("ds_write_b128 v25, v[16:19]")
    a("ds_write_b128 v25, v[16:19] offset:1024")
    a("ds_write_b128 v25, v[16:19] offset:2048")
    a("v_cmp_eq_u32 vcc, 0, v1")
    a("v_cndmask_b32 v15, 0, v15, vcc")
    a(f"v_add_f32 v{T0}, v{T0}, v15")
    a("v_lshlrev_b32 v20, 5, v5")
    a("v_sub_u32 v20, s34, v20")
    a(f"v_cvt_pk_bf16_f32 v64, v{T1+3}, v{T1+3}")
    a(f"v_cvt_pk_bf16_f32 v66, v{T1+2}, v{T1+2}")
    a(f"v_cvt_pk_bf16_f32 v69, v{T1}, v{T1}")
    a(f"v_cvt_pk_bf16_f32 v70, v{T1+2}, v{T1+1}")
    a("v_lshlrev_b32 v23, 4, v6")
    a("v_sub_u32 v23, v20, v23")
    a("v_lshlrev_b32 v24, 3, v6")
    a("v_sub_u32 v26, s34, v24")
    a("v_sub_u32 v24, v20, v24")
    a(f"v_cvt_pk_bf16_f32 v72, v{T0+3}, v{T0+2}")
    a(f"v_cvt_pk_bf16_f32 v73, v{T0+1}, v{T0}")
    a("s_mov_b32 exec_lo, 0\ns_mov_b32 exec_hi, 1")
    a(f"ds_write_b16 v20, v69 offset:{14*4+2}")
    a(f"ds_write_b32 v20, v69 offset:{15*4}")
    a(f"ds_write_b16 v20, v69 offset:{16*4}")
    a("s_mov_b32 exec_lo, -1\ns_mov_b32 exec_hi, 0")
    a(f"ds_write_b16 v23, v64 offset:{140*4+2}")
    a("ds_write2_b32 v23, v66, v70 offset0:141 offset1:142")
    a(f"ds_write_b32 v23, v69 offset:{143*4}")
    a(f"ds_write_b16 v23, v69 offset:{144*4}")
    a("s_mov_b64 exec, -1")
    a(f"ds_write_b64 v24, v[72:73] offset:{270*4}")
    a("v_and_b32 v27, 3, v5")
    a("v_mul_u32_u24 v27, 96, v27")
    a("v_bfe_u32 v28, v5, 2, 1")
    a("v_lshlrev_b32 v28, 5, v28")
    a("v_sub_u32 v27, v27, v28")
    a("v_and_b32 v28, 1, v5")
    a("v_mul_u32_u24 v28, 160, v28")
    a("v_bfe_u32 v29, v5, 1, 2")
    a("v_lshlrev_b32 v29, 5, v29")
    a("v_sub_u32 v28, v28, v29")
    a(f"v_add_u32 v28, {(406-294)*4}, v28")
    a("v_cmp_gt_u32 vcc, 8, v5")
    a("v_cndmask_b32 v27, v28, v27, vcc")
    a("v_add_u32 v27, v27, v26")
    a("s_waitcnt lgkmcnt(11)")
    for s_ in range(8):
        c = "0" if s_ == 0 else f"v[{T2}:{T2+3}]"
        a(f"v_mfma_f32_16x16x32_bf16 v[{T2}:{T2+3}], v[{FA+4*s_}:{FA+4*s_+3}], v[{FB+4*s_}:{FB+4*s_+3}], {c}")
    stamp(3)
    a("v_and_b32 v28, 1, v5")
    a(f"v_mul_u32_u24 v28, {EOFF}, v28")
    a("v_lshrrev_b32 v29, 1, v5")
    a("v_lshlrev_b32 v29, 2, v29")
    a("v_add_u32 v28, v28, v29")
    a("v_sub_u32 v28, s34, v28")
    a(f"v_add_u32 v28, {EOFF}, v28")
    a("v_lshl_add_u32 v10, v6, 4, v28")
    a(f"v_add_u32 v11, {128*4}, v10")
    a("v_lshl_add_u32 v12, v6, 3, v28")
    a(f"v_add_u32 v12, {256*4}, v12")
    a("v_lshlrev_b32 v13, 5, v5")
    a("v_lshl_add_u32 v14, v6, 3, v13")
    a("v_lshl_add_u32 v13, v6, 4, v13")
    a("v_add_u32 v13, s35, v13")
    a(f"s_mul_i32 s3, s31, {YSTR}")
    a(f"s_add_u32 s3, s3, {USTG}")
    a("v_add_u32 v14, s3, v14")
    a(f"v_cvt_pk_bf16_f32 v72, v{T2+3}, v{T2+2}")
    a(f"v_cvt_pk_bf16_f32 v73, v{T2+1}, v{T2}")
    a(f"ds_write_b64 v27, v[72:73] offset:{294*4}")
    for j in range(2):
        a(f"ds_read_b128 v[{96+8*j}:{99+8*j}], v25 offset:{1024*j}")
        a(f"ds_read_b32 v{100+8*j}, v25 offset:{1024*j+16}")
    a("v_readlane_b32 s3, v72, 52")
    a("s_and_b32 s3, s3, 0xffff")
    a("s_mul_i32 s3, s3, 0x10001")
    for d in range(4): a(f"v_pk_mul_lo_u16 v{BAND+24+d}, v{BAND+24+d}, s3")
    a("v_lshrrev_b32 v3, 2, v5")
    a(f"v_mul_u32_u24 v3, {YSTR}, v3")
    a("v_and_b32 v4, 3, v5")
    a("v_lshl_add_u32 v3, v4, 3, v3")
    a("v_lshl_add_u32 v3, v6, 5, v3")
    a(f"v_add_u32 v3, {USTG}, v3")
    a("v_mul_u32_u24 v4, 2304, v1")
    a("s_lshl_b32 s33, s30, 4")
    a("v_add_u32 v4, s33, v4")
    for j in range(2):
        a(f"s_waitcnt lgkmcnt({2-2*j})")
        for k in range(4):
            a(f"v_alignbit_b32 v{128+4*j+k}, v{97+8*j+k}, v{96+8*j+k}, 16")
        a(f"ds_write_b128 v25, v[{128+4*j}:{131+4*j}] offset:{EOFF+1024*j}")
    stamp(4)
    Y = 16
    TF = 48
    BF = 116
    UR = 156
    WT = 188
    YP = 212
    T65 = BAND + 24
    q_ = []
    def lds(txt, tag=None):
        a(txt); q_.append(tag)
    def need(tags):
        idx = max(i for i, t in enumerate(q_) if t in tags)
        n = len(q_) - 1 - idx
        if n < need.done:
            a(f"s_waitcnt lgkmcnt({min(n, 15)})")
        need.best = None
    done_upto = [-1]
    def wait_for(tags):
        idx = max(i for i, t in enumerate(q_) if t in tags)
        if idx > done_upto[0]:
            n = len(q_) - 1 - idx
            a(f"s_waitcnt lgkmcnt({min(n, 15)})")
            done_upto[0] = idx if n <= 15 else len(q_) - 1 - 15
    def tload(k):
        o = 271 - 8 * (2*k + 1)
        ad = 10
        if o >= 128: ad, o = 11, o - 128
        lds(f"ds_read2_b32 v[{TF+4*k}:{TF+4*k+1}], v{ad} offset0:{o} offset1:{o+1}", ("T", k))
        lds(f"ds_read2_b32 v[{TF+4*k+2}:{TF+4*k+3}], v{ad} offset0:{o+2} offset1:{o+3}", ("T", k))
    bfl = [(0, d) for d in (2, 3, 4)] + [(1, d) for d in (2, 3, 4)] + [(2, d) for d in (4, 5, 6, 7)]
    def bload(n):
        pr, dl = bfl[n]
        for hf in range(2):
            if pr < 2: o = 280 + 24 * (2*pr + hf) + 31 - 8 * dl
            else: o = 376 + 40 * hf + 63 - 8 * dl
            o -= 256
            lds(f"ds_read2_b32 v[{BF+4*n+2*hf}:{BF+4*n+2*hf+1}], v12 offset0:{o} offset1:{o+1}", ("B", n))
    useq = []
    for q in range(8):
        useq += ([(q, 'x')] if q < 6 else []) + [(q, r) for r in range(8)]
    upos = {u: i for i, u in enumerate(useq)}
    def ureg(u): return UR + 4 * (upos[u] % 8)
    unext = [0]
    def uld():
        if unext[0] >= len(useq): return
        q, r = u = useq[unext[0]]; unext[0] += 1
        o = 512 * q + (480 - 16 if r == 'x' else 480 - 64 * r)
        lds(f"ds_read_b128 v[{ureg(u)}:{ureg(u)+3}], v13 offset:{o}", ("U", u))
    first = set()
    def mf(d, x, y, c):
        if "noc" in os.environ.get("DBGA", ""): a("s_nop 7"); return
        a(f"v_mfma_f32_16x16x32_bf16 v[{d}:{d+3}], v[{x}:{x+3}], v[{y}:{y+3}], {c}")
    def ymf(at, x, y):
        c = f"v[{Y+4*at}:{Y+4*at+3}]" if at in first else "0"
        first.add(at)
        mf(Y + 4*at, x, y, c)
    def ywrite(at):
        p = YP + 2 * (at % 2)
        a(f"v_cvt_pk_bf16_f32 v{p}, v{Y+4*at}, v{Y+4*at+1}")
        a(f"v_cvt_pk_bf16_f32 v{p+1}, v{Y+4*at+2}, v{Y+4*at+3}")
        lds(f"ds_write_b64 v14, v[{p}:{p+1}] offset:{512*at}", ("Y", at))
    uld(); uld()
    pend = []
    tload(0); tload(8); tload(16)
    for k in range(1, 8): pend.append(lambda k=k: (tload(k), tload(k + 8)))
    for n in range(10): pend.append(lambda n=n: bload(n))
    for _ in range(3): uld()
    for _ in range(2): pend.pop(0)()
    for q in range(8):
        npair = 3 if q < 4 else (2 if q < 6 else 0)
        for pr in range(npair):
            for hf in range(2):
                st = STREAMS[2*pr + hf]
                u = (q, 'x') if st[0] == -24 else (q, 0)
                wait_for({("U", u)})
                mf(WT + 8*pr + 4*hf, ureg(u), BAND + 4*(2*pr + hf), "0")
                if pend: pend.pop(0)()
        if q < 6: uld()
        scat = [(n, pr, dl) for n, (pr, dl) in enumerate(bfl) if pr < npair and q + dl < 8]
        scat.sort(key=lambda t: t[1])
        for r in range(8):
            u = (q, r)
            wait_for({("U", u), ("T", r)})
            ymf(q, TF + 4*r, ureg(u))
            if pend: pend.pop(0)()
            if q < 7:
                wait_for({("T", r + 8)})
                ymf(q + 1, TF + 4*(r + 8), ureg(u))
            if r == 0:
                if q < 6: wait_for({("T", 16)}); ymf(q + 2, TF + 64, ureg(u))
                if q < 4: ymf(q + 4, T65, ureg(u))
            uld()
            if pend: pend.pop(0)()
            if r == 1 and q > 0: ywrite(q - 1)
            if 2 <= r <= 4 and r - 2 < npair:
                w = WT + 8 * (r - 2)
                for k in range(4): a(f"v_cvt_pk_bf16_f32 v{w+k}, v{w+2*k}, v{w+2*k+1}")
            if r >= 3:
                take = [t for t in scat if t[1] <= r - 3][:(3 if r < 7 else 99)]
                for t in take:
                    scat.remove(t)
                    n, pr, dl = t
                    wait_for({("B", n)})
                    ymf(q + dl, WT + 8*pr, BF + 4*n)
            if r == 2 and q in CUTS:
                lab = a.label("L_a_noy")
                a("s_cmp_lt_u32 s31, 4")
                a(f"s_cbranch_scc1 {lab}")
                idx = max(i for i, t in enumerate(q_) if t == ("Y", q - 1))
                a(f"s_waitcnt lgkmcnt({len(q_) - 1 - idx})")
                a("s_barrier")
                a(f"{lab}:")
        assert not scat
    stamp(5)
    ywrite(7)
    def ystore(n, row0_sreg):
        a(f"s_lshl_b32 s3, s{row0_sreg}, 1")
        a("v_add_u32 v7, s3, v3")
        a(f"s_mul_i32 s3, s{row0_sreg}, 2304")
        a("v_add_u32 v8, s3, v4")
        for j in range(n):
            a(f"ds_read_b64_tr_b16 v[{60+4*j}:{61+4*j}], v7 offset:{128*j}")
            a(f"ds_read_b64_tr_b16 v[{62+4*j}:{63+4*j}], v7 offset:{128*j+4*YSTR}")
        for j in range(n):
            a(f"s_waitcnt lgkmcnt({2*(n-1-j)})")
            if "nos" not in os.environ.get("DBGA", ""): a(f"global_store_dwordx4 v8, v[{60+4*j}:{63+4*j}], s[24:25] {STA}")
            if j < n - 1: a(f"v_add_u32 v8, {64*2304}, v8")
    a("s_waitcnt lgkmcnt(0)")
    a("s_cmp_ge_u32 s31, 4")
    a("s_cbranch_scc1 L_a_y2")
    prev = 0
    for cut in CUTS:
        n = cut - prev
        a("s_barrier")
        a(f"s_mul_i32 s33, s31, {64*n}")
        a(f"s_add_u32 s33, s33, {256*prev}")
        ystore(n, 33)
        a("s_nop 1")
        prev = cut
    a("L_a_y2:")
    a("s_barrier")
    n = (8 - prev) // 2
    a(f"s_mul_i32 s33, s31, {64*n}")
    a(f"s_add_u32 s33, s33, {256*prev}")
    ystore(n, 33)
    stamp(6)
    wb = os.environ.get("WBL2", "0")
    if wb == "last":
        a("s_waitcnt vmcnt(0)")
        a("s_barrier")
        a("s_cmp_lg_u32 s31, 0")
        a("s_cbranch_scc1 L_fin")
        a("s_lshl_b32 s3, s42, 2")
        a("v_mov_b32 v2, s3")
        a("v_mov_b32 v3, 1")
        a("s_mov_b64 exec, 1")
        a("global_atomic_add v4, v2, v3, s[26:27] offset:128 sc0")
        a("s_waitcnt vmcnt(0)")
        a("v_readfirstlane_b32 s3, v4")
        a("s_mov_b64 exec, -1")
        a("s_cmp_lg_u32 s3, 8")
        a("s_cbranch_scc1 L_fin")
        a("buffer_wbl2 sc1")
    elif wb != "0":
        a(f"s_cmp_lg_u32 s43, {wb}")
        a("s_cbranch_scc1 L_fin")
        a("s_waitcnt vmcnt(0)")
        a("s_barrier")
        a("s_cmp_lg_u32 s31, 0")
        a("s_cbranch_scc1 L_fin")
        a("buffer_wbl2 sc1")
```

```python
import sys, os
from asmlib import *
import hazard
from gen_a import *
from gen_b import *

NST = 15
STAMP_OFF = 200 << 20
def build(stamps=False, do_a=True, do_b=True, do_p3=True):
    a = Asm()
    sbase = 64
    def stamp(i):
        if stamps: a(f"{'s_memtime' if os.environ.get('CYC') else 's_memrealtime'} s[{sbase+2*i}:{sbase+2*i+1}]")
    stamp(0)
    a("s_load_dwordx16 s[4:19], s[0:1], 0")
    a("s_load_dwordx8 s[20:27], s[0:1], 64")
    a("s_load_dwordx2 s[28:29], s[0:1], 96")
    a("s_cmp_ge_u32 s2, 256")
    a("s_cbranch_scc1 L_end")
    a("v_and_b32 v1, 63, v0")
    a("v_lshrrev_b32 v2, 6, v0")
    a("s_and_b32 s42, s2, 7")
    a("s_lshr_b32 s43, s2, 3")
    a("v_readfirstlane_b32 s31, v2")
    if not os.environ.get("NOCPF"):
        a("s_and_b32 s34, s43, 7")
        a("s_cmp_lg_u32 s34, s31")
        a("s_cbranch_scc1 L_nocpf")
        a("s_getpc_b64 s[36:37]")
        a("L_pc:")
        a("s_lshl_b32 s34, s34, 13")
        a("v_lshl_add_u32 v4, v1, 7, s34")
        a("v_min_u32 v4, L_code_end-L_pc-4, v4")
        a("v_mov_b32 v5, s37")
        a("v_add_co_u32 v4, vcc, s36, v4")
        a("v_addc_co_u32 v5, vcc, 0, v5, vcc")
        a("global_load_dword v255, v[4:5], off")
        a("L_nocpf:")
    if os.environ.get("SWAP9", "1") == "1":
        a("s_add_u32 s35, s42, 15")
        a("s_cmp_gt_u32 s2, 248")
        a("s_cselect_b32 s36, s35, s43")
        a("s_cselect_b32 s37, 0, s42")
        a("s_sub_u32 s35, s43, 16")
        a("s_cmp_lt_u32 s35, 7")
        a("s_cselect_b32 s38, s42, 1")
        a("s_add_u32 s35, s35, 1")
        a("s_cmp_eq_u32 s38, 0")
        a("s_cselect_b32 s43, 31, s36")
        a("s_cselect_b32 s42, s35, s37")
    a("v_and_b32 v2, 15, v1")
    a("v_lshrrev_b32 v3, 4, v1")
    a("s_and_b32 s34, s42, 3")
    if KRT == 5:
        a("s_cmp_ge_u32 s43, 13")
        a("s_cbranch_scc1 L_notkv")
        a("s_mul_i32 s35, s34, 13")
        a("s_add_u32 s35, s35, s43")
        a("s_lshr_b32 s33, s35, 2")
        a("s_and_b32 s36, s35, 3")
        a("s_and_b32 s32, s42, 4")
        a("s_add_u32 s32, s32, s36")
        a("s_add_u32 s94, s33, s36")
        if os.environ.get("ROT3", "1") == "1":
            a("s_mul_i32 s35, s94, 86")
            a("s_lshr_b32 s35, s35, 8")
            a("s_mul_i32 s35, s35, 3")
            a("s_sub_u32 s94, s94, s35")
            a("s_mul_i32 s94, s94, 3")
        else:
            a("s_and_b32 s94, s94, 3")
            a("s_lshl_b32 s94, s94, 1")
        role_gemm(a, "kv", stamp)
        a("L_notkv:")
        a(f"s_cmp_ge_u32 s43, {AS0}")
        a("s_cbranch_scc1 L_rolea")
        a("s_cmp_ge_u32 s43, 21")
        a("s_cbranch_scc1 L_spare")
        a("s_sub_u32 s35, s43, 13")
        a("s_lshr_b32 s33, s35, 1")
        a("s_lshl_b32 s36, s34, 2")
        a("s_add_u32 s33, s33, s36")
        a("s_and_b32 s36, s35, 1")
        a("s_lshr_b32 s32, s42, 1")
        a("s_and_b32 s32, s32, 2")
        a("s_add_u32 s32, s32, s36")
        a("s_mov_b32 s94, s35")
    else:
        a("s_cmp_ge_u32 s43, 16")
        a("s_cbranch_scc1 L_notkv")
        a("s_lshr_b32 s35, s43, 2")
        a("s_and_b32 s36, s43, 3")
        a("s_lshl_b32 s33, s34, 2")
        a("s_add_u32 s33, s33, s35")
        a("s_and_b32 s32, s42, 4")
        a("s_add_u32 s32, s32, s36")
        a("s_add_u32 s94, s35, s36")
        a("s_and_b32 s94, s94, 3")
        a("s_lshl_b32 s94, s94, 1")
        role_gemm(a, "kv", stamp)
        a("L_notkv:")
        a(f"s_cmp_ge_u32 s43, {AS0}")
        a("s_cbranch_scc1 L_rolea")
        a("s_mul_i32 s35, s34, 107")
        a("s_add_u32 s36, s35, 107")
        a("s_lshr_b32 s35, s35, 4")
        a("s_lshr_b32 s36, s36, 4")
        a("s_add_u32 s35, s35, s43")
        a("s_sub_u32 s35, s35, 16")
        a("s_cmp_ge_u32 s35, s36")
        a("s_cbranch_scc1 L_spare")
        a("s_lshr_b32 s33, s35, 1")
        a("s_and_b32 s36, s35, 1")
        a("s_lshr_b32 s32, s42, 1")
        a("s_and_b32 s32, s32, 2")
        a("s_add_u32 s32, s32, s36")
        a("s_sub_u32 s94, s43, 16")
        a("s_and_b32 s94, s94, 6")
    role_gemm(a, "q", stamp)
    phase3(a, stamp)
    a("s_branch L_fin")
    a("L_spare:")
    a("s_cmp_lg_u32 s42, 0")
    a("s_cbranch_scc1 L_end")
    role_zero(a)
    a("L_rolea:")
    if do_a:
        a("s_lshl_b32 s30, s42, 3")
        a("s_add_u32 s30, s30, s43")
        a(f"s_sub_u32 s30, s30, {AS0}")
        a("s_add_u32 s33, s42, 64")
        a("s_cmp_eq_u32 s43, 31")
        a("s_cselect_b32 s30, s33, s30")
        role_a(a, stamp, None if not os.environ.get('PF') else (pf_setup, pf_base, pf_round))
    a("L_fin:")
    if stamps:
        a("s_waitcnt vmcnt(0)")
        stamp(NST - 1)
        a("s_waitcnt lgkmcnt(0)")
        a("s_mov_b64 exec, 1")
        if os.environ.get("SPINK"):
            k = int(os.environ["SPINK"]); wsel = int(os.environ.get("DBGWG", "0")); wv = int(os.environ.get("DBGWV", "0"))
            a(f"s_cmp_lg_u32 s2, {wsel}")
            a("s_cbranch_scc1 L_end")
            a(f"s_cmp_lg_u32 s31, {wv}")
            a("s_cbranch_scc1 L_end")
            a("L_spin:")
            a("s_sleep 2")
            a("s_memrealtime s[62:63]")
            a("s_waitcnt lgkmcnt(0)")
            a(f"s_sub_u32 s3, s62, s{sbase+2*k}")
            a("s_cmp_lt_u32 s3, 3000")
            a("s_cbranch_scc1 L_spin")
            a("s_branch L_end")
        if "dbgout" in DBG:
            a("v_mov_b32 v2, 0")
            a(f"v_mov_b32 v4, s{sbase+2*(NST-1)}")
            a("global_atomic_umax v2, v4, s[26:27] offset:4")
            a(f"s_not_b32 s3, s{sbase}")
            a("v_mov_b32 v4, s3")
            a("global_atomic_umax v2, v4, s[26:27] offset:8")
            wsel = int(os.environ.get("DBGWG", "0")); wv = int(os.environ.get("DBGWV", "0"))
            a(f"s_cmp_lg_u32 s2, {wsel}")
            a("s_cbranch_scc1 L_end")
            a(f"s_cmp_lg_u32 s31, {wv}")
            a("s_cbranch_scc1 L_end")
            for i in range(1, 14):
                a(f"v_mov_b32 v4, s{sbase+2*i}")
                a(f"global_store_dword v2, v4, s[26:27] offset:{8+4*i}")
            a("s_branch L_end")
        a("s_lshl_b32 s3, s31, 8")
        a("s_add_u32 s3, s3, s2")
        a(f"s_mul_i32 s3, s3, {8*NST}")
        a(f"s_add_u32 s3, s3, {STAMP_OFF}")
        a("v_mov_b32 v2, s3")
        for i in range(NST):
            a(f"v_mov_b32 v4, s{sbase+2*i}\nv_mov_b32 v5, s{sbase+2*i+1}")
            a(f"global_store_dwordx2 v2, v[4:5], s[28:29] offset:{8*i}")
    a("L_end:")
    a("s_endpgm")
    a("L_code_end:")
    lines, n = hazard.fix(a.lines)
    print("nops inserted:", n, "lines", len(lines), file=sys.stderr)
    k = kernel_wrap(KN + "_kernel", "\n".join(lines), 256, 102, extra="  .amdhsa_float_denorm_mode_32 3\n")
    return make_file([f"; @launch grid=(256,1,1) block=(512,1,1) lds={B_LDS}"], [k])
if __name__ == "__main__":
    out = sys.argv[1]
    open(out, "w").write(build(stamps="--stamps" in sys.argv, do_a="--noa" not in sys.argv, do_p3="--nop3" not in sys.argv))
```

```python
import math, os
STA = os.environ.get("STA", "")
LOG2E = 1.4426950408889634
import struct
def f2u(x): return struct.unpack("<I", struct.pack("<f", x))[0]
def hexf(x): return "0x%08x" % f2u(x)
L2E_HI = struct.unpack("<f", struct.pack("<f", LOG2E))[0]
L2E_LO = LOG2E - L2E_HI

USTR = 4672
KBASE = 8 * USTR
KSTR = 8704
EOFF = 2112
YSTR = 4160
GROW = 544
USTG = KBASE + 8 * KSTR
A_LDS = USTG + 8 * YSTR

STREAMS = [(-24, 16, 2), (-16, 4, 1), (-16, 8, 2), (-16, 12, 1), (-24, 16, 4), (-16, 8, 3)]
BAND = 224
CUTS = [3, 6]
ULATE = int(os.environ.get('ULATE', '1'))
def role_a(a, stamp=lambda i: None, pf=None):
    a.c("---------------- role A ----------------")
    if pf: pf[0](a, 252, 253)
    a("s_lshl_b32 s32, s30, 3")
    a("s_add_u32 s32, s32, s31")
    a("s_lshl_b32 s33, s32, 8")
    a("v_lshl_add_u32 v2, v1, 2, s33")
    a("s_lshl_b32 s33, s32, 1")
    a("v_mov_b32 v3, s33")
    a("s_waitcnt lgkmcnt(0)")
    a("global_load_dword v10, v2, s[6:7]")
    a("global_load_ushort v14, v3, s[14:15]")
    a("global_load_dword v11, v2, s[8:9]")
    a("global_load_dword v12, v2, s[10:11]")
    a("global_load_dword v13, v2, s[12:13]")
    a("global_load_ushort v15, v3, s[16:17]")
    a("v_mul_u32_u24 v4, 1152, v0")
    a("s_lshl_b32 s33, s30, 4")
    a("v_add_u32 v4, s33, v4")
    a("s_mov_b64 s[44:45], s[4:5]\ns_mov_b32 s46, 2359296\ns_mov_b32 s47, 0x20000")
    a("s_lshl_b32 s48, s31, 10")
    a(f"s_add_u32 s48, s48, {USTG}")
    a("s_mov_b32 s49, s30")
    def uload(j):
        if "nou" in os.environ.get("DBGA", ""): return
        a("s_and_b32 s49, s49, 3")
        a("s_lshl_b32 s3, s49, 13")
        a("s_add_u32 m0, s48, s3")
        a(f"s_mul_i32 s3, s49, {512*1152}")
        a("s_add_u32 s49, s49, 1")
        a("buffer_load_dwordx4 v4, s[44:47], s3 offen lds")
    if not ULATE: uload(0)
    NPF = int(os.environ.get('NPF', '2')) if pf else 0
    if pf:
        pf[1](a)
        for r in range(NPF): pf[2](a, 252, 253 + r, r)
    a("v_and_b32 v5, 15, v1")
    a("v_lshrrev_b32 v6, 4, v1")
    a(f"s_mul_i32 s34, s31, {KSTR}")
    a(f"s_add_u32 s34, s34, {KBASE}")
    a(f"s_mul_i32 s35, s31, {USTR}")
    a("v_lshl_add_u32 v7, v1, 3, s34")
    a(f"v_mul_u32_u24 v8, {GROW}, v5")
    a("v_lshl_add_u32 v8, v6, 4, v8")
    a("v_add_u32 v8, s34, v8")
    a("v_mov_b32 v16, 0\nv_mov_b32 v17, 0")
    a("v_lshl_add_u32 v9, v1, 3, s35")
    a("ds_write_b64 v9, v[16:17]")
    a(f"s_mov_b32 s36, {hexf(L2E_HI)}")
    a(f"s_mov_b32 s37, {hexf(L2E_LO)}")
    a(f"s_mov_b32 s38, {hexf(math.log(2.0))}")
    a("s_mov_b32 s39, 0xffff0000")
    a("v_lshlrev_b32 v20, 3, v6")
    a("v_sub_u32 v20, v20, v5")
    a("v_add_u32 v21, 1, v20")
    a("s_mov_b32 s40, 0x05040100")
    a("v_perm_b32 v20, v21, v20, s40")
    a("s_mov_b32 s41, 0x3f803f80")
    a("s_mov_b32 s50, 0x00010001")
    for k, (start, sh, hw) in enumerate(STREAMS + [None]) if False else []: pass
    rng = [(-st - sh - hw, -st - sh + hw) for (st, sh, hw) in STREAMS] + [(12, 13)]
    for k, (lo, hi) in enumerate(rng):
        n = hi - lo + 1
        a(f"s_mov_b32 s51, {hex(n * 0x10001)}")
        for d in range(4):
            r = BAND + 4 * k + d
            c = (2 * d - lo) & 0xffff
            a(f"s_mov_b32 s52, {hex(c * 0x10001)}")
            a(f"v_pk_add_u16 v{r}, v20, s52")
            a(f"v_pk_sub_u16 v{r}, s51, v{r} clamp")
            a(f"v_pk_min_u16 v{r}, v{r}, s50")
            if k < 6: a(f"v_pk_mul_lo_u16 v{r}, v{r}, s41")
    stamp(1)
    def exp_bf16(dst, x, t0, t1):
        a(f"v_mul_f32 v{t0}, s36, v{x}")
        a(f"v_fma_f32 v{t1}, v{x}, s36, -v{t0}")
        a(f"v_fmac_f32 v{t1}, s37, v{x}")
        a(f"v_exp_f32 v{t0}, v{t0}")
        a(f"v_mul_f32 v{t1}, s38, v{t1}")
        a(f"v_fma_f32 v{t0}, v{t0}, v{t1}, v{t0}")
        a(f"v_cvt_pk_bf16_f32 v{t0}, v{t0}, v{t0}")
        a(f"v_and_b32 v{dst}, s39, v{t0}")
    a(f"s_waitcnt vmcnt({(4 if ULATE else 5) + NPF})")
    a("v_lshlrev_b32 v20, 16, v10")
    a("v_and_b32 v21, s39, v10")
    a("v_lshlrev_b32 v14, 16, v14")
    exp_bf16(18, 14, 22, 23)
    exp_bf16(20, 20, 22, 23)
    exp_bf16(21, 21, 24, 25)
    a("v_mul_f32 v20, v20, v18\nv_mul_f32 v21, v21, v18")
    a("v_mul_f32 v20, s36, v20\nv_mul_f32 v21, s36, v21")
    a(f"s_waitcnt vmcnt({(0 if ULATE else 1) + NPF})")
    if not ULATE: uload(1)
    a("v_lshlrev_b32 v22, 16, v11\nv_and_b32 v23, s39, v11")
    a("v_mul_f32 v22, v22, v18\nv_mul_f32 v23, v23, v18")
    a("v_mul_f32 v22, 0.15915494, v22\nv_mul_f32 v23, 0.15915494, v23")
    a("v_add_f32 v19, v18, v18")
    C = 24
    a("v_lshlrev_b32 v24, 16, v12\nv_and_b32 v25, s39, v12")
    a("v_lshlrev_b32 v26, 16, v13\nv_and_b32 v27, s39, v13")
    a("v_mul_f32 v24, v24, v19\nv_mul_f32 v25, v25, v19")
    a("v_mul_f32 v26, v26, -v19\nv_mul_f32 v27, v27, -v19" .replace("v_mul_f32", "v_mul_f32_e64"))
    a("v_lshlrev_b32 v15, 16, v15")
    def direct(dst, c, conj):
        t = 60
        cs = hexf(float(c))
        for h in range(2):
            a(f"v_mul_f32 v{t+h}, {hexf(-float(c))}, v{20+h}")
            a(f"v_mul_f32 v{t+2+h}, {hexf(-float(c) if conj else float(c))}, v{22+h}")
        for h in range(2):
            a(f"v_exp_f32 v{t+h}, v{t+h}")
            a(f"v_fract_f32 v{t+2+h}, v{t+2+h}")
        for h in range(2):
            a(f"v_cos_f32 v{dst+h}, v{t+2+h}")
            a(f"v_sin_f32 v{dst+2+h}, v{t+2+h}")
        a(f"v_pk_mul_f32 v[{dst}:{dst+1}], v[{dst}:{dst+1}], v[{t}:{t+1}]")
        a(f"v_pk_mul_f32 v[{dst+2}:{dst+3}], v[{dst+2}:{dst+3}], v[{t}:{t+1}]")
    tcnt = [0]
    def cmul(d, z, w):
        t = 64 + 4 * (tcnt[0] % 2); tcnt[0] += 1
        assert d != z and d != w
        if "nok" in os.environ.get("DBGA", ""): a("s_nop 15"); return
        a(f"v_pk_mul_f32 v[{t}:{t+1}], v[{z+2}:{z+3}], v[{w+2}:{w+3}]")
        a(f"v_pk_mul_f32 v[{t+2}:{t+3}], v[{z+2}:{z+3}], v[{w}:{w+1}]")
        a(f"v_pk_fma_f32 v[{d}:{d+1}], v[{z}:{z+1}], v[{w}:{w+1}], v[{t}:{t+1}] neg_lo:[0,0,1] neg_hi:[0,0,1]")
        a(f"v_pk_fma_f32 v[{d+2}:{d+3}], v[{z}:{z+1}], v[{w+2}:{w+3}], v[{t+2}:{t+3}]")
    pcnt = [0]
    def emit(z, row):
        p = 72 + 2 * (pcnt[0] % 4); pcnt[0] += 1
        a(f"v_cvt_pk_bf16_f32 v{p}, v{z}, v{z+2}")
        a(f"v_cvt_pk_bf16_f32 v{p+1}, v{z+1}, v{z+3}")
        a(f"ds_write_b64 v7, v[{p}:{p+1}] offset:{row*GROW}")
    W16, W1, E256, W2, W4, W8 = 28, 32, 36, 40, 44, 48
    Z0, Z1, G0, G1 = 52, 56, 80, 84
    FA, FB = 96, 128
    ACC = 160
    direct(W16, 16, False)
    a("v_mov_b32 v72, 0x3f80\nv_mov_b32 v73, 0x3f80")
    a("ds_write_b64 v7, v[72:73]"); pcnt[0] = 1
    emit(W16, 1)
    cmul(Z0, W16, W16); emit(Z0, 2)
    z, o = Z0, Z1
    for i in range(3, 16):
        cmul(o, z, W16); emit(o, i); z, o = o, z
        if i == (10 if ULATE else 6): uload(2)
    for s in range(8): a(f"ds_read_b128 v[{FA+4*s}:{FA+4*s+3}], v8 offset:{64*s}")
    direct(W1, 1, True)
    uload(3)
    direct(E256, 256, True)
    def tile_mfma(t):
        for s in range(8): a(f"ds_read_b128 v[{FB+4*s}:{FB+4*s+3}], v8 offset:{64*s}")
    def tile_mfma2(t, swap=False):
        a("s_waitcnt lgkmcnt(0)")
        for s in range(8):
            c = "0" if s == 0 else f"v[{ACC+4*t}:{ACC+4*t+3}]"
            x, y = (FA, FB) if swap else (FB, FA)
            a(f"v_mfma_f32_16x16x32_bf16 v[{ACC+4*t}:{ACC+4*t+3}], v[{x+4*s}:{x+4*s+3}], v[{y+4*s}:{y+4*s+3}], {c}")
    def wopf():
        a("s_sub_u32 s33, s43, 23")
        a("s_lshl_b32 s33, s33, 3")
        a("s_add_u32 s33, s33, s31")
        a("s_lshl_b32 s3, s33, 13")
        a("v_lshl_add_u32 v220, v1, 7, s3")
        a("s_lshl_b32 s3, s33, 10")
        a(f"s_add_u32 s3, s3, {4608*128}")
        a("v_and_b32 v221, 7, v1")
        a("v_lshl_add_u32 v221, v221, 7, s3")
        a("global_load_dword v220, v220, s[22:23]")
        a("global_load_dword v221, v221, s[22:23]")
    def utrans():
        a("v_bfe_u32 v200, v1, 2, 2")
        a("v_lshl_add_u32 v200, v6, 3, v200")
        a("v_bfe_u32 v201, v1, 1, 1")
        a("v_lshl_add_u32 v200, v201, 2, v200")
        a("v_lshlrev_b32 v200, 4, v200")
        a("v_and_b32 v201, 1, v1")
        a("v_lshl_add_u32 v200, v201, 3, v200")
        a("s_lshl_b32 s3, s31, 12")
        a(f"s_add_u32 s3, s3, {USTG}")
        a("v_add_u32 v200, s3, v200")
        a("v_and_b32 v201, 7, v1")
        a(f"v_mul_u32_u24 v201, {USTR}, v201")
        a("v_lshrrev_b32 v202, 3, v1")
        a("v_lshl_add_u32 v201, v202, 3, v201")
        a("s_lshl_b32 s3, s31, 9")
        a("v_add_u32 v201, s3, v201")
        stamp(7)
        a("s_waitcnt vmcnt(2)")
        a("s_barrier")
        stamp(8)
        for i in range(8): a(f"ds_read_b64_tr_b16 v[{204+2*i}:{205+2*i}], v200 offset:{512*i}")
        for i in range(8):
            a(f"s_waitcnt lgkmcnt(7)")
            a(f"ds_write_b64 v201, v[{204+2*i}:{205+2*i}] offset:{512+64*i}")
        a("s_waitcnt lgkmcnt(0)")
        a("s_barrier")
    emit(C, 0)
    cmul(Z0, C, W1); emit(Z0, 1)
    z, o = Z0, Z1
    for j in range(2, 16):
        cmul(o, z, W1); emit(o, j); z, o = o, z
        if ULATE and j in (5, 11): uload(0)
    tile_mfma(0)
    cmul(W2, W1, W1); cmul(G0, C, E256); cmul(W4, W2, W2); cmul(Z0, G0, W2); cmul(W8, W4, W4)
    tile_mfma2(0)
    emit(G0, 0); emit(Z0, 1)
    cmul(G1, G0, E256)
    z, o = Z0, Z1
    for j in range(2, 8):
        cmul(o, z, W2); emit(o, j); z, o = o, z
    emit(G1, 8)
    wopf()
    tile_mfma(1)
    cmul(G0, G1, E256)
    cmul(Z0, G1, W4)
    cmul(Z1, Z0, W4)
    tile_mfma2(1)
    if not ULATE: utrans()
    emit(Z0, 1); emit(Z1, 2); cmul(Z0, Z1, W4); emit(Z0, 3); cmul(Z1, Z0, W4); emit(Z1, 0)
    cmul(G1, G0, E256)
    cmul(Z0, G0, W4); emit(Z0, 5); cmul(Z1, Z0, W4); emit(Z1, 6); cmul(Z0, Z1, W4); emit(Z0, 7); cmul(Z1, Z0, W4); emit(Z1, 4)
    g, og = G1, G0
    for h in range(4):
        cmul(Z0, g, W8)
        if h < 3: cmul(og, g, E256)
        emit(Z0, 8 + 2*h + 1)
        cmul(Z1, Z0, W8); emit(Z1, 8 + 2*h)
        g, og = og, g
    if ULATE: utrans()
    tile_mfma(2)
    stamp(2)
    T0, T1, T2 = ACC, ACC+4, ACC+8
    a("v_lshl_add_u32 v25, v1, 4, s34")
    a("v_mov_b64 v[18:19], v[16:17]")
    a("ds_write_b128 v25, v[16:19]")
    a("ds_write_b128 v25, v[16:19] offset:1024")
    a("ds_write_b128 v25, v[16:19] offset:2048")
    a("v_cmp_eq_u32 vcc, 0, v1")
    a("v_cndmask_b32 v15, 0, v15, vcc")
    a(f"v_add_f32 v{T0}, v{T0}, v15")
    a("v_lshlrev_b32 v20, 5, v5")
    a("v_sub_u32 v20, s34, v20")
    a(f"v_cvt_pk_bf16_f32 v64, v{T1+3}, v{T1+3}")
    a(f"v_cvt_pk_bf16_f32 v66, v{T1+2}, v{T1+2}")
    a(f"v_cvt_pk_bf16_f32 v69, v{T1}, v{T1}")
    a(f"v_cvt_pk_bf16_f32 v70, v{T1+2}, v{T1+1}")
    a("v_lshlrev_b32 v23, 4, v6")
    a("v_sub_u32 v23, v20, v23")
    a("v_lshlrev_b32 v24, 3, v6")
    a("v_sub_u32 v26, s34, v24")
    a("v_sub_u32 v24, v20, v24")
    a(f"v_cvt_pk_bf16_f32 v72, v{T0+3}, v{T0+2}")
    a(f"v_cvt_pk_bf16_f32 v73, v{T0+1}, v{T0}")
    a("s_mov_b32 exec_lo, 0\ns_mov_b32 exec_hi, 1")
    a(f"ds_write_b16 v20, v69 offset:{14*4+2}")
    a(f"ds_write_b32 v20, v69 offset:{15*4}")
    a(f"ds_write_b16 v20, v69 offset:{16*4}")
    a("s_mov_b32 exec_lo, -1\ns_mov_b32 exec_hi, 0")
    a(f"ds_write_b16 v23, v64 offset:{140*4+2}")
    a("ds_write2_b32 v23, v66, v70 offset0:141 offset1:142")
    a(f"ds_write_b32 v23, v69 offset:{143*4}")
    a(f"ds_write_b16 v23, v69 offset:{144*4}")
    a("s_mov_b64 exec, -1")
    a(f"ds_write_b64 v24, v[72:73] offset:{270*4}")
    a("v_and_b32 v27, 3, v5")
    a("v_mul_u32_u24 v27, 96, v27")
    a("v_bfe_u32 v28, v5, 2, 1")
    a("v_lshlrev_b32 v28, 5, v28")
    a("v_sub_u32 v27, v27, v28")
    a("v_and_b32 v28, 1, v5")
    a("v_mul_u32_u24 v28, 160, v28")
    a("v_bfe_u32 v29, v5, 1, 2")
    a("v_lshlrev_b32 v29, 5, v29")
    a("v_sub_u32 v28, v28, v29")
    a(f"v_add_u32 v28, {(406-294)*4}, v28")
    a("v_cmp_gt_u32 vcc, 8, v5")
    a("v_cndmask_b32 v27, v28, v27, vcc")
    a("v_add_u32 v27, v27, v26")
    a("s_waitcnt lgkmcnt(11)")
    for s_ in range(8):
        c = "0" if s_ == 0 else f"v[{T2}:{T2+3}]"
        a(f"v_mfma_f32_16x16x32_bf16 v[{T2}:{T2+3}], v[{FA+4*s_}:{FA+4*s_+3}], v[{FB+4*s_}:{FB+4*s_+3}], {c}")
    stamp(3)
    a("v_and_b32 v28, 1, v5")
    a(f"v_mul_u32_u24 v28, {EOFF}, v28")
    a("v_lshrrev_b32 v29, 1, v5")
    a("v_lshlrev_b32 v29, 2, v29")
    a("v_add_u32 v28, v28, v29")
    a("v_sub_u32 v28, s34, v28")
    a(f"v_add_u32 v28, {EOFF}, v28")
    a("v_lshl_add_u32 v10, v6, 4, v28")
    a(f"v_add_u32 v11, {128*4}, v10")
    a("v_lshl_add_u32 v12, v6, 3, v28")
    a(f"v_add_u32 v12, {256*4}, v12")
    a("v_lshlrev_b32 v13, 5, v5")
    a("v_lshl_add_u32 v14, v6, 3, v13")
    a("v_lshl_add_u32 v13, v6, 4, v13")
    a("v_add_u32 v13, s35, v13")
    a(f"s_mul_i32 s3, s31, {YSTR}")
    a(f"s_add_u32 s3, s3, {USTG}")
    a("v_add_u32 v14, s3, v14")
    a(f"v_cvt_pk_bf16_f32 v72, v{T2+3}, v{T2+2}")
    a(f"v_cvt_pk_bf16_f32 v73, v{T2+1}, v{T2}")
    a(f"ds_write_b64 v27, v[72:73] offset:{294*4}")
    for j in range(2):
        a(f"ds_read_b128 v[{96+8*j}:{99+8*j}], v25 offset:{1024*j}")
        a(f"ds_read_b32 v{100+8*j}, v25 offset:{1024*j+16}")
    a("v_readlane_b32 s3, v72, 52")
    a("s_and_b32 s3, s3, 0xffff")
    a("s_mul_i32 s3, s3, 0x10001")
    for d in range(4): a(f"v_pk_mul_lo_u16 v{BAND+24+d}, v{BAND+24+d}, s3")
    a("v_lshrrev_b32 v3, 2, v5")
    a(f"v_mul_u32_u24 v3, {YSTR}, v3")
    a("v_and_b32 v4, 3, v5")
    a("v_lshl_add_u32 v3, v4, 3, v3")
    a("v_lshl_add_u32 v3, v6, 5, v3")
    a(f"v_add_u32 v3, {USTG}, v3")
    a("v_mul_u32_u24 v4, 2304, v1")
    a("s_lshl_b32 s33, s30, 4")
    a("v_add_u32 v4, s33, v4")
    for j in range(2):
        a(f"s_waitcnt lgkmcnt({2-2*j})")
        for k in range(4):
            a(f"v_alignbit_b32 v{128+4*j+k}, v{97+8*j+k}, v{96+8*j+k}, 16")
        a(f"ds_write_b128 v25, v[{128+4*j}:{131+4*j}] offset:{EOFF+1024*j}")
    stamp(4)
    Y = 16
    TF = 48
    BF = 116
    UR = 156
    WT = 188
    YP = 212
    T65 = BAND + 24
    q_ = []
    def lds(txt, tag=None):
        a(txt); q_.append(tag)
    def need(tags):
        idx = max(i for i, t in enumerate(q_) if t in tags)
        n = len(q_) - 1 - idx
        if n < need.done:
            a(f"s_waitcnt lgkmcnt({min(n, 15)})")
        need.best = None
    done_upto = [-1]
    def wait_for(tags):
        idx = max(i for i, t in enumerate(q_) if t in tags)
        if idx > done_upto[0]:
            n = len(q_) - 1 - idx
            a(f"s_waitcnt lgkmcnt({min(n, 15)})")
            done_upto[0] = idx if n <= 15 else len(q_) - 1 - 15
    def tload(k):
        o = 271 - 8 * (2*k + 1)
        ad = 10
        if o >= 128: ad, o = 11, o - 128
        lds(f"ds_read2_b32 v[{TF+4*k}:{TF+4*k+1}], v{ad} offset0:{o} offset1:{o+1}", ("T", k))
        lds(f"ds_read2_b32 v[{TF+4*k+2}:{TF+4*k+3}], v{ad} offset0:{o+2} offset1:{o+3}", ("T", k))
    bfl = [(0, d) for d in (2, 3, 4)] + [(1, d) for d in (2, 3, 4)] + [(2, d) for d in (4, 5, 6, 7)]
    def bload(n):
        pr, dl = bfl[n]
        for hf in range(2):
            if pr < 2: o = 280 + 24 * (2*pr + hf) + 31 - 8 * dl
            else: o = 376 + 40 * hf + 63 - 8 * dl
            o -= 256
            lds(f"ds_read2_b32 v[{BF+4*n+2*hf}:{BF+4*n+2*hf+1}], v12 offset0:{o} offset1:{o+1}", ("B", n))
    useq = []
    for q in range(8):
        useq += ([(q, 'x')] if q < 6 else []) + [(q, r) for r in range(8)]
    upos = {u: i for i, u in enumerate(useq)}
    def ureg(u): return UR + 4 * (upos[u] % 8)
    unext = [0]
    def uld():
        if unext[0] >= len(useq): return
        q, r = u = useq[unext[0]]; unext[0] += 1
        o = 512 * q + (480 - 16 if r == 'x' else 480 - 64 * r)
        lds(f"ds_read_b128 v[{ureg(u)}:{ureg(u)+3}], v13 offset:{o}", ("U", u))
    first = set()
    def mf(d, x, y, c):
        if "noc" in os.environ.get("DBGA", ""): a("s_nop 7"); return
        a(f"v_mfma_f32_16x16x32_bf16 v[{d}:{d+3}], v[{x}:{x+3}], v[{y}:{y+3}], {c}")
    def ymf(at, x, y):
        c = f"v[{Y+4*at}:{Y+4*at+3}]" if at in first else "0"
        first.add(at)
        mf(Y + 4*at, x, y, c)
    def ywrite(at):
        p = YP + 2 * (at % 2)
        a(f"v_cvt_pk_bf16_f32 v{p}, v{Y+4*at}, v{Y+4*at+1}")
        a(f"v_cvt_pk_bf16_f32 v{p+1}, v{Y+4*at+2}, v{Y+4*at+3}")
        lds(f"ds_write_b64 v14, v[{p}:{p+1}] offset:{512*at}", ("Y", at))
    uld(); uld()
    pend = []
    tload(0); tload(8); tload(16)
    for k in range(1, 8): pend.append(lambda k=k: (tload(k), tload(k + 8)))
    for n in range(10): pend.append(lambda n=n: bload(n))
    for _ in range(3): uld()
    for _ in range(2): pend.pop(0)()
    for q in range(8):
        npair = 3 if q < 4 else (2 if q < 6 else 0)
        for pr in range(npair):
            for hf in range(2):
                st = STREAMS[2*pr + hf]
                u = (q, 'x') if st[0] == -24 else (q, 0)
                wait_for({("U", u)})
                mf(WT + 8*pr + 4*hf, ureg(u), BAND + 4*(2*pr + hf), "0")
                if pend: pend.pop(0)()
        if q < 6: uld()
        scat = [(n, pr, dl) for n, (pr, dl) in enumerate(bfl) if pr < npair and q + dl < 8]
        scat.sort(key=lambda t: t[1])
        for r in range(8):
            u = (q, r)
            wait_for({("U", u), ("T", r)})
            ymf(q, TF + 4*r, ureg(u))
            if pend: pend.pop(0)()
            if q < 7:
                wait_for({("T", r + 8)})
                ymf(q + 1, TF + 4*(r + 8), ureg(u))
            if r == 0:
                if q < 6: wait_for({("T", 16)}); ymf(q + 2, TF + 64, ureg(u))
                if q < 4: ymf(q + 4, T65, ureg(u))
            uld()
            if pend: pend.pop(0)()
            if r == 1 and q > 0: ywrite(q - 1)
            if 2 <= r <= 4 and r - 2 < npair:
                w = WT + 8 * (r - 2)
                for k in range(4): a(f"v_cvt_pk_bf16_f32 v{w+k}, v{w+2*k}, v{w+2*k+1}")
            if r >= 3:
                take = [t for t in scat if t[1] <= r - 3][:(3 if r < 7 else 99)]
                for t in take:
                    scat.remove(t)
                    n, pr, dl = t
                    wait_for({("B", n)})
                    ymf(q + dl, WT + 8*pr, BF + 4*n)
            if r == 2 and q in CUTS:
                lab = a.label("L_a_noy")
                a("s_cmp_lt_u32 s31, 4")
                a(f"s_cbranch_scc1 {lab}")
                idx = max(i for i, t in enumerate(q_) if t == ("Y", q - 1))
                a(f"s_waitcnt lgkmcnt({len(q_) - 1 - idx})")
                a("s_barrier")
                a(f"{lab}:")
        assert not scat
    stamp(5)
    ywrite(7)
    def ystore(n, row0_sreg):
        a(f"s_lshl_b32 s3, s{row0_sreg}, 1")
        a("v_add_u32 v7, s3, v3")
        a(f"s_mul_i32 s3, s{row0_sreg}, 2304")
        a("v_add_u32 v8, s3, v4")
        for j in range(n):
            a(f"ds_read_b64_tr_b16 v[{60+4*j}:{61+4*j}], v7 offset:{128*j}")
            a(f"ds_read_b64_tr_b16 v[{62+4*j}:{63+4*j}], v7 offset:{128*j+4*YSTR}")
        for j in range(n):
            a(f"s_waitcnt lgkmcnt({2*(n-1-j)})")
            if "nos" not in os.environ.get("DBGA", ""): a(f"global_store_dwordx4 v8, v[{60+4*j}:{63+4*j}], s[24:25] {STA}")
            if j < n - 1: a(f"v_add_u32 v8, {64*2304}, v8")
    a("s_waitcnt lgkmcnt(0)")
    a("s_cmp_ge_u32 s31, 4")
    a("s_cbranch_scc1 L_a_y2")
    prev = 0
    for cut in CUTS:
        n = cut - prev
        a("s_barrier")
        a(f"s_mul_i32 s33, s31, {64*n}")
        a(f"s_add_u32 s33, s33, {256*prev}")
        ystore(n, 33)
        a("s_nop 1")
        prev = cut
    a("L_a_y2:")
    a("s_barrier")
    n = (8 - prev) // 2
    a(f"s_mul_i32 s33, s31, {64*n}")
    a(f"s_add_u32 s33, s33, {256*prev}")
    ystore(n, 33)
    stamp(6)
    wb = os.environ.get("WBL2", "0")
    if wb == "last":
        a("s_waitcnt vmcnt(0)")
        a("s_barrier")
        a("s_cmp_lg_u32 s31, 0")
        a("s_cbranch_scc1 L_fin")
        a("s_and_b32 s33, s2, 7")
        a("s_lshl_b32 s3, s33, 2")
        a("v_mov_b32 v2, s3")
        a("v_mov_b32 v3, 1")
        a("s_mov_b64 exec, 1")
        a("global_atomic_add v4, v2, v3, s[26:27] offset:128 sc0")
        a("s_waitcnt vmcnt(0)")
        a("v_readfirstlane_b32 s3, v4")
        a("s_mov_b64 exec, -1")
        a("s_cmp_eq_u32 s33, 0")
        a("s_cselect_b32 s33, 15, 7")
        a("s_cmp_lg_u32 s3, s33")
        a("s_cbranch_scc1 L_fin")
        a("buffer_wbl2 sc1")
    elif wb != "0":
        a(f"s_cmp_lg_u32 s43, {wb}")
        a("s_cbranch_scc1 L_fin")
        a("s_waitcnt vmcnt(0)")
        a("s_barrier")
        a("s_cmp_lg_u32 s31, 0")
        a("s_cbranch_scc1 L_fin")
        a("buffer_wbl2 sc1")
```

```python
import math, os
STA = os.environ.get("STA", "")
LOG2E = 1.4426950408889634
import struct
def f2u(x): return struct.unpack("<I", struct.pack("<f", x))[0]
def hexf(x): return "0x%08x" % f2u(x)
L2E_HI = struct.unpack("<f", struct.pack("<f", LOG2E))[0]
L2E_LO = LOG2E - L2E_HI

USTR = 4624
KBASE = 8 * USTR
KSTR = 8704
EOFF = 2112
YSTR = 4160
GROW = 544
USTG = KBASE + 8 * KSTR
BSH = USTG + 8 * YSTR
A_LDS = BSH + 8192

STREAMS = [(-24, 16, 2), (-16, 4, 1), (-16, 8, 2), (-16, 12, 1), (-24, 16, 4), (-16, 8, 3)]
BAND = 224
CUTS = [3, 6]
ULATE = int(os.environ.get('ULATE', '1'))
def role_a(a, stamp=lambda i: None, pf=None):
    a.c("---------------- role A ----------------")
    if pf: pf[0](a, 252, 253)
    a("s_lshl_b32 s32, s30, 3")
    a("s_add_u32 s32, s32, s31")
    a("s_lshl_b32 s33, s32, 8")
    a("v_lshl_add_u32 v2, v1, 2, s33")
    a("s_lshl_b32 s33, s32, 1")
    a("v_mov_b32 v3, s33")
    a("s_waitcnt lgkmcnt(0)")
    a("global_load_dword v10, v2, s[6:7]")
    a("global_load_ushort v14, v3, s[14:15]")
    a("global_load_dword v11, v2, s[8:9]")
    a("global_load_dword v12, v2, s[10:11]")
    a("global_load_dword v13, v2, s[12:13]")
    a("global_load_ushort v15, v3, s[16:17]")
    a("v_mul_u32_u24 v4, 1152, v0")
    a("s_lshl_b32 s33, s30, 4")
    a("v_add_u32 v4, s33, v4")
    a("s_mov_b64 s[44:45], s[4:5]\ns_mov_b32 s46, 2359296\ns_mov_b32 s47, 0x20000")
    a("s_lshl_b32 s48, s31, 10")
    a(f"s_add_u32 s48, s48, {USTG}")
    a("s_mov_b32 s49, s30")
    def uload(j):
        if "nou" in os.environ.get("DBGA", ""): return
        a("s_and_b32 s49, s49, 3")
        a("s_lshl_b32 s3, s49, 13")
        a("s_add_u32 m0, s48, s3")
        a(f"s_mul_i32 s3, s49, {512*1152}")
        a("s_add_u32 s49, s49, 1")
        a("buffer_load_dwordx4 v4, s[44:47], s3 offen lds")
    if not ULATE: uload(0)
    NPF = int(os.environ.get('NPF', '2')) if pf else 0
    if pf:
        pf[1](a)
        for r in range(NPF): pf[2](a, 252, 253 + r, r)
    a("v_and_b32 v5, 15, v1")
    a("v_lshrrev_b32 v6, 4, v1")
    a(f"s_mul_i32 s34, s31, {KSTR}")
    a(f"s_add_u32 s34, s34, {KBASE}")
    a(f"s_mul_i32 s35, s31, {USTR}")
    a("v_lshl_add_u32 v7, v1, 3, s34")
    a(f"v_mul_u32_u24 v8, {GROW}, v5")
    a("v_lshl_add_u32 v8, v6, 4, v8")
    a("v_add_u32 v8, s34, v8")
    a("v_mov_b32 v16, 0\nv_mov_b32 v17, 0")
    a("v_lshl_add_u32 v9, v1, 3, s35")
    a("ds_write_b64 v9, v[16:17]")
    a(f"s_mov_b32 s36, {hexf(L2E_HI)}")
    a(f"s_mov_b32 s37, {hexf(L2E_LO)}")
    a(f"s_mov_b32 s38, {hexf(math.log(2.0))}")
    a("s_mov_b32 s39, 0xffff0000")
    a("v_lshlrev_b32 v20, 3, v6")
    a("v_sub_u32 v20, v20, v5")
    a("v_add_u32 v21, 1, v20")
    a("s_mov_b32 s40, 0x05040100")
    a("v_perm_b32 v20, v21, v20, s40")
    a("s_mov_b32 s41, 0x3f803f80")
    a("s_mov_b32 s50, 0x00010001")
    rng = [(-st - sh - hw, -st - sh + hw) for (st, sh, hw) in STREAMS] + [(12, 13), (12, 13)]
    tlo = sum((lo & 15) << (4*k) for k, (lo, hi) in enumerate(rng))
    tn = sum((hi - lo + 1) << (4*k) for k, (lo, hi) in enumerate(rng))
    assert all(0 <= lo < 16 for lo, hi in rng)
    a("s_lshl_b32 s3, s31, 2")
    a(f"s_lshr_b32 s52, {tlo:#x}, s3")
    a("s_and_b32 s52, s52, 15")
    a("s_mul_i32 s52, s52, s50")
    a(f"s_lshr_b32 s51, {tn:#x}, s3")
    a("s_and_b32 s51, s51, 15")
    a("s_mul_i32 s51, s51, s50")
    a("s_cmp_lt_u32 s31, 6")
    a("s_cselect_b32 s41, s41, s50")
    a("v_pk_sub_u16 v20, v20, s52")
    for d in range(4):
        r = BAND + d
        if d: a(f"s_mov_b32 s52, {hex(2 * d * 0x10001)}\nv_pk_add_u16 v{r}, v20, s52")
        a(f"v_pk_sub_u16 v{r}, s51, v{r if d else 20} clamp")
        a(f"v_pk_min_u16 v{r}, v{r}, s50")
        a(f"v_pk_mul_lo_u16 v{r}, v{r}, s41")
    a(f"v_lshlrev_b32 v222, 4, v1")
    a(f"v_add_u32 v222, {BSH}, v222")
    a("s_lshl_b32 s3, s31, 10")
    a("v_add_u32 v21, s3, v222")
    a(f"ds_write_b128 v21, v[{BAND}:{BAND+3}]")
    stamp(1)
    def exp_bf16(dst, x, t0, t1):
        a(f"v_mul_f32 v{t0}, s36, v{x}")
        a(f"v_fma_f32 v{t1}, v{x}, s36, -v{t0}")
        a(f"v_fmac_f32 v{t1}, s37, v{x}")
        a(f"v_exp_f32 v{t0}, v{t0}")
        a(f"v_mul_f32 v{t1}, s38, v{t1}")
        a(f"v_fma_f32 v{t0}, v{t0}, v{t1}, v{t0}")
        a(f"v_cvt_pk_bf16_f32 v{t0}, v{t0}, v{t0}")
        a(f"v_and_b32 v{dst}, s39, v{t0}")
    a(f"s_waitcnt vmcnt({(4 if ULATE else 5) + NPF})")
    a("v_lshlrev_b32 v20, 16, v10")
    a("v_and_b32 v21, s39, v10")
    a("v_lshlrev_b32 v14, 16, v14")
    exp_bf16(18, 14, 22, 23)
    exp_bf16(20, 20, 22, 23)
    exp_bf16(21, 21, 24, 25)
    a("v_mul_f32 v20, v20, v18\nv_mul_f32 v21, v21, v18")
    a("v_mul_f32 v20, s36, v20\nv_mul_f32 v21, s36, v21")
    a(f"s_waitcnt vmcnt({(0 if ULATE else 1) + NPF})")
    if not ULATE: uload(1)
    a("v_lshlrev_b32 v22, 16, v11\nv_and_b32 v23, s39, v11")
    a("v_mul_f32 v22, v22, v18\nv_mul_f32 v23, v23, v18")
    a("v_mul_f32 v22, 0.15915494, v22\nv_mul_f32 v23, 0.15915494, v23")
    a("v_add_f32 v19, v18, v18")
    C = 24
    a("v_lshlrev_b32 v24, 16, v12\nv_and_b32 v25, s39, v12")
    a("v_lshlrev_b32 v26, 16, v13\nv_and_b32 v27, s39, v13")
    a("v_mul_f32 v24, v24, v19\nv_mul_f32 v25, v25, v19")
    a("v_mul_f32 v26, v26, -v19\nv_mul_f32 v27, v27, -v19" .replace("v_mul_f32", "v_mul_f32_e64"))
    a("v_lshlrev_b32 v15, 16, v15")
    def direct(dst, c, conj):
        t = 60
        cs = hexf(float(c))
        for h in range(2):
            a(f"v_mul_f32 v{t+h}, {hexf(-float(c))}, v{20+h}")
            a(f"v_mul_f32 v{t+2+h}, {hexf(-float(c) if conj else float(c))}, v{22+h}")
        for h in range(2):
            a(f"v_exp_f32 v{t+h}, v{t+h}")
            a(f"v_fract_f32 v{t+2+h}, v{t+2+h}")
        for h in range(2):
            a(f"v_cos_f32 v{dst+h}, v{t+2+h}")
            a(f"v_sin_f32 v{dst+2+h}, v{t+2+h}")
        a(f"v_pk_mul_f32 v[{dst}:{dst+1}], v[{dst}:{dst+1}], v[{t}:{t+1}]")
        a(f"v_pk_mul_f32 v[{dst+2}:{dst+3}], v[{dst+2}:{dst+3}], v[{t}:{t+1}]")
    tcnt = [0]
    def cmul(d, z, w):
        t = 64 + 4 * (tcnt[0] % 2); tcnt[0] += 1
        assert d != z and d != w
        if "nok" in os.environ.get("DBGA", ""): a("s_nop 15"); return
        a(f"v_pk_mul_f32 v[{t}:{t+1}], v[{z+2}:{z+3}], v[{w+2}:{w+3}]")
        a(f"v_pk_mul_f32 v[{t+2}:{t+3}], v[{z+2}:{z+3}], v[{w}:{w+1}]")
        a(f"v_pk_fma_f32 v[{d}:{d+1}], v[{z}:{z+1}], v[{w}:{w+1}], v[{t}:{t+1}] neg_lo:[0,0,1] neg_hi:[0,0,1]")
        a(f"v_pk_fma_f32 v[{d+2}:{d+3}], v[{z}:{z+1}], v[{w+2}:{w+3}], v[{t+2}:{t+3}]")
    pcnt = [0]
    def emit(z, row):
        p = 72 + 2 * (pcnt[0] % 4); pcnt[0] += 1
        a(f"v_cvt_pk_bf16_f32 v{p}, v{z}, v{z+2}")
        a(f"v_cvt_pk_bf16_f32 v{p+1}, v{z+1}, v{z+3}")
        a(f"ds_write_b64 v7, v[{p}:{p+1}] offset:{row*GROW}")
    W16, W1, E256, W2, W4, W8 = 28, 32, 36, 40, 44, 48
    Z0, Z1, G0, G1 = 52, 56, 80, 84
    FA, FB = 96, 128
    ACC = 160
    direct(W16, 16, False)
    a("v_mov_b32 v72, 0x3f80\nv_mov_b32 v73, 0x3f80")
    a("ds_write_b64 v7, v[72:73]"); pcnt[0] = 1
    emit(W16, 1)
    cmul(Z0, W16, W16); emit(Z0, 2)
    z, o = Z0, Z1
    for i in range(3, 16):
        cmul(o, z, W16); emit(o, i); z, o = o, z
        if i == (10 if ULATE else 6): uload(2)
    for s in range(8): a(f"ds_read_b128 v[{FA+4*s}:{FA+4*s+3}], v8 offset:{64*s}")
    direct(W1, 1, True)
    uload(3)
    direct(E256, 256, True)
    def tile_mfma(t):
        for s in range(8): a(f"ds_read_b128 v[{FB+4*s}:{FB+4*s+3}], v8 offset:{64*s}")
    def tile_mfma2(t, swap=False):
        a("s_waitcnt lgkmcnt(0)")
        for s in range(8):
            c = "0" if s == 0 else f"v[{ACC+4*t}:{ACC+4*t+3}]"
            x, y = (FA, FB) if swap else (FB, FA)
            a(f"v_mfma_f32_16x16x32_bf16 v[{ACC+4*t}:{ACC+4*t+3}], v[{x+4*s}:{x+4*s+3}], v[{y+4*s}:{y+4*s+3}], {c}")
    def wopf():
        a("s_sub_u32 s33, s43, 23")
        a("s_lshl_b32 s33, s33, 3")
        a("s_add_u32 s33, s33, s31")
        a("s_lshl_b32 s3, s33, 13")
        a("v_lshl_add_u32 v220, v1, 7, s3")
        a("s_lshl_b32 s3, s33, 10")
        a(f"s_add_u32 s3, s3, {4608*128}")
        a("v_and_b32 v221, 7, v1")
        a("v_lshl_add_u32 v221, v221, 7, s3")
        a("global_load_dword v220, v220, s[22:23]")
        a("global_load_dword v221, v221, s[22:23]")
    def utrans():
        a("v_bfe_u32 v200, v1, 2, 2")
        a("v_lshl_add_u32 v200, v6, 3, v200")
        a("v_bfe_u32 v201, v1, 1, 1")
        a("v_lshl_add_u32 v200, v201, 2, v200")
        a("v_lshlrev_b32 v200, 4, v200")
        a("v_and_b32 v201, 1, v1")
        a("v_lshl_add_u32 v200, v201, 3, v200")
        a("s_lshl_b32 s3, s31, 12")
        a(f"s_add_u32 s3, s3, {USTG}")
        a("v_add_u32 v200, s3, v200")
        a("v_and_b32 v201, 7, v1")
        a(f"v_mul_u32_u24 v201, {USTR}, v201")
        a("v_lshrrev_b32 v202, 3, v1")
        a("v_lshl_add_u32 v201, v202, 3, v201")
        a("s_lshl_b32 s3, s31, 9")
        a("v_add_u32 v201, s3, v201")
        stamp(7)
        a("s_waitcnt vmcnt(2) lgkmcnt(0)")
        a("s_barrier")
        stamp(8)
        for i in range(8): a(f"ds_read_b64_tr_b16 v[{204+2*i}:{205+2*i}], v200 offset:{512*i}")
        for i in range(8):
            a(f"s_waitcnt lgkmcnt(7)")
            a(f"ds_write_b64 v201, v[{204+2*i}:{205+2*i}] offset:{512+64*i}")
        for k in range(7): a(f"ds_read_b128 v[{BAND+4*k}:{BAND+4*k+3}], v222 offset:{1024*k}")
    emit(C, 0)
    cmul(Z0, C, W1); emit(Z0, 1)
    z, o = Z0, Z1
    for j in range(2, 16):
        cmul(o, z, W1); emit(o, j); z, o = o, z
        if ULATE and j in (5, 11): uload(0)
    tile_mfma(0)
    cmul(W2, W1, W1); cmul(G0, C, E256); cmul(W4, W2, W2); cmul(Z0, G0, W2); cmul(W8, W4, W4)
    tile_mfma2(0)
    emit(G0, 0); emit(Z0, 1)
    cmul(G1, G0, E256)
    z, o = Z0, Z1
    for j in range(2, 8):
        cmul(o, z, W2); emit(o, j); z, o = o, z
    emit(G1, 8)
    wopf()
    tile_mfma(1)
    cmul(G0, G1, E256)
    cmul(Z0, G1, W4)
    cmul(Z1, Z0, W4)
    tile_mfma2(1)
    if not ULATE: utrans()
    emit(Z0, 1); emit(Z1, 2); cmul(Z0, Z1, W4); emit(Z0, 3); cmul(Z1, Z0, W4); emit(Z1, 0)
    cmul(G1, G0, E256)
    cmul(Z0, G0, W4); emit(Z0, 5); cmul(Z1, Z0, W4); emit(Z1, 6); cmul(Z0, Z1, W4); emit(Z0, 7); cmul(Z1, Z0, W4); emit(Z1, 4)
    g, og = G1, G0
    for h in range(4):
        cmul(Z0, g, W8)
        if h < 3: cmul(og, g, E256)
        emit(Z0, 8 + 2*h + 1)
        cmul(Z1, Z0, W8); emit(Z1, 8 + 2*h)
        g, og = og, g
    if ULATE: utrans()
    tile_mfma(2)
    stamp(2)
    T0, T1, T2 = ACC, ACC+4, ACC+8
    a("v_lshl_add_u32 v25, v1, 4, s34")
    a("v_mov_b64 v[18:19], v[16:17]")
    a("ds_write_b128 v25, v[16:19]")
    a("ds_write_b128 v25, v[16:19] offset:1024")
    a("ds_write_b128 v25, v[16:19] offset:2048")
    a("v_cmp_eq_u32 vcc, 0, v1")
    a("v_cndmask_b32 v15, 0, v15, vcc")
    a(f"v_add_f32 v{T0}, v{T0}, v15")
    a("v_lshlrev_b32 v20, 5, v5")
    a("v_sub_u32 v20, s34, v20")
    a(f"v_cvt_pk_bf16_f32 v64, v{T1+3}, v{T1+3}")
    a(f"v_cvt_pk_bf16_f32 v66, v{T1+2}, v{T1+2}")
    a(f"v_cvt_pk_bf16_f32 v69, v{T1}, v{T1}")
    a(f"v_cvt_pk_bf16_f32 v70, v{T1+2}, v{T1+1}")
    a("v_lshlrev_b32 v23, 4, v6")
    a("v_sub_u32 v23, v20, v23")
    a("v_lshlrev_b32 v24, 3, v6")
    a("v_sub_u32 v26, s34, v24")
    a("v_sub_u32 v24, v20, v24")
    a(f"v_cvt_pk_bf16_f32 v72, v{T0+3}, v{T0+2}")
    a(f"v_cvt_pk_bf16_f32 v73, v{T0+1}, v{T0}")
    a("s_mov_b32 exec_lo, 0\ns_mov_b32 exec_hi, 1")
    a(f"ds_write_b16 v20, v69 offset:{14*4+2}")
    a(f"ds_write_b32 v20, v69 offset:{15*4}")
    a(f"ds_write_b16 v20, v69 offset:{16*4}")
    a("s_mov_b32 exec_lo, -1\ns_mov_b32 exec_hi, 0")
    a(f"ds_write_b16 v23, v64 offset:{140*4+2}")
    a("ds_write2_b32 v23, v66, v70 offset0:141 offset1:142")
    a(f"ds_write_b32 v23, v69 offset:{143*4}")
    a(f"ds_write_b16 v23, v69 offset:{144*4}")
    a("s_mov_b64 exec, -1")
    a(f"ds_write_b64 v24, v[72:73] offset:{270*4}")
    a("v_and_b32 v27, 3, v5")
    a("v_mul_u32_u24 v27, 96, v27")
    a("v_bfe_u32 v28, v5, 2, 1")
    a("v_lshlrev_b32 v28, 5, v28")
    a("v_sub_u32 v27, v27, v28")
    a("v_and_b32 v28, 1, v5")
    a("v_mul_u32_u24 v28, 160, v28")
    a("v_bfe_u32 v29, v5, 1, 2")
    a("v_lshlrev_b32 v29, 5, v29")
    a("v_sub_u32 v28, v28, v29")
    a(f"v_add_u32 v28, {(406-294)*4}, v28")
    a("v_cmp_gt_u32 vcc, 8, v5")
    a("v_cndmask_b32 v27, v28, v27, vcc")
    a("v_add_u32 v27, v27, v26")
    a("s_waitcnt lgkmcnt(11)")
    for s_ in range(8):
        c = "0" if s_ == 0 else f"v[{T2}:{T2+3}]"
        a(f"v_mfma_f32_16x16x32_bf16 v[{T2}:{T2+3}], v[{FA+4*s_}:{FA+4*s_+3}], v[{FB+4*s_}:{FB+4*s_+3}], {c}")
    a("s_barrier")
    stamp(3)
    a("v_and_b32 v28, 1, v5")
    a(f"v_mul_u32_u24 v28, {EOFF}, v28")
    a("v_lshrrev_b32 v29, 1, v5")
    a("v_lshlrev_b32 v29, 2, v29")
    a("v_add_u32 v28, v28, v29")
    a("v_sub_u32 v28, s34, v28")
    a(f"v_add_u32 v28, {EOFF}, v28")
    a("v_lshl_add_u32 v10, v6, 4, v28")
    a(f"v_add_u32 v11, {128*4}, v10")
    a("v_lshl_add_u32 v12, v6, 3, v28")
    a(f"v_add_u32 v12, {256*4}, v12")
    a("v_lshlrev_b32 v13, 5, v5")
    a("v_lshl_add_u32 v14, v6, 3, v13")
    a("v_lshl_add_u32 v13, v6, 4, v13")
    a("v_add_u32 v13, s35, v13")
    a(f"s_mul_i32 s3, s31, {YSTR}")
    a(f"s_add_u32 s3, s3, {USTG}")
    a("v_add_u32 v14, s3, v14")
    a(f"v_cvt_pk_bf16_f32 v72, v{T2+3}, v{T2+2}")
    a(f"v_cvt_pk_bf16_f32 v73, v{T2+1}, v{T2}")
    a(f"ds_write_b64 v27, v[72:73] offset:{294*4}")
    for j in range(2):
        a(f"ds_read_b128 v[{96+8*j}:{99+8*j}], v25 offset:{1024*j}")
        a(f"ds_read_b32 v{100+8*j}, v25 offset:{1024*j+16}")
    a("v_readlane_b32 s3, v72, 52")
    a("s_and_b32 s3, s3, 0xffff")
    a("s_mul_i32 s3, s3, 0x10001")
    for d in range(4): a(f"v_pk_mul_lo_u16 v{BAND+24+d}, v{BAND+24+d}, s3")
    a("v_lshrrev_b32 v3, 2, v5")
    a(f"v_mul_u32_u24 v3, {YSTR}, v3")
    a("v_and_b32 v4, 3, v5")
    a("v_lshl_add_u32 v3, v4, 3, v3")
    a("v_lshl_add_u32 v3, v6, 5, v3")
    a(f"v_add_u32 v3, {USTG}, v3")
    a("v_mul_u32_u24 v4, 2304, v1")
    a("s_lshl_b32 s33, s30, 4")
    a("v_add_u32 v4, s33, v4")
    for j in range(2):
        a(f"s_waitcnt lgkmcnt({2-2*j})")
        for k in range(4):
            a(f"v_alignbit_b32 v{128+4*j+k}, v{97+8*j+k}, v{96+8*j+k}, 16")
        a(f"ds_write_b128 v25, v[{128+4*j}:{131+4*j}] offset:{EOFF+1024*j}")
    stamp(4)
    Y = 16
    TF = 48
    BF = 116
    UR = 156
    WT = 188
    YP = 212
    T65 = BAND + 24
    q_ = []
    def lds(txt, tag=None):
        a(txt); q_.append(tag)
    def need(tags):
        idx = max(i for i, t in enumerate(q_) if t in tags)
        n = len(q_) - 1 - idx
        if n < need.done:
            a(f"s_waitcnt lgkmcnt({min(n, 15)})")
        need.best = None
    done_upto = [-1]
    def wait_for(tags):
        idx = max(i for i, t in enumerate(q_) if t in tags)
        if idx > done_upto[0]:
            n = len(q_) - 1 - idx
            a(f"s_waitcnt lgkmcnt({min(n, 15)})")
            done_upto[0] = idx if n <= 15 else len(q_) - 1 - 15
    def tload(k):
        o = 271 - 8 * (2*k + 1)
        ad = 10
        if o >= 128: ad, o = 11, o - 128
        lds(f"ds_read2_b32 v[{TF+4*k}:{TF+4*k+1}], v{ad} offset0:{o} offset1:{o+1}", ("T", k))
        lds(f"ds_read2_b32 v[{TF+4*k+2}:{TF+4*k+3}], v{ad} offset0:{o+2} offset1:{o+3}", ("T", k))
    bfl = [(0, d) for d in (2, 3, 4)] + [(1, d) for d in (2, 3, 4)] + [(2, d) for d in (4, 5, 6, 7)]
    def bload(n):
        pr, dl = bfl[n]
        for hf in range(2):
            if pr < 2: o = 280 + 24 * (2*pr + hf) + 31 - 8 * dl
            else: o = 376 + 40 * hf + 63 - 8 * dl
            o -= 256
            lds(f"ds_read2_b32 v[{BF+4*n+2*hf}:{BF+4*n+2*hf+1}], v12 offset0:{o} offset1:{o+1}", ("B", n))
    useq = []
    for q in range(8):
        useq += ([(q, 'x')] if q < 6 else []) + [(q, r) for r in range(8)]
    upos = {u: i for i, u in enumerate(useq)}
    def ureg(u): return UR + 4 * (upos[u] % 8)
    unext = [0]
    def uld():
        if unext[0] >= len(useq): return
        q, r = u = useq[unext[0]]; unext[0] += 1
        o = 512 * q + (480 - 16 if r == 'x' else 480 - 64 * r)
        lds(f"ds_read_b128 v[{ureg(u)}:{ureg(u)+3}], v13 offset:{o}", ("U", u))
    first = set()
    def mf(d, x, y, c):
        if "noc" in os.environ.get("DBGA", ""): a("s_nop 7"); return
        a(f"v_mfma_f32_16x16x32_bf16 v[{d}:{d+3}], v[{x}:{x+3}], v[{y}:{y+3}], {c}")
    def ymf(at, x, y):
        c = f"v[{Y+4*at}:{Y+4*at+3}]" if at in first else "0"
        first.add(at)
        mf(Y + 4*at, x, y, c)
    def ywrite(at):
        p = YP + 2 * (at % 2)
        a(f"v_cvt_pk_bf16_f32 v{p}, v{Y+4*at}, v{Y+4*at+1}")
        a(f"v_cvt_pk_bf16_f32 v{p+1}, v{Y+4*at+2}, v{Y+4*at+3}")
        lds(f"ds_write_b64 v14, v[{p}:{p+1}] offset:{512*at}", ("Y", at))
    uld(); uld()
    pend = []
    tload(0); tload(8); tload(16)
    for k in range(1, 8): pend.append(lambda k=k: (tload(k), tload(k + 8)))
    for n in range(10): pend.append(lambda n=n: bload(n))
    for _ in range(3): uld()
    for _ in range(2): pend.pop(0)()
    for q in range(8):
        npair = 3 if q < 4 else (2 if q < 6 else 0)
        for pr in range(npair):
            for hf in range(2):
                st = STREAMS[2*pr + hf]
                u = (q, 'x') if st[0] == -24 else (q, 0)
                wait_for({("U", u)})
                mf(WT + 8*pr + 4*hf, ureg(u), BAND + 4*(2*pr + hf), "0")
                if pend: pend.pop(0)()
        if q < 6: uld()
        scat = [(n, pr, dl) for n, (pr, dl) in enumerate(bfl) if pr < npair and q + dl < 8]
        scat.sort(key=lambda t: t[1])
        for r in range(8):
            u = (q, r)
            wait_for({("U", u), ("T", r)})
            ymf(q, TF + 4*r, ureg(u))
            if pend: pend.pop(0)()
            if q < 7:
                wait_for({("T", r + 8)})
                ymf(q + 1, TF + 4*(r + 8), ureg(u))
            if r == 0:
                if q < 6: wait_for({("T", 16)}); ymf(q + 2, TF + 64, ureg(u))
                if q < 4: ymf(q + 4, T65, ureg(u))
            uld()
            if pend: pend.pop(0)()
            if r == 1 and q > 0: ywrite(q - 1)
            if 2 <= r <= 4 and r - 2 < npair:
                w = WT + 8 * (r - 2)
                for k in range(4): a(f"v_cvt_pk_bf16_f32 v{w+k}, v{w+2*k}, v{w+2*k+1}")
            if r >= 3:
                take = [t for t in scat if t[1] <= r - 3][:(3 if r < 7 else 99)]
                for t in take:
                    scat.remove(t)
                    n, pr, dl = t
                    wait_for({("B", n)})
                    ymf(q + dl, WT + 8*pr, BF + 4*n)
            if r == 2 and q in CUTS:
                lab = a.label("L_a_noy")
                a("s_cmp_lt_u32 s31, 4")
                a(f"s_cbranch_scc1 {lab}")
                idx = max(i for i, t in enumerate(q_) if t == ("Y", q - 1))
                a(f"s_waitcnt lgkmcnt({len(q_) - 1 - idx})")
                a("s_barrier")
                a(f"{lab}:")
        assert not scat
    stamp(5)
    ywrite(7)
    def ystore(n, row0_sreg):
        a(f"s_lshl_b32 s3, s{row0_sreg}, 1")
        a("v_add_u32 v7, s3, v3")
        a(f"s_mul_i32 s3, s{row0_sreg}, 2304")
        a("v_add_u32 v8, s3, v4")
        for j in range(n):
            a(f"ds_read_b64_tr_b16 v[{60+4*j}:{61+4*j}], v7 offset:{128*j}")
            a(f"ds_read_b64_tr_b16 v[{62+4*j}:{63+4*j}], v7 offset:{128*j+4*YSTR}")
        for j in range(n):
            a(f"s_waitcnt lgkmcnt({2*(n-1-j)})")
            if "nos" not in os.environ.get("DBGA", ""): a(f"global_store_dwordx4 v8, v[{60+4*j}:{63+4*j}], s[24:25] {STA}")
            if j < n - 1: a(f"v_add_u32 v8, {64*2304}, v8")
    a("s_waitcnt lgkmcnt(0)")
    a("s_cmp_ge_u32 s31, 4")
    a("s_cbranch_scc1 L_a_y2")
    prev = 0
    for cut in CUTS:
        n = cut - prev
        a("s_barrier")
        a(f"s_mul_i32 s33, s31, {64*n}")
        a(f"s_add_u32 s33, s33, {256*prev}")
        ystore(n, 33)
        a("s_nop 1")
        prev = cut
    a("L_a_y2:")
    a("s_barrier")
    n = (8 - prev) // 2
    a(f"s_mul_i32 s33, s31, {64*n}")
    a(f"s_add_u32 s33, s33, {256*prev}")
    ystore(n, 33)
    stamp(6)
    wb = os.environ.get("WBL2", "last")
    if wb == "last":
        a("s_waitcnt vmcnt(0)")
        a("s_barrier")
        a("s_cmp_lg_u32 s31, 0")
        a("s_cbranch_scc1 L_fin")
        a("s_and_b32 s33, s2, 7")
        a("s_lshl_b32 s3, s33, 2")
        a("v_mov_b32 v2, s3")
        a("v_mov_b32 v3, 1")
        a("s_mov_b64 exec, 1")
        a("global_atomic_add v4, v2, v3, s[26:27] offset:128 sc0")
        a("s_waitcnt vmcnt(0)")
        a("v_readfirstlane_b32 s3, v4")
        a("s_mov_b64 exec, -1")
        a("s_cmp_eq_u32 s33, 0")
        a("s_cselect_b32 s33, 15, 7")
        a("s_cmp_lg_u32 s3, s33")
        a("s_cbranch_scc1 L_fin")
        a("buffer_wbl2 sc1")
    elif wb != "0":
        a(f"s_cmp_lg_u32 s43, {wb}")
        a("s_cbranch_scc1 L_fin")
        a("s_waitcnt vmcnt(0)")
        a("s_barrier")
        a("s_cmp_lg_u32 s31, 0")
        a("s_cbranch_scc1 L_fin")
        a("buffer_wbl2 sc1")
```

```python
import os
from gen_a import hexf, LOG2E
DBG = os.environ.get('DBG', '')
STB = os.environ.get('STB', 'sc1')
PORD = os.environ.get('PORD', 'cc')
QW = int(os.environ.get('QW', '8'))
POLL2 = int(os.environ.get('POLL2', '0'))
KW = int(os.environ.get('KW', '8'))
KRT = int(os.environ.get('KRT', '4'))
NSC = int(os.environ.get('NSC', '1'))
PQW = int(os.environ.get('PQW', '4'))
PQE = int(os.environ.get('PQE', '2')) if PORD == 'qk' else 0
FAIR = int(os.environ.get('FAIR', '0'))
PSLEEP = int(os.environ.get('PSLEEP', '6'))
SHARD = int(os.environ.get('SHARD', '16'))
LATEM = int(os.environ.get('LATEM', '3'))
ROTW = int(os.environ.get('ROTW', '1'))
ROTR = int(os.environ.get('ROTR', '1'))
NS = 4
WROW = 288
WSZ = 64 * WROW
EXS = 160
LCNT = 163776
EX = LCNT - 2 * 128 * EXS
B_LDS = 163840
EPI = 147456
RXB = 147456
RXF = 157696
KVACC, CNT, PQC, PQ, PQL, WS_SZ = 0, 0xC000, 0xB000, 0x100000, 0x300000, 0x400000
PAIRB = 2816
O_MMB, O_LD, O_XM, O_XL = 1024, 2048, 2304, 2688
EPS = 1e-6
ONE_EPS = 1.0 + 1e-6
OOB = "0x7ffffff0"
SX, SW, SWO, SWS, SDB = 44, 48, 52, 56, 60
WSR = f"s[{SWS}:{SWS+3}]"
WOF = 112
AS0 = 23

def srd(a, r, p, size):
    a(f"s_mov_b32 s{r}, s{p}\ns_mov_b32 s{r+1}, s{p+1}\ns_mov_b32 s{r+2}, {size}\ns_mov_b32 s{r+3}, 0x20000")

PFS = [int(x) for x in os.environ.get("PFS", "8,7,1,3,5,6").split(",")]
def pf_setup(a, v, t):
    a(f"s_sub_u32 s53, s43, {AS0}")
    a("s_lshl_b32 s53, s53, 3")
    a("s_add_u32 s53, s53, s31")
    a("s_mul_i32 s57, s53, 43")
    a("s_lshr_b32 s57, s57, 10")
    a("s_mul_i32 s58, s57, 24")
    a("s_sub_u32 s58, s53, s58")
    a("s_lshl_b32 s57, s57, 2")
    a(f"v_min_u32 v{t}, 14, v2")
    a(f"v_mul_u32_u24 v{t+1}, 52, v{t}")
    a(f"v_lshrrev_b32 v{t+1}, 8, v{t+1}")
    a(f"v_mul_u32_u24 v{t+1}, {1152-640}, v{t+1}")
    a(f"v_lshl_add_u32 v{t}, v{t}, 7, v{t+1}")
    a(f"v_mul_u32_u24 v{t+1}, 3456, v3")
    a(f"s_mul_i32 s59, s58, {4*3456}")
    a("s_and_b32 s3, s42, 4")
    a("s_lshl_b32 s3, s3, 7")
    a("s_add_u32 s59, s59, s3")
    a(f"v_add3_u32 v{t}, v{t}, v{t+1}, s59")
    a("s_lshl_b32 s3, s34, 9")
    a("s_lshl_b32 s59, s58, 6")
    a("s_add_u32 s3, s3, s59")
    a("s_sub_u32 s3, s3, 1024")
    a(f"v_add_u32 v{t+1}, s3, v1")
    a(f"v_mul_u32_u24 v{t+1}, 1152, v{t+1}")
    a("s_cmp_lt_u32 s58, 16")
    a("s_cselect_b64 vcc, -1, 0")
    a("s_movk_i32 s56, 128")
    a(f"s_cselect_b32 s56, {64*3456}, s56")
    a(f"v_cndmask_b32 v{v}, v{t+1}, v{t}, vcc")
def pf_base(a):
    a("s_cmp_lt_u32 s58, 16")
    a("s_cselect_b64 s[54:55], s[20:21], s[18:19]")
def pf_round(a, v, dst, r):
    tab = sum(PFS[3*r + i] << (4*i) for i in range(3))
    a(f"s_lshr_b32 s3, {tab:#x}, s57")
    a("s_and_b32 s3, s3, 15")
    a("s_mul_i32 s3, s3, s56")
    a(f"v_add_u32 v{dst}, s3, v{v}")
    a(f"global_load_dword v{dst}, v{dst}, s[54:55]")

def role_zero(a):
    a.c("---------------- zero-init WG ----------------")
    a("v_lshlrev_b32 v2, 4, v0")
    for i in range(4): a(f"v_mov_b32 v{4+i}, 0")
    a("s_mov_b32 s33, 0")
    a("s_waitcnt lgkmcnt(0)")
    srd(a, SWS, 28, WS_SZ); srd(a, SDB, 26, 256)
    for j in range(8):
        a(f"buffer_store_dwordx4 v[4:7], v2, {WSR}, s33 offen sc1")
        a("s_add_u32 s33, s33, 8192")
    a("s_waitcnt vmcnt(0)")
    a("s_barrier")
    a("s_cmp_lg_u32 s31, 0")
    a("s_cbranch_scc1 L_fin")
    a("v_mov_b32 v8, 1")
    a("s_mov_b64 exec, 1")
    a(f"buffer_atomic_add v8, v4, s[{SDB}:{SDB+3}], 0 offen")
    a("s_mov_b64 exec, -1")
    a("s_branch L_fin")

def phi4(a, r, t, d):
    if isinstance(a, list):
        L = a; a = lambda x: L.append(x)
    for h in (0, 2):
        a(f"v_pk_fma_f32 v[{t+h}:{t+h+1}], v[{r+h}:{r+h+1}], s[40:41], v[250:251]|v_fma_f32 v{t+h}, v{r+h}, s40, v250|v_fma_f32 v{t+h+1}, v{r+h+1}, s40, v250")
    for i in range(4): a(f"v_exp_f32_e64 v{t+i}, v{t+i} clamp")
    for h in (0, 2):
        a(f"v_pk_add_f32 v[{t+h}:{t+h+1}], v[{t+h}:{t+h+1}], v[252:253]|v_add_f32 v{t+h}, v252, v{t+h}|v_add_f32 v{t+h+1}, v252, v{t+h+1}")
    for i in range(4): a(f"v_max_f32 v{t+i}, v{t+i}, v{r+i}")
    if d is not None:
        a(f"v_cvt_pk_bf16_f32 v{d}, v{t}, v{t+1}")
        a(f"v_cvt_pk_bf16_f32 v{d+1}, v{t+2}, v{t+3}")

def ct_calc(a):
    a("s_sub_u32 s97, 20, s43" if KRT == 5 else "s_mov_b32 s97, s43")
    a("s_mul_i32 s96, s97, 52")
    a("s_lshr_b32 s96, s96, 8")
    a("s_mul_i32 s3, s96, 5")
    a("s_sub_u32 s97, s97, s3")
def wo_voff(a, d):
    a("s_and_b32 s30, s31, 1")
    a("s_lshl_b32 s3, s30, 3")
    a(f"v_lshl_add_u32 v{d+2}, v3, 1, s3")
    a(f"v_xor_b32 v{d+2}, v{d+2}, v2")
    a("s_lshl_b32 s3, s97, 8")
    a(f"v_lshl_add_u32 v{d+2}, v{d+2}, 4, s3")
    a("s_and_b32 s3, s31, 3")
    a("s_lshl_b32 s95, s3, 10")
    a(f"v_lshl_add_u32 v{d}, v3, 2, s3")
    a(f"v_mul_u32_u24 v{d}, 1152, v{d}")
    a(f"v_add_u32 v{d}, v{d}, v{d+2}")
    a("s_mul_i32 s3, s3, 18")
    a("s_lshl_b32 s30, s30, 4")
    a("s_sub_u32 s3, s3, s30")
    a("s_add_u32 s3, s3, 16")
    a(f"v_lshrrev_b32 v{d+1}, 1, v3")
    a(f"v_mul_u32_u24 v{d+1}, 70, v{d+1}")
    a(f"v_add3_u32 v{d+1}, v{d+1}, v3, s3")
    a(f"v_mul_u32_u24 v{d+1}, 1152, v{d+1}")
    a(f"v_add_u32 v{d+1}, v{d+1}, v{d+2}")
def wo_loads(a, d, steps):
    for st in steps:
        for h in range(2):
            a(f"s_add_u32 m0, s95, {8192*st + 4096*h}")
            a(f"s_mov_b32 s3, {((36*st + 20*h) if st < 16 else (288*(st-16) + 144*h))*1152}")
            a(f"buffer_load_dwordx4 v{d + (st >= 16)}, s[{SWO}:{SWO+3}], s3 offen lds")
def wotr(a, s, ar, base=0):
    L = []
    for t in range(2):
        for h in range(2):
            r = WOF + 8*s + 4*t + 2*h
            L.append(f"ds_read_b64_tr_b16 v[{r}:{r+1}], v{ar+t} offset:{8192*s + 4096*h - base}")
    return L

def tr_addr(a, d):
    if isinstance(a, list):
        L = a; a = lambda x: L.append(x)
    a(f"v_lshrrev_b32 v{d}, 2, v2")
    a(f"v_lshl_add_u32 v{d}, v3, 2, v{d}")
    a(f"v_and_b32 v{d+1}, 7, v{d}")
    a(f"v_lshlrev_b32 v{d+1}, 1, v{d+1}")
    a(f"v_bfe_u32 v{d+2}, v2, 1, 1")
    a("s_lshr_b32 s3, s31, 1")
    a("s_lshl_b32 s3, s3, 2")
    a(f"v_add_u32 v{d+2}, s3, v{d+2}")
    a(f"v_xor_b32 v{d+1}, v{d+1}, v{d+2}")
    a(f"v_lshlrev_b32 v{d}, 8, v{d}")
    a(f"v_lshl_add_u32 v{d}, v{d+1}, 4, v{d}")
    a(f"v_and_b32 v{d+1}, 1, v2")
    a(f"v_lshl_add_u32 v{d}, v{d+1}, 3, v{d}")
    a(f"v_xor_b32 v{d+1}, 32, v{d}")
    a(f"v_add_u32 v{d+2}, 0x10000, v{d}")
    a(f"v_add_u32 v{d+3}, 0x10000, v{d+1}")
def wo_regs(a, d, n):
    for st in list(range(8, 14)) + list(range(7, -1, -1)):
        for x in (wotr(a, st, d) if st < 8 else wotr(a, st, d + 2, 0x10000)): a(x)
    a(f"v_add_u32 v0, 0x1c000, v{d}")

def lds_last(a, lab):
    a(f"v_mov_b32 v4, {LCNT}")
    a("v_mov_b32 v5, 1")
    a("s_waitcnt vmcnt(0)")
    a("s_mov_b64 exec, 1")
    a("ds_add_rtn_u32 v6, v4, v5")
    a("s_mov_b64 exec, -1")
    a("s_waitcnt lgkmcnt(0)")
    a("v_readfirstlane_b32 s3, v6")
    a("s_cmp_lg_u32 s3, 3")
    a(f"s_cbranch_scc1 {lab}")

def prep3(a):
    a("s_mov_b32 s33, s97")
    a("s_lshl_b32 s34, s42, 2")
    a("s_add_u32 s32, s96, s34")
    a("s_and_b32 s36, s31, 1")
    a("s_lshr_b32 s35, s31, 1")
    a(f"v_mov_b32 v8, {OOB}")
    a("v_lshlrev_b32 v9, 4, v1")
    a("s_add_u32 s40, s31, s43" if ROTW else "s_mov_b32 s40, s31")
    a("s_and_b32 s40, s40, 7")
    a("s_and_b32 s41, s33, 3" if ROTR else "s_mov_b32 s41, 0")
    a(f"s_mul_i32 s37, s40, {2*PAIRB}")
    a("v_and_b32 v6, 3, v2")
    a("v_bfe_u32 v7, v2, 2, 1")
    a("v_lshl_add_u32 v7, v7, 1, v6")
    a("v_cmp_gt_u32 vcc, 2, v6")
    a("v_cndmask_b32 v7, v7, v6, vcc")
    a("v_lshlrev_b32 v12, 4, v3")
    a("v_lshl_add_u32 v12, v7, 6, v12")
    a("v_cmp_gt_u32 s[44:45], 8, v2")
    a("s_or_b64 s[96:97], s[44:45], vcc")
    a("s_orn2_b64 vcc, vcc, s[44:45]")
    a("v_cndmask_b32 v13, v8, v12, vcc")
    a("v_cndmask_b32 v12, v8, v12, s[96:97]")
    a("v_lshlrev_b32 v10, 4, v2")
    a(f"v_lshlrev_b32 v11, 4, v7")
    a(f"v_add_u32 v11, {O_XL - O_LD}, v11")
    a("v_cmp_lt_u32 s[100:101], 1, v3")
    a("v_cndmask_b32 v10, v10, v11, s[100:101]")
    a("v_and_b32 v6, 1, v3")
    a(f"v_mul_u32_u24 v11, {PAIRB}, v6")
    a("v_add_u32 v10, v10, v11")
    a("v_cmp_eq_u32 s[98:99], 1, v6")
    a("v_cmp_eq_u32 s[44:45], 1, v7")
    a("v_cmp_lt_u32 s[46:47], 3, v7")
    a("s_or_b64 s[44:45], s[44:45], s[46:47]")
    a("s_andn2_b64 s[46:47], s[100:101], s[98:99]")
    a("s_and_b64 s[46:47], s[46:47], s[96:97]")
    a("s_and_b64 s[96:97], s[100:101], s[98:99]")
    a("s_and_b64 s[96:97], s[96:97], vcc")
    a("v_lshlrev_b32 v7, 3, v2")
    a("v_lshl_add_u32 v7, v6, 7, v7")
    a("s_lshl_b32 s38, s32, 6")
    a("s_lshl_b32 s39, s40, 1")
    a("s_add_u32 s38, s38, s39")
    a("s_lshl_b32 s39, s38, 7")
    a(f"s_add_u32 s39, s39, {PQL}")
    a("s_lshl_b32 s38, s38, 10")
    a(f"s_add_u32 s38, s38, {PQ}")

def role_gemm(a, kind, stamp):
    Q = kind == "q"
    RT = (9 - KRT) if Q else KRT
    R = 32 * RT
    XSZ = R * 128
    SLOT = XSZ + WSZ
    NL = 5 + RT
    L = lambda s: f"L_{kind}_{s}"
    a.c(f"---------------- role {kind} ----------------")
    rstamp = stamp
    if "stA" in DBG or "stB" in DBG: stamp = lambda i: None
    a("s_cmp_lt_u32 s31, 4")
    a(f"s_cbranch_scc1 {L('comp')}")
    a("s_sub_u32 s35, s31, 4")
    a("s_and_b32 s37, s35, 1")
    a(f"s_mul_i32 s34, s33, {R}")
    a(f"s_mul_i32 s36, s35, {8*RT}")
    a("s_add_u32 s36, s36, s34")
    a("v_lshrrev_b32 v4, 3, v1")
    a("v_add_u32 v4, s36, v4")
    a("v_mul_u32_u24 v4, 1152, v4")
    a("v_and_b32 v5, 7, v1")
    a("v_xor_b32 v5, v5, v3")
    if RT % 2:
        a("s_lshl_b32 s36, s37, 2")
        a("v_xor_b32 v5, s36, v5")
    a("v_lshl_add_u32 v10, v5, 4, v4")
    a("v_xor_b32 v5, 4, v5")
    a("v_lshl_add_u32 v11, v5, 4, v4")
    a(f"s_mul_i32 s38, s35, {1024*RT}")
    a("s_lshr_b32 s36, s35, 1")
    a("s_lshl_b32 s36, s36, 3")
    a("s_add_u32 s36, s36, s37")
    a(f"s_mul_i32 s36, s36, {4*3456}")
    a(f"s_mul_i32 s39, s32, {288 if Q else 144}")
    a("s_add_u32 s36, s36, s39")
    if not Q: a("s_add_u32 s36, s36, 1152")
    a(f"s_mul_i32 s39, s35, {16*WROW}")
    a(f"s_mov_b32 s{SW+2}, 1990656\ns_mov_b32 s{SW+3}, 0x20000\ns_mov_b32 s{SX+2}, 2359296\ns_mov_b32 s{SX+3}, 0x20000")
    def wcalc(t):
        if t: a(f"v_add_u32 v4, {64*t}, v1")
        src = "v4" if t else "v1"
        if Q:
            a(f"v_mul_u32_u24 v5, 3641, {src}")
            a("v_lshrrev_b32 v5, 16, v5")
            a(f"v_lshl_add_u32 v6, {src}, 4, s36")
            a(f"v_mul_u32_u24 v7, {3456-288}, v5")
        else:
            a(f"v_mul_u32_u24 v5, 7282, {src}")
            a("v_lshrrev_b32 v5, 16, v5")
            a(f"v_lshl_add_u32 v6, {src}, 4, s36")
            a("v_mul_u32_u24 v7, 1008, v5")
            a("v_lshrrev_b32 v5, 1, v5")
            a("v_mad_u32_u24 v7, v5, s34, v7")
        a("v_lshrrev_b32 v5, 2, v5")
        a(f"v_mul_u32_u24 v5, {4*3456}, v5")
        a(f"v_add3_u32 v{13+t}, v5, v6, v7")
    def wload(slot, t):
        if t == 4: a("s_mov_b32 exec_hi, 0")
        a(f"s_add_u32 m0, s39, {slot*SLOT + XSZ + 1024*t}")
        a(f"buffer_load_dwordx4 v{13+t}, s[{SW}:{SW+3}], s30 offen lds")
        if t == 4: a("s_mov_b32 exec_hi, -1")
    def xpart(slot):
        a("s_lshl_b32 s30, s94, 7")
        for t in range(RT):
            a(f"s_add_u32 m0, s38, {slot*SLOT + 1024*t}")
            a(f"s_add_u32 s3, s30, {8*1152*t}")
            a(f"buffer_load_dwordx4 v{10+(t&1)}, s[{SX}:{SX+3}], s3 offen lds")
        a(f"s_mul_i32 s30, s94, {64*3456}")
        a("s_add_u32 s94, s94, 1")
        a("s_cmp_eq_u32 s94, 9")
        a("s_cselect_b32 s94, 0, s94")
    def stage(slot):
        xpart(slot)
        for t in range(5): wload(slot, t)
    a("s_movk_i32 s34, 1152")
    wcalc(0); wcalc(1)
    a("s_waitcnt lgkmcnt(0)")
    a(f"s_mov_b64 s[{SW}:{SW+1}], s[20:21]\ns_mov_b64 s[{SX}:{SX+1}], s[18:19]")
    xpart(0)
    wload(0, 0); wload(0, 1)
    for t in (2, 3, 4): wcalc(t); wload(0, t)
    stamp(1)
    stage(1)
    srd(a, SWS, 28, WS_SZ); srd(a, SDB, 26, 256); srd(a, SWO, 22, 663552)
    ct_calc(a)
    wo_voff(a, 21)
    tr_addr(a, 106)
    a("v_mov_b32 v4, 0")
    issue = {s: [s + 2] for s in range(7)}
    early = {7: [5, 6, 7, 8], 8: [9, 10]}
    out = [("S", 0)] * NL + [("S", 1)] * NL
    for s in range(9):
        idx = max(i for i, t in enumerate(out) if t == ("S", s))
        a(f"s_waitcnt vmcnt({len(out) - 1 - idx})")
        if "stA" in DBG: rstamp(1 + s)
        a("s_barrier")
        if "stB" in DBG: rstamp(1 + s)
        if s == 5:
            a(f"buffer_load_dword v24, v4, s[{SDB}:{SDB+3}], 0 offen sc1"); out.append("R")
        for st in issue.get(s, []):
            if "noload" not in DBG: stage(st % NS)
            out += [("S", st)] * NL
        if s in early:
            wo_loads(a, 21, early[s]); out += ["W"] * (2 * len(early[s]))
    stamp(2)
    a("v_readfirstlane_b32 s37, v24")
    a("s_mov_b32 s36, 0")
    a("s_cmp_lg_u32 s37, 0")
    a(f"s_cbranch_scc1 {L('rdy2')}")
    a(f"{L('rdy')}:")
    a(f"buffer_load_dword v5, v4, s[{SDB}:{SDB+3}], 0 offen sc1")
    a("s_add_u32 s36, s36, 1")
    a("s_waitcnt vmcnt(0)")
    a("v_readfirstlane_b32 s37, v5")
    a("s_cmp_ge_u32 s36, 0x10000")
    a(f"s_cbranch_scc1 {L('rdy2')}")
    a("s_cmp_eq_u32 s37, 0")
    a(f"s_cbranch_scc1 {L('rdy')}")
    a(f"{L('rdy2')}:")
    a("s_barrier")
    lst = [11, 12, 13, 0, 1, 2, 3, 4, 14, 15, 16, 17]
    nb = QW if Q else KW
    wo_loads(a, 21, lst[:nb])
    prep3(a)
    a("s_barrier")
    stamp(3)
    wo_loads(a, 21, lst[nb:])
    stamp(4)
    a("s_waitcnt vmcnt(0)")
    a("s_branch L_bjoin")
    a(f"{L('comp')}:")
    ct_calc(a)
    a("s_and_b32 s35, s31, 1")
    a("s_lshr_b32 s36, s31, 1")
    XA0, XA1, WA, LA = 4, 5, 6, 7
    a("v_lshrrev_b32 v9, 1, v2")
    a("v_xor_b32 v9, v9, v3")
    a("v_lshlrev_b32 v10, 7, v2")
    a("v_lshl_add_u32 v10, v9, 4, v10")
    a(f"s_mul_i32 s37, s35, {RT*2048}")
    a(f"v_add_u32 v{XA0}, s37, v10")
    a(f"v_xor_b32 v{XA1}, 64, v{XA0}")
    a("v_lshrrev_b32 v9, 2, v2")
    a("v_and_b32 v10, 3, v2")
    a("v_lshl_add_u32 v11, v3, 2, v9")
    a(f"v_mul_u32_u24 v11, {WROW}, v11")
    a(f"s_mul_i32 s37, s36, {144 if Q else 72}")
    a(f"s_add_u32 s37, s37, {XSZ}")
    a("v_add_u32 v11, s37, v11")
    a(f"v_lshl_add_u32 v{WA}, v10, 3, v11")
    a("v_and_b32 v12, 1, v10")
    a(f"v_mul_u32_u24 v12, {72 if Q else 144}, v12")
    a(f"v_add3_u32 v{LA}, v11, v12, 32")
    a(f"v_mov_b32 v12, {LCNT}\nv_mov_b32 v14, 0\nv_mov_b32 v15, 0")
    a("ds_write_b32 v12, v14")
    ACC = 16
    def acc(rt, t): return ACC + 4 * (5 * rt + t)
    a(f"v_mov_b32 v8, {hexf(ONE_EPS)}\nv_mov_b32 v9, v8")
    if not Q:
        a("v_lshrrev_b32 v10, 2, v2")
        a("v_cmp_eq_u32 s[98:99], 1, v10")
        a("v_cmp_eq_u32 s[100:101], 3, v10")
        a("v_cndmask_b32 v10, v8, 0, s[98:99]")
        a("v_mov_b32 v11, v10")
    for rt in range(RT):
        for t in range(5):
            src = "v[8:9]" if Q or t < 2 else ("v[10:11]" if t == 4 else "v[14:15]")
            for i in (0, 2): a(f"v_mov_b64 v[{acc(rt,t)+i}:{acc(rt,t)+i+1}], {src}")
    F = [120, 160]
    woff = [0, 40, 72, 112] if Q else [0, 40, 144, 184]
    TORD = [0, 1, 4, 2, 3]
    def reads(kk):
        f = F[kk]; Lr = []
        def w(t):
            for h in range(2):
                ad, o = (WA, woff[t]) if t < 4 else (LA, 0)
                Lr.append(f"ds_read_b64_tr_b16 v[{f+20+4*t+2*h}:{f+20+4*t+2*h+1}], v{ad} offset:{o + (32*kk + 16*h)*WROW}")
        w(TORD[0])
        for rt in range(RT): Lr.append(f"ds_read_b128 v[{f+4*rt}:{f+4*rt+3}], v{(XA0,XA1)[kk]} offset:{2048*rt}")
        for t in TORD[1:]: w(t)
        return Lr
    def one(kk, rt, t):
        f = F[kk]
        w, x = f"v[{f+20+4*t}:{f+23+4*t}]", f"v[{f+4*rt}:{f+4*rt+3}]"
        if not Q: w, x = x, w
        return f"v_mfma_f32_16x16x32_bf16 v[{acc(rt,t)}:{acc(rt,t)+3}], {w}, {x}, v[{acc(rt,t)}:{acc(rt,t)+3}]"
    def mfmas(kk):
        return [one(kk, rt, t) for t in TORD for rt in range(RT)]
    def inter(M, Rd):
        if "nocomp" in DBG: return
        if "noread" in DBG: Rd = []
        for k, m in enumerate(M):
            if k < len(Rd): a(Rd[k])
            a(m)
    a(f"s_mov_b32 s40, {hexf(LOG2E)}\ns_mov_b32 s41, s40")
    a(f"v_mov_b32 v250, {hexf(-ONE_EPS*LOG2E)}\nv_mov_b32 v251, v250")
    a(f"v_mov_b32 v252, {hexf(EPS)}\nv_mov_b32 v253, v252")
    a("s_waitcnt lgkmcnt(0)")
    srd(a, SWS, 28, WS_SZ); srd(a, SWO, 22, 663552)
    stamp(1)
    post = []
    p = lambda t: post.extend(x.strip() for x in t.split("\n") if x.strip())
    if Q:
        p("v_lshlrev_b32 v8, 4, v1")
        p("v_lshlrev_b32 v9, 3, v1")
        p(f"s_mul_i32 s38, s33, {2*RT}")
        p(f"s_mul_i32 s39, s35, {RT}")
        p("s_add_u32 s38, s38, s39")
        p("s_lshl_b32 s38, s38, 4")
        p("s_lshl_b32 s39, s32, 2")
        p("s_add_u32 s38, s38, s39")
        p("s_lshl_b32 s39, s36, 1")
        p("s_add_u32 s38, s38, s39")
        p("s_lshl_b32 s37, s38, 10")
        p(f"s_add_u32 s37, s37, {PQ}")
        p("s_lshl_b32 s39, s38, 7")
        p(f"s_add_u32 s39, s39, {PQL}")
        p(f"s_mov_b32 s{SX}, s28\ns_mov_b32 s{SX+1}, s29\ns_mov_b32 s{SX+2}, {PQL}\ns_mov_b32 s{SX+3}, 0x20000")
        p(f"s_mov_b32 s{SW}, s28\ns_mov_b32 s{SW+1}, s29\ns_mov_b32 s{SW+2}, {PQL + 0x40000}\ns_mov_b32 s{SW+3}, 0x20000")
    else:
        p(f"s_mul_i32 s38, s33, {2*RT}")
        p(f"s_mul_i32 s39, s35, {RT}")
        p("v_mov_b32 v13, 0x3f803f80")
        p("s_add_u32 s38, s38, s39")
        p("s_lshl_b32 s51, s32, 1")
        p("s_add_u32 s51, s51, s36")
        p(f"s_mul_i32 s51, s51, {PAIRB}")
        p("s_lshl_b32 s50, s33, 3")
        p("s_add_u32 s50, s50, s32")
        p(f"s_and_b32 s50, s50, {SHARD-1}")
        p("s_lshl_b32 s50, s50, 7")
        p(f"s_add_u32 s50, s50, {CNT}")
        p("v_lshlrev_b32 v243, 11, v1")
        p(f"v_mov_b32 v8, {OOB}")
        p("v_lshrrev_b32 v9, 2, v2")
        p("v_and_b32 v10, 3, v2")
        p("v_lshlrev_b32 v11, 8, v9")
        p("v_lshl_add_u32 v11, v3, 4, v11")
        p("v_lshl_add_u32 v236, v10, 2, v11")
        p("v_cmp_gt_u32 s[44:45], 4, v2")
        p("v_cmp_gt_u32 s[46:47], 2, v2")
        p("v_cndmask_b32 v237, v8, v236, s[44:45]")
        p("v_cmp_eq_u32 vcc, 1, v3")
        p("v_cmp_eq_u32 s[48:49], 3, v3")
        p("v_lshlrev_b32 v9, 2, v2")
        p("v_cndmask_b32 v240, v8, v9, vcc")
        p("v_add_u32 v10, 128, v240")
        p("v_cndmask_b32 v238, v10, v9, s[48:49]")
        p("v_add_u32 v10, 256, v240")
        p("v_add_u32 v11, 64, v9")
        p("v_cndmask_b32 v239, v10, v11, s[48:49]")
        p("v_and_b32 v9, 1, v2")
        p("v_lshlrev_b32 v9, 2, v9")
        p("v_bfe_u32 v10, v2, 1, 1")
        p("v_lshl_add_u32 v11, v10, 4, v9")
        p("v_lshl_add_u32 v9, v10, 5, v9")
        p("v_add_u32 v9, 32, v9")
        p("v_cndmask_b32 v9, v8, v9, vcc")
        p("v_cndmask_b32 v242, v8, v9, s[44:45]")
        p("v_cndmask_b32 v9, v9, v11, s[48:49]")
        p("v_cndmask_b32 v241, v8, v9, s[44:45]")
        p("s_lshl_b32 s3, s31, 11")
        p(f"s_add_u32 s3, s3, {RXB}")
        p("v_lshl_add_u32 v248, v1, 4, s3")
        p("v_xor_b32 v249, 0x800, v248")
        p("s_lshl_b32 s3, s31, 9")
        p(f"s_add_u32 s3, s3, {RXF}")
        p("v_lshl_add_u32 v14, v1, 3, s3")
        p("v_xor_b32 v15, 0x200, v14")
        p("v_mov_b64 v[8:9], 0")
        p("ds_write_b64 v14, v[8:9]")
        p("s_waitcnt lgkmcnt(0)")
    tr_addr(post, 244)
    for x in post: a(x)
    for st in range(9):
        a("s_barrier")
        if st == 0:
            for x in reads(0): a(x)
        else: inter(mfmas(1), reads(0))
        a("s_waitcnt lgkmcnt(0)")
        if st < 8:
            dl = SLOT if (st + 1) % NS else -(NS - 1) * SLOT
            upd = [f"v_add_u32 v{r}, {dl & 0xffffffff:#x}, v{r}" for r in (XA0, XA1, WA, LA)]
            inter(mfmas(0), reads(1) + upd)
            a("s_waitcnt lgkmcnt(0)")
    T0_, T1_ = 200, 204
    def postp(rt):
        Lp = []
        d = 208 + 12 * (rt % 2)
        if Q:
            phi4(Lp, acc(rt, 0), T0_, d); phi4(Lp, acc(rt, 1), T1_, d + 2)
            Lp.append(f"buffer_store_dwordx4 v[{d}:{d+3}], v8, s[{SX}:{SX+3}], s37 offen sc1")
            phi4(Lp, acc(rt, 4), T0_, d + 8)
            Lp.append(f"s_mov_b32 exec_hi, 0\nbuffer_store_dwordx2 v[{d+8}:{d+9}], v9, s[{SW}:{SW+3}], s39 offen sc1\ns_mov_b32 exec_hi, -1")
            phi4(Lp, acc(rt, 2), T1_, d + 4); phi4(Lp, acc(rt, 3), T0_, d + 6)
            Lp.append(f"buffer_store_dwordx4 v[{d+4}:{d+7}], v8, s[{SX}:{SX+3}], s37 offen offset:1024 sc1")
            Lp.append("s_add_u32 s37, s37, 16384\ns_add_u32 s39, s39, 2048")
        else:
            pk = lambda t: acc(rt & ~1, t) + 2 * (rt & 1)
            for t in (0, 1): phi4(Lp, acc(rt, t), (T0_, T1_)[t], pk(t))
            phi4(Lp, acc(rt, 4), T0_, None)
            if RT % 2: Lp.append(f"s_add_u32 s39, s38, {rt}\ns_cmp_lt_u32 s39, 128\ns_cselect_b32 s39, 0x3f803f80, 0\nv_mov_b32 v13, s39")
            for i in range(4): Lp.append(f"v_cndmask_b32 v{T0_+i}, v{T0_+i}, v{acc(rt,4)+i}, s[98:99]")
            e = pk(4)
            Lp += [f"v_cvt_pk_bf16_f32 v{e}, v{T0_}, v{T0_+1}", f"v_cvt_pk_bf16_f32 v{e+1}, v{T0_+2}, v{T0_+3}",
                   f"v_cndmask_b32 v{e}, v{e}, v13, s[100:101]", f"v_cndmask_b32 v{e+1}, v{e+1}, v13, s[100:101]"]
            for t in (2, 3):
                e = pk(t)
                Lp += [f"v_cvt_pk_bf16_f32 v{e}, v{acc(rt,t)}, v{acc(rt,t)+1}", f"v_cvt_pk_bf16_f32 v{e+1}, v{acc(rt,t)+2}, v{acc(rt,t)+3}"]
                if rt == RT - 1 and RT % 2: Lp.append(f"v_mov_b64 v[{e+2}:{e+3}], 0")
            if rt == RT - 1 and RT % 2:
                for t in (0, 1, 4): Lp.append(f"v_mov_b64 v[{pk(t)+2}:{pk(t)+3}], 0")
        return Lp
    Rd = reads(1)
    first = [one(0, rt, t) for rt in range(2) for t in TORD]
    for k, m in enumerate(first):
        for x in Rd[2*k:2*k+2]: a(x)
        a(m)
    a("s_waitcnt lgkmcnt(0)")
    a("s_barrier")
    for t in TORD: a(one(1, 0, t))
    rest = []
    for rt in range(1, RT):
        rest += [(rt, one(1, rt, t)) for t in TORD]
        if rt + 1 < RT: rest += [(rt + 1, one(0, rt + 1, t)) for t in TORD]
    for _ in range(3): a(rest.pop(0)[1])
    stamp(2)
    KA = 208
    kvt = [(0, 2, 0), (1, 3, 1), (2, 2, 4), (3, 3, 4), (4, 4, 0), (5, 4, 1), (6, 4, 4)]
    def kvm(ks):
        r = 2 * ks
        return [(99, f"v_mfma_f32_16x16x32_bf16 v[{KA+4*i}:{KA+4*i+3}], v[{acc(r,x)}:{acc(r,x)+3}], v[{acc(r,y)}:{acc(r,y)+3}], " + ("0" if ks == 0 else f"v[{KA+4*i}:{KA+4*i+3}]"))
                for i, x, y in kvt]
    for rt in range(RT):
        while rest and rest[0][0] <= rt: a(rest.pop(0)[1])
        k = 0
        for x in postp(rt):
            alt = x.split("|")
            for y in (alt[1:] if len(alt) > 1 and rest and NSC else alt[:1]):
                a(y); k += 2 if y.startswith("v_exp") else 1
                if k >= 2 and rest: a(rest.pop(0)[1]); k = 0
        if not Q and (rt % 2 == 1 or rt == RT - 1): rest += kvm(rt // 2)
    while rest: a(rest.pop(0)[1])
    if not Q:
        at = lambda r, ad, o: a(f"buffer_atomic_add_f32 v{r}, v{ad}, {WSR}, s51 offen offset:{o}")
        for i in range(4): a(f"v_cndmask_b32 v{KA+8+i}, v{KA+12+i}, v{KA+8+i}, s[46:47]")
        a(f"v_mov_b64 v[{KA+18}:{KA+19}], v[{KA+22}:{KA+23}]")
        a(f"v_cndmask_b32 v{KA+24}, v{KA+26}, v{KA+24}, s[46:47]")
        a(f"v_cndmask_b32 v{KA+25}, v{KA+27}, v{KA+25}, s[46:47]")
        own = [(KA, KA + 8, KA + 24), (KA + 4, KA + 16, KA + 25)]
        a("s_cmp_eq_u32 s35, 1")
        a(f"s_cbranch_scc1 {L('rx1')}")
        for rh in range(2):
            if rh: a(f"{L('rx1')}:")
            o, k = own[1 - rh], own[rh]
            a(f"ds_write_b128 v248, v[{o[0]}:{o[0]+3}]")
            a(f"ds_write_b128 v248, v[{o[1]}:{o[1]+3}] offset:1024")
            a(f"ds_write2_b32 v14, v{o[2]}, v14 offset0:0 offset1:1")
            a("s_mov_b32 s3, 0")
            a(f"{L('rp' + str(rh))}:")
            a("ds_read_b64 v[200:201], v15")
            a("ds_read_b128 v[16:19], v249")
            a("ds_read_b128 v[20:23], v249 offset:1024")
            a("s_add_u32 s3, s3, 1")
            a("s_waitcnt lgkmcnt(0)")
            a("v_cmp_eq_u32 vcc, 0, v201")
            a("s_cmp_ge_u32 s3, 0x100000")
            a(f"s_cbranch_scc1 {L('rq' + str(rh))}")
            a(f"s_cbranch_vccnz {L('rp' + str(rh))}")
            a(f"{L('rq' + str(rh))}:")
            for j in range(2):
                for h in (0, 2): a(f"v_pk_add_f32 v[{k[j]+h}:{k[j]+h+1}], v[{k[j]+h}:{k[j]+h+1}], v[{16+4*j+h}:{17+4*j+h}]")
            a(f"v_add_f32 v{k[2]}, v{k[2]}, v200")
            if rh == 0:
                for i in range(4): at(KA + i, 236, 64*i)
                for i in range(4): at(KA + 8 + i, 237, O_LD + 64*i)
                at(KA + 24, 241, O_XL)
                a(f"s_branch {L('rxd')}")
            else:
                for i in range(4): at(KA + 4 + i, 236, O_MMB + 64*i)
                at(KA + 16, 238, O_XM); at(KA + 17, 240, O_XM + 192)
                at(KA + 18, 239, O_XM); at(KA + 19, 240, O_XM + 320)
                at(KA + 25, 242, O_XL + 16)
        a(f"{L('rxd')}:")
    stamp(3)
    a("s_barrier")
    a("v_mov_b64 v[106:107], v[244:245]\nv_mov_b64 v[108:109], v[246:247]")
    if Q:
        a("s_lshl_b32 s50, s33, 7")
        a(f"s_add_u32 s50, s50, {PQC}")
        a("v_mov_b32 v243, 0")
    prep3(a)
    lds_last(a, L("sig"))
    a(f"s_mov_b64 exec, {1 if Q else 0xff}")
    a(f"buffer_atomic_add v5, v243, {WSR}, s50 offen")
    a("s_mov_b64 exec, -1")
    a(f"{L('sig')}:")
    stamp(4)
    a("s_branch L_bjoin")

def phase3(a, stamp):
    a.c("---------------- phase 3 ----------------")
    if "stA" in DBG or "stB" in DBG: stamp = lambda i: None
    a("L_bjoin:")
    stamp(5)
    a("s_cmp_eq_u32 s43, 0" if KRT == 5 else "s_cmp_ge_u32 s43, 20")
    a("s_cbranch_scc1 L_fin")
    def poll_prep_q():
        a("s_lshl_b32 s34, s32, 1")
        a("v_add_u32 v104, s34, v101")
        a(f"v_mul_u32_u24 v104, {205 if KRT == 4 else 256}, v104")
        a("v_lshrrev_b32 v104, 10, v104")
        a("v_lshlrev_b32 v104, 7, v104")
        a(f"s_mov_b32 s34, {PQC}")
    def poll_prep_k():
        a("v_lshlrev_b32 v104, 7, v101")
        a("s_lshl_b32 s34, s42, 11")
        a(f"s_add_u32 s34, s34, {CNT}")
    def poll(wave, prep, nl, tgt, tag, two=False, bar=True):
        a(f"s_cmp_lg_u32 s31, {wave}")
        a(f"s_cbranch_scc1 L_pw{tag}")
        prep()
        a(f"s_mov_b64 exec, {hex((1 << nl) - 1)}")
        a("s_mov_b32 s3, 0")
        if two and POLL2:
            a(f"buffer_load_dword v254, v104, {WSR}, s34 offen sc1")
            a(f"s_sleep {POLL2}")
            a(f"L_poll{tag}:")
            for cur, nxt in ((254, 255), (255, 254)):
                a(f"buffer_load_dword v{nxt}, v104, {WSR}, s34 offen sc1")
                a("s_waitcnt vmcnt(1)")
                a(f"v_cmp_gt_u32 vcc, {tgt}, v{cur}")
                a("s_add_u32 s3, s3, 1")
                a(f"s_cbranch_vccz L_pd{tag}")
            a("s_cmp_lt_u32 s3, 0x20000")
            a(f"s_cbranch_scc1 L_poll{tag}")
        else:
            a(f"L_poll{tag}:")
            if PSLEEP: a(f"s_sleep {PSLEEP}")
            a(f"buffer_load_dword v105, v104, {WSR}, s34 offen sc1")
            a("s_add_u32 s3, s3, 1")
            a("s_waitcnt vmcnt(0)")
            a(f"v_cmp_gt_u32 vcc, {tgt}, v105")
            a("s_cmp_ge_u32 s3, 0x10000")
            a(f"s_cbranch_scc1 L_pd{tag}")
            a(f"s_cbranch_vccnz L_poll{tag}")
        a(f"L_pd{tag}:")
        a("s_mov_b64 exec, -1")
        a(f"L_pw{tag}:")
        if bar: a("s_barrier")
    AM = [16, 20, 24, 28]
    AX = [32, 36, 40, 44]
    PQR = 56
    T = 48
    def pql(rt, ad=9, al=7):
        b = PQR + 14 * rt
        a(f"s_add_u32 s3, s41, {rt}")
        a("s_and_b32 s3, s3, 3")
        a("s_lshl_b32 s30, s3, 14")
        a("s_add_u32 s30, s30, s38")
        a("s_lshl_b32 s3, s3, 11")
        a("s_add_u32 s3, s3, s39")
        a(f"buffer_load_dwordx4 v[{b+2}:{b+5}], v{ad}, {WSR}, s30 offen sc1")
        a(f"buffer_load_dwordx4 v[{b+8}:{b+11}], v{ad}, {WSR}, s30 offen offset:1024 sc1")
        a(f"buffer_load_dwordx2 v[{b+6}:{b+7}], v{al}, {WSR}, s3 offen sc1")
    def kvl():
        a(f"buffer_load_dwordx4 v[{AX[0]}:{AX[0]+3}], v102, {WSR}, s51 offen offset:{O_XM} sc1")
        a(f"buffer_load_dwordx4 v[{T}:{T+3}], v100, {WSR}, s51 offen offset:{O_LD} sc1")
        a(f"s_add_u32 s3, s51, {PAIRB}")
        a(f"buffer_load_dwordx4 v[{AX[2]}:{AX[2]+3}], v103, {WSR}, s3 offen offset:{O_XM} sc1")
        for c in range(2):
            o = c * PAIRB
            a(f"buffer_load_dwordx4 v[{AM[2*c]}:{AM[2*c]+3}], v98, {WSR}, s51 offen offset:{o} sc1")
            a(f"buffer_load_dwordx4 v[{AM[2*c+1]}:{AM[2*c+1]+3}], v98, {WSR}, s51 offen offset:{o+O_MMB} sc1")
    if PORD == "qk":
        stamp(6)
        poll(PQW, poll_prep_q, 2, 4, "q"); stamp(8)
        a("v_mov_b64 v[16:17], v[106:107]\nv_mov_b64 v[18:19], v[108:109]")
        a("v_add_u32 v0, 0x1c000, v106")
        trs = [x for st in range(14) for x in (wotr(a, st, 16) if st < 8 else wotr(a, st, 18, 0x10000))]
        for rt in range(PQE):
            pql(rt)
            for x in trs[36*rt//PQE:36*(rt+1)//PQE]: a(x)
        a("s_waitcnt lgkmcnt(0)")
        a("v_mov_b64 v[4:5], v[18:19]")
        stamp(7)
        poll(0, poll_prep_k, SHARD, (13 if KRT == 5 else 16) * 8 // SHARD, "k", two=True); stamp(9)
        kvl()
        for x in trs[36:]: a(x.replace("v18 ", "v4 ").replace("v19 ", "v5 "))
        for rt in range(PQE, 4): pql(rt)
        vm = [f"p{r}" for r in range(PQE) for _ in range(3)] + ["x"]*3 + ["m0"]*2 + ["m1"]*2 + [f"p{r}" for r in range(PQE, 4) for _ in range(3)]
    else:
        a("s_barrier")
        stamp(6)
        a("v_add_u32 v0, 0x1c000, v106")
        for st in range(14):
            for x in (wotr(a, st, 106) if st < 8 else wotr(a, st, 108, 0x10000)): a(x)
        a("v_mov_b32 v98, v9\nv_mov_b32 v99, v7\nv_mov_b32 v100, v10\nv_mov_b64 v[102:103], v[12:13]\nv_mov_b32 v254, v9\nv_mov_b32 v255, v7\nv_mov_b32 v101, v1")
        a("s_mov_b32 s51, s37")
        a("v_xor_b32 v5, 32, v0\nv_mov_b32 v4, v0")
        for s in (14, 15):
            for x in wotr(a, s, 4, 0x1c000): a(x)
        a("s_lshl_b32 s34, s40, 11")
        a("v_add_u32 v10, s34, v9")
        a("s_lshr_b32 s34, s40, 2")
        a("s_lshl_b32 s34, s34, 10")
        a("s_and_b32 s3, s40, 3")
        a("s_lshl_b32 s3, s3, 2")
        a("s_add_u32 s34, s34, s3")
        a(f"s_add_u32 s34, s34, {16*1024}")
        a("v_add_u32 v11, s34, v9")
        a(f"s_mul_i32 s34, s36, {18*1024}")
        a("v_add_u32 v8, s34, v9")
        a("s_lshl_b32 s34, s31, 10")
        a(f"s_add_u32 s34, s34, {EPI}")
        a("v_add_u32 v9, s34, v9")
        a("v_and_b32 v12, 1, v3")
        a("v_lshrrev_b32 v14, 1, v3")
        a("v_lshl_add_u32 v12, v12, 1, v14")
        a("v_lshl_add_u32 v12, v2, 2, v12")
        a("v_cmp_eq_u32 vcc, 0, v3")
        a("v_lshl_add_u32 v2, v12, 4, s34")
        a("s_add_u32 s3, s36, s41")
        a("s_and_b32 s3, s3, 3")
        a("s_cmp_lt_u32 s3, 2")
        a(f"s_mov_b32 s37, {32*2304}")
        a(f"s_cselect_b32 s37, s37, {(-32*2304) & 0xffffffff:#x}")
        a("s_lshl_b32 s34, s32, 6")
        a("s_lshl_b32 s3, s3, 4")
        a("s_add_u32 s34, s34, s3")
        a("v_lshrrev_b32 v14, 2, v1")
        a("v_add_u32 v14, s34, v14")
        a("v_mul_u32_u24 v14, 2304, v14")
        a("v_and_b32 v15, 3, v1")
        a("v_lshl_add_u32 v14, v15, 4, v14")
        a("s_lshl_b32 s34, s33, 8")
        a("s_lshl_b32 s3, s35, 6")
        a("s_add_u32 s34, s34, s3")
        a("s_add_u32 s3, s34, 1152")
        a("v_add_u32 v3, s3, v14")
        a("v_xor_b32 v1, 32, v0")
        a(f"v_mov_b32 v12, {hexf(EPS)}\nv_mov_b32 v13, v12\nv_mov_b32 v14, 0\nv_mov_b32 v15, 0")
        a(f"v_mov_b32 v{AX[1]+2}, 0\nv_mov_b32 v{AX[3]+2}, 0")
        a("s_andn2_b64 s[48:49], s[98:99], s[100:101]")
        a("s_mov_b64 s[94:95], vcc")
        a("s_mov_b32 s50, s34")
        a("s_waitcnt lgkmcnt(0)")
        stamp(8)
        if PORD == "cc": poll(PQW, poll_prep_q, 2, 4, "q", bar=False)
        poll(0, poll_prep_k, SHARD, (13 if KRT == 5 else 16) * 8 // SHARD, "k", two=True); stamp(7)
        kvl()
        if PORD == "cc": pql(0, 98, 99); pql(1, 98, 99)
        vm = ["x"]*3 + ["m0"]*2 + ["m1"]*2 + [f"p{r}" for r in range(2 if PORD == "cc" else 0) for _ in range(3)]
    vdone = [-1]
    def vwait(tag):
        idx = max(i for i, t in enumerate(vm) if t == tag)
        if idx > vdone[0]:
            a(f"s_waitcnt vmcnt({len(vm) - 1 - idx})"); vdone[0] = idx
    def pmov(rt):
        b = PQR + 14 * rt
        vwait(f"p{rt}")
        a(f"v_mov_b64 v[{b}:{b+1}], v[{b+6}:{b+7}]\nv_mov_b64 v[{b+12}:{b+13}], v[{b+6}:{b+7}]")
    for rt in range(PQE): pmov(rt)
    def mf(d, x, y, c): a(f"v_mfma_f32_16x16x32_bf16 v[{d}:{d+3}], v[{x}:{x+3}], v[{y}:{y+3}], {c}")
    def regs(rt): return (PQR + 14 * rt, (48, 240, 48, 56)[rt], (52, 244, 52, 60)[rt], (4, 248, 4, 64)[rt])
    def MX(rt):
        b, X0, X1, D0 = regs(rt)
        ops = [b, b+4, b+6, b+10]
        if rt >= PQE: pmov(rt)
        mf(X0, AX[1], ops[1], "v[12:15]"); mf(X1, AX[3], ops[3], "v[12:15]")
        mf(X0, AX[0], ops[0], f"v[{X0}:{X0+3}]"); mf(X1, AX[2], ops[2], f"v[{X1}:{X1+3}]")
    def MM_(rt):
        b, X0, X1, D0 = regs(rt)
        ops = [b, b+4, b+6, b+10]
        mf(D0, AM[0], ops[0], "0")
        mf(b, AM[1], ops[1], "0")
        mf(b+6, AM[2], ops[2], "0")
        mf(b+10, AM[3], ops[3], "0")
    def conv(st=True):
        vwait("x")
        if st: stamp(9)
        a(f"v_cvt_pk_bf16_f32 v252, v{T}, v{T+1}")
        a(f"v_cvt_pk_bf16_f32 v253, v{T+2}, v{T+3}")
        for c in range(2):
            xa, xb = AX[2*c], AX[2*c+1]
            mk = "s[46:47]" if c == 0 else "s[96:97]"
            a(f"v_cvt_pk_bf16_f32 v{T+2}, v{xa}, v{xa+1}")
            a(f"v_cvt_pk_bf16_f32 v{T+3}, v{xa+2}, v{xa+3}")
            a(f"v_cndmask_b32 v{T+4}, 0, v252, {mk}")
            a(f"v_mov_b32 v{xa+1}, 0")
            a(f"v_cndmask_b32 v{xb}, 0, v{T+2}, s[44:45]")
            a(f"v_cndmask_b32 v{xb+1}, 0, v{T+3}, s[44:45]")
            a(f"v_cndmask_b32 v{xb+3}, 0, v{T+4}, s[44:45]")
            a(f"v_cndmask_b32 v{xa}, v{T+4}, 0, s[44:45]")
            a(f"v_cndmask_b32 v{xa+2}, v{T+2}, 0, s[44:45]")
            a(f"v_cndmask_b32 v{xa+3}, v{T+3}, 0, s[44:45]")
        for c in range(2):
            ma, mb = AM[2*c], AM[2*c+1]
            mk = "s[94:95]" if c == 0 else "s[48:49]"
            vwait(f"m{c}")
            a(f"v_cvt_pk_bf16_f32 v{ma+3}, v{ma+2}, v{ma+3}")
            a(f"v_cvt_pk_bf16_f32 v{ma+2}, v{ma}, v{ma+1}")
            a(f"v_cndmask_b32 v{ma}, 0, v252, {mk}")
            a(f"v_mov_b32 v{ma+1}, 0")
            a(f"v_cvt_pk_bf16_f32 v{mb}, v{mb}, v{mb+1}")
            a(f"v_cvt_pk_bf16_f32 v{mb+1}, v{mb+2}, v{mb+3}")
            a(f"v_mov_b32 v{mb+2}, 0")
            a(f"v_cndmask_b32 v{mb+3}, 0, v253, {mk}")
    if PORD == "cc": conv()
    else:
        a(f"s_cmp_eq_u32 s31, {PQW}")
        a("s_cbranch_scc1 L_skipconv")
        conv()
        a("L_skipconv:")
        poll(PQW, poll_prep_q, 2, 4, "q")
        stamp(10)
        pql(0, 98, 99); pql(1, 98, 99); vm.extend(["p0"]*3 + ["p1"]*3)
        a(f"s_cmp_lg_u32 s31, {PQW}")
        a("s_cbranch_scc1 L_skipconv2")
        conv(False)
        a("L_skipconv2:")
    def V(rt):
        b, X0, X1, D0 = regs(rt)
        L = []
        p = lambda t: L.extend(x.strip() for x in t.split("\n"))
        for x in (X0, X1):
            p(f"v_rcp_f32 v{x}, v{x}\nv_rcp_f32 v{x+1}, v{x+1}")
        if NSC: p(f"v_add_f32 v{X0+2}, v{X0+2}, v{X1+2}\nv_add_f32 v{X0+3}, v{X0+3}, v{X1+3}")
        else: p(f"v_pk_add_f32 v[{X0+2}:{X0+3}], v[{X0+2}:{X0+3}], v[{X1+2}:{X1+3}]")
        p(f"v_cndmask_b32 v{X1+2}, v{X0}, v{X0+1}, s[98:99]")
        p(f"v_cndmask_b32 v{X1+3}, v{X1}, v{X1+1}, s[98:99]")
        p(f"v_cndmask_b32 v{X1+2}, v{X1+2}, v{X1+3}, s[100:101]")
        if NSC: p(f"v_mul_f32 v{X0+2}, v{X0+2}, v{X1+2}\nv_mul_f32 v{X0+3}, v{X0+3}, v{X1+2}")
        else: p(f"v_pk_mul_f32 v[{X0+2}:{X0+3}], v[{X0+2}:{X0+3}], v[{X1+2}:{X1+3}] op_sel:[0,0] op_sel_hi:[1,0]")
        p(f"v_cvt_pk_bf16_f32 v{b+4}, v{X0+2}, v{X0+3}")
        p(f"ds_write_b32 v11, v{b+4} offset:{rt*18*1024}")
        for d, rc in ((D0, X0), (b, X0+1), (b+6, X1), (b+10, X1+1)):
            sel = "op_sel:[0,0] op_sel_hi:[1,0]" if rc % 2 == 0 else "op_sel:[0,1] op_sel_hi:[1,1]"
            rp = rc & ~1
            if NSC:
                for i in range(4): p(f"v_mul_f32 v{d+i}, v{d+i}, v{rc}")
                continue
            p(f"v_pk_mul_f32 v[{d}:{d+1}], v[{d}:{d+1}], v[{rp}:{rp+1}] {sel}")
            p(f"v_pk_mul_f32 v[{d+2}:{d+3}], v[{d+2}:{d+3}], v[{rp}:{rp+1}] {sel}")
        p(f"v_cvt_pk_bf16_f32 v{D0}, v{D0}, v{D0+1}\nv_cvt_pk_bf16_f32 v{D0+1}, v{D0+2}, v{D0+3}")
        p(f"v_cvt_pk_bf16_f32 v{D0+2}, v{b}, v{b+1}\nv_cvt_pk_bf16_f32 v{D0+3}, v{b+2}, v{b+3}")
        p(f"ds_write_b128 v10, v[{D0}:{D0+3}] offset:{rt*18*1024}")
        p(f"v_cvt_pk_bf16_f32 v{b+6}, v{b+6}, v{b+7}\nv_cvt_pk_bf16_f32 v{b+7}, v{b+8}, v{b+9}")
        p(f"v_cvt_pk_bf16_f32 v{b+8}, v{b+10}, v{b+11}\nv_cvt_pk_bf16_f32 v{b+9}, v{b+12}, v{b+13}")
        p(f"ds_write_b128 v10, v[{b+6}:{b+9}] offset:{rt*18*1024+1024}")
        return L
    def late_pq():
        for rt in (2, 3):
            pql(rt, 254, 255); vm.extend([f"p{rt}"] * 3)
    if PORD == "qk": MM_(0); MM_(1)
    else:
        if LATEM == 1: late_pq()
        MX(0); MM_(0)
        if LATEM == 2: late_pq()
        MX(1); MM_(1)
        if LATEM == 3: late_pq()
    for x in V(0): a(x)
    if not LATEM: MX(2); MM_(2)
    for x in V(1): a(x)
    if not LATEM: MX(3); MM_(3)
    a("s_waitcnt lgkmcnt(0)")
    a("s_barrier")
    stamp(11)
    OA = 68
    OF = 16
    q_ = []; done = [-1]
    def lds(t, tag=None): a(t); q_.append(tag)
    def wait_for(tags):
        idx = max(i for i, t in enumerate(q_) if t in tags)
        if idx > done[0]:
            n = len(q_) - 1 - idx
            a(f"s_waitcnt lgkmcnt({min(n, 15)})")
            done[0] = idx if n <= 15 else len(q_) - 16
    def emit(x):
        if "@" in x: t, g = x.split("@"); lds(t, g)
        elif x.startswith("ds_"): lds(x)
        else: a(x)
    late = [x + "@W" for s in (16, 17) for x in wotr(a, s, 0, 0x1c000)]
    LA = 5
    def ofr(ps, k): return 240 + 4*k if (LATEM and ps == 0 and k < 3) else OF + 4*(k%8)
    def ord_(ps, k): lds(f"ds_read_b128 v[{ofr(ps,k)}:{ofr(ps,k)+3}], v8 offset:{(ps*36 + k)*1024}", ("O", ps, k))
    def epi(ps):
        d = OA + 8*ps; p = 84 + 4*ps
        L = [f"v_cvt_pk_bf16_f32 v{p+k}, v{d+2*k}, v{d+2*k+1}" for k in range(4)]
        L += ["v_nop", f"v_permlane16_swap_b32 v{p}, v{p+2}", f"v_permlane16_swap_b32 v{p+1}, v{p+3}",
              f"ds_write_b128 v2, v[{p}:{p+3}] offset:{8192*ps}", f"ds_read_b128 v[{p+8}:{p+11}], v9 offset:{8192*ps}@E{ps}"]
        return L
    def store(ps):
        wait_for({f"E{ps}"})
        if ps: a("v_add_u32 v3, s37, v3")
        a(f"global_store_dwordx4 v3, v[{92+4*ps}:{95+4*ps}], s[24:25] {STB}")
    for ps in range(2):
        fill = (V(2) + late + V(3)) if ps == 0 else ["s_nop 0"] * 4 + epi(0)
        if ps == 1:
            a("s_cmp_ge_u32 s50, 1152")
            a("s_cbranch_scc1 L_fin")
        lm = LATEM and ps == 0
        nxt = 3 if lm else LA
        for k in range(nxt): ord_(ps, k)
        if lm: MX(2); MM_(2)
        for k in range(18):
            wait_for({("O", ps, k)} | ({"W"} if k >= 16 else set()))
            for t in range(2):
                d = OA + 8*ps + 4*t
                mf(d, WOF + 8*k + 4*t, ofr(ps, k), "0" if k == 0 else f"v[{d}:{d+3}]")
                if lm and k == 0 and t == 1: MX(3); MM_(3)
                if not (lm and k == 0 and t == 0):
                    for _ in range(2):
                        if nxt < 18 and nxt <= k + LA: ord_(ps, nxt); nxt += 1
                for _ in range(3 if NSC and ps == 0 else 2):
                    if fill and not (lm and k == 0): emit(fill.pop(0))
            if ps == 1 and k == 9: store(0)
        assert not fill
        if ps == 0:
            a("s_waitcnt lgkmcnt(0)"); done[0] = len(q_) - 1
            a("s_barrier")
            stamp(12)
    for x in epi(1): emit(x)
    store(1)
    stamp(13)
```

```python
import os
from gen_a import hexf, LOG2E
DBG = os.environ.get('DBG', '')
STB = os.environ.get('STB', 'sc1')
PORD = os.environ.get('PORD', 'cc')
QW = int(os.environ.get('QW', '8'))
POLL2 = int(os.environ.get('POLL2', '0'))
KW = int(os.environ.get('KW', '8'))
KRT = int(os.environ.get('KRT', '4'))
NSC = int(os.environ.get('NSC', '1'))
PQW = int(os.environ.get('PQW', '4'))
PQE = int(os.environ.get('PQE', '2')) if PORD == 'qk' else 0
FAIR = int(os.environ.get('FAIR', '0'))
PSLEEP = int(os.environ.get('PSLEEP', '6'))
SHARD = int(os.environ.get('SHARD', '16'))
LATEM = int(os.environ.get('LATEM', '3'))
ROTW = int(os.environ.get('ROTW', '1'))
ROTR = int(os.environ.get('ROTR', '1'))
FULL = int(os.environ.get('FULL', '1'))
NS = 4
WROW = 288
WSZ = 64 * WROW
EXS = 160
LCNT = 163776
EX = LCNT - 2 * 128 * EXS
B_LDS = 163840
EPI = 147456
RXB = 147456
RXF = 157696
KVACC, CNT, PQC, PQ, PQL, WS_SZ = 0, 0xC000, 0xB000, 0x100000, 0x300000, 0x400000
PAIRB = 2816
O_MMB, O_LD, O_XM, O_XL = 1024, 2048, 2304, 2688
EPS = 1e-6
ONE_EPS = 1.0 + 1e-6
OOB = "0x7ffffff0"
SX, SW, SWO, SWS, SDB = 44, 48, 52, 56, 60
WSR = f"s[{SWS}:{SWS+3}]"
WOF = 112
AS0 = 23

def srd(a, r, p, size):
    a(f"s_mov_b32 s{r}, s{p}\ns_mov_b32 s{r+1}, s{p+1}\ns_mov_b32 s{r+2}, {size}\ns_mov_b32 s{r+3}, 0x20000")

PFS = [int(x) for x in os.environ.get("PFS", "8,7,1,3,5,6").split(",")]
def pf_setup(a, v, t):
    a(f"s_sub_u32 s53, s43, {AS0}")
    a("s_lshl_b32 s53, s53, 3")
    a("s_add_u32 s53, s53, s31")
    a("s_mul_i32 s57, s53, 43")
    a("s_lshr_b32 s57, s57, 10")
    a("s_mul_i32 s58, s57, 24")
    a("s_sub_u32 s58, s53, s58")
    a("s_lshl_b32 s57, s57, 2")
    a(f"v_min_u32 v{t}, 14, v2")
    a(f"v_mul_u32_u24 v{t+1}, 52, v{t}")
    a(f"v_lshrrev_b32 v{t+1}, 8, v{t+1}")
    a(f"v_mul_u32_u24 v{t+1}, {1152-640}, v{t+1}")
    a(f"v_lshl_add_u32 v{t}, v{t}, 7, v{t+1}")
    a(f"v_mul_u32_u24 v{t+1}, 3456, v3")
    a(f"s_mul_i32 s59, s58, {4*3456}")
    a("s_and_b32 s3, s42, 4")
    a("s_lshl_b32 s3, s3, 7")
    a("s_add_u32 s59, s59, s3")
    a(f"v_add3_u32 v{t}, v{t}, v{t+1}, s59")
    a("s_lshl_b32 s3, s34, 9")
    a("s_lshl_b32 s59, s58, 6")
    a("s_add_u32 s3, s3, s59")
    a("s_sub_u32 s3, s3, 1024")
    a(f"v_add_u32 v{t+1}, s3, v1")
    a(f"v_mul_u32_u24 v{t+1}, 1152, v{t+1}")
    a("s_cmp_lt_u32 s58, 16")
    a("s_cselect_b64 vcc, -1, 0")
    a("s_movk_i32 s56, 128")
    a(f"s_cselect_b32 s56, {64*3456}, s56")
    a(f"v_cndmask_b32 v{v}, v{t+1}, v{t}, vcc")
def pf_base(a):
    a("s_cmp_lt_u32 s58, 16")
    a("s_cselect_b64 s[54:55], s[20:21], s[18:19]")
def pf_round(a, v, dst, r):
    tab = sum(PFS[3*r + i] << (4*i) for i in range(3))
    a(f"s_lshr_b32 s3, {tab:#x}, s57")
    a("s_and_b32 s3, s3, 15")
    a("s_mul_i32 s3, s3, s56")
    a(f"v_add_u32 v{dst}, s3, v{v}")
    a(f"global_load_dword v{dst}, v{dst}, s[54:55]")

def role_zero(a):
    a.c("---------------- zero-init WG ----------------")
    a("v_lshlrev_b32 v2, 4, v0")
    for i in range(4): a(f"v_mov_b32 v{4+i}, 0")
    a("s_mov_b32 s33, 0")
    a("s_waitcnt lgkmcnt(0)")
    srd(a, SWS, 28, WS_SZ); srd(a, SDB, 26, 256)
    for j in range(8):
        a(f"buffer_store_dwordx4 v[4:7], v2, {WSR}, s33 offen sc1")
        a("s_add_u32 s33, s33, 8192")
    a("s_waitcnt vmcnt(0)")
    a("s_barrier")
    a("s_cmp_lg_u32 s31, 0")
    a("s_cbranch_scc1 L_fin")
    a("v_mov_b32 v8, 1")
    a("s_mov_b64 exec, 1")
    a(f"buffer_atomic_add v8, v4, s[{SDB}:{SDB+3}], 0 offen")
    a("s_mov_b64 exec, -1")
    a("s_branch L_fin")

def phi4(a, r, t, d):
    if isinstance(a, list):
        L = a; a = lambda x: L.append(x)
    for h in (0, 2):
        a(f"v_pk_fma_f32 v[{t+h}:{t+h+1}], v[{r+h}:{r+h+1}], s[40:41], v[250:251]|v_fma_f32 v{t+h}, v{r+h}, s40, v250|v_fma_f32 v{t+h+1}, v{r+h+1}, s40, v250")
    for i in range(4): a(f"v_exp_f32_e64 v{t+i}, v{t+i} clamp")
    for h in (0, 2):
        a(f"v_pk_add_f32 v[{t+h}:{t+h+1}], v[{t+h}:{t+h+1}], v[252:253]|v_add_f32 v{t+h}, v252, v{t+h}|v_add_f32 v{t+h+1}, v252, v{t+h+1}")
    for i in range(4): a(f"v_max_f32 v{t+i}, v{t+i}, v{r+i}")
    if d is not None:
        a(f"v_cvt_pk_bf16_f32 v{d}, v{t}, v{t+1}")
        a(f"v_cvt_pk_bf16_f32 v{d+1}, v{t+2}, v{t+3}")

def ct_calc(a):
    a("s_sub_u32 s97, 20, s43" if KRT == 5 else "s_mov_b32 s97, s43")
    a("s_mul_i32 s96, s97, 52")
    a("s_lshr_b32 s96, s96, 8")
    a("s_mul_i32 s3, s96, 5")
    a("s_sub_u32 s97, s97, s3")
def wo_voff(a, d):
    a("s_and_b32 s30, s31, 1")
    a("s_lshl_b32 s3, s30, 3")
    a(f"v_lshl_add_u32 v{d+2}, v3, 1, s3")
    a(f"v_xor_b32 v{d+2}, v{d+2}, v2")
    a("s_lshl_b32 s3, s97, 8")
    a(f"v_lshl_add_u32 v{d+2}, v{d+2}, 4, s3")
    a("s_and_b32 s3, s31, 3")
    a("s_lshl_b32 s95, s3, 10")
    a(f"v_lshl_add_u32 v{d}, v3, 2, s3")
    a(f"v_mul_u32_u24 v{d}, 1152, v{d}")
    a(f"v_add_u32 v{d}, v{d}, v{d+2}")
    a("s_mul_i32 s3, s3, 18")
    a("s_lshl_b32 s30, s30, 4")
    a("s_sub_u32 s3, s3, s30")
    a("s_add_u32 s3, s3, 16")
    a(f"v_lshrrev_b32 v{d+1}, 1, v3")
    a(f"v_mul_u32_u24 v{d+1}, 70, v{d+1}")
    a(f"v_add3_u32 v{d+1}, v{d+1}, v3, s3")
    a(f"v_mul_u32_u24 v{d+1}, 1152, v{d+1}")
    a(f"v_add_u32 v{d+1}, v{d+1}, v{d+2}")
def wo_loads(a, d, steps):
    for st in steps:
        for h in range(2):
            a(f"s_add_u32 m0, s95, {8192*st + 4096*h}")
            a(f"s_mov_b32 s3, {((36*st + 20*h) if st < 16 else (288*(st-16) + 144*h))*1152}")
            a(f"buffer_load_dwordx4 v{d + (st >= 16)}, s[{SWO}:{SWO+3}], s3 offen lds")
def wotr(a, s, ar, base=0):
    L = []
    for t in range(2):
        for h in range(2):
            r = WOF + 8*s + 4*t + 2*h
            L.append(f"ds_read_b64_tr_b16 v[{r}:{r+1}], v{ar+t} offset:{8192*s + 4096*h - base}")
    return L

def tr_addr(a, d):
    if isinstance(a, list):
        L = a; a = lambda x: L.append(x)
    a(f"v_lshrrev_b32 v{d}, 2, v2")
    a(f"v_lshl_add_u32 v{d}, v3, 2, v{d}")
    a(f"v_and_b32 v{d+1}, 7, v{d}")
    a(f"v_lshlrev_b32 v{d+1}, 1, v{d+1}")
    a(f"v_bfe_u32 v{d+2}, v2, 1, 1")
    a("s_lshr_b32 s3, s31, 1")
    a("s_lshl_b32 s3, s3, 2")
    a(f"v_add_u32 v{d+2}, s3, v{d+2}")
    a(f"v_xor_b32 v{d+1}, v{d+1}, v{d+2}")
    a(f"v_lshlrev_b32 v{d}, 8, v{d}")
    a(f"v_lshl_add_u32 v{d}, v{d+1}, 4, v{d}")
    a(f"v_and_b32 v{d+1}, 1, v2")
    a(f"v_lshl_add_u32 v{d}, v{d+1}, 3, v{d}")
    a(f"v_xor_b32 v{d+1}, 32, v{d}")
    a(f"v_add_u32 v{d+2}, 0x10000, v{d}")
    a(f"v_add_u32 v{d+3}, 0x10000, v{d+1}")
def wo_regs(a, d, n):
    for st in list(range(8, 14)) + list(range(7, -1, -1)):
        for x in (wotr(a, st, d) if st < 8 else wotr(a, st, d + 2, 0x10000)): a(x)
    a(f"v_add_u32 v0, 0x1c000, v{d}")

def lds_last(a, lab):
    a(f"v_mov_b32 v4, {LCNT}")
    a("v_mov_b32 v5, 1")
    a("s_waitcnt vmcnt(0)")
    a("s_mov_b64 exec, 1")
    a("ds_add_rtn_u32 v6, v4, v5")
    a("s_mov_b64 exec, -1")
    a("s_waitcnt lgkmcnt(0)")
    a("v_readfirstlane_b32 s3, v6")
    a("s_cmp_lg_u32 s3, 3")
    a(f"s_cbranch_scc1 {lab}")

def prep3(a):
    a("s_mov_b32 s33, s97")
    a("s_lshl_b32 s34, s42, 2")
    a("s_add_u32 s32, s96, s34")
    a("s_and_b32 s36, s31, 1")
    a("s_lshr_b32 s35, s31, 1")
    a(f"v_mov_b32 v8, {OOB}")
    a("v_lshlrev_b32 v9, 4, v1")
    a("s_add_u32 s40, s31, s43" if ROTW else "s_mov_b32 s40, s31")
    a("s_and_b32 s40, s40, 7")
    a("s_and_b32 s41, s33, 3" if ROTR else "s_mov_b32 s41, 0")
    a(f"s_mul_i32 s37, s40, {2*PAIRB}")
    a("v_and_b32 v6, 3, v2")
    a("v_bfe_u32 v7, v2, 2, 1")
    a("v_lshl_add_u32 v7, v7, 1, v6")
    a("v_cmp_gt_u32 vcc, 2, v6")
    a("v_cndmask_b32 v7, v7, v6, vcc")
    a("v_lshlrev_b32 v12, 4, v3")
    a("v_lshl_add_u32 v12, v7, 6, v12")
    a("v_cmp_gt_u32 s[44:45], 8, v2")
    a("s_or_b64 s[96:97], s[44:45], vcc")
    a("s_orn2_b64 vcc, vcc, s[44:45]")
    a("v_cndmask_b32 v13, v8, v12, vcc")
    a("v_cndmask_b32 v12, v8, v12, s[96:97]")
    a("v_lshlrev_b32 v10, 4, v2")
    a(f"v_lshlrev_b32 v11, 4, v7")
    a(f"v_add_u32 v11, {O_XL - O_LD}, v11")
    a("v_cmp_lt_u32 s[100:101], 1, v3")
    a("v_cndmask_b32 v10, v10, v11, s[100:101]")
    a("v_and_b32 v6, 1, v3")
    a(f"v_mul_u32_u24 v11, {PAIRB}, v6")
    a("v_add_u32 v10, v10, v11")
    a("v_cmp_eq_u32 s[98:99], 1, v6")
    a("v_cmp_eq_u32 s[44:45], 1, v7")
    a("v_cmp_lt_u32 s[46:47], 3, v7")
    a("s_or_b64 s[44:45], s[44:45], s[46:47]")
    a("s_andn2_b64 s[46:47], s[100:101], s[98:99]")
    a("s_and_b64 s[46:47], s[46:47], s[96:97]")
    a("s_and_b64 s[96:97], s[100:101], s[98:99]")
    a("s_and_b64 s[96:97], s[96:97], vcc")
    a("v_lshlrev_b32 v7, 3, v2")
    a("v_lshl_add_u32 v7, v6, 7, v7")
    a("s_lshl_b32 s38, s32, 6")
    a("s_lshl_b32 s39, s40, 1")
    a("s_add_u32 s38, s38, s39")
    a("s_lshl_b32 s39, s38, 7")
    a(f"s_add_u32 s39, s39, {PQL}")
    a("s_lshl_b32 s38, s38, 10")
    a(f"s_add_u32 s38, s38, {PQ}")

def role_gemm(a, kind, stamp):
    Q = kind == "q"
    RT = (9 - KRT) if Q else KRT
    R = 32 * RT
    XSZ = R * 128
    SLOT = XSZ + WSZ
    NL = 5 + RT
    L = lambda s: f"L_{kind}_{s}"
    a.c(f"---------------- role {kind} ----------------")
    rstamp = stamp
    if "stA" in DBG or "stB" in DBG: stamp = lambda i: None
    a("s_cmp_lt_u32 s31, 4")
    a(f"s_cbranch_scc1 {L('comp')}")
    a("s_sub_u32 s35, s31, 4")
    a("s_and_b32 s37, s35, 1")
    a(f"s_mul_i32 s34, s33, {R}")
    a(f"s_mul_i32 s36, s35, {8*RT}")
    a("s_add_u32 s36, s36, s34")
    a("v_lshrrev_b32 v4, 3, v1")
    a("v_add_u32 v4, s36, v4")
    a("v_mul_u32_u24 v4, 1152, v4")
    a("v_and_b32 v5, 7, v1")
    a("v_xor_b32 v5, v5, v3")
    if RT % 2:
        a("s_lshl_b32 s36, s37, 2")
        a("v_xor_b32 v5, s36, v5")
    a("v_lshl_add_u32 v10, v5, 4, v4")
    a("v_xor_b32 v5, 4, v5")
    a("v_lshl_add_u32 v11, v5, 4, v4")
    a(f"s_mul_i32 s38, s35, {1024*RT}")
    a("s_lshr_b32 s36, s35, 1")
    a("s_lshl_b32 s36, s36, 3")
    a("s_add_u32 s36, s36, s37")
    a(f"s_mul_i32 s36, s36, {4*3456}")
    a(f"s_mul_i32 s39, s32, {288 if Q else 144}")
    a("s_add_u32 s36, s36, s39")
    if not Q: a("s_add_u32 s36, s36, 1152")
    a(f"s_mul_i32 s39, s35, {16*WROW}")
    a(f"s_mov_b32 s{SW+2}, 1990656\ns_mov_b32 s{SW+3}, 0x20000\ns_mov_b32 s{SX+2}, 2359296\ns_mov_b32 s{SX+3}, 0x20000")
    def wcalc(t):
        if t: a(f"v_add_u32 v4, {64*t}, v1")
        src = "v4" if t else "v1"
        if Q:
            a(f"v_mul_u32_u24 v5, 3641, {src}")
            a("v_lshrrev_b32 v5, 16, v5")
            a(f"v_lshl_add_u32 v6, {src}, 4, s36")
            a(f"v_mul_u32_u24 v7, {3456-288}, v5")
        else:
            a(f"v_mul_u32_u24 v5, 7282, {src}")
            a("v_lshrrev_b32 v5, 16, v5")
            a(f"v_lshl_add_u32 v6, {src}, 4, s36")
            a("v_mul_u32_u24 v7, 1008, v5")
            a("v_lshrrev_b32 v5, 1, v5")
            a("v_mad_u32_u24 v7, v5, s34, v7")
        a("v_lshrrev_b32 v5, 2, v5")
        a(f"v_mul_u32_u24 v5, {4*3456}, v5")
        a(f"v_add3_u32 v{13+t}, v5, v6, v7")
    def wload(slot, t):
        if t == 4: a("s_mov_b32 exec_hi, 0")
        a(f"s_add_u32 m0, s39, {slot*SLOT + XSZ + 1024*t}")
        a(f"buffer_load_dwordx4 v{13+t}, s[{SW}:{SW+3}], s30 offen lds")
        if t == 4: a("s_mov_b32 exec_hi, -1")
    def xpart(slot):
        a("s_lshl_b32 s30, s94, 7")
        for t in range(RT):
            a(f"s_add_u32 m0, s38, {slot*SLOT + 1024*t}")
            a(f"s_add_u32 s3, s30, {8*1152*t}")
            a(f"buffer_load_dwordx4 v{10+(t&1)}, s[{SX}:{SX+3}], s3 offen lds")
        a(f"s_mul_i32 s30, s94, {64*3456}")
        a("s_add_u32 s94, s94, 1")
        a("s_cmp_eq_u32 s94, 9")
        a("s_cselect_b32 s94, 0, s94")
    def stage(slot):
        xpart(slot)
        for t in range(5): wload(slot, t)
    a("s_movk_i32 s34, 1152")
    wcalc(0); wcalc(1)
    a("s_waitcnt lgkmcnt(0)")
    a(f"s_mov_b64 s[{SW}:{SW+1}], s[20:21]\ns_mov_b64 s[{SX}:{SX+1}], s[18:19]")
    xpart(0)
    wload(0, 0); wload(0, 1)
    for t in (2, 3, 4): wcalc(t); wload(0, t)
    stamp(1)
    stage(1)
    srd(a, SWS, 28, WS_SZ); srd(a, SDB, 26, 256); srd(a, SWO, 22, 663552)
    ct_calc(a)
    wo_voff(a, 21)
    tr_addr(a, 106)
    a("v_mov_b32 v4, 0")
    issue = {s: [s + 2] for s in range(7)}
    early = {7: [5, 6, 7, 8], 8: [9, 10]}
    out = [("S", 0)] * NL + [("S", 1)] * NL
    for s in range(9):
        idx = max(i for i, t in enumerate(out) if t == ("S", s))
        a(f"s_waitcnt vmcnt({len(out) - 1 - idx})")
        if "stA" in DBG: rstamp(1 + s)
        a("s_barrier")
        if "stB" in DBG: rstamp(1 + s)
        if s == 5:
            a(f"buffer_load_dword v24, v4, s[{SDB}:{SDB+3}], 0 offen sc1"); out.append("R")
        for st in issue.get(s, []):
            if "noload" not in DBG: stage(st % NS)
            out += [("S", st)] * NL
        if s in early:
            wo_loads(a, 21, early[s]); out += ["W"] * (2 * len(early[s]))
    stamp(2)
    a("v_readfirstlane_b32 s37, v24")
    a("s_mov_b32 s36, 0")
    a("s_cmp_lg_u32 s37, 0")
    a(f"s_cbranch_scc1 {L('rdy2')}")
    a(f"{L('rdy')}:")
    a(f"buffer_load_dword v5, v4, s[{SDB}:{SDB+3}], 0 offen sc1")
    a("s_add_u32 s36, s36, 1")
    a("s_waitcnt vmcnt(0)")
    a("v_readfirstlane_b32 s37, v5")
    a("s_cmp_ge_u32 s36, 0x10000")
    a(f"s_cbranch_scc1 {L('rdy2')}")
    a("s_cmp_eq_u32 s37, 0")
    a(f"s_cbranch_scc1 {L('rdy')}")
    a(f"{L('rdy2')}:")
    a("s_barrier")
    lst = [11, 12, 13, 0, 1, 2, 3, 4, 14, 15, 16, 17]
    nb = QW if Q else KW
    wo_loads(a, 21, lst[:nb])
    prep3(a)
    a("s_barrier")
    stamp(3)
    wo_loads(a, 21, lst[nb:])
    stamp(4)
    a("s_waitcnt vmcnt(0)")
    a("s_branch L_bjoin")
    a(f"{L('comp')}:")
    ct_calc(a)
    a("s_and_b32 s35, s31, 1")
    a("s_lshr_b32 s36, s31, 1")
    XA0, XA1, WA, LA = 4, 5, 6, 7
    a("v_lshrrev_b32 v9, 1, v2")
    a("v_xor_b32 v9, v9, v3")
    a("v_lshlrev_b32 v10, 7, v2")
    a("v_lshl_add_u32 v10, v9, 4, v10")
    a(f"s_mul_i32 s37, s35, {RT*2048}")
    a(f"v_add_u32 v{XA0}, s37, v10")
    a(f"v_xor_b32 v{XA1}, 64, v{XA0}")
    a("v_lshrrev_b32 v9, 2, v2")
    a("v_and_b32 v10, 3, v2")
    a("v_lshl_add_u32 v11, v3, 2, v9")
    a(f"v_mul_u32_u24 v11, {WROW}, v11")
    a(f"s_mul_i32 s37, s36, {144 if Q else 72}")
    a(f"s_add_u32 s37, s37, {XSZ}")
    a("v_add_u32 v11, s37, v11")
    a(f"v_lshl_add_u32 v{WA}, v10, 3, v11")
    a("v_and_b32 v12, 1, v10")
    a(f"v_mul_u32_u24 v12, {72 if Q else 144}, v12")
    a(f"v_add3_u32 v{LA}, v11, v12, 32")
    a(f"v_mov_b32 v12, {LCNT}\nv_mov_b32 v14, 0\nv_mov_b32 v15, 0")
    a("ds_write_b32 v12, v14")
    ACC = 16
    def acc(rt, t): return ACC + 4 * (5 * rt + t)
    a(f"v_mov_b32 v8, {hexf(ONE_EPS)}\nv_mov_b32 v9, v8")
    if not Q:
        a("v_lshrrev_b32 v10, 2, v2")
        a("v_cmp_eq_u32 s[98:99], 1, v10")
        a("v_cmp_eq_u32 s[100:101], 3, v10")
        a("v_cndmask_b32 v10, v8, 0, s[98:99]")
        a("v_mov_b32 v11, v10")
    for rt in range(RT):
        for t in range(5):
            src = "v[8:9]" if Q or t < 2 else ("v[10:11]" if t == 4 else "v[14:15]")
            for i in (0, 2): a(f"v_mov_b64 v[{acc(rt,t)+i}:{acc(rt,t)+i+1}], {src}")
    F = [120, 160]
    woff = [0, 40, 72, 112] if Q else [0, 40, 144, 184]
    TORD = [0, 1, 4, 2, 3]
    def reads(kk):
        f = F[kk]; Lr = []
        def w(t):
            for h in range(2):
                ad, o = (WA, woff[t]) if t < 4 else (LA, 0)
                Lr.append(f"ds_read_b64_tr_b16 v[{f+20+4*t+2*h}:{f+20+4*t+2*h+1}], v{ad} offset:{o + (32*kk + 16*h)*WROW}")
        w(TORD[0])
        for rt in range(RT): Lr.append(f"ds_read_b128 v[{f+4*rt}:{f+4*rt+3}], v{(XA0,XA1)[kk]} offset:{2048*rt}")
        for t in TORD[1:]: w(t)
        return Lr
    def one(kk, rt, t):
        f = F[kk]
        w, x = f"v[{f+20+4*t}:{f+23+4*t}]", f"v[{f+4*rt}:{f+4*rt+3}]"
        if not Q: w, x = x, w
        return f"v_mfma_f32_16x16x32_bf16 v[{acc(rt,t)}:{acc(rt,t)+3}], {w}, {x}, v[{acc(rt,t)}:{acc(rt,t)+3}]"
    def mfmas(kk):
        return [one(kk, rt, t) for t in TORD for rt in range(RT)]
    def inter(M, Rd):
        if "nocomp" in DBG: return
        if "noread" in DBG: Rd = []
        for k, m in enumerate(M):
            if k < len(Rd): a(Rd[k])
            a(m)
    a(f"s_mov_b32 s40, {hexf(LOG2E)}\ns_mov_b32 s41, s40")
    a(f"v_mov_b32 v250, {hexf(-ONE_EPS*LOG2E)}\nv_mov_b32 v251, v250")
    a(f"v_mov_b32 v252, {hexf(EPS)}\nv_mov_b32 v253, v252")
    a("s_waitcnt lgkmcnt(0)")
    srd(a, SWS, 28, WS_SZ); srd(a, SWO, 22, 663552)
    stamp(1)
    post = []
    p = lambda t: post.extend(x.strip() for x in t.split("\n") if x.strip())
    if Q:
        p("v_lshlrev_b32 v8, 4, v1")
        p("v_lshlrev_b32 v9, 3, v1")
        p(f"s_mul_i32 s38, s33, {2*RT}")
        p(f"s_mul_i32 s39, s35, {RT}")
        p("s_add_u32 s38, s38, s39")
        p("s_lshl_b32 s38, s38, 4")
        p("s_lshl_b32 s39, s32, 2")
        p("s_add_u32 s38, s38, s39")
        p("s_lshl_b32 s39, s36, 1")
        p("s_add_u32 s38, s38, s39")
        p("s_lshl_b32 s37, s38, 10")
        p(f"s_add_u32 s37, s37, {PQ}")
        p("s_lshl_b32 s39, s38, 7")
        p(f"s_add_u32 s39, s39, {PQL}")
        p(f"s_mov_b32 s{SX}, s28\ns_mov_b32 s{SX+1}, s29\ns_mov_b32 s{SX+2}, {PQL}\ns_mov_b32 s{SX+3}, 0x20000")
        p(f"s_mov_b32 s{SW}, s28\ns_mov_b32 s{SW+1}, s29\ns_mov_b32 s{SW+2}, {PQL + 0x40000}\ns_mov_b32 s{SW+3}, 0x20000")
    else:
        p(f"s_mul_i32 s38, s33, {2*RT}")
        p(f"s_mul_i32 s39, s35, {RT}")
        p("v_mov_b32 v13, 0x3f803f80")
        p("s_add_u32 s38, s38, s39")
        p("s_lshl_b32 s51, s32, 1")
        p("s_add_u32 s51, s51, s36")
        p(f"s_mul_i32 s51, s51, {PAIRB}")
        p("s_lshl_b32 s50, s33, 3")
        p("s_add_u32 s50, s50, s32")
        p(f"s_and_b32 s50, s50, {SHARD-1}")
        p("s_lshl_b32 s50, s50, 7")
        p(f"s_add_u32 s50, s50, {CNT}")
        p("v_lshlrev_b32 v243, 11, v1")
        p(f"v_mov_b32 v8, {OOB}")
        p("v_lshrrev_b32 v9, 2, v2")
        p("v_and_b32 v10, 3, v2")
        p("v_lshlrev_b32 v11, 8, v9")
        p("v_lshl_add_u32 v11, v3, 4, v11")
        p("v_lshl_add_u32 v236, v10, 2, v11")
        p("v_cmp_gt_u32 s[44:45], 4, v2")
        p("v_cmp_gt_u32 s[46:47], 2, v2")
        p("v_cndmask_b32 v237, v8, v236, s[44:45]")
        p("v_cmp_eq_u32 vcc, 1, v3")
        p("v_cmp_eq_u32 s[48:49], 3, v3")
        p("v_lshlrev_b32 v9, 2, v2")
        p("v_cndmask_b32 v240, v8, v9, vcc")
        p("v_add_u32 v10, 128, v240")
        p("v_cndmask_b32 v238, v10, v9, s[48:49]")
        p("v_add_u32 v10, 256, v240")
        p("v_add_u32 v11, 64, v9")
        p("v_cndmask_b32 v239, v10, v11, s[48:49]")
        p("v_and_b32 v9, 1, v2")
        p("v_lshlrev_b32 v9, 2, v9")
        p("v_bfe_u32 v10, v2, 1, 1")
        p("v_lshl_add_u32 v11, v10, 4, v9")
        p("v_lshl_add_u32 v9, v10, 5, v9")
        p("v_add_u32 v9, 32, v9")
        p("v_cndmask_b32 v9, v8, v9, vcc")
        p("v_cndmask_b32 v242, v8, v9, s[44:45]")
        p("v_cndmask_b32 v9, v9, v11, s[48:49]")
        p("v_cndmask_b32 v241, v8, v9, s[44:45]")
        p("s_lshl_b32 s3, s31, 11")
        p(f"s_add_u32 s3, s3, {RXB}")
        p("v_lshl_add_u32 v248, v1, 4, s3")
        p("v_xor_b32 v249, 0x800, v248")
        p("s_lshl_b32 s3, s31, 9")
        p(f"s_add_u32 s3, s3, {RXF}")
        p("v_lshl_add_u32 v14, v1, 3, s3")
        p("v_xor_b32 v15, 0x200, v14")
        p("v_mov_b64 v[8:9], 0")
        p("ds_write_b64 v14, v[8:9]")
        p("s_waitcnt lgkmcnt(0)")
    tr_addr(post, 244)
    for x in post: a(x)
    for st in range(9):
        a("s_barrier")
        if st == 0:
            for x in reads(0): a(x)
        else: inter(mfmas(1), reads(0))
        a("s_waitcnt lgkmcnt(0)")
        if st < 8:
            dl = SLOT if (st + 1) % NS else -(NS - 1) * SLOT
            upd = [f"v_add_u32 v{r}, {dl & 0xffffffff:#x}, v{r}" for r in (XA0, XA1, WA, LA)]
            inter(mfmas(0), reads(1) + upd)
            a("s_waitcnt lgkmcnt(0)")
    T0_, T1_ = 200, 204
    def postp(rt):
        Lp = []
        d = 208 + 12 * (rt % 2)
        if Q:
            phi4(Lp, acc(rt, 0), T0_, d); phi4(Lp, acc(rt, 1), T1_, d + 2)
            Lp.append(f"buffer_store_dwordx4 v[{d}:{d+3}], v8, s[{SX}:{SX+3}], s37 offen sc1")
            phi4(Lp, acc(rt, 4), T0_, d + 8)
            Lp.append(f"s_mov_b32 exec_hi, 0\nbuffer_store_dwordx2 v[{d+8}:{d+9}], v9, s[{SW}:{SW+3}], s39 offen sc1\ns_mov_b32 exec_hi, -1")
            phi4(Lp, acc(rt, 2), T1_, d + 4); phi4(Lp, acc(rt, 3), T0_, d + 6)
            Lp.append(f"buffer_store_dwordx4 v[{d+4}:{d+7}], v8, s[{SX}:{SX+3}], s37 offen offset:1024 sc1")
            Lp.append("s_add_u32 s37, s37, 16384\ns_add_u32 s39, s39, 2048")
        else:
            pk = lambda t: acc(rt & ~1, t) + 2 * (rt & 1)
            for t in (0, 1): phi4(Lp, acc(rt, t), (T0_, T1_)[t], pk(t))
            phi4(Lp, acc(rt, 4), T0_, None)
            if RT % 2: Lp.append(f"s_add_u32 s39, s38, {rt}\ns_cmp_lt_u32 s39, 128\ns_cselect_b32 s39, 0x3f803f80, 0\nv_mov_b32 v13, s39")
            for i in range(4): Lp.append(f"v_cndmask_b32 v{T0_+i}, v{T0_+i}, v{acc(rt,4)+i}, s[98:99]")
            e = pk(4)
            Lp += [f"v_cvt_pk_bf16_f32 v{e}, v{T0_}, v{T0_+1}", f"v_cvt_pk_bf16_f32 v{e+1}, v{T0_+2}, v{T0_+3}",
                   f"v_cndmask_b32 v{e}, v{e}, v13, s[100:101]", f"v_cndmask_b32 v{e+1}, v{e+1}, v13, s[100:101]"]
            for t in (2, 3):
                e = pk(t)
                Lp += [f"v_cvt_pk_bf16_f32 v{e}, v{acc(rt,t)}, v{acc(rt,t)+1}", f"v_cvt_pk_bf16_f32 v{e+1}, v{acc(rt,t)+2}, v{acc(rt,t)+3}"]
                if rt == RT - 1 and RT % 2: Lp.append(f"v_mov_b64 v[{e+2}:{e+3}], 0")
            if rt == RT - 1 and RT % 2:
                for t in (0, 1, 4): Lp.append(f"v_mov_b64 v[{pk(t)+2}:{pk(t)+3}], 0")
        return Lp
    Rd = reads(1)
    first = [one(0, rt, t) for rt in range(2) for t in TORD]
    for k, m in enumerate(first):
        for x in Rd[2*k:2*k+2]: a(x)
        a(m)
    a("s_waitcnt lgkmcnt(0)")
    a("s_barrier")
    for t in TORD: a(one(1, 0, t))
    rest = []
    for rt in range(1, RT):
        rest += [(rt, one(1, rt, t)) for t in TORD]
        if rt + 1 < RT: rest += [(rt + 1, one(0, rt + 1, t)) for t in TORD]
    for _ in range(3): a(rest.pop(0)[1])
    stamp(2)
    KA = 208
    kvt = [(0, 2, 0), (1, 3, 1), (2, 2, 4), (3, 3, 4), (4, 4, 0), (5, 4, 1), (6, 4, 4)]
    def kvm(ks):
        r = 2 * ks
        return [(99, f"v_mfma_f32_16x16x32_bf16 v[{KA+4*i}:{KA+4*i+3}], v[{acc(r,x)}:{acc(r,x)+3}], v[{acc(r,y)}:{acc(r,y)+3}], " + ("0" if ks == 0 else f"v[{KA+4*i}:{KA+4*i+3}]"))
                for i, x, y in kvt]
    for rt in range(RT):
        while rest and rest[0][0] <= rt: a(rest.pop(0)[1])
        k = 0
        for x in postp(rt):
            alt = x.split("|")
            for y in (alt[1:] if len(alt) > 1 and rest and NSC else alt[:1]):
                a(y); k += 2 if y.startswith("v_exp") else 1
                if k >= 2 and rest: a(rest.pop(0)[1]); k = 0
        if not Q and (rt % 2 == 1 or rt == RT - 1): rest += kvm(rt // 2)
    while rest: a(rest.pop(0)[1])
    if not Q:
        at = lambda r, ad, o: a(f"buffer_atomic_add_f32 v{r}, v{ad}, {WSR}, s51 offen offset:{o}")
        for i in range(4): a(f"v_cndmask_b32 v{KA+8+i}, v{KA+12+i}, v{KA+8+i}, s[46:47]")
        a(f"v_mov_b64 v[{KA+18}:{KA+19}], v[{KA+22}:{KA+23}]")
        a(f"v_cndmask_b32 v{KA+24}, v{KA+26}, v{KA+24}, s[46:47]")
        a(f"v_cndmask_b32 v{KA+25}, v{KA+27}, v{KA+25}, s[46:47]")
        own = [(KA, KA + 8, KA + 24), (KA + 4, KA + 16, KA + 25)]
        a("s_cmp_eq_u32 s35, 1")
        a(f"s_cbranch_scc1 {L('rx1')}")
        for rh in range(2):
            if rh: a(f"{L('rx1')}:")
            o, k = own[1 - rh], own[rh]
            a(f"ds_write_b128 v248, v[{o[0]}:{o[0]+3}]")
            a(f"ds_write_b128 v248, v[{o[1]}:{o[1]+3}] offset:1024")
            a(f"ds_write2_b32 v14, v{o[2]}, v14 offset0:0 offset1:1")
            a("s_mov_b32 s3, 0")
            a(f"{L('rp' + str(rh))}:")
            a("ds_read_b64 v[200:201], v15")
            a("ds_read_b128 v[16:19], v249")
            a("ds_read_b128 v[20:23], v249 offset:1024")
            a("s_add_u32 s3, s3, 1")
            a("s_waitcnt lgkmcnt(0)")
            a("v_cmp_eq_u32 vcc, 0, v201")
            a("s_cmp_ge_u32 s3, 0x100000")
            a(f"s_cbranch_scc1 {L('rq' + str(rh))}")
            a(f"s_cbranch_vccnz {L('rp' + str(rh))}")
            a(f"{L('rq' + str(rh))}:")
            for j in range(2):
                for h in (0, 2): a(f"v_pk_add_f32 v[{k[j]+h}:{k[j]+h+1}], v[{k[j]+h}:{k[j]+h+1}], v[{16+4*j+h}:{17+4*j+h}]")
            a(f"v_add_f32 v{k[2]}, v{k[2]}, v200")
            if rh == 0:
                for i in range(4): at(KA + i, 236, 64*i)
                for i in range(4): at(KA + 8 + i, 237, O_LD + 64*i)
                at(KA + 24, 241, O_XL)
                a(f"s_branch {L('rxd')}")
            else:
                for i in range(4): at(KA + 4 + i, 236, O_MMB + 64*i)
                at(KA + 16, 238, O_XM); at(KA + 17, 240, O_XM + 192)
                at(KA + 18, 239, O_XM); at(KA + 19, 240, O_XM + 320)
                at(KA + 25, 242, O_XL + 16)
        a(f"{L('rxd')}:")
    stamp(3)
    a("s_barrier")
    a("v_mov_b64 v[106:107], v[244:245]\nv_mov_b64 v[108:109], v[246:247]")
    if Q:
        a("s_lshl_b32 s50, s33, 7")
        a(f"s_add_u32 s50, s50, {PQC}")
        a("v_mov_b32 v243, 0")
    prep3(a)
    lds_last(a, L("sig"))
    a(f"s_mov_b64 exec, {1 if Q else 0xff}")
    a(f"buffer_atomic_add v5, v243, {WSR}, s50 offen")
    a("s_mov_b64 exec, -1")
    a(f"{L('sig')}:")
    stamp(4)
    a("s_branch L_bjoin")

def phase3(a, stamp):
    a.c("---------------- phase 3 ----------------")
    if "stA" in DBG or "stB" in DBG: stamp = lambda i: None
    a("L_bjoin:")
    stamp(5)
    a("s_cmp_eq_u32 s43, 0" if KRT == 5 else "s_cmp_ge_u32 s43, 20")
    a("s_cbranch_scc1 L_fin")
    def poll_prep_q():
        a("s_lshl_b32 s34, s32, 1")
        a("v_add_u32 v104, s34, v101")
        a(f"v_mul_u32_u24 v104, {205 if KRT == 4 else 256}, v104")
        a("v_lshrrev_b32 v104, 10, v104")
        a("v_lshlrev_b32 v104, 7, v104")
        a(f"s_mov_b32 s34, {PQC}")
    def poll_prep_k():
        a("v_lshlrev_b32 v104, 7, v101")
        a("s_lshl_b32 s34, s42, 11")
        a(f"s_add_u32 s34, s34, {CNT}")
    def poll(wave, prep, nl, tgt, tag, two=False, bar=True):
        a(f"s_cmp_lg_u32 s31, {wave}")
        a(f"s_cbranch_scc1 L_pw{tag}")
        prep()
        a(f"s_mov_b64 exec, {hex((1 << nl) - 1)}")
        a("s_mov_b32 s3, 0")
        if two and POLL2:
            a(f"buffer_load_dword v254, v104, {WSR}, s34 offen sc1")
            a(f"s_sleep {POLL2}")
            a(f"L_poll{tag}:")
            for cur, nxt in ((254, 255), (255, 254)):
                a(f"buffer_load_dword v{nxt}, v104, {WSR}, s34 offen sc1")
                a("s_waitcnt vmcnt(1)")
                a(f"v_cmp_gt_u32 vcc, {tgt}, v{cur}")
                a("s_add_u32 s3, s3, 1")
                a(f"s_cbranch_vccz L_pd{tag}")
            a("s_cmp_lt_u32 s3, 0x20000")
            a(f"s_cbranch_scc1 L_poll{tag}")
        else:
            a(f"L_poll{tag}:")
            if PSLEEP: a(f"s_sleep {PSLEEP}")
            a(f"buffer_load_dword v105, v104, {WSR}, s34 offen sc1")
            a("s_add_u32 s3, s3, 1")
            a("s_waitcnt vmcnt(0)")
            a(f"v_cmp_gt_u32 vcc, {tgt}, v105")
            a("s_cmp_ge_u32 s3, 0x10000")
            a(f"s_cbranch_scc1 L_pd{tag}")
            a(f"s_cbranch_vccnz L_poll{tag}")
        a(f"L_pd{tag}:")
        a("s_mov_b64 exec, -1")
        a(f"L_pw{tag}:")
        if bar: a("s_barrier")
    AM = [16, 20, 24, 28]
    AX = [32, 36, 40, 44]
    PQR = 56
    T = 48
    def pql(rt, ad=9, al=7):
        b = PQR + 14 * rt
        a(f"s_add_u32 s3, s41, {rt}")
        a("s_and_b32 s3, s3, 3")
        a("s_lshl_b32 s30, s3, 14")
        a("s_add_u32 s30, s30, s38")
        a("s_lshl_b32 s3, s3, 11")
        a("s_add_u32 s3, s3, s39")
        a(f"buffer_load_dwordx4 v[{b+2}:{b+5}], v{ad}, {WSR}, s30 offen sc1")
        a(f"buffer_load_dwordx4 v[{b+8}:{b+11}], v{ad}, {WSR}, s30 offen offset:1024 sc1")
        a(f"buffer_load_dwordx2 v[{b+6}:{b+7}], v{al}, {WSR}, s3 offen sc1")
    def kvl():
        a(f"buffer_load_dwordx4 v[{AX[0]}:{AX[0]+3}], v102, {WSR}, s51 offen offset:{O_XM} sc1")
        a(f"buffer_load_dwordx4 v[{T}:{T+3}], v100, {WSR}, s51 offen offset:{O_LD} sc1")
        a(f"s_add_u32 s3, s51, {PAIRB}")
        a(f"buffer_load_dwordx4 v[{AX[2]}:{AX[2]+3}], v103, {WSR}, s3 offen offset:{O_XM} sc1")
        for c in range(2):
            o = c * PAIRB
            a(f"buffer_load_dwordx4 v[{AM[2*c]}:{AM[2*c]+3}], v98, {WSR}, s51 offen offset:{o} sc1")
            a(f"buffer_load_dwordx4 v[{AM[2*c+1]}:{AM[2*c+1]+3}], v98, {WSR}, s51 offen offset:{o+O_MMB} sc1")
    if PORD == "qk":
        stamp(6)
        poll(PQW, poll_prep_q, 2, 4, "q"); stamp(8)
        a("v_mov_b64 v[16:17], v[106:107]\nv_mov_b64 v[18:19], v[108:109]")
        a("v_add_u32 v0, 0x1c000, v106")
        trs = [x for st in range(14) for x in (wotr(a, st, 16) if st < 8 else wotr(a, st, 18, 0x10000))]
        for rt in range(PQE):
            pql(rt)
            for x in trs[36*rt//PQE:36*(rt+1)//PQE]: a(x)
        a("s_waitcnt lgkmcnt(0)")
        a("v_mov_b64 v[4:5], v[18:19]")
        stamp(7)
        poll(0, poll_prep_k, SHARD, (13 if KRT == 5 else 16) * 8 // SHARD, "k", two=True); stamp(9)
        kvl()
        for x in trs[36:]: a(x.replace("v18 ", "v4 ").replace("v19 ", "v5 "))
        for rt in range(PQE, 4): pql(rt)
        vm = [f"p{r}" for r in range(PQE) for _ in range(3)] + ["x"]*3 + ["m0"]*2 + ["m1"]*2 + [f"p{r}" for r in range(PQE, 4) for _ in range(3)]
    else:
        a("s_barrier")
        stamp(6)
        a("v_add_u32 v0, 0x1c000, v106")
        for st in range(14):
            for x in (wotr(a, st, 106) if st < 8 else wotr(a, st, 108, 0x10000)): a(x)
        a("v_mov_b32 v98, v9\nv_mov_b32 v99, v7\nv_mov_b32 v100, v10\nv_mov_b64 v[102:103], v[12:13]\nv_mov_b32 v254, v9\nv_mov_b32 v255, v7\nv_mov_b32 v101, v1")
        a("s_mov_b32 s51, s37")
        a("v_xor_b32 v5, 32, v0\nv_mov_b32 v4, v0")
        for s in (14, 15):
            for x in wotr(a, s, 4, 0x1c000): a(x)
        a("s_lshl_b32 s34, s40, 11")
        a("v_add_u32 v10, s34, v9")
        a("s_lshr_b32 s34, s40, 2")
        a("s_lshl_b32 s34, s34, 10")
        a("s_and_b32 s3, s40, 3")
        a("s_lshl_b32 s3, s3, 2")
        a("s_add_u32 s34, s34, s3")
        a(f"s_add_u32 s34, s34, {16*1024}")
        a("v_add_u32 v11, s34, v9")
        a(f"s_mul_i32 s34, s36, {18*1024}")
        a("v_add_u32 v8, s34, v9")
        a("s_lshl_b32 s34, s31, 10")
        a(f"s_add_u32 s34, s34, {EPI}")
        a("v_add_u32 v9, s34, v9")
        a("v_and_b32 v12, 1, v3")
        a("v_lshrrev_b32 v14, 1, v3")
        a("v_lshl_add_u32 v12, v12, 1, v14")
        if FULL:
            a("s_lshl_b32 s3, s35, 2")
            a("v_add_u32 v12, s3, v12")
            a("v_xor_b32 v12, v12, v2")
            a("v_lshl_add_u32 v12, v2, 4, v12")
            a("s_lshl_b32 s3, s36, 12")
            a(f"s_add_u32 s3, s3, {EPI}")
            a("v_lshl_add_u32 v12, v12, 4, s3")
            a("s_and_b32 s3, s31, 3")
            a("s_lshl_b32 s3, s3, 2")
            a("v_add_u32 v14, s3, v3")
            a("v_xor_b32 v15, v14, v2")
            a("v_cmp_eq_u32 vcc, 0, v3")
            a("v_mov_b32 v2, v12")
            a("s_lshr_b32 s3, s31, 2")
            a("s_add_u32 s3, s3, s41")
            a("s_and_b32 s3, s3, 3")
            a("s_cmp_lt_u32 s3, 2")
            a(f"s_mov_b32 s37, {32*2304}")
            a(f"s_cselect_b32 s37, s37, {(-32*2304) & 0xffffffff:#x}")
            a("s_lshl_b32 s34, s32, 6")
            a("s_lshl_b32 s3, s3, 4")
            a("s_add_u32 s34, s34, s3")
            a("v_add_u32 v14, s34, v14")
            a("v_mul_u32_u24 v14, 2304, v14")
            a("s_lshl_b32 s34, s33, 8")
            a("v_lshl_add_u32 v15, v15, 4, s34")
            a("s_movk_i32 s3, 1152")
            a("v_cmp_gt_u32 s[60:61], s3, v15")
            a("v_add3_u32 v3, v14, v15, s3")
            a("s_lshl_b32 s3, s35, 6")
            a("s_add_u32 s34, s34, s3")
        else:
            a("v_lshl_add_u32 v12, v2, 2, v12")
            a("v_cmp_eq_u32 vcc, 0, v3")
            a("v_lshl_add_u32 v2, v12, 4, s34")
            a("s_add_u32 s3, s36, s41")
            a("s_and_b32 s3, s3, 3")
            a("s_cmp_lt_u32 s3, 2")
            a(f"s_mov_b32 s37, {32*2304}")
            a(f"s_cselect_b32 s37, s37, {(-32*2304) & 0xffffffff:#x}")
            a("s_lshl_b32 s34, s32, 6")
            a("s_lshl_b32 s3, s3, 4")
            a("s_add_u32 s34, s34, s3")
            a("v_lshrrev_b32 v14, 2, v1")
            a("v_add_u32 v14, s34, v14")
            a("v_mul_u32_u24 v14, 2304, v14")
            a("v_and_b32 v15, 3, v1")
            a("v_lshl_add_u32 v14, v15, 4, v14")
            a("s_lshl_b32 s34, s33, 8")
            a("s_lshl_b32 s3, s35, 6")
            a("s_add_u32 s34, s34, s3")
            a("s_add_u32 s3, s34, 1152")
            a("v_add_u32 v3, s3, v14")
        a("v_xor_b32 v1, 32, v0")
        a(f"v_mov_b32 v12, {hexf(EPS)}\nv_mov_b32 v13, v12\nv_mov_b32 v14, 0\nv_mov_b32 v15, 0")
        a(f"v_mov_b32 v{AX[1]+2}, 0\nv_mov_b32 v{AX[3]+2}, 0")
        a("s_andn2_b64 s[48:49], s[98:99], s[100:101]")
        a("s_mov_b64 s[94:95], vcc")
        a("s_mov_b32 s50, s34")
        a("s_waitcnt lgkmcnt(0)")
        stamp(8)
        if PORD == "cc": poll(PQW, poll_prep_q, 2, 4, "q", bar=False)
        poll(0, poll_prep_k, SHARD, (13 if KRT == 5 else 16) * 8 // SHARD, "k", two=True); stamp(7)
        kvl()
        if PORD == "cc": pql(0, 98, 99); pql(1, 98, 99)
        vm = ["x"]*3 + ["m0"]*2 + ["m1"]*2 + [f"p{r}" for r in range(2 if PORD == "cc" else 0) for _ in range(3)]
    vdone = [-1]
    def vwait(tag):
        idx = max(i for i, t in enumerate(vm) if t == tag)
        if idx > vdone[0]:
            a(f"s_waitcnt vmcnt({len(vm) - 1 - idx})"); vdone[0] = idx
    def pmov(rt):
        b = PQR + 14 * rt
        vwait(f"p{rt}")
        a(f"v_mov_b64 v[{b}:{b+1}], v[{b+6}:{b+7}]\nv_mov_b64 v[{b+12}:{b+13}], v[{b+6}:{b+7}]")
    for rt in range(PQE): pmov(rt)
    def mf(d, x, y, c): a(f"v_mfma_f32_16x16x32_bf16 v[{d}:{d+3}], v[{x}:{x+3}], v[{y}:{y+3}], {c}")
    def regs(rt): return (PQR + 14 * rt, (48, 240, 48, 56)[rt], (52, 244, 52, 60)[rt], (4, 248, 4, 64)[rt])
    def MX(rt):
        b, X0, X1, D0 = regs(rt)
        ops = [b, b+4, b+6, b+10]
        if rt >= PQE: pmov(rt)
        mf(X0, AX[1], ops[1], "v[12:15]"); mf(X1, AX[3], ops[3], "v[12:15]")
        mf(X0, AX[0], ops[0], f"v[{X0}:{X0+3}]"); mf(X1, AX[2], ops[2], f"v[{X1}:{X1+3}]")
    def MM_(rt):
        b, X0, X1, D0 = regs(rt)
        ops = [b, b+4, b+6, b+10]
        mf(D0, AM[0], ops[0], "0")
        mf(b, AM[1], ops[1], "0")
        mf(b+6, AM[2], ops[2], "0")
        mf(b+10, AM[3], ops[3], "0")
    def conv(st=True):
        vwait("x")
        if st: stamp(9)
        a(f"v_cvt_pk_bf16_f32 v252, v{T}, v{T+1}")
        a(f"v_cvt_pk_bf16_f32 v253, v{T+2}, v{T+3}")
        for c in range(2):
            xa, xb = AX[2*c], AX[2*c+1]
            mk = "s[46:47]" if c == 0 else "s[96:97]"
            a(f"v_cvt_pk_bf16_f32 v{T+2}, v{xa}, v{xa+1}")
            a(f"v_cvt_pk_bf16_f32 v{T+3}, v{xa+2}, v{xa+3}")
            a(f"v_cndmask_b32 v{T+4}, 0, v252, {mk}")
            a(f"v_mov_b32 v{xa+1}, 0")
            a(f"v_cndmask_b32 v{xb}, 0, v{T+2}, s[44:45]")
            a(f"v_cndmask_b32 v{xb+1}, 0, v{T+3}, s[44:45]")
            a(f"v_cndmask_b32 v{xb+3}, 0, v{T+4}, s[44:45]")
            a(f"v_cndmask_b32 v{xa}, v{T+4}, 0, s[44:45]")
            a(f"v_cndmask_b32 v{xa+2}, v{T+2}, 0, s[44:45]")
            a(f"v_cndmask_b32 v{xa+3}, v{T+3}, 0, s[44:45]")
        for c in range(2):
            ma, mb = AM[2*c], AM[2*c+1]
            mk = "s[94:95]" if c == 0 else "s[48:49]"
            vwait(f"m{c}")
            a(f"v_cvt_pk_bf16_f32 v{ma+3}, v{ma+2}, v{ma+3}")
            a(f"v_cvt_pk_bf16_f32 v{ma+2}, v{ma}, v{ma+1}")
            a(f"v_cndmask_b32 v{ma}, 0, v252, {mk}")
            a(f"v_mov_b32 v{ma+1}, 0")
            a(f"v_cvt_pk_bf16_f32 v{mb}, v{mb}, v{mb+1}")
            a(f"v_cvt_pk_bf16_f32 v{mb+1}, v{mb+2}, v{mb+3}")
            a(f"v_mov_b32 v{mb+2}, 0")
            a(f"v_cndmask_b32 v{mb+3}, 0, v253, {mk}")
    if PORD == "cc": conv()
    else:
        a(f"s_cmp_eq_u32 s31, {PQW}")
        a("s_cbranch_scc1 L_skipconv")
        conv()
        a("L_skipconv:")
        poll(PQW, poll_prep_q, 2, 4, "q")
        stamp(10)
        pql(0, 98, 99); pql(1, 98, 99); vm.extend(["p0"]*3 + ["p1"]*3)
        a(f"s_cmp_lg_u32 s31, {PQW}")
        a("s_cbranch_scc1 L_skipconv2")
        conv(False)
        a("L_skipconv2:")
    def V(rt):
        b, X0, X1, D0 = regs(rt)
        L = []
        p = lambda t: L.extend(x.strip() for x in t.split("\n"))
        for x in (X0, X1):
            p(f"v_rcp_f32 v{x}, v{x}\nv_rcp_f32 v{x+1}, v{x+1}")
        if NSC: p(f"v_add_f32 v{X0+2}, v{X0+2}, v{X1+2}\nv_add_f32 v{X0+3}, v{X0+3}, v{X1+3}")
        else: p(f"v_pk_add_f32 v[{X0+2}:{X0+3}], v[{X0+2}:{X0+3}], v[{X1+2}:{X1+3}]")
        p(f"v_cndmask_b32 v{X1+2}, v{X0}, v{X0+1}, s[98:99]")
        p(f"v_cndmask_b32 v{X1+3}, v{X1}, v{X1+1}, s[98:99]")
        p(f"v_cndmask_b32 v{X1+2}, v{X1+2}, v{X1+3}, s[100:101]")
        if NSC: p(f"v_mul_f32 v{X0+2}, v{X0+2}, v{X1+2}\nv_mul_f32 v{X0+3}, v{X0+3}, v{X1+2}")
        else: p(f"v_pk_mul_f32 v[{X0+2}:{X0+3}], v[{X0+2}:{X0+3}], v[{X1+2}:{X1+3}] op_sel:[0,0] op_sel_hi:[1,0]")
        p(f"v_cvt_pk_bf16_f32 v{b+4}, v{X0+2}, v{X0+3}")
        p(f"ds_write_b32 v11, v{b+4} offset:{rt*18*1024}")
        for d, rc in ((D0, X0), (b, X0+1), (b+6, X1), (b+10, X1+1)):
            sel = "op_sel:[0,0] op_sel_hi:[1,0]" if rc % 2 == 0 else "op_sel:[0,1] op_sel_hi:[1,1]"
            rp = rc & ~1
            if NSC:
                for i in range(4): p(f"v_mul_f32 v{d+i}, v{d+i}, v{rc}")
                continue
            p(f"v_pk_mul_f32 v[{d}:{d+1}], v[{d}:{d+1}], v[{rp}:{rp+1}] {sel}")
            p(f"v_pk_mul_f32 v[{d+2}:{d+3}], v[{d+2}:{d+3}], v[{rp}:{rp+1}] {sel}")
        p(f"v_cvt_pk_bf16_f32 v{D0}, v{D0}, v{D0+1}\nv_cvt_pk_bf16_f32 v{D0+1}, v{D0+2}, v{D0+3}")
        p(f"v_cvt_pk_bf16_f32 v{D0+2}, v{b}, v{b+1}\nv_cvt_pk_bf16_f32 v{D0+3}, v{b+2}, v{b+3}")
        p(f"ds_write_b128 v10, v[{D0}:{D0+3}] offset:{rt*18*1024}")
        p(f"v_cvt_pk_bf16_f32 v{b+6}, v{b+6}, v{b+7}\nv_cvt_pk_bf16_f32 v{b+7}, v{b+8}, v{b+9}")
        p(f"v_cvt_pk_bf16_f32 v{b+8}, v{b+10}, v{b+11}\nv_cvt_pk_bf16_f32 v{b+9}, v{b+12}, v{b+13}")
        p(f"ds_write_b128 v10, v[{b+6}:{b+9}] offset:{rt*18*1024+1024}")
        return L
    def late_pq():
        for rt in (2, 3):
            pql(rt, 254, 255); vm.extend([f"p{rt}"] * 3)
    if PORD == "qk": MM_(0); MM_(1)
    else:
        if LATEM == 1: late_pq()
        MX(0); MM_(0)
        if LATEM == 2: late_pq()
        MX(1); MM_(1)
        if LATEM == 3: late_pq()
    for x in V(0): a(x)
    if not LATEM: MX(2); MM_(2)
    for x in V(1): a(x)
    if not LATEM: MX(3); MM_(3)
    a("s_waitcnt lgkmcnt(0)")
    a("s_barrier")
    stamp(11)
    OA = 68
    OF = 16
    q_ = []; done = [-1]
    def lds(t, tag=None): a(t); q_.append(tag)
    def wait_for(tags):
        idx = max(i for i, t in enumerate(q_) if t in tags)
        if idx > done[0]:
            n = len(q_) - 1 - idx
            a(f"s_waitcnt lgkmcnt({min(n, 15)})")
            done[0] = idx if n <= 15 else len(q_) - 16
    def emit(x):
        if "@" in x: t, g = x.split("@"); lds(t, g)
        elif x.startswith("ds_"): lds(x)
        else: a(x)
    late = [x + "@W" for s in (16, 17) for x in wotr(a, s, 0, 0x1c000)]
    LA = 5
    def ofr(ps, k): return 240 + 4*k if (LATEM and ps == 0 and k < 3) else OF + 4*(k%8)
    def ord_(ps, k): lds(f"ds_read_b128 v[{ofr(ps,k)}:{ofr(ps,k)+3}], v8 offset:{(ps*36 + k)*1024}", ("O", ps, k))
    def epi(ps):
        d = OA + 8*ps; p = 84 + 4*ps
        L = [f"v_cvt_pk_bf16_f32 v{p+k}, v{d+2*k}, v{d+2*k+1}" for k in range(4)]
        L += ["v_nop", f"v_permlane16_swap_b32 v{p}, v{p+2}", f"v_permlane16_swap_b32 v{p+1}, v{p+3}",
              f"ds_write_b128 v2, v[{p}:{p+3}] offset:{8192*ps}@X{ps}"]
        if not FULL: L.append(f"ds_read_b128 v[{p+8}:{p+11}], v9 offset:{8192*ps}@E{ps}")
        return L
    def xbar(ps):
        wait_for({f"X{ps}"})
        a("s_barrier")
        emit(f"ds_read_b128 v[{92+4*ps}:{95+4*ps}], v9 offset:{8192*ps}@E{ps}")
    def store(ps):
        wait_for({f"E{ps}"})
        if ps: a("v_add_u32 v3, s37, v3")
        if FULL: a("s_mov_b64 exec, s[60:61]")
        a(f"global_store_dwordx4 v3, v[{92+4*ps}:{95+4*ps}], s[24:25] {STB}")
        if FULL: a("s_mov_b64 exec, -1")
    for ps in range(2):
        fill = (V(2) + late + V(3)) if ps == 0 else ["s_nop 0"] * 4 + epi(0)
        if ps == 1:
            a("s_cmp_ge_u32 s50, 1152")
            a("s_cbranch_scc1 " + ("L_narrow" if FULL else "L_fin"))
        lm = LATEM and ps == 0
        nxt = 3 if lm else LA
        for k in range(nxt): ord_(ps, k)
        if lm: MX(2); MM_(2)
        for k in range(18):
            wait_for({("O", ps, k)} | ({"W"} if k >= 16 else set()))
            for t in range(2):
                d = OA + 8*ps + 4*t
                mf(d, WOF + 8*k + 4*t, ofr(ps, k), "0" if k == 0 else f"v[{d}:{d+3}]")
                if lm and k == 0 and t == 1: MX(3); MM_(3)
                if not (lm and k == 0 and t == 0):
                    for _ in range(2):
                        if nxt < 18 and nxt <= k + LA: ord_(ps, nxt); nxt += 1
                for _ in range(3 if NSC and ps == 0 else 2):
                    if fill and not (lm and k == 0): emit(fill.pop(0))
            if ps == 1 and k == 7 and FULL: xbar(0)
            if ps == 1 and k == (11 if FULL else 9): store(0)
        assert not fill
        if ps == 0:
            a("s_waitcnt lgkmcnt(0)"); done[0] = len(q_) - 1
            a("s_barrier")
            stamp(12)
    for x in epi(1): emit(x)
    if FULL: xbar(1)
    store(1)
    stamp(13)
    if FULL:
        a("s_branch L_fin")
        a("L_narrow:")
        for ps in range(2):
            a("s_barrier")
            a(f"ds_read_b128 v[{92+4*ps}:{95+4*ps}], v9 offset:{8192*ps}")
            a("s_waitcnt lgkmcnt(0)")
            if ps: a("v_add_u32 v3, s37, v3")
            a("s_mov_b64 exec, s[60:61]")
            a(f"global_store_dwordx4 v3, v[{92+4*ps}:{95+4*ps}], s[24:25] {STB}")
            a("s_mov_b64 exec, -1")
```

```python
import sys, os
from asmlib import *
import hazard
from gen_a import *
from gen_b import *

NST = 15
STAMP_OFF = 200 << 20
def build(stamps=False, do_a=True, do_b=True, do_p3=True):
    a = Asm()
    sbase = 64
    def stamp(i):
        if stamps: a(f"{'s_memtime' if os.environ.get('CYC') else 's_memrealtime'} s[{sbase+2*i}:{sbase+2*i+1}]")
    stamp(0)
    a("s_load_dwordx16 s[4:19], s[0:1], 0")
    a("s_load_dwordx8 s[20:27], s[0:1], 64")
    a("s_load_dwordx2 s[28:29], s[0:1], 96")
    a("s_cmp_ge_u32 s2, 256")
    a("s_cbranch_scc1 L_end")
    a("v_and_b32 v1, 63, v0")
    a("v_lshrrev_b32 v2, 6, v0")
    a("s_and_b32 s42, s2, 7")
    a("s_lshr_b32 s43, s2, 3")
    a("v_readfirstlane_b32 s31, v2")
    if not os.environ.get("NOCPF"):
        a("s_and_b32 s34, s43, 7")
        a("s_cmp_lg_u32 s34, s31")
        a("s_cbranch_scc1 L_nocpf")
        a("s_getpc_b64 s[36:37]")
        a("L_pc:")
        a("s_lshl_b32 s34, s34, 13")
        a("v_lshl_add_u32 v4, v1, 7, s34")
        a("v_min_u32 v4, L_code_end-L_pc-4, v4")
        a("v_mov_b32 v5, s37")
        a("v_add_co_u32 v4, vcc, s36, v4")
        a("v_addc_co_u32 v5, vcc, 0, v5, vcc")
        a("global_load_dword v255, v[4:5], off")
        a("L_nocpf:")
    if os.environ.get("SWAP9", "1") == "1":
        a("s_add_u32 s35, s42, 15")
        a("s_cmp_gt_u32 s2, 248")
        a("s_cselect_b32 s36, s35, s43")
        a("s_cselect_b32 s37, 0, s42")
        a("s_sub_u32 s35, s43, 16")
        a("s_cmp_lt_u32 s35, 7")
        a("s_cselect_b32 s38, s42, 1")
        a("s_add_u32 s35, s35, 1")
        a("s_cmp_eq_u32 s38, 0")
        a("s_cselect_b32 s43, 31, s36")
        a("s_cselect_b32 s42, s35, s37")
    a("v_and_b32 v2, 15, v1")
    a("v_lshrrev_b32 v3, 4, v1")
    a("s_and_b32 s34, s42, 3")
    if KRT == 5:
        a("s_cmp_ge_u32 s43, 13")
        a("s_cbranch_scc1 L_notkv")
        a("s_mul_i32 s35, s34, 13")
        a("s_add_u32 s35, s35, s43")
        a("s_lshr_b32 s33, s35, 2")
        a("s_and_b32 s36, s35, 3")
        a("s_and_b32 s32, s42, 4")
        a("s_add_u32 s32, s32, s36")
        a("s_add_u32 s94, s33, s36")
        if os.environ.get("ROT3", "1") == "1":
            a("s_mul_i32 s35, s94, 86")
            a("s_lshr_b32 s35, s35, 8")
            a("s_mul_i32 s35, s35, 3")
            a("s_sub_u32 s94, s94, s35")
            a("s_mul_i32 s94, s94, 3")
        else:
            a("s_and_b32 s94, s94, 3")
            a("s_lshl_b32 s94, s94, 1")
        role_gemm(a, "kv", stamp)
        a("L_notkv:")
        a(f"s_cmp_ge_u32 s43, {AS0}")
        a("s_cbranch_scc1 L_rolea")
        a("s_cmp_ge_u32 s43, 21")
        a("s_cbranch_scc1 L_spare")
        a("s_sub_u32 s35, s43, 13")
        a("s_lshr_b32 s33, s35, 1")
        a("s_lshl_b32 s36, s34, 2")
        a("s_add_u32 s33, s33, s36")
        a("s_and_b32 s36, s35, 1")
        a("s_lshr_b32 s32, s42, 1")
        a("s_and_b32 s32, s32, 2")
        a("s_add_u32 s32, s32, s36")
        a("s_mov_b32 s94, s35")
    else:
        a("s_cmp_ge_u32 s43, 16")
        a("s_cbranch_scc1 L_notkv")
        a("s_lshr_b32 s35, s43, 2")
        a("s_and_b32 s36, s43, 3")
        a("s_lshl_b32 s33, s34, 2")
        a("s_add_u32 s33, s33, s35")
        a("s_and_b32 s32, s42, 4")
        a("s_add_u32 s32, s32, s36")
        RK = os.environ.get("RK", "4")
        a("s_add_u32 s94, s35, s36")
        if RK == "4": a("s_and_b32 s94, s94, 3\ns_lshl_b32 s94, s94, 1")
        elif RK == "2": a("s_and_b32 s94, s94, 1\ns_lshl_b32 s94, s94, 2")
        elif RK == "4n": a("s_and_b32 s94, s94, 3")
        elif RK == "2n": a("s_and_b32 s94, s94, 1")
        else: a("s_mov_b32 s94, 0")
        role_gemm(a, "kv", stamp)
        a("L_notkv:")
        a(f"s_cmp_ge_u32 s43, {AS0}")
        a("s_cbranch_scc1 L_rolea")
        a("s_mul_i32 s35, s34, 107")
        a("s_add_u32 s36, s35, 107")
        a("s_lshr_b32 s35, s35, 4")
        a("s_lshr_b32 s36, s36, 4")
        a("s_add_u32 s35, s35, s43")
        a("s_sub_u32 s35, s35, 16")
        a("s_cmp_ge_u32 s35, s36")
        a("s_cbranch_scc1 L_spare")
        a("s_lshr_b32 s33, s35, 1")
        a("s_and_b32 s36, s35, 1")
        a("s_lshr_b32 s32, s42, 1")
        a("s_and_b32 s32, s32, 2")
        a("s_add_u32 s32, s32, s36")
        a("s_sub_u32 s94, s43, 16")
        if RK == "4": a("s_and_b32 s94, s94, 6")
        elif RK == "2": a("s_and_b32 s94, s94, 2\ns_lshl_b32 s94, s94, 1")
        elif RK == "4n": a("s_lshr_b32 s94, s94, 1")
        elif RK == "2n": a("s_lshr_b32 s94, s94, 1\ns_and_b32 s94, s94, 1")
        else: a("s_mov_b32 s94, 0")
    role_gemm(a, "q", stamp)
    phase3(a, stamp)
    a("s_branch L_fin")
    a("L_spare:")
    a("s_cmp_lg_u32 s42, 0")
    a("s_cbranch_scc1 L_end")
    role_zero(a)
    a("L_rolea:")
    if do_a:
        a("s_lshl_b32 s30, s42, 3")
        a("s_add_u32 s30, s30, s43")
        a(f"s_sub_u32 s30, s30, {AS0}")
        a("s_add_u32 s33, s42, 64")
        a("s_cmp_eq_u32 s43, 31")
        a("s_cselect_b32 s30, s33, s30")
        role_a(a, stamp, None if not os.environ.get('PF') else (pf_setup, pf_base, pf_round))
    a("L_fin:")
    if stamps:
        a("s_waitcnt vmcnt(0)")
        stamp(NST - 1)
        a("s_waitcnt lgkmcnt(0)")
        a("s_mov_b64 exec, 1")
        if os.environ.get("SPINK"):
            k = int(os.environ["SPINK"]); wsel = int(os.environ.get("DBGWG", "0")); wv = int(os.environ.get("DBGWV", "0"))
            a(f"s_cmp_lg_u32 s2, {wsel}")
            a("s_cbranch_scc1 L_end")
            a(f"s_cmp_lg_u32 s31, {wv}")
            a("s_cbranch_scc1 L_end")
            a("L_spin:")
            a("s_sleep 2")
            a("s_memrealtime s[62:63]")
            a("s_waitcnt lgkmcnt(0)")
            a(f"s_sub_u32 s3, s62, s{sbase+2*k}")
            a("s_cmp_lt_u32 s3, 3000")
            a("s_cbranch_scc1 L_spin")
            a("s_branch L_end")
        if "dbgout" in DBG:
            a("v_mov_b32 v2, 0")
            a(f"v_mov_b32 v4, s{sbase+2*(NST-1)}")
            a("global_atomic_umax v2, v4, s[26:27] offset:4")
            a(f"s_not_b32 s3, s{sbase}")
            a("v_mov_b32 v4, s3")
            a("global_atomic_umax v2, v4, s[26:27] offset:8")
            wsel = int(os.environ.get("DBGWG", "0")); wv = int(os.environ.get("DBGWV", "0"))
            a(f"s_cmp_lg_u32 s2, {wsel}")
            a("s_cbranch_scc1 L_end")
            a(f"s_cmp_lg_u32 s31, {wv}")
            a("s_cbranch_scc1 L_end")
            for i in range(1, 14):
                a(f"v_mov_b32 v4, s{sbase+2*i}")
                a(f"global_store_dword v2, v4, s[26:27] offset:{8+4*i}")
            a("s_branch L_end")
        a("s_lshl_b32 s3, s31, 8")
        a("s_add_u32 s3, s3, s2")
        a(f"s_mul_i32 s3, s3, {8*NST}")
        a(f"s_add_u32 s3, s3, {STAMP_OFF}")
        a("v_mov_b32 v2, s3")
        for i in range(NST):
            a(f"v_mov_b32 v4, s{sbase+2*i}\nv_mov_b32 v5, s{sbase+2*i+1}")
            a(f"global_store_dwordx2 v2, v[4:5], s[28:29] offset:{8*i}")
    a("L_end:")
    a("s_endpgm")
    a("L_code_end:")
    lines, n = hazard.fix(a.lines)
    print("nops inserted:", n, "lines", len(lines), file=sys.stderr)
    k = kernel_wrap(KN + "_kernel", "\n".join(lines), 256, 102, extra="  .amdhsa_float_denorm_mode_32 3\n")
    return make_file([f"; @launch grid=(256,1,1) block=(512,1,1) lds={B_LDS}"], [k])
if __name__ == "__main__":
    out = sys.argv[1]
    open(out, "w").write(build(stamps="--stamps" in sys.argv, do_a="--noa" not in sys.argv, do_p3="--nop3" not in sys.argv))
```

```python
import math, os
STA = os.environ.get("STA", "")
LOG2E = 1.4426950408889634
import struct
def f2u(x): return struct.unpack("<I", struct.pack("<f", x))[0]
def hexf(x): return "0x%08x" % f2u(x)
L2E_HI = struct.unpack("<f", struct.pack("<f", LOG2E))[0]
L2E_LO = LOG2E - L2E_HI

USTR = 4624
KBASE = 8 * USTR
KSTR = 8768
YOFF = 4352
EOFF = 2112
YSTR = 4160
GROW = 544
USTG = KBASE + 8 * KSTR
BSH = USTG + 32768
A_LDS = BSH + 8192

STREAMS = [(-24, 16, 2), (-16, 4, 1), (-16, 8, 2), (-16, 12, 1), (-24, 16, 4), (-16, 8, 3)]
BAND = 224
CUTS = [3, 6]
UDEF = int(os.environ.get('UDEF', '4'))
YQ = int(os.environ.get('YQ', '1'))
U0 = os.environ.get('U0', 'b')
ULATE = int(os.environ.get('ULATE', '1'))
def role_a(a, stamp=lambda i: None, pf=None):
    a.c("---------------- role A ----------------")
    if pf: pf[0](a, 216, 218)
    a("s_lshl_b32 s32, s30, 3")
    a("s_add_u32 s32, s32, s31")
    a("s_lshl_b32 s33, s32, 8")
    a("v_lshl_add_u32 v2, v1, 2, s33")
    a("s_lshl_b32 s33, s32, 1")
    a("v_mov_b32 v3, s33")
    a("s_waitcnt lgkmcnt(0)")
    a("global_load_dword v10, v2, s[6:7]")
    a("global_load_ushort v14, v3, s[14:15]")
    a("global_load_dword v11, v2, s[8:9]")
    a("global_load_dword v12, v2, s[10:11]")
    a("global_load_dword v13, v2, s[12:13]")
    a("global_load_ushort v15, v3, s[16:17]")
    a("v_mul_u32_u24 v252, 1152, v0")
    a("s_lshl_b32 s33, s30, 4")
    a("v_add_u32 v252, s33, v252")
    a("s_mov_b64 s[44:45], s[4:5]\ns_mov_b32 s46, 2359296\ns_mov_b32 s47, 0x20000")
    a("s_lshl_b32 s48, s31, 10")
    a(f"s_add_u32 s48, s48, {USTG}")
    a("s_and_b32 s49, s30, 1")
    def uload(h):
        if "nou" in os.environ.get("DBGA", ""): return
        a(f"s_lshl_b32 s3, s49, 13")
        a("s_add_u32 s3, s48, s3")
        a(f"s_add_u32 m0, s3, {16384*h}")
        a(f"s_mul_i32 s3, s49, {512*1152}")
        if h: a(f"s_add_u32 s3, s3, {1024*1152}")
        a("s_xor_b32 s49, s49, 1")
        a("buffer_load_dwordx4 v252, s[44:47], s3 offen lds")
    NPF = 0
    PF0, PF1 = os.environ.get('PFP', 'p,w').split(',')
    a("v_and_b32 v5, 15, v1")
    a("v_lshrrev_b32 v6, 4, v1")
    a(f"s_mul_i32 s34, s31, {KSTR}")
    a(f"s_add_u32 s34, s34, {KBASE}")
    a(f"s_mul_i32 s35, s31, {USTR}")
    a("v_lshl_add_u32 v7, v1, 3, s34")
    a(f"v_mul_u32_u24 v8, {GROW}, v5")
    a("v_lshl_add_u32 v8, v6, 4, v8")
    a("v_add_u32 v8, s34, v8")
    a("v_mov_b32 v16, 0\nv_mov_b32 v17, 0")
    a("v_lshl_add_u32 v9, v1, 3, s35")
    a("ds_write_b64 v9, v[16:17]")
    a(f"s_mov_b32 s36, {hexf(L2E_HI)}")
    a(f"s_mov_b32 s37, {hexf(L2E_LO)}")
    a(f"s_mov_b32 s38, {hexf(math.log(2.0))}")
    a("s_mov_b32 s39, 0xffff0000")
    a("v_lshlrev_b32 v20, 3, v6")
    a("v_sub_u32 v20, v20, v5")
    a("v_add_u32 v21, 1, v20")
    a("s_mov_b32 s40, 0x05040100")
    a("v_perm_b32 v20, v21, v20, s40")
    a("s_mov_b32 s41, 0x3f803f80")
    a("s_mov_b32 s50, 0x00010001")
    rng = [(-st - sh - hw, -st - sh + hw) for (st, sh, hw) in STREAMS] + [(12, 13), (12, 13)]
    tlo = sum((lo & 15) << (4*k) for k, (lo, hi) in enumerate(rng))
    tn = sum((hi - lo + 1) << (4*k) for k, (lo, hi) in enumerate(rng))
    assert all(0 <= lo < 16 for lo, hi in rng)
    a("s_lshl_b32 s3, s31, 2")
    a(f"s_lshr_b32 s52, {tlo:#x}, s3")
    a("s_and_b32 s52, s52, 15")
    a("s_mul_i32 s52, s52, s50")
    a(f"s_lshr_b32 s51, {tn:#x}, s3")
    a("s_and_b32 s51, s51, 15")
    a("s_mul_i32 s51, s51, s50")
    a("s_cmp_lt_u32 s31, 6")
    a("s_cselect_b32 s41, s41, s50")
    a("v_pk_sub_u16 v20, v20, s52")
    for d in range(4):
        r = BAND + d
        if d: a(f"s_mov_b32 s52, {hex(2 * d * 0x10001)}\nv_pk_add_u16 v{r}, v20, s52")
        a(f"v_pk_sub_u16 v{r}, s51, v{r if d else 20} clamp")
        a(f"v_pk_min_u16 v{r}, v{r}, s50")
        a(f"v_pk_mul_lo_u16 v{r}, v{r}, s41")
    a(f"v_lshlrev_b32 v222, 4, v1")
    a(f"v_add_u32 v222, {BSH}, v222")
    a("s_lshl_b32 s3, s31, 10")
    a("v_add_u32 v21, s3, v222")
    a(f"ds_write_b128 v21, v[{BAND}:{BAND+3}]")
    def wopf():
        a("s_and_b32 s58, s30, 7")
        a("s_lshl_b32 s3, s31, 3")
        a("s_add_u32 s58, s58, s3")
        a("s_lshl_b32 s3, s58, 13")
        a("v_lshl_add_u32 v220, v1, 7, s3")
        a("v_min_u32 v216, 14, v5")
        a("v_mul_u32_u24 v217, 52, v216")
        a("v_lshrrev_b32 v217, 8, v217")
        a(f"v_mul_u32_u24 v217, {1152-640}, v217")
        a("v_lshl_add_u32 v216, v216, 7, v217")
        a("v_mul_u32_u24 v217, 3456, v6")
        a(f"s_mul_i32 s59, s58, {4*3456}")
        a("s_and_b32 s3, s2, 4")
        a("s_lshl_b32 s3, s3, 7")
        a("s_add_u32 s59, s59, s3")
        a(f"s_add_u32 s59, s59, {512*3456}")
        a("v_add3_u32 v216, v216, v217, s59")
        a("s_and_b32 s3, s2, 3")
        a("s_lshl_b32 s3, s3, 9")
        a("s_lshl_b32 s59, s58, 6")
        a("s_add_u32 s3, s3, s59")
        a(f"s_sub_u32 s3, s3, {17*64}")
        a("v_add_u32 v217, s3, v1")
        a("v_max_i32 v217, 0, v217")
        a("v_min_i32 v217, 2047, v217")
        a("v_mul_u32_u24 v217, 1152, v217")
        a("v_add_u32 v217, 1024, v217")
        a(f"v_add_u32 v221, {(64-26)*8192}, v220")
        a("v_min_u32 v221, 663548, v221")
        a("s_cmp_lt_u32 s58, 26")
        a("s_cselect_b64 vcc, -1, 0")
        a("s_cselect_b64 s[54:55], s[18:19], s[22:23]")
        a("v_cndmask_b32 v221, v221, v217, vcc")
        a("s_cmp_lt_u32 s58, 16")
        a("s_cselect_b64 vcc, -1, 0")
        a("s_cselect_b64 s[54:55], s[20:21], s[54:55]")
        a("v_cndmask_b32 v221, v221, v216, vcc")
    WP = int(os.environ.get('WP', '0'))
    wopf()
    stamp(1)
    def exp_bf16(dst, x, t0, t1):
        a(f"v_mul_f32 v{t0}, s36, v{x}")
        a(f"v_fma_f32 v{t1}, v{x}, s36, -v{t0}")
        a(f"v_fmac_f32 v{t1}, s37, v{x}")
        a(f"v_exp_f32 v{t0}, v{t0}")
        a(f"v_mul_f32 v{t1}, s38, v{t1}")
        a(f"v_fma_f32 v{t0}, v{t0}, v{t1}, v{t0}")
        a(f"v_cvt_pk_bf16_f32 v{t0}, v{t0}, v{t0}")
        a(f"v_and_b32 v{dst}, s39, v{t0}")
    a(f"s_waitcnt vmcnt({4 + NPF})")
    a("v_lshlrev_b32 v20, 16, v10")
    a("v_and_b32 v21, s39, v10")
    a("v_lshlrev_b32 v14, 16, v14")
    exp_bf16(18, 14, 22, 23)
    exp_bf16(20, 20, 22, 23)
    exp_bf16(21, 21, 24, 25)
    a("v_mul_f32 v20, v20, v18\nv_mul_f32 v21, v21, v18")
    a("v_mul_f32 v20, s36, v20\nv_mul_f32 v21, s36, v21")
    a(f"s_waitcnt vmcnt({NPF})")
    if pf and PF0 == 'p': pf[1](a, 216, 0)
    if pf and PF1 == 'p': pf[1](a, 216, 1)
    a("v_lshlrev_b32 v22, 16, v11\nv_and_b32 v23, s39, v11")
    a("v_mul_f32 v22, v22, v18\nv_mul_f32 v23, v23, v18")
    a("v_mul_f32 v22, 0.15915494, v22\nv_mul_f32 v23, 0.15915494, v23")
    a("v_add_f32 v19, v18, v18")
    C = 24
    a("v_lshlrev_b32 v24, 16, v12\nv_and_b32 v25, s39, v12")
    a("v_lshlrev_b32 v26, 16, v13\nv_and_b32 v27, s39, v13")
    a("v_mul_f32 v24, v24, v19\nv_mul_f32 v25, v25, v19")
    a("v_mul_f32 v26, v26, -v19\nv_mul_f32 v27, v27, -v19" .replace("v_mul_f32", "v_mul_f32_e64"))
    a("v_lshlrev_b32 v15, 16, v15")
    def direct(dst, c, conj):
        t = 60
        cs = hexf(float(c))
        for h in range(2):
            a(f"v_mul_f32 v{t+h}, {hexf(-float(c))}, v{20+h}")
            a(f"v_mul_f32 v{t+2+h}, {hexf(-float(c) if conj else float(c))}, v{22+h}")
        for h in range(2):
            a(f"v_exp_f32 v{t+h}, v{t+h}")
            a(f"v_fract_f32 v{t+2+h}, v{t+2+h}")
        for h in range(2):
            a(f"v_cos_f32 v{dst+h}, v{t+2+h}")
            a(f"v_sin_f32 v{dst+2+h}, v{t+2+h}")
        a(f"v_pk_mul_f32 v[{dst}:{dst+1}], v[{dst}:{dst+1}], v[{t}:{t+1}]")
        a(f"v_pk_mul_f32 v[{dst+2}:{dst+3}], v[{dst+2}:{dst+3}], v[{t}:{t+1}]")
    tcnt = [0]
    def cmul(d, z, w):
        t = 64 + 4 * (tcnt[0] % 2); tcnt[0] += 1
        assert d != z and d != w
        if "nok" in os.environ.get("DBGA", ""): a("s_nop 15"); return
        a(f"v_pk_mul_f32 v[{t}:{t+1}], v[{z+2}:{z+3}], v[{w+2}:{w+3}]")
        a(f"v_pk_mul_f32 v[{t+2}:{t+3}], v[{z+2}:{z+3}], v[{w}:{w+1}]")
        a(f"v_pk_fma_f32 v[{d}:{d+1}], v[{z}:{z+1}], v[{w}:{w+1}], v[{t}:{t+1}] neg_lo:[0,0,1] neg_hi:[0,0,1]")
        a(f"v_pk_fma_f32 v[{d+2}:{d+3}], v[{z}:{z+1}], v[{w+2}:{w+3}], v[{t+2}:{t+3}]")
    pcnt = [0]
    def emit(z, row):
        p = 72 + 2 * (pcnt[0] % 4); pcnt[0] += 1
        a(f"v_cvt_pk_bf16_f32 v{p}, v{z}, v{z+2}")
        a(f"v_cvt_pk_bf16_f32 v{p+1}, v{z+1}, v{z+3}")
        a(f"ds_write_b64 v7, v[{p}:{p+1}] offset:{row*GROW}")
    W16, W1, E256, W2, W4, W8 = 28, 32, 36, 40, 44, 48
    Z0, Z1, G0, G1 = 52, 56, 80, 84
    FA, FB = 96, 128
    ACC = 160
    direct(W16, 16, False)
    a("v_mov_b32 v72, 0x3f80\nv_mov_b32 v73, 0x3f80")
    a("ds_write_b64 v7, v[72:73]"); pcnt[0] = 1
    emit(W16, 1)
    cmul(Z0, W16, W16); emit(Z0, 2)
    z, o = Z0, Z1
    for i in range(3, 16):
        cmul(o, z, W16); emit(o, i); z, o = o, z
        if i == 10 and U0 == 'a': uload(0)
    for s in range(8): a(f"ds_read_b128 v[{FA+4*s}:{FA+4*s+3}], v8 offset:{64*s}")
    if pf and PF1 == 'd': pf[1](a, 216, 1)
    direct(W1, 1, True)
    if U0 in 'ab': uload(0)
    direct(E256, 256, True)
    def tile_mfma(t):
        for s in range(8): a(f"ds_read_b128 v[{FB+4*s}:{FB+4*s+3}], v8 offset:{64*s}")
    def tile_mfma2(t, swap=False):
        a("s_waitcnt lgkmcnt(0)")
        for s in range(8):
            c = "0" if s == 0 else f"v[{ACC+4*t}:{ACC+4*t+3}]"
            x, y = (FA, FB) if swap else (FB, FA)
            a(f"v_mfma_f32_16x16x32_bf16 v[{ACC+4*t}:{ACC+4*t+3}], v[{x+4*s}:{x+4*s+3}], v[{y+4*s}:{y+4*s+3}], {c}")
    def wopf2(i):
        a("global_load_dword v221, v221, s[54:55]" if i == 0 else "global_load_dword v220, v220, s[22:23]")
    def utr(h, nvm):
        a(f"s_waitcnt vmcnt({nvm}) lgkmcnt(0)")
        a("s_barrier")
        for i in range(4): a(f"ds_read_b64_tr_b16 v[{UT+2*i}:{UT+1+2*i}], v253 offset:{16384*h + 512*i}")
        for i in range(4):
            a(f"s_waitcnt lgkmcnt(3)")
            a(f"ds_write_b64 v254, v[{UT+2*i}:{UT+1+2*i}] offset:{512 + 2048*h + 64*i}")
    UT = 204
    def utrans():
        a("v_bfe_u32 v200, v1, 2, 2")
        a("v_lshl_add_u32 v200, v6, 3, v200")
        a("v_bfe_u32 v201, v1, 1, 1")
        a("v_lshl_add_u32 v200, v201, 2, v200")
        a("v_lshlrev_b32 v200, 4, v200")
        a("v_and_b32 v201, 1, v1")
        a("v_lshl_add_u32 v200, v201, 3, v200")
        a("s_lshl_b32 s3, s31, 11")
        a(f"s_add_u32 s3, s3, {USTG}")
        a("v_add_u32 v253, s3, v200")
        a("v_and_b32 v201, 7, v1")
        a(f"v_mul_u32_u24 v201, {USTR}, v201")
        a("v_lshrrev_b32 v202, 3, v1")
        a("v_lshl_add_u32 v201, v202, 3, v201")
        a("s_lshl_b32 s3, s31, 8")
        a("v_add_u32 v254, s3, v201")
        stamp(7)
        utr(0, 2)
        stamp(8)
        for k in range(7): a(f"ds_read_b128 v[{BAND+4*k}:{BAND+4*k+3}], v222 offset:{1024*k}")
    emit(C, 0)
    cmul(Z0, C, W1); emit(Z0, 1)
    z, o = Z0, Z1
    for j in range(2, 16):
        cmul(o, z, W1); emit(o, j); z, o = o, z
        if (U0 == 'b' and j == 8) or (U0 == 'c' and j in (5, 13)): uload(0)
    if WP == 1: wopf2(0)
    tile_mfma(0)
    cmul(W2, W1, W1); cmul(G0, C, E256); cmul(W4, W2, W2); cmul(Z0, G0, W2); cmul(W8, W4, W4)
    tile_mfma2(0)
    emit(G0, 0); emit(Z0, 1)
    cmul(G1, G0, E256)
    z, o = Z0, Z1
    for j in range(2, 8):
        cmul(o, z, W2); emit(o, j); z, o = o, z
    emit(G1, 8)
    if WP == 0: wopf2(0)
    wopf2(1)
    tile_mfma(1)
    cmul(G0, G1, E256)
    cmul(Z0, G1, W4)
    cmul(Z1, Z0, W4)
    tile_mfma2(1)
    emit(Z0, 1); emit(Z1, 2); cmul(Z0, Z1, W4); emit(Z0, 3); cmul(Z1, Z0, W4); emit(Z1, 0)
    cmul(G1, G0, E256)
    cmul(Z0, G0, W4); emit(Z0, 5); cmul(Z1, Z0, W4); emit(Z1, 6); cmul(Z0, Z1, W4); emit(Z0, 7); cmul(Z1, Z0, W4); emit(Z1, 4)
    g, og = G1, G0
    for h in range(4):
        cmul(Z0, g, W8)
        if h < 3: cmul(og, g, E256)
        emit(Z0, 8 + 2*h + 1)
        cmul(Z1, Z0, W8); emit(Z1, 8 + 2*h)
        g, og = og, g
    utrans()
    tile_mfma(2)
    if UDEF == 2: uload(1); uload(1)
    stamp(2)
    T0, T1, T2 = ACC, ACC+4, ACC+8
    a("v_lshl_add_u32 v25, v1, 4, s34")
    a("v_mov_b64 v[18:19], v[16:17]")
    a("ds_write_b128 v25, v[16:19]")
    a("ds_write_b128 v25, v[16:19] offset:1024")
    a("ds_write_b128 v25, v[16:19] offset:2048")
    a("v_cmp_eq_u32 vcc, 0, v1")
    a("v_cndmask_b32 v15, 0, v15, vcc")
    a(f"v_add_f32 v{T0}, v{T0}, v15")
    a("v_lshlrev_b32 v20, 5, v5")
    a("v_sub_u32 v20, s34, v20")
    a(f"v_cvt_pk_bf16_f32 v64, v{T1+3}, v{T1+3}")
    a(f"v_cvt_pk_bf16_f32 v66, v{T1+2}, v{T1+2}")
    a(f"v_cvt_pk_bf16_f32 v69, v{T1}, v{T1}")
    a(f"v_cvt_pk_bf16_f32 v70, v{T1+2}, v{T1+1}")
    a("v_lshlrev_b32 v23, 4, v6")
    a("v_sub_u32 v23, v20, v23")
    a("v_lshlrev_b32 v24, 3, v6")
    a("v_sub_u32 v26, s34, v24")
    a("v_sub_u32 v24, v20, v24")
    a(f"v_cvt_pk_bf16_f32 v72, v{T0+3}, v{T0+2}")
    a(f"v_cvt_pk_bf16_f32 v73, v{T0+1}, v{T0}")
    a("s_mov_b32 exec_lo, 0\ns_mov_b32 exec_hi, 1")
    a(f"ds_write_b16 v20, v69 offset:{14*4+2}")
    a(f"ds_write_b32 v20, v69 offset:{15*4}")
    a(f"ds_write_b16 v20, v69 offset:{16*4}")
    a("s_mov_b32 exec_lo, -1\ns_mov_b32 exec_hi, 0")
    a(f"ds_write_b16 v23, v64 offset:{140*4+2}")
    a("ds_write2_b32 v23, v66, v70 offset0:141 offset1:142")
    a(f"ds_write_b32 v23, v69 offset:{143*4}")
    a(f"ds_write_b16 v23, v69 offset:{144*4}")
    a("s_mov_b64 exec, -1")
    a(f"ds_write_b64 v24, v[72:73] offset:{270*4}")
    a("v_and_b32 v27, 3, v5")
    a("v_mul_u32_u24 v27, 96, v27")
    a("v_bfe_u32 v28, v5, 2, 1")
    a("v_lshlrev_b32 v28, 5, v28")
    a("v_sub_u32 v27, v27, v28")
    a("v_and_b32 v28, 1, v5")
    a("v_mul_u32_u24 v28, 160, v28")
    a("v_bfe_u32 v29, v5, 1, 2")
    a("v_lshlrev_b32 v29, 5, v29")
    a("v_sub_u32 v28, v28, v29")
    a(f"v_add_u32 v28, {(406-294)*4}, v28")
    a("v_cmp_gt_u32 vcc, 8, v5")
    a("v_cndmask_b32 v27, v28, v27, vcc")
    a("v_add_u32 v27, v27, v26")
    a("s_waitcnt lgkmcnt(11)")
    for s_ in range(8):
        c = "0" if s_ == 0 else f"v[{T2}:{T2+3}]"
        a(f"v_mfma_f32_16x16x32_bf16 v[{T2}:{T2+3}], v[{FA+4*s_}:{FA+4*s_+3}], v[{FB+4*s_}:{FB+4*s_+3}], {c}")
    a("s_barrier")
    stamp(3)
    a("v_and_b32 v28, 1, v5")
    a(f"v_mul_u32_u24 v28, {EOFF}, v28")
    a("v_lshrrev_b32 v29, 1, v5")
    a("v_lshlrev_b32 v29, 2, v29")
    a("v_add_u32 v28, v28, v29")
    a("v_sub_u32 v28, s34, v28")
    a(f"v_add_u32 v28, {EOFF}, v28")
    a("v_lshl_add_u32 v10, v6, 4, v28")
    a(f"v_add_u32 v11, {128*4}, v10")
    a("v_lshl_add_u32 v12, v6, 3, v28")
    a(f"v_add_u32 v12, {256*4}, v12")
    a("v_lshlrev_b32 v13, 5, v5")
    a("v_lshl_add_u32 v14, v6, 3, v13")
    a("v_lshl_add_u32 v13, v6, 4, v13")
    a("v_add_u32 v13, s35, v13")
    a(f"s_add_u32 s3, s34, {YOFF}")
    a("v_add_u32 v14, s3, v14")
    a(f"v_cvt_pk_bf16_f32 v72, v{T2+3}, v{T2+2}")
    a(f"v_cvt_pk_bf16_f32 v73, v{T2+1}, v{T2}")
    a(f"ds_write_b64 v27, v[72:73] offset:{294*4}")
    for j in range(2):
        a(f"ds_read_b128 v[{96+8*j}:{99+8*j}], v25 offset:{1024*j}")
        a(f"ds_read_b32 v{100+8*j}, v25 offset:{1024*j+16}")
    a("v_readlane_b32 s3, v72, 52")
    a("s_and_b32 s3, s3, 0xffff")
    a("s_mul_i32 s3, s3, 0x10001")
    for d in range(4): a(f"v_pk_mul_lo_u16 v{BAND+24+d}, v{BAND+24+d}, s3")
    a("v_lshrrev_b32 v3, 2, v5")
    a(f"v_mul_u32_u24 v3, {KSTR}, v3")
    a("v_and_b32 v4, 3, v5")
    a("v_lshl_add_u32 v3, v4, 3, v3")
    a("v_lshl_add_u32 v3, v6, 5, v3")
    a(f"v_add_u32 v3, {KBASE+YOFF}, v3")
    a("v_mul_u32_u24 v4, 2304, v1")
    a("s_lshl_b32 s33, s30, 4")
    a("v_add_u32 v4, s33, v4")
    for j in range(2):
        a(f"s_waitcnt lgkmcnt({2-2*j})")
        for k in range(4):
            a(f"v_alignbit_b32 v{128+4*j+k}, v{97+8*j+k}, v{96+8*j+k}, 16")
        a(f"ds_write_b128 v25, v[{128+4*j}:{131+4*j}] offset:{EOFF+1024*j}")
    if UDEF == 4: uload(1); uload(1)
    stamp(4)
    Y = 16
    TF = 48
    BF = 116
    UR = 156
    WT = 188
    YP = 212
    T65 = BAND + 24
    q_ = []
    def lds(txt, tag=None):
        a(txt); q_.append(tag)
    def need(tags):
        idx = max(i for i, t in enumerate(q_) if t in tags)
        n = len(q_) - 1 - idx
        if n < need.done:
            a(f"s_waitcnt lgkmcnt({min(n, 15)})")
        need.best = None
    done_upto = [-1]
    def wait_for(tags):
        idx = max(i for i, t in enumerate(q_) if t in tags)
        if idx > done_upto[0]:
            n = len(q_) - 1 - idx
            a(f"s_waitcnt lgkmcnt({min(n, 15)})")
            done_upto[0] = idx if n <= 15 else len(q_) - 1 - 15
    def tload(k):
        o = 271 - 8 * (2*k + 1)
        ad = 10
        if o >= 128: ad, o = 11, o - 128
        lds(f"ds_read2_b32 v[{TF+4*k}:{TF+4*k+1}], v{ad} offset0:{o} offset1:{o+1}", ("T", k))
        lds(f"ds_read2_b32 v[{TF+4*k+2}:{TF+4*k+3}], v{ad} offset0:{o+2} offset1:{o+3}", ("T", k))
    bfl = [(0, d) for d in (2, 3, 4)] + [(1, d) for d in (2, 3, 4)] + [(2, d) for d in (4, 5, 6, 7)]
    def bload(n):
        pr, dl = bfl[n]
        for hf in range(2):
            if pr < 2: o = 280 + 24 * (2*pr + hf) + 31 - 8 * dl
            else: o = 376 + 40 * hf + 63 - 8 * dl
            o -= 256
            lds(f"ds_read2_b32 v[{BF+4*n+2*hf}:{BF+4*n+2*hf+1}], v12 offset0:{o} offset1:{o+1}", ("B", n))
    useq = []
    for q in range(8):
        useq += ([(q, 'x')] if q < 6 else []) + [(q, r) for r in range(8)]
    upos = {u: i for i, u in enumerate(useq)}
    def ureg(u): return UR + 4 * (upos[u] % 8)
    unext = [0]
    def uld():
        if unext[0] >= len(useq): return
        q, r = u = useq[unext[0]]; unext[0] += 1
        o = 512 * q + (480 - 16 if r == 'x' else 480 - 64 * r)
        lds(f"ds_read_b128 v[{ureg(u)}:{ureg(u)+3}], v13 offset:{o}", ("U", u))
    first = set()
    def mf(d, x, y, c):
        if "noc" in os.environ.get("DBGA", ""): a("s_nop 7"); return
        a(f"v_mfma_f32_16x16x32_bf16 v[{d}:{d+3}], v[{x}:{x+3}], v[{y}:{y+3}], {c}")
    def ymf(at, x, y):
        c = f"v[{Y+4*at}:{Y+4*at+3}]" if at in first else "0"
        first.add(at)
        mf(Y + 4*at, x, y, c)
    def ywrite(at):
        p = YP + 2 * (at % 2)
        a(f"v_cvt_pk_bf16_f32 v{p}, v{Y+4*at}, v{Y+4*at+1}")
        a(f"v_cvt_pk_bf16_f32 v{p+1}, v{Y+4*at+2}, v{Y+4*at+3}")
        lds(f"ds_write_b64 v14, v[{p}:{p+1}] offset:{512*at}", ("Y", at))
    uld(); uld()
    pend = []
    tload(0); tload(8); tload(16)
    for k in range(1, 8): pend.append(lambda k=k: (tload(k), tload(k + 8)))
    for n in range(10): pend.append(lambda n=n: bload(n))
    for _ in range(3): uld()
    for _ in range(2): pend.pop(0)()
    for q in range(8):
        npair = 3 if q < 4 else (2 if q < 6 else 0)
        for pr in range(npair):
            for hf in range(2):
                st = STREAMS[2*pr + hf]
                u = (q, 'x') if st[0] == -24 else (q, 0)
                wait_for({("U", u)})
                mf(WT + 8*pr + 4*hf, ureg(u), BAND + 4*(2*pr + hf), "0")
                if pend: pend.pop(0)()
        if q < 6: uld()
        scat = [(n, pr, dl) for n, (pr, dl) in enumerate(bfl) if pr < npair and q + dl < 8]
        scat.sort(key=lambda t: t[1])
        for r in range(8):
            u = (q, r)
            wait_for({("U", u), ("T", r)})
            ymf(q, TF + 4*r, ureg(u))
            if pend: pend.pop(0)()
            if q < 7:
                wait_for({("T", r + 8)})
                ymf(q + 1, TF + 4*(r + 8), ureg(u))
            if r == 0:
                if q < 6: wait_for({("T", 16)}); ymf(q + 2, TF + 64, ureg(u))
                if q < 4: ymf(q + 4, T65, ureg(u))
            uld()
            if pend: pend.pop(0)()
            if r == 1 and q > 0: ywrite(q - 1)
            if 2 <= r <= 4 and r - 2 < npair:
                w = WT + 8 * (r - 2)
                for k in range(4): a(f"v_cvt_pk_bf16_f32 v{w+k}, v{w+2*k}, v{w+2*k+1}")
            if r >= 3:
                take = [t for t in scat if t[1] <= r - 3][:(3 if r < 7 else 99)]
                for t in take:
                    scat.remove(t)
                    n, pr, dl = t
                    wait_for({("B", n)})
                    ymf(q + dl, WT + 8*pr, BF + 4*n)
            if q == 0 and UDEF == 5 and r in (2, 6): uload(1)
            if r == 1 and q in (YQ, 3):
                lab = a.label("L_a_not")
                if YQ != 3:
                    a("s_cmp_lt_u32 s31, 4" if q == YQ else "s_cmp_ge_u32 s31, 4")
                    a(f"s_cbranch_scc1 {lab}")
                UT = 216
                utr(1, 0)
                a("s_waitcnt lgkmcnt(0)")
                a("s_barrier")
                a(f"{lab}:")
            if r == 2 and q in CUTS:
                lab = a.label("L_a_noy")
                a("s_cmp_lt_u32 s31, 4")
                a(f"s_cbranch_scc1 {lab}")
                idx = max(i for i, t in enumerate(q_) if t == ("Y", q - 1))
                a(f"s_waitcnt lgkmcnt({len(q_) - 1 - idx})")
                a("s_barrier")
                a(f"{lab}:")
        assert not scat
    stamp(5)
    ywrite(7)
    def ystore(n, row0_sreg):
        a(f"s_lshl_b32 s3, s{row0_sreg}, 1")
        a("v_add_u32 v7, s3, v3")
        a(f"s_mul_i32 s3, s{row0_sreg}, 2304")
        a("v_add_u32 v8, s3, v4")
        for j in range(n):
            a(f"ds_read_b64_tr_b16 v[{60+4*j}:{61+4*j}], v7 offset:{128*j}")
            a(f"ds_read_b64_tr_b16 v[{62+4*j}:{63+4*j}], v7 offset:{128*j+4*KSTR}")
        for j in range(n):
            a(f"s_waitcnt lgkmcnt({2*(n-1-j)})")
            if "nos" not in os.environ.get("DBGA", ""): a(f"global_store_dwordx4 v8, v[{60+4*j}:{63+4*j}], s[24:25] {STA}")
            if j < n - 1: a(f"v_add_u32 v8, {64*2304}, v8")
    a("s_waitcnt lgkmcnt(0)")
    a("s_cmp_ge_u32 s31, 4")
    a("s_cbranch_scc1 L_a_y2")
    prev = 0
    for cut in CUTS:
        n = cut - prev
        a("s_barrier")
        a(f"s_mul_i32 s33, s31, {64*n}")
        a(f"s_add_u32 s33, s33, {256*prev}")
        ystore(n, 33)
        a("s_nop 1")
        prev = cut
    a("L_a_y2:")
    a("s_barrier")
    n = (8 - prev) // 2
    a(f"s_mul_i32 s33, s31, {64*n}")
    a(f"s_add_u32 s33, s33, {256*prev}")
    ystore(n, 33)
    stamp(6)
    wb = os.environ.get("WBL2", "last")
    if wb == "last":
        a("s_waitcnt vmcnt(0)")
        a("s_barrier")
        a("s_cmp_lg_u32 s31, 0")
        a("s_cbranch_scc1 L_fin")
        a("s_and_b32 s33, s2, 7")
        a("s_lshl_b32 s3, s33, 2")
        a("v_mov_b32 v2, s3")
        a("v_mov_b32 v3, 1")
        a("s_mov_b64 exec, 1")
        a("global_atomic_add v4, v2, v3, s[26:27] offset:128 sc0")
        a("s_waitcnt vmcnt(0)")
        a("v_readfirstlane_b32 s3, v4")
        a("s_mov_b64 exec, -1")
        a("s_cmp_eq_u32 s33, 0")
        a("s_cselect_b32 s33, 15, 7")
        a("s_cmp_lg_u32 s3, s33")
        a("s_cbranch_scc1 L_fin")
        a("buffer_wbl2 sc1")
    elif wb != "0":
        a(f"s_cmp_lg_u32 s43, {wb}")
        a("s_cbranch_scc1 L_fin")
        a("s_waitcnt vmcnt(0)")
        a("s_barrier")
        a("s_cmp_lg_u32 s31, 0")
        a("s_cbranch_scc1 L_fin")
        a("buffer_wbl2 sc1")
```

```python
import os
from gen_a import hexf, LOG2E
DBG = os.environ.get('DBG', '')
STB = os.environ.get('STB', 'sc1')
PORD = os.environ.get('PORD', 'cc')
QW = int(os.environ.get('QW', '8'))
POLL2 = int(os.environ.get('POLL2', '0'))
KW = int(os.environ.get('KW', '8'))
KRT = int(os.environ.get('KRT', '4'))
NSC = int(os.environ.get('NSC', '1'))
PQW = int(os.environ.get('PQW', '4'))
PQE = int(os.environ.get('PQE', '2')) if PORD == 'qk' else 0
FAIR = int(os.environ.get('FAIR', '0'))
PSLEEP = int(os.environ.get('PSLEEP', '2'))
SHARD = int(os.environ.get('SHARD', '16'))
LATEM = int(os.environ.get('LATEM', '3'))
ROTW = int(os.environ.get('ROTW', '1'))
ROTR = int(os.environ.get('ROTR', '1'))
FULL = int(os.environ.get('FULL', '1'))
SEQ8 = int(os.environ.get('SEQ8', '1'))
PKW = int(os.environ.get('PKW', '5'))
PS0 = int(os.environ.get('PS0', '0'))
NS = 4
WROW = 288
WSZ = 64 * WROW
EXS = 160
LCNT = 163776
EX = LCNT - 2 * 128 * EXS
B_LDS = 163840
EPI = 147456
RXB = 147456
RXF = 157696
KVACC, CNT, PQC, PQ, PQL, WS_SZ = 0, 0xC000, 0x10000, 0x100000, 0x300000, 0x400000
PAIRB = 2816
O_MMB, O_LD, O_XM, O_XL = 1024, 2048, 2304, 2688
EPS = 1e-6
ONE_EPS = 1.0 + 1e-6
OOB = "0x7ffffff0"
SX, SW, SWO, SWS, SDB = 44, 48, 52, 56, 60
WSR = f"s[{SWS}:{SWS+3}]"
WOF = 112
AS0 = 23

def srd(a, r, p, size):
    a(f"s_mov_b32 s{r}, s{p}\ns_mov_b32 s{r+1}, s{p+1}\ns_mov_b32 s{r+2}, {size}\ns_mov_b32 s{r+3}, 0x20000")

def pf_setup(a, v, t):
    a("s_and_b32 s58, s30, 7")
    a("s_lshl_b32 s58, s58, 3")
    a("s_add_u32 s58, s58, s31")
    a(f"v_min_u32 v{t}, 14, v2")
    a(f"v_mul_u32_u24 v{t+1}, 52, v{t}")
    a(f"v_lshrrev_b32 v{t+1}, 8, v{t+1}")
    a(f"v_mul_u32_u24 v{t+1}, {1152-640}, v{t+1}")
    a(f"v_lshl_add_u32 v{t}, v{t}, 7, v{t+1}")
    a(f"v_mul_u32_u24 v{t+1}, 3456, v3")
    a("s_and_b32 s59, s58, 31")
    a(f"s_mul_i32 s59, s59, {4*3456}")
    a("s_and_b32 s3, s2, 4")
    a("s_lshl_b32 s3, s3, 7")
    a("s_add_u32 s59, s59, s3")
    a(f"s_add_u32 s59, s59, {384*3456}")
    a(f"v_add3_u32 v{v}, v{t}, v{t+1}, s59")
    a("s_and_b32 s3, s2, 3")
    a("s_lshl_b32 s3, s3, 9")
    a("s_lshl_b32 s59, s58, 6")
    a("s_add_u32 s3, s3, s59")
    a(f"s_sub_u32 s3, s3, {49*64}")
    a(f"v_add_u32 v{t+1}, s3, v1")
    a(f"v_max_i32 v{t+1}, 0, v{t+1}")
    a(f"v_min_i32 v{t+1}, 2047, v{t+1}")
    a(f"v_mul_u32_u24 v{t+1}, 1152, v{t+1}")
    a(f"v_add_u32 v{t+1}, 1024, v{t+1}")
    a(f"v_add_u32 v{t}, {128*3456}, v{v}")
    a("s_cmp_lt_u32 s58, 48")
    a("s_cselect_b64 vcc, -1, 0")
    a(f"v_cndmask_b32 v{v+1}, v{t+1}, v{t}, vcc")
def pf_round(a, v, r):
    lab = a.label("L_pf")
    if r == 0:
        a("s_cmp_ge_u32 s58, 32")
        a(f"s_cbranch_scc1 {lab}")
        a(f"global_load_dword v{v}, v{v}, s[20:21]")
    else:
        a("s_sub_u32 s3, s58, 32")
        a("s_cmp_ge_u32 s3, 26")
        a(f"s_cbranch_scc1 {lab}")
        a("s_cmp_lt_u32 s58, 48")
        a("s_cselect_b64 s[54:55], s[20:21], s[18:19]")
        a(f"global_load_dword v{v+1}, v{v+1}, s[54:55]")
    a(f"{lab}:")

def role_zero(a):
    a.c("---------------- zero-init WG ----------------")
    a("v_lshlrev_b32 v2, 4, v0")
    for i in range(4): a(f"v_mov_b32 v{4+i}, 0")
    a("s_mov_b32 s33, 0")
    a("s_waitcnt lgkmcnt(0)")
    srd(a, SWS, 28, WS_SZ); srd(a, SDB, 26, 256)
    for j in range(9):
        a(f"buffer_store_dwordx4 v[4:7], v2, {WSR}, s33 offen sc1")
        a("s_add_u32 s33, s33, 8192")
    a("s_waitcnt vmcnt(0)")
    a("s_barrier")
    a("s_cmp_lg_u32 s31, 0")
    a("s_cbranch_scc1 L_fin")
    a("v_mov_b32 v8, 1")
    a("s_mov_b64 exec, 1")
    a(f"buffer_atomic_add v8, v4, s[{SDB}:{SDB+3}], 0 offen")
    a("s_mov_b64 exec, -1")
    a("s_branch L_fin")

def phi4(a, r, t, d):
    if isinstance(a, list):
        L = a; a = lambda x: L.append(x)
    for h in (0, 2):
        a(f"v_pk_fma_f32 v[{t+h}:{t+h+1}], v[{r+h}:{r+h+1}], s[40:41], v[250:251]|v_fma_f32 v{t+h}, v{r+h}, s40, v250|v_fma_f32 v{t+h+1}, v{r+h+1}, s40, v250")
    for i in range(4): a(f"v_exp_f32_e64 v{t+i}, v{t+i} clamp")
    for h in (0, 2):
        a(f"v_pk_add_f32 v[{t+h}:{t+h+1}], v[{t+h}:{t+h+1}], v[252:253]|v_add_f32 v{t+h}, v252, v{t+h}|v_add_f32 v{t+h+1}, v252, v{t+h+1}")
    for i in range(4): a(f"v_max_f32 v{t+i}, v{t+i}, v{r+i}")
    if d is not None:
        a(f"v_cvt_pk_bf16_f32 v{d}, v{t}, v{t+1}")
        a(f"v_cvt_pk_bf16_f32 v{d+1}, v{t+2}, v{t+3}")

def ct_calc(a):
    assert KRT == 4
    a("s_lshr_b32 s96, s43, 2")
    a("s_and_b32 s97, s43, 3")
    a("s_cmp_ge_u32 s43, 16")
    a("s_cselect_b32 s96, s97, s96")
    a("s_cselect_b32 s97, 4, s97")
def wo_voff(a, d):
    a("s_and_b32 s30, s31, 1")
    a("s_lshl_b32 s3, s30, 3")
    a(f"v_lshl_add_u32 v{d+2}, v3, 1, s3")
    a(f"v_xor_b32 v{d+2}, v{d+2}, v2")
    a("s_lshl_b32 s3, s97, 8")
    a(f"v_lshl_add_u32 v{d+2}, v{d+2}, 4, s3")
    a(f"v_mov_b32 v{d}, 0x40000000")
    a(f"v_cmp_gt_u32 vcc, 1152, v{d+2}")
    a(f"v_cndmask_b32 v{d+2}, v{d}, v{d+2}, vcc")
    a("s_and_b32 s3, s31, 3")
    a("s_lshl_b32 s95, s3, 10")
    a(f"v_lshl_add_u32 v{d}, v3, 2, s3")
    a(f"v_mul_u32_u24 v{d}, 1152, v{d}")
    a(f"v_add_u32 v{d}, v{d}, v{d+2}")
    a("s_mul_i32 s3, s3, 18")
    a("s_lshl_b32 s30, s30, 4")
    a("s_sub_u32 s3, s3, s30")
    a("s_add_u32 s3, s3, 16")
    a(f"v_lshrrev_b32 v{d+1}, 1, v3")
    a(f"v_mul_u32_u24 v{d+1}, 70, v{d+1}")
    a(f"v_add3_u32 v{d+1}, v{d+1}, v3, s3")
    a(f"v_mul_u32_u24 v{d+1}, 1152, v{d+1}")
    a(f"v_add_u32 v{d+1}, v{d+1}, v{d+2}")
def wo_loads(a, d, steps):
    for st in steps:
        for h in range(2):
            a(f"s_add_u32 m0, s95, {8192*st + 4096*h}")
            a(f"s_mov_b32 s3, {((36*st + 20*h) if st < 16 else (288*(st-16) + 144*h))*1152}")
            a(f"buffer_load_dwordx4 v{d + (st >= 16)}, s[{SWO}:{SWO+3}], s3 offen lds")
def wotr(a, s, ar, base=0):
    L = []
    for t in range(2):
        for h in range(2):
            r = WOF + 8*s + 4*t + 2*h
            L.append(f"ds_read_b64_tr_b16 v[{r}:{r+1}], v{ar+t} offset:{8192*s + 4096*h - base}")
    return L

def tr_addr(a, d):
    if isinstance(a, list):
        L = a; a = lambda x: L.append(x)
    a(f"v_lshrrev_b32 v{d}, 2, v2")
    a(f"v_lshl_add_u32 v{d}, v3, 2, v{d}")
    a(f"v_and_b32 v{d+1}, 7, v{d}")
    a(f"v_lshlrev_b32 v{d+1}, 1, v{d+1}")
    a(f"v_bfe_u32 v{d+2}, v2, 1, 1")
    a("s_lshr_b32 s3, s31, 1")
    a("s_xor_b32 s3, s3, 2")
    a("s_lshl_b32 s3, s3, 2")
    a(f"v_add_u32 v{d+2}, s3, v{d+2}")
    a(f"v_xor_b32 v{d+1}, v{d+1}, v{d+2}")
    a(f"v_lshlrev_b32 v{d}, 8, v{d}")
    a(f"v_lshl_add_u32 v{d}, v{d+1}, 4, v{d}")
    a(f"v_and_b32 v{d+1}, 1, v2")
    a(f"v_lshl_add_u32 v{d}, v{d+1}, 3, v{d}")
    a(f"v_xor_b32 v{d+1}, 32, v{d}")
    a(f"v_add_u32 v{d+2}, 0x10000, v{d}")
    a(f"v_add_u32 v{d+3}, 0x10000, v{d+1}")
def wo_regs(a, d, n):
    for st in list(range(8, 14)) + list(range(7, -1, -1)):
        for x in (wotr(a, st, d) if st < 8 else wotr(a, st, d + 2, 0x10000)): a(x)
    a(f"v_add_u32 v0, 0x1c000, v{d}")

def lds_last(a, lab):
    a(f"v_mov_b32 v4, {LCNT}")
    a("v_mov_b32 v5, 1")
    a("s_waitcnt vmcnt(0)")
    a("s_mov_b64 exec, 1")
    a("ds_add_rtn_u32 v6, v4, v5")
    a("s_mov_b64 exec, -1")
    a("s_waitcnt lgkmcnt(0)")
    a("v_readfirstlane_b32 s3, v6")
    a("s_cmp_lg_u32 s3, 3")
    a(f"s_cbranch_scc1 {lab}")

def prep3(a):
    a("s_mov_b32 s33, s97")
    a("s_lshl_b32 s34, s42, 2")
    a("s_add_u32 s32, s96, s34")
    a("s_and_b32 s36, s31, 1")
    a("s_lshr_b32 s35, s31, 1")
    a("s_xor_b32 s35, s35, 2")
    a(f"v_mov_b32 v8, {OOB}")
    a("v_lshlrev_b32 v9, 4, v1")
    a("s_add_u32 s40, s31, s43" if ROTW else "s_mov_b32 s40, s31")
    a("s_and_b32 s40, s40, 7")
    a("s_and_b32 s41, s33, 3" if ROTR else "s_mov_b32 s41, 0")
    a(f"s_mul_i32 s37, s40, {2*PAIRB}")
    a("v_and_b32 v6, 3, v2")
    a("v_bfe_u32 v7, v2, 2, 1")
    a("v_lshl_add_u32 v7, v7, 1, v6")
    a("v_cmp_gt_u32 vcc, 2, v6")
    a("v_cndmask_b32 v7, v7, v6, vcc")
    a("v_lshlrev_b32 v12, 4, v3")
    a("v_lshl_add_u32 v12, v7, 6, v12")
    a("v_cmp_gt_u32 s[44:45], 8, v2")
    a("s_or_b64 s[96:97], s[44:45], vcc")
    a("s_orn2_b64 vcc, vcc, s[44:45]")
    a("v_cndmask_b32 v13, v8, v12, vcc")
    a("v_cndmask_b32 v12, v8, v12, s[96:97]")
    a("v_lshlrev_b32 v10, 4, v2")
    a(f"v_lshlrev_b32 v11, 4, v7")
    a(f"v_add_u32 v11, {O_XL - O_LD}, v11")
    a("v_cmp_lt_u32 s[100:101], 1, v3")
    a("v_cndmask_b32 v10, v10, v11, s[100:101]")
    a("v_and_b32 v6, 1, v3")
    a(f"v_mul_u32_u24 v11, {PAIRB}, v6")
    a("v_add_u32 v10, v10, v11")
    a("v_cmp_eq_u32 s[98:99], 1, v6")
    a("v_cmp_eq_u32 s[44:45], 1, v7")
    a("v_cmp_lt_u32 s[46:47], 3, v7")
    a("s_or_b64 s[44:45], s[44:45], s[46:47]")
    a("s_andn2_b64 s[46:47], s[100:101], s[98:99]")
    a("s_and_b64 s[46:47], s[46:47], s[96:97]")
    a("s_and_b64 s[96:97], s[100:101], s[98:99]")
    a("s_and_b64 s[96:97], s[96:97], vcc")
    a("v_lshlrev_b32 v7, 3, v2")
    a("v_lshl_add_u32 v7, v6, 7, v7")
    a("s_lshl_b32 s38, s32, 6")
    a("s_lshl_b32 s39, s40, 1")
    a("s_add_u32 s38, s38, s39")
    a("s_lshl_b32 s39, s38, 7")
    a(f"s_add_u32 s39, s39, {PQL}")
    a("s_lshl_b32 s38, s38, 10")
    a(f"s_add_u32 s38, s38, {PQ}")

def role_gemm(a, kind, stamp):
    Q = kind == "q"
    RT = (9 - KRT) if Q else KRT
    R = 32 * RT
    XSZ = R * 128
    SLOT = XSZ + WSZ
    NL = 5 + RT
    L = lambda s: f"L_{kind}_{s}"
    a.c(f"---------------- role {kind} ----------------")
    rstamp = stamp
    if "stA" in DBG or "stB" in DBG: stamp = lambda i: None
    a("s_cmp_lt_u32 s31, 4")
    a(f"s_cbranch_scc1 {L('comp')}")
    a("s_sub_u32 s35, s31, 4")
    a("s_and_b32 s37, s35, 1")
    a(f"s_mul_i32 s34, s33, {R}")
    a(f"s_mul_i32 s36, s35, {8*RT}")
    a("s_add_u32 s36, s36, s34")
    a("v_lshrrev_b32 v4, 3, v1")
    a("v_add_u32 v4, s36, v4")
    a("v_mul_u32_u24 v4, 1152, v4")
    a("v_and_b32 v5, 7, v1")
    a("v_xor_b32 v5, v5, v3")
    if RT % 2:
        a("s_lshl_b32 s36, s37, 2")
        a("v_xor_b32 v5, s36, v5")
    a("v_lshl_add_u32 v10, v5, 4, v4")
    a("v_xor_b32 v5, 4, v5")
    a("v_lshl_add_u32 v11, v5, 4, v4")
    a(f"s_mul_i32 s38, s35, {1024*RT}")
    a("s_lshr_b32 s36, s35, 1")
    a("s_lshl_b32 s36, s36, 3")
    a("s_add_u32 s36, s36, s37")
    a(f"s_mul_i32 s36, s36, {4*3456}")
    a(f"s_mul_i32 s39, s32, {288 if Q else 144}")
    a("s_add_u32 s36, s36, s39")
    if not Q: a("s_add_u32 s36, s36, 1152")
    a(f"s_mul_i32 s39, s35, {16*WROW}")
    a(f"s_mov_b32 s{SW+2}, 1990656\ns_mov_b32 s{SW+3}, 0x20000\ns_mov_b32 s{SX+2}, 2359296\ns_mov_b32 s{SX+3}, 0x20000")
    def wcalc(t):
        if t: a(f"v_add_u32 v4, {64*t}, v1")
        src = "v4" if t else "v1"
        if Q:
            a(f"v_mul_u32_u24 v5, 3641, {src}")
            a("v_lshrrev_b32 v5, 16, v5")
            a(f"v_lshl_add_u32 v6, {src}, 4, s36")
            a(f"v_mul_u32_u24 v7, {3456-288}, v5")
        else:
            a(f"v_mul_u32_u24 v5, 7282, {src}")
            a("v_lshrrev_b32 v5, 16, v5")
            a(f"v_lshl_add_u32 v6, {src}, 4, s36")
            a("v_mul_u32_u24 v7, 1008, v5")
            a("v_lshrrev_b32 v5, 1, v5")
            a("v_mad_u32_u24 v7, v5, s34, v7")
        a("v_lshrrev_b32 v5, 2, v5")
        a(f"v_mul_u32_u24 v5, {4*3456}, v5")
        a(f"v_add3_u32 v{13+t}, v5, v6, v7")
    def wload(slot, t):
        if t == 4: a("s_mov_b32 exec_hi, 0")
        a(f"s_add_u32 m0, s39, {slot*SLOT + XSZ + 1024*t}")
        a(f"buffer_load_dwordx4 v{13+t}, s[{SW}:{SW+3}], s30 offen lds")
        if t == 4: a("s_mov_b32 exec_hi, -1")
    def xpart(slot):
        a("s_lshl_b32 s30, s94, 7")
        for t in range(RT):
            a(f"s_add_u32 m0, s38, {slot*SLOT + 1024*t}")
            a(f"s_add_u32 s3, s30, {8*1152*t}")
            a(f"buffer_load_dwordx4 v{10+(t&1)}, s[{SX}:{SX+3}], s3 offen lds")
        a(f"s_mul_i32 s30, s94, {64*3456}")
        nst[0] += 1
        if not SEQ8:
            a("s_add_u32 s94, s94, 1")
            a("s_cmp_eq_u32 s94, 9")
            a("s_cselect_b32 s94, 0, s94")
        elif nst[0] == 8: a("s_mov_b32 s94, 8")
        else: a("s_add_u32 s94, s94, 1\ns_and_b32 s94, s94, 7")
    nst = [0]
    def stage(slot):
        xpart(slot)
        for t in range(5): wload(slot, t)
    a("s_movk_i32 s34, 1152")
    wcalc(0); wcalc(1)
    a("s_waitcnt lgkmcnt(0)")
    a(f"s_mov_b64 s[{SW}:{SW+1}], s[20:21]\ns_mov_b64 s[{SX}:{SX+1}], s[18:19]")
    xpart(0)
    wload(0, 0); wload(0, 1)
    for t in (2, 3, 4): wcalc(t); wload(0, t)
    stamp(1)
    stage(1)
    srd(a, SWS, 28, WS_SZ); srd(a, SDB, 26, 256); srd(a, SWO, 22, 663552)
    ct_calc(a)
    wo_voff(a, 21)
    tr_addr(a, 106)
    a("v_mov_b32 v4, 0")
    issue = {s: [s + 2] for s in range(7)}
    early = {7: [5, 6, 7, 8], 8: [9, 10]}
    out = [("S", 0)] * NL + [("S", 1)] * NL
    for s in range(9):
        idx = max(i for i, t in enumerate(out) if t == ("S", s))
        a(f"s_waitcnt vmcnt({len(out) - 1 - idx})")
        if "stA" in DBG: rstamp(1 + s)
        a("s_barrier")
        if "stB" in DBG: rstamp(1 + s)
        if s == 5:
            a(f"buffer_load_dword v24, v4, s[{SDB}:{SDB+3}], 0 offen sc1"); out.append("R")
        for st in issue.get(s, []):
            if "noload" not in DBG: stage(st % NS)
            out += [("S", st)] * NL
        if s in early:
            wo_loads(a, 21, early[s]); out += ["W"] * (2 * len(early[s]))
    stamp(2)
    a("v_readfirstlane_b32 s37, v24")
    a("s_mov_b32 s36, 0")
    a("s_cmp_lg_u32 s37, 0")
    a(f"s_cbranch_scc1 {L('rdy2')}")
    a(f"{L('rdy')}:")
    a(f"buffer_load_dword v5, v4, s[{SDB}:{SDB+3}], 0 offen sc1")
    a("s_add_u32 s36, s36, 1")
    a("s_waitcnt vmcnt(0)")
    a("v_readfirstlane_b32 s37, v5")
    a("s_cmp_ge_u32 s36, 0x10000")
    a(f"s_cbranch_scc1 {L('rdy2')}")
    a("s_cmp_eq_u32 s37, 0")
    a(f"s_cbranch_scc1 {L('rdy')}")
    a(f"{L('rdy2')}:")
    a("s_barrier")
    lst = [11, 12, 13, 0, 1, 2, 3, 4, 14, 15, 16, 17]
    nb = QW if Q else KW
    wo_loads(a, 21, lst[:nb])
    prep3(a)
    a("s_barrier")
    stamp(3)
    wo_loads(a, 21, lst[nb:])
    stamp(4)
    a(f"v_mov_b32 v4, {LCNT + 4}\nv_mov_b32 v5, 1")
    a("s_waitcnt vmcnt(0)")
    a("s_mov_b64 exec, 1")
    a("ds_add_u32 v4, v5")
    a("s_mov_b64 exec, -1")
    a("s_branch L_bjoin")
    a(f"{L('comp')}:")
    ct_calc(a)
    a("s_and_b32 s35, s31, 1")
    a("s_lshr_b32 s36, s31, 1")
    XA0, XA1, WA, LA = 4, 5, 6, 7
    a("v_lshrrev_b32 v9, 1, v2")
    a("v_xor_b32 v9, v9, v3")
    a("v_lshlrev_b32 v10, 7, v2")
    a("v_lshl_add_u32 v10, v9, 4, v10")
    a(f"s_mul_i32 s37, s35, {RT*2048}")
    a(f"v_add_u32 v{XA0}, s37, v10")
    a(f"v_xor_b32 v{XA1}, 64, v{XA0}")
    a("v_lshrrev_b32 v9, 2, v2")
    a("v_and_b32 v10, 3, v2")
    a("v_lshl_add_u32 v11, v3, 2, v9")
    a(f"v_mul_u32_u24 v11, {WROW}, v11")
    a(f"s_mul_i32 s37, s36, {144 if Q else 72}")
    a(f"s_add_u32 s37, s37, {XSZ}")
    a("v_add_u32 v11, s37, v11")
    a(f"v_lshl_add_u32 v{WA}, v10, 3, v11")
    a("v_and_b32 v12, 1, v10")
    a(f"v_mul_u32_u24 v12, {72 if Q else 144}, v12")
    a(f"v_add3_u32 v{LA}, v11, v12, 32")
    a(f"v_mov_b32 v12, {LCNT}\nv_mov_b32 v14, 0\nv_mov_b32 v15, 0")
    a("ds_write_b64 v12, v[14:15]")
    ACC = 16
    def acc(rt, t): return ACC + 4 * (5 * rt + t)
    a(f"v_mov_b32 v8, {hexf(ONE_EPS)}\nv_mov_b32 v9, v8")
    if not Q:
        a("v_lshrrev_b32 v10, 2, v2")
        a("v_cmp_eq_u32 s[98:99], 1, v10")
        a("v_cmp_eq_u32 s[100:101], 3, v10")
        a("v_cndmask_b32 v10, v8, 0, s[98:99]")
        a("v_mov_b32 v11, v10")
    for rt in range(RT):
        for t in range(5):
            src = "v[8:9]" if Q or t < 2 else ("v[10:11]" if t == 4 else "v[14:15]")
            for i in (0, 2): a(f"v_mov_b64 v[{acc(rt,t)+i}:{acc(rt,t)+i+1}], {src}")
    F = [120, 160]
    woff = [0, 40, 72, 112] if Q else [0, 40, 144, 184]
    TORD = [0, 1, 4, 2, 3]
    def reads(kk):
        f = F[kk]; Lr = []
        def w(t):
            for h in range(2):
                ad, o = (WA, woff[t]) if t < 4 else (LA, 0)
                Lr.append(f"ds_read_b64_tr_b16 v[{f+20+4*t+2*h}:{f+20+4*t+2*h+1}], v{ad} offset:{o + (32*kk + 16*h)*WROW}")
        w(TORD[0])
        for rt in range(RT): Lr.append(f"ds_read_b128 v[{f+4*rt}:{f+4*rt+3}], v{(XA0,XA1)[kk]} offset:{2048*rt}")
        for t in TORD[1:]: w(t)
        return Lr
    def one(kk, rt, t):
        f = F[kk]
        w, x = f"v[{f+20+4*t}:{f+23+4*t}]", f"v[{f+4*rt}:{f+4*rt+3}]"
        if not Q: w, x = x, w
        return f"v_mfma_f32_16x16x32_bf16 v[{acc(rt,t)}:{acc(rt,t)+3}], {w}, {x}, v[{acc(rt,t)}:{acc(rt,t)+3}]"
    def mfmas(kk):
        return [one(kk, rt, t) for t in TORD for rt in range(RT)]
    def inter(M, Rd):
        if "nocomp" in DBG: return
        if "noread" in DBG: Rd = []
        for k, m in enumerate(M):
            if k < len(Rd): a(Rd[k])
            a(m)
    a(f"s_mov_b32 s40, {hexf(LOG2E)}\ns_mov_b32 s41, s40")
    a(f"v_mov_b32 v250, {hexf(-ONE_EPS*LOG2E)}\nv_mov_b32 v251, v250")
    a(f"v_mov_b32 v252, {hexf(EPS)}\nv_mov_b32 v253, v252")
    a("s_waitcnt lgkmcnt(0)")
    srd(a, SWS, 28, WS_SZ); srd(a, SWO, 22, 663552)
    stamp(1)
    post = []
    p = lambda t: post.extend(x.strip() for x in t.split("\n") if x.strip())
    if Q:
        p("v_lshlrev_b32 v8, 4, v1")
        p("v_lshlrev_b32 v9, 3, v1")
        p(f"s_mul_i32 s38, s33, {2*RT}")
        p(f"s_mul_i32 s39, s35, {RT}")
        p("s_add_u32 s38, s38, s39")
        p("s_lshl_b32 s38, s38, 4")
        p("s_lshl_b32 s39, s32, 2")
        p("s_add_u32 s38, s38, s39")
        p("s_lshl_b32 s39, s36, 1")
        p("s_add_u32 s38, s38, s39")
        p("s_lshl_b32 s37, s38, 10")
        p(f"s_add_u32 s37, s37, {PQ}")
        p("s_lshl_b32 s39, s38, 7")
        p(f"s_add_u32 s39, s39, {PQL}")
        p(f"s_mov_b32 s{SX}, s28\ns_mov_b32 s{SX+1}, s29\ns_mov_b32 s{SX+2}, {PQL}\ns_mov_b32 s{SX+3}, 0x20000")
        p(f"s_mov_b32 s{SW}, s28\ns_mov_b32 s{SW+1}, s29\ns_mov_b32 s{SW+2}, {PQL + 0x40000}\ns_mov_b32 s{SW+3}, 0x20000")
    else:
        p(f"s_mul_i32 s38, s33, {2*RT}")
        p(f"s_mul_i32 s39, s35, {RT}")
        p("v_mov_b32 v13, 0x3f803f80")
        p("s_add_u32 s38, s38, s39")
        p("s_lshl_b32 s51, s32, 1")
        p("s_add_u32 s51, s51, s36")
        p(f"s_mul_i32 s51, s51, {PAIRB}")
        p("s_lshl_b32 s50, s33, 3")
        p("s_add_u32 s50, s50, s32")
        p(f"s_and_b32 s50, s50, {SHARD-1}")
        p("s_lshl_b32 s50, s50, 7")
        p(f"s_add_u32 s50, s50, {CNT}")
        p("v_lshlrev_b32 v243, 11, v1")
        p(f"v_mov_b32 v8, {OOB}")
        p("v_lshrrev_b32 v9, 2, v2")
        p("v_and_b32 v10, 3, v2")
        p("v_lshlrev_b32 v11, 8, v9")
        p("v_lshl_add_u32 v11, v3, 4, v11")
        p("v_lshl_add_u32 v236, v10, 2, v11")
        p("v_cmp_gt_u32 s[44:45], 4, v2")
        p("v_cmp_gt_u32 s[46:47], 2, v2")
        p("v_cndmask_b32 v237, v8, v236, s[44:45]")
        p("v_cmp_eq_u32 vcc, 1, v3")
        p("v_cmp_eq_u32 s[48:49], 3, v3")
        p("v_lshlrev_b32 v9, 2, v2")
        p("v_cndmask_b32 v240, v8, v9, vcc")
        p("v_add_u32 v10, 128, v240")
        p("v_cndmask_b32 v238, v10, v9, s[48:49]")
        p("v_add_u32 v10, 256, v240")
        p("v_add_u32 v11, 64, v9")
        p("v_cndmask_b32 v239, v10, v11, s[48:49]")
        p("v_and_b32 v9, 1, v2")
        p("v_lshlrev_b32 v9, 2, v9")
        p("v_bfe_u32 v10, v2, 1, 1")
        p("v_lshl_add_u32 v11, v10, 4, v9")
        p("v_lshl_add_u32 v9, v10, 5, v9")
        p("v_add_u32 v9, 32, v9")
        p("v_cndmask_b32 v9, v8, v9, vcc")
        p("v_cndmask_b32 v242, v8, v9, s[44:45]")
        p("v_cndmask_b32 v9, v9, v11, s[48:49]")
        p("v_cndmask_b32 v241, v8, v9, s[44:45]")
        p("s_lshl_b32 s3, s31, 11")
        p(f"s_add_u32 s3, s3, {RXB}")
        p("v_lshl_add_u32 v248, v1, 4, s3")
        p("v_xor_b32 v249, 0x800, v248")
        p("s_lshl_b32 s3, s31, 9")
        p(f"s_add_u32 s3, s3, {RXF}")
        p("v_lshl_add_u32 v14, v1, 3, s3")
        p("v_xor_b32 v15, 0x200, v14")
        p("v_mov_b64 v[8:9], 0")
        p("ds_write_b64 v14, v[8:9]")
        p("s_waitcnt lgkmcnt(0)")
    tr_addr(post, 244)
    for x in post: a(x)
    for st in range(9):
        a("s_barrier")
        if st == 0:
            for x in reads(0): a(x)
        else: inter(mfmas(1), reads(0))
        a("s_waitcnt lgkmcnt(0)")
        if st < 8:
            dl = SLOT if (st + 1) % NS else -(NS - 1) * SLOT
            upd = [f"v_add_u32 v{r}, {dl & 0xffffffff:#x}, v{r}" for r in (XA0, XA1, WA, LA)]
            inter(mfmas(0), reads(1) + upd)
            a("s_waitcnt lgkmcnt(0)")
    T0_, T1_ = 200, 204
    def postp(rt):
        Lp = []
        d = 208 + 12 * (rt % 2)
        if Q:
            phi4(Lp, acc(rt, 0), T0_, d); phi4(Lp, acc(rt, 1), T1_, d + 2)
            Lp.append(f"buffer_store_dwordx4 v[{d}:{d+3}], v8, s[{SX}:{SX+3}], s37 offen sc1")
            phi4(Lp, acc(rt, 4), T0_, d + 8)
            Lp.append(f"s_mov_b32 exec_hi, 0\nbuffer_store_dwordx2 v[{d+8}:{d+9}], v9, s[{SW}:{SW+3}], s39 offen sc1\ns_mov_b32 exec_hi, -1")
            phi4(Lp, acc(rt, 2), T1_, d + 4); phi4(Lp, acc(rt, 3), T0_, d + 6)
            Lp.append(f"buffer_store_dwordx4 v[{d+4}:{d+7}], v8, s[{SX}:{SX+3}], s37 offen offset:1024 sc1")
            Lp.append("s_add_u32 s37, s37, 16384\ns_add_u32 s39, s39, 2048")
        else:
            pk = lambda t: acc(rt & ~1, t) + 2 * (rt & 1)
            for t in (0, 1): phi4(Lp, acc(rt, t), (T0_, T1_)[t], pk(t))
            phi4(Lp, acc(rt, 4), T0_, None)
            if RT % 2: Lp.append(f"s_add_u32 s39, s38, {rt}\ns_cmp_lt_u32 s39, 128\ns_cselect_b32 s39, 0x3f803f80, 0\nv_mov_b32 v13, s39")
            for i in range(4): Lp.append(f"v_cndmask_b32 v{T0_+i}, v{T0_+i}, v{acc(rt,4)+i}, s[98:99]")
            e = pk(4)
            Lp += [f"v_cvt_pk_bf16_f32 v{e}, v{T0_}, v{T0_+1}", f"v_cvt_pk_bf16_f32 v{e+1}, v{T0_+2}, v{T0_+3}",
                   f"v_cndmask_b32 v{e}, v{e}, v13, s[100:101]", f"v_cndmask_b32 v{e+1}, v{e+1}, v13, s[100:101]"]
            for t in (2, 3):
                e = pk(t)
                Lp += [f"v_cvt_pk_bf16_f32 v{e}, v{acc(rt,t)}, v{acc(rt,t)+1}", f"v_cvt_pk_bf16_f32 v{e+1}, v{acc(rt,t)+2}, v{acc(rt,t)+3}"]
                if rt == RT - 1 and RT % 2: Lp.append(f"v_mov_b64 v[{e+2}:{e+3}], 0")
            if rt == RT - 1 and RT % 2:
                for t in (0, 1, 4): Lp.append(f"v_mov_b64 v[{pk(t)+2}:{pk(t)+3}], 0")
        return Lp
    Rd = reads(1)
    first = [one(0, rt, t) for rt in range(2) for t in TORD]
    for k, m in enumerate(first):
        for x in Rd[2*k:2*k+2]: a(x)
        a(m)
    a("s_waitcnt lgkmcnt(0)")
    a("s_barrier")
    for t in TORD: a(one(1, 0, t))
    rest = []
    for rt in range(1, RT):
        rest += [(rt, one(1, rt, t)) for t in TORD]
        if rt + 1 < RT: rest += [(rt + 1, one(0, rt + 1, t)) for t in TORD]
    for _ in range(3): a(rest.pop(0)[1])
    stamp(2)
    KA = 208
    kvt = [(0, 2, 0), (1, 3, 1), (2, 2, 4), (3, 3, 4), (4, 4, 0), (5, 4, 1), (6, 4, 4)]
    def kvm(ks):
        r = 2 * ks
        return [(99, f"v_mfma_f32_16x16x32_bf16 v[{KA+4*i}:{KA+4*i+3}], v[{acc(r,x)}:{acc(r,x)+3}], v[{acc(r,y)}:{acc(r,y)+3}], " + ("0" if ks == 0 else f"v[{KA+4*i}:{KA+4*i+3}]"))
                for i, x, y in kvt]
    for rt in range(RT):
        while rest and rest[0][0] <= rt: a(rest.pop(0)[1])
        k = 0
        for x in postp(rt):
            alt = x.split("|")
            for y in (alt[1:] if len(alt) > 1 and rest and NSC else alt[:1]):
                a(y); k += 2 if y.startswith("v_exp") else 1
                if k >= 2 and rest: a(rest.pop(0)[1]); k = 0
        if not Q and (rt % 2 == 1 or rt == RT - 1): rest += kvm(rt // 2)
    while rest: a(rest.pop(0)[1])
    if not Q:
        at = lambda r, ad, o: a(f"buffer_atomic_add_f32 v{r}, v{ad}, {WSR}, s51 offen offset:{o}")
        for i in range(4): a(f"v_cndmask_b32 v{KA+8+i}, v{KA+12+i}, v{KA+8+i}, s[46:47]")
        a(f"v_mov_b64 v[{KA+18}:{KA+19}], v[{KA+22}:{KA+23}]")
        a(f"v_cndmask_b32 v{KA+24}, v{KA+26}, v{KA+24}, s[46:47]")
        a(f"v_cndmask_b32 v{KA+25}, v{KA+27}, v{KA+25}, s[46:47]")
        own = [(KA, KA + 8, KA + 24), (KA + 4, KA + 16, KA + 25)]
        a("s_cmp_eq_u32 s35, 1")
        a(f"s_cbranch_scc1 {L('rx1')}")
        for rh in range(2):
            if rh: a(f"{L('rx1')}:")
            o, k = own[1 - rh], own[rh]
            a(f"ds_write_b128 v248, v[{o[0]}:{o[0]+3}]")
            a(f"ds_write_b128 v248, v[{o[1]}:{o[1]+3}] offset:1024")
            a(f"ds_write2_b32 v14, v{o[2]}, v14 offset0:0 offset1:1")
            a("s_mov_b32 s3, 0")
            a(f"{L('rp' + str(rh))}:")
            a("ds_read_b64 v[200:201], v15")
            a("ds_read_b128 v[16:19], v249")
            a("ds_read_b128 v[20:23], v249 offset:1024")
            a("s_add_u32 s3, s3, 1")
            a("s_waitcnt lgkmcnt(0)")
            a("v_cmp_eq_u32 vcc, 0, v201")
            a("s_cmp_ge_u32 s3, 0x100000")
            a(f"s_cbranch_scc1 {L('rq' + str(rh))}")
            a(f"s_cbranch_vccnz {L('rp' + str(rh))}")
            a(f"{L('rq' + str(rh))}:")
            for j in range(2):
                for h in (0, 2): a(f"v_pk_add_f32 v[{k[j]+h}:{k[j]+h+1}], v[{k[j]+h}:{k[j]+h+1}], v[{16+4*j+h}:{17+4*j+h}]")
            a(f"v_add_f32 v{k[2]}, v{k[2]}, v200")
            if rh == 0:
                for i in range(4): at(KA + i, 236, 64*i)
                for i in range(4): at(KA + 8 + i, 237, O_LD + 64*i)
                at(KA + 24, 241, O_XL)
                a(f"s_branch {L('rxd')}")
            else:
                for i in range(4): at(KA + 4 + i, 236, O_MMB + 64*i)
                at(KA + 16, 238, O_XM); at(KA + 17, 240, O_XM + 192)
                at(KA + 18, 239, O_XM); at(KA + 19, 240, O_XM + 320)
                at(KA + 25, 242, O_XL + 16)
        a(f"{L('rxd')}:")
    stamp(3)
    a("s_barrier")
    a("v_mov_b64 v[106:107], v[244:245]\nv_mov_b64 v[108:109], v[246:247]")
    if Q:
        if PORD == "pw":
            a("s_lshl_b32 s50, s33, 2")
            a("s_add_u32 s50, s50, s32")
            a("s_lshl_b32 s50, s50, 7")
        else: a("s_lshl_b32 s50, s33, 7")
        a(f"s_add_u32 s50, s50, {PQC}")
        a("v_mov_b32 v243, 0")
    prep3(a)
    lds_last(a, L("sig"))
    a(f"s_mov_b64 exec, {1 if Q else 0xff}")
    a(f"buffer_atomic_add v5, v243, {WSR}, s50 offen")
    a("s_mov_b64 exec, -1")
    a(f"{L('sig')}:")
    stamp(4)
    a("s_branch L_bjoin")

def phase3(a, stamp):
    a.c("---------------- phase 3 ----------------")
    if "stA" in DBG or "stB" in DBG: stamp = lambda i: None
    a("L_bjoin:")
    stamp(5)
    a("s_cmp_eq_u32 s43, 0" if KRT == 5 else "s_cmp_ge_u32 s43, 20")
    a("s_cbranch_scc1 L_fin")
    def poll_prep_q():
        a("s_lshl_b32 s34, s32, 1")
        a("v_add_u32 v104, s34, v101")
        a(f"v_mul_u32_u24 v104, {205 if KRT == 4 else 256}, v104")
        a("v_lshrrev_b32 v104, 10, v104")
        a("v_lshlrev_b32 v104, 7, v104")
        a(f"s_mov_b32 s34, {PQC}")
    def poll_prep_k():
        a("v_lshlrev_b32 v104, 7, v101")
        a("s_lshl_b32 s34, s42, 11")
        a(f"s_add_u32 s34, s34, {CNT}")
    def poll(wave, prep, nl, tgt, tag, two=False, bar=True):
        a(f"s_cmp_lg_u32 s31, {wave}")
        a(f"s_cbranch_scc1 L_pw{tag}")
        prep()
        a(f"s_mov_b64 exec, {hex((1 << nl) - 1)}")
        a("s_mov_b32 s3, 0")
        if two and POLL2:
            a(f"buffer_load_dword v254, v104, {WSR}, s34 offen sc1")
            a(f"s_sleep {POLL2}")
            a(f"L_poll{tag}:")
            for cur, nxt in ((254, 255), (255, 254)):
                a(f"buffer_load_dword v{nxt}, v104, {WSR}, s34 offen sc1")
                a("s_waitcnt vmcnt(1)")
                a(f"v_cmp_gt_u32 vcc, {tgt}, v{cur}")
                a("s_add_u32 s3, s3, 1")
                a(f"s_cbranch_vccz L_pd{tag}")
            a("s_cmp_lt_u32 s3, 0x20000")
            a(f"s_cbranch_scc1 L_poll{tag}")
        else:
            if PS0: a(f"s_sleep {PS0}")
            a(f"L_poll{tag}:")
            if PSLEEP: a(f"s_sleep {PSLEEP}")
            a(f"buffer_load_dword v105, v104, {WSR}, s34 offen sc1")
            a("s_add_u32 s3, s3, 1")
            a("s_waitcnt vmcnt(0)")
            a(f"v_cmp_gt_u32 vcc, {tgt}, v105")
            a("s_cmp_ge_u32 s3, 0x10000")
            a(f"s_cbranch_scc1 L_pd{tag}")
            a(f"s_cbranch_vccnz L_poll{tag}")
        a(f"L_pd{tag}:")
        a("s_mov_b64 exec, -1")
        a(f"L_pw{tag}:")
        if bar: a("s_barrier")
    AM = [16, 20, 24, 28]
    AX = [32, 36, 40, 44]
    PQR = 56
    T = 48
    def pql(rt, ad=9, al=7):
        b = PQR + 14 * rt
        a(f"s_add_u32 s3, s41, {rt}")
        a("s_and_b32 s3, s3, 3")
        a("s_lshl_b32 s30, s3, 14")
        a("s_add_u32 s30, s30, s38")
        a("s_lshl_b32 s3, s3, 11")
        a("s_add_u32 s3, s3, s39")
        a(f"buffer_load_dwordx4 v[{b+2}:{b+5}], v{ad}, {WSR}, s30 offen sc1")
        a(f"buffer_load_dwordx4 v[{b+8}:{b+11}], v{ad}, {WSR}, s30 offen offset:1024 sc1")
        a(f"buffer_load_dwordx2 v[{b+6}:{b+7}], v{al}, {WSR}, s3 offen sc1")
    def kvl():
        a(f"buffer_load_dwordx4 v[{AX[0]}:{AX[0]+3}], v102, {WSR}, s51 offen offset:{O_XM} sc1")
        a(f"buffer_load_dwordx4 v[{T}:{T+3}], v100, {WSR}, s51 offen offset:{O_LD} sc1")
        a(f"s_add_u32 s3, s51, {PAIRB}")
        a(f"buffer_load_dwordx4 v[{AX[2]}:{AX[2]+3}], v103, {WSR}, s3 offen offset:{O_XM} sc1")
        for c in range(2):
            o = c * PAIRB
            a(f"buffer_load_dwordx4 v[{AM[2*c]}:{AM[2*c]+3}], v98, {WSR}, s51 offen offset:{o} sc1")
            a(f"buffer_load_dwordx4 v[{AM[2*c+1]}:{AM[2*c+1]+3}], v98, {WSR}, s51 offen offset:{o+O_MMB} sc1")
    if PORD == "qk":
        stamp(6)
        poll(PQW, poll_prep_q, 2, 4, "q"); stamp(8)
        a("v_mov_b64 v[16:17], v[106:107]\nv_mov_b64 v[18:19], v[108:109]")
        a("v_add_u32 v0, 0x1c000, v106")
        trs = [x for st in range(14) for x in (wotr(a, st, 16) if st < 8 else wotr(a, st, 18, 0x10000))]
        for rt in range(PQE):
            pql(rt)
            for x in trs[36*rt//PQE:36*(rt+1)//PQE]: a(x)
        a("s_waitcnt lgkmcnt(0)")
        a("v_mov_b64 v[4:5], v[18:19]")
        stamp(7)
        poll(0, poll_prep_k, SHARD, (13 if KRT == 5 else 16) * 8 // SHARD, "k", two=True); stamp(9)
        kvl()
        for x in trs[36:]: a(x.replace("v18 ", "v4 ").replace("v19 ", "v5 "))
        for rt in range(PQE, 4): pql(rt)
        vm = [f"p{r}" for r in range(PQE) for _ in range(3)] + ["x"]*3 + ["m0"]*2 + ["m1"]*2 + [f"p{r}" for r in range(PQE, 4) for _ in range(3)]
    else:
        a(f"v_mov_b32 v4, {LCNT + 4}")
        a("s_mov_b32 s3, 0")
        a("L_xv:")
        a("ds_read_b32 v5, v4")
        a("s_add_u32 s3, s3, 1")
        a("s_waitcnt lgkmcnt(0)")
        a("v_cmp_gt_u32 vcc, 4, v5")
        a("s_cmp_ge_u32 s3, 0x100000")
        a("s_cbranch_scc1 L_xv2")
        a("s_cbranch_vccnz L_xv")
        a("L_xv2:")
        stamp(6)
        a("v_add_u32 v0, 0x1c000, v106")
        a("s_lshl_b32 s3, s33, 2")
        a("s_add_u32 s3, s3, s35")
        a("s_cmp_ge_u32 s3, 18")
        a("s_cbranch_scc1 L_notr")
        for st in range(14):
            for x in (wotr(a, st, 106) if st < 8 else wotr(a, st, 108, 0x10000)): a(x)
        a("L_notr:")
        a("v_mov_b32 v98, v9\nv_mov_b32 v99, v7\nv_mov_b32 v100, v10\nv_mov_b64 v[102:103], v[12:13]\nv_mov_b32 v254, v9\nv_mov_b32 v255, v7\nv_mov_b32 v101, v1")
        a("s_mov_b32 s51, s37")
        a("v_xor_b32 v5, 32, v0\nv_mov_b32 v4, v0")
        for s in (14, 15):
            for x in wotr(a, s, 4, 0x1c000): a(x)
        a("s_lshl_b32 s34, s40, 11")
        a("v_add_u32 v10, s34, v9")
        a("s_lshr_b32 s34, s40, 2")
        a("s_lshl_b32 s34, s34, 10")
        a("s_and_b32 s3, s40, 3")
        a("s_lshl_b32 s3, s3, 2")
        a("s_add_u32 s34, s34, s3")
        a(f"s_add_u32 s34, s34, {16*1024}")
        a("v_add_u32 v11, s34, v9")
        a(f"s_mul_i32 s34, s36, {18*1024}")
        a("v_add_u32 v8, s34, v9")
        a("s_lshl_b32 s34, s31, 10")
        a(f"s_add_u32 s34, s34, {EPI}")
        a("v_add_u32 v9, s34, v9")
        a("v_and_b32 v12, 1, v3")
        a("v_lshrrev_b32 v14, 1, v3")
        a("v_lshl_add_u32 v12, v12, 1, v14")
        if FULL:
            a("s_lshl_b32 s3, s35, 2")
            a("v_add_u32 v12, s3, v12")
            a("v_xor_b32 v12, v12, v2")
            a("v_lshl_add_u32 v12, v2, 4, v12")
            a("s_lshl_b32 s3, s36, 12")
            a(f"s_add_u32 s3, s3, {EPI}")
            a("v_lshl_add_u32 v12, v12, 4, s3")
            a("s_and_b32 s3, s31, 3")
            a("s_lshl_b32 s3, s3, 2")
            a("v_add_u32 v14, s3, v3")
            a("v_xor_b32 v15, v14, v2")
            a("v_cmp_eq_u32 vcc, 0, v3")
            a("v_mov_b32 v2, v12")
            a("s_lshr_b32 s3, s31, 2")
            a("s_add_u32 s3, s3, s41")
            a("s_and_b32 s3, s3, 3")
            a("s_cmp_lt_u32 s3, 2")
            a(f"s_mov_b32 s37, {32*2304}")
            a(f"s_cselect_b32 s37, s37, {(-32*2304) & 0xffffffff:#x}")
            a("s_lshl_b32 s34, s32, 6")
            a("s_lshl_b32 s3, s3, 4")
            a("s_add_u32 s34, s34, s3")
            a("v_add_u32 v14, s34, v14")
            a("v_mul_u32_u24 v14, 2304, v14")
            a("s_lshl_b32 s34, s33, 8")
            a("v_lshl_add_u32 v15, v15, 4, s34")
            a("s_movk_i32 s3, 1152")
            a("v_cmp_gt_u32 s[60:61], s3, v15")
            a("v_add3_u32 v3, v14, v15, s3")
            a("s_lshl_b32 s3, s35, 6")
            a("s_add_u32 s34, s34, s3")
        else:
            a("v_lshl_add_u32 v12, v2, 2, v12")
            a("v_cmp_eq_u32 vcc, 0, v3")
            a("v_lshl_add_u32 v2, v12, 4, s34")
            a("s_add_u32 s3, s36, s41")
            a("s_and_b32 s3, s3, 3")
            a("s_cmp_lt_u32 s3, 2")
            a(f"s_mov_b32 s37, {32*2304}")
            a(f"s_cselect_b32 s37, s37, {(-32*2304) & 0xffffffff:#x}")
            a("s_lshl_b32 s34, s32, 6")
            a("s_lshl_b32 s3, s3, 4")
            a("s_add_u32 s34, s34, s3")
            a("v_lshrrev_b32 v14, 2, v1")
            a("v_add_u32 v14, s34, v14")
            a("v_mul_u32_u24 v14, 2304, v14")
            a("v_and_b32 v15, 3, v1")
            a("v_lshl_add_u32 v14, v15, 4, v14")
            a("s_lshl_b32 s34, s33, 8")
            a("s_lshl_b32 s3, s35, 6")
            a("s_add_u32 s34, s34, s3")
            a("s_add_u32 s3, s34, 1152")
            a("v_add_u32 v3, s3, v14")
        a("v_xor_b32 v1, 32, v0")
        a(f"v_mov_b32 v12, {hexf(EPS)}\nv_mov_b32 v13, v12\nv_mov_b32 v14, 0\nv_mov_b32 v15, 0")
        a(f"v_mov_b32 v{AX[1]+2}, 0\nv_mov_b32 v{AX[3]+2}, 0")
        a("s_andn2_b64 s[48:49], s[98:99], s[100:101]")
        a("s_mov_b64 s[94:95], vcc")
        a("s_mov_b32 s50, s34")
        a("s_waitcnt lgkmcnt(0)")
        stamp(8)
        if PORD == "pw":
            assert SHARD == 16 and KRT == 4
            a("s_barrier")
            a("v_and_b32 v105, 1, v101")
            a("s_lshl_b32 s34, s32, 1")
            a("v_add_u32 v104, s34, v105")
            a("v_mul_u32_u24 v104, 205, v104")
            a("v_lshrrev_b32 v104, 10, v104")
            a("s_lshr_b32 s34, s40, 1")
            a("s_lshl_b32 s34, s34, 7")
            a(f"s_add_u32 s34, s34, {PQC}")
            a("v_lshl_add_u32 v104, v104, 9, s34")
            a("s_lshl_b32 s34, s42, 11")
            a("s_lshl_b32 s3, s40, 7")
            a("s_add_u32 s34, s34, s3")
            a(f"s_add_u32 s34, s34, {CNT}")
            a("v_lshl_add_u32 v105, v105, 10, s34")
            a("v_cmp_gt_u32 vcc, 2, v101")
            a("v_cndmask_b32 v104, v104, v105, vcc")
            a("v_cndmask_b32_e64 v110, 1, 8, vcc")
            a("s_mov_b64 exec, 15")
            a("s_mov_b32 s3, 0")
            a("L_pollw:")
            if PSLEEP: a(f"s_sleep {PSLEEP}")
            a(f"buffer_load_dword v105, v104, {WSR}, 0 offen sc1")
            a("s_add_u32 s3, s3, 1")
            a("s_waitcnt vmcnt(0)")
            a("v_cmp_gt_u32 vcc, v110, v105")
            a("s_cmp_ge_u32 s3, 0x10000")
            a("s_cbranch_scc1 L_pdw")
            a("s_cbranch_vccnz L_pollw")
            a("L_pdw:")
            a("s_mov_b64 exec, -1")
            stamp(7)
        else:
            if PORD == "cc": poll(PQW, poll_prep_q, 2, 4, "q", bar=False)
            poll(PKW, poll_prep_k, SHARD, (13 if KRT == 5 else 16) * 8 // SHARD, "k", two=True); stamp(7)
        kvl()
        if PORD in ("cc", "pw"): pql(0, 98, 99); pql(1, 98, 99)
        vm = ["x"]*3 + ["m0"]*2 + ["m1"]*2 + [f"p{r}" for r in range(2 if PORD in ("cc", "pw") else 0) for _ in range(3)]
    vdone = [-1]
    def vwait(tag):
        idx = max(i for i, t in enumerate(vm) if t == tag)
        if idx > vdone[0]:
            a(f"s_waitcnt vmcnt({len(vm) - 1 - idx})"); vdone[0] = idx
    def pmov(rt):
        b = PQR + 14 * rt
        vwait(f"p{rt}")
        a(f"v_mov_b64 v[{b}:{b+1}], v[{b+6}:{b+7}]\nv_mov_b64 v[{b+12}:{b+13}], v[{b+6}:{b+7}]")
    for rt in range(PQE): pmov(rt)
    def mf(d, x, y, c): a(f"v_mfma_f32_16x16x32_bf16 v[{d}:{d+3}], v[{x}:{x+3}], v[{y}:{y+3}], {c}")
    def regs(rt): return (PQR + 14 * rt, (48, 240, 48, 56)[rt], (52, 244, 52, 60)[rt], (4, 248, 4, 64)[rt])
    def MX(rt):
        b, X0, X1, D0 = regs(rt)
        ops = [b, b+4, b+6, b+10]
        if rt >= PQE: pmov(rt)
        mf(X0, AX[1], ops[1], "v[12:15]"); mf(X1, AX[3], ops[3], "v[12:15]")
        mf(X0, AX[0], ops[0], f"v[{X0}:{X0+3}]"); mf(X1, AX[2], ops[2], f"v[{X1}:{X1+3}]")
    def MM_(rt):
        b, X0, X1, D0 = regs(rt)
        ops = [b, b+4, b+6, b+10]
        mf(D0, AM[0], ops[0], "0")
        mf(b, AM[1], ops[1], "0")
        mf(b+6, AM[2], ops[2], "0")
        mf(b+10, AM[3], ops[3], "0")
    def conv(st=True):
        vwait("x")
        if st: stamp(9)
        a(f"v_cvt_pk_bf16_f32 v252, v{T}, v{T+1}")
        a(f"v_cvt_pk_bf16_f32 v253, v{T+2}, v{T+3}")
        for c in range(2):
            xa, xb = AX[2*c], AX[2*c+1]
            mk = "s[46:47]" if c == 0 else "s[96:97]"
            a(f"v_cvt_pk_bf16_f32 v{T+2}, v{xa}, v{xa+1}")
            a(f"v_cvt_pk_bf16_f32 v{T+3}, v{xa+2}, v{xa+3}")
            a(f"v_cndmask_b32 v{T+4}, 0, v252, {mk}")
            a(f"v_mov_b32 v{xa+1}, 0")
            a(f"v_cndmask_b32 v{xb}, 0, v{T+2}, s[44:45]")
            a(f"v_cndmask_b32 v{xb+1}, 0, v{T+3}, s[44:45]")
            a(f"v_cndmask_b32 v{xb+3}, 0, v{T+4}, s[44:45]")
            a(f"v_cndmask_b32 v{xa}, v{T+4}, 0, s[44:45]")
            a(f"v_cndmask_b32 v{xa+2}, v{T+2}, 0, s[44:45]")
            a(f"v_cndmask_b32 v{xa+3}, v{T+3}, 0, s[44:45]")
        for c in range(2):
            ma, mb = AM[2*c], AM[2*c+1]
            mk = "s[94:95]" if c == 0 else "s[48:49]"
            vwait(f"m{c}")
            a(f"v_cvt_pk_bf16_f32 v{ma+3}, v{ma+2}, v{ma+3}")
            a(f"v_cvt_pk_bf16_f32 v{ma+2}, v{ma}, v{ma+1}")
            a(f"v_cndmask_b32 v{ma}, 0, v252, {mk}")
            a(f"v_mov_b32 v{ma+1}, 0")
            a(f"v_cvt_pk_bf16_f32 v{mb}, v{mb}, v{mb+1}")
            a(f"v_cvt_pk_bf16_f32 v{mb+1}, v{mb+2}, v{mb+3}")
            a(f"v_mov_b32 v{mb+2}, 0")
            a(f"v_cndmask_b32 v{mb+3}, 0, v253, {mk}")
    if PORD in ("cc", "pw"): conv()
    else:
        a(f"s_cmp_eq_u32 s31, {PQW}")
        a("s_cbranch_scc1 L_skipconv")
        conv()
        a("L_skipconv:")
        poll(PQW, poll_prep_q, 2, 4, "q")
        stamp(10)
        pql(0, 98, 99); pql(1, 98, 99); vm.extend(["p0"]*3 + ["p1"]*3)
        a(f"s_cmp_lg_u32 s31, {PQW}")
        a("s_cbranch_scc1 L_skipconv2")
        conv(False)
        a("L_skipconv2:")
    def V(rt):
        b, X0, X1, D0 = regs(rt)
        L = []
        p = lambda t: L.extend(x.strip() for x in t.split("\n"))
        for x in (X0, X1):
            p(f"v_rcp_f32 v{x}, v{x}\nv_rcp_f32 v{x+1}, v{x+1}")
        if NSC: p(f"v_add_f32 v{X0+2}, v{X0+2}, v{X1+2}\nv_add_f32 v{X0+3}, v{X0+3}, v{X1+3}")
        else: p(f"v_pk_add_f32 v[{X0+2}:{X0+3}], v[{X0+2}:{X0+3}], v[{X1+2}:{X1+3}]")
        p(f"v_cndmask_b32 v{X1+2}, v{X0}, v{X0+1}, s[98:99]")
        p(f"v_cndmask_b32 v{X1+3}, v{X1}, v{X1+1}, s[98:99]")
        p(f"v_cndmask_b32 v{X1+2}, v{X1+2}, v{X1+3}, s[100:101]")
        if NSC: p(f"v_mul_f32 v{X0+2}, v{X0+2}, v{X1+2}\nv_mul_f32 v{X0+3}, v{X0+3}, v{X1+2}")
        else: p(f"v_pk_mul_f32 v[{X0+2}:{X0+3}], v[{X0+2}:{X0+3}], v[{X1+2}:{X1+3}] op_sel:[0,0] op_sel_hi:[1,0]")
        p(f"v_cvt_pk_bf16_f32 v{b+4}, v{X0+2}, v{X0+3}")
        p(f"ds_write_b32 v11, v{b+4} offset:{rt*18*1024}")
        for d, rc in ((D0, X0), (b, X0+1), (b+6, X1), (b+10, X1+1)):
            sel = "op_sel:[0,0] op_sel_hi:[1,0]" if rc % 2 == 0 else "op_sel:[0,1] op_sel_hi:[1,1]"
            rp = rc & ~1
            if NSC:
                for i in range(4): p(f"v_mul_f32 v{d+i}, v{d+i}, v{rc}")
                continue
            p(f"v_pk_mul_f32 v[{d}:{d+1}], v[{d}:{d+1}], v[{rp}:{rp+1}] {sel}")
            p(f"v_pk_mul_f32 v[{d+2}:{d+3}], v[{d+2}:{d+3}], v[{rp}:{rp+1}] {sel}")
        p(f"v_cvt_pk_bf16_f32 v{D0}, v{D0}, v{D0+1}\nv_cvt_pk_bf16_f32 v{D0+1}, v{D0+2}, v{D0+3}")
        p(f"v_cvt_pk_bf16_f32 v{D0+2}, v{b}, v{b+1}\nv_cvt_pk_bf16_f32 v{D0+3}, v{b+2}, v{b+3}")
        p(f"ds_write_b128 v10, v[{D0}:{D0+3}] offset:{rt*18*1024}")
        p(f"v_cvt_pk_bf16_f32 v{b+6}, v{b+6}, v{b+7}\nv_cvt_pk_bf16_f32 v{b+7}, v{b+8}, v{b+9}")
        p(f"v_cvt_pk_bf16_f32 v{b+8}, v{b+10}, v{b+11}\nv_cvt_pk_bf16_f32 v{b+9}, v{b+12}, v{b+13}")
        p(f"ds_write_b128 v10, v[{b+6}:{b+9}] offset:{rt*18*1024+1024}")
        return L
    def late_pq():
        for rt in (2, 3):
            pql(rt, 254, 255); vm.extend([f"p{rt}"] * 3)
    if PORD == "qk": MM_(0); MM_(1)
    else:
        if LATEM == 1: late_pq()
        MX(0); MM_(0)
        if LATEM == 2: late_pq()
        MX(1); MM_(1)
        if LATEM == 3: late_pq()
    for x in V(0): a(x)
    if not LATEM: MX(2); MM_(2)
    for x in V(1): a(x)
    if not LATEM: MX(3); MM_(3)
    a("s_waitcnt lgkmcnt(0)")
    a("s_barrier")
    stamp(11)
    OA = 68
    OF = 16
    q_ = []; done = [-1]
    def lds(t, tag=None): a(t); q_.append(tag)
    def wait_for(tags):
        idx = max(i for i, t in enumerate(q_) if t in tags)
        if idx > done[0]:
            n = len(q_) - 1 - idx
            a(f"s_waitcnt lgkmcnt({min(n, 15)})")
            done[0] = idx if n <= 15 else len(q_) - 16
    def emit(x):
        if "@" in x: t, g = x.split("@"); lds(t, g)
        elif x.startswith("ds_"): lds(x)
        else: a(x)
    late = [x + "@W" for s in (16, 17) for x in wotr(a, s, 0, 0x1c000)]
    LA = 5
    def ofr(ps, k): return 240 + 4*k if (LATEM and ps == 0 and k < 3) else OF + 4*(k%8)
    def ord_(ps, k): lds(f"ds_read_b128 v[{ofr(ps,k)}:{ofr(ps,k)+3}], v8 offset:{(ps*36 + k)*1024}", ("O", ps, k))
    def epi(ps):
        d = OA + 8*ps; p = 84 + 4*ps
        L = [f"v_cvt_pk_bf16_f32 v{p+k}, v{d+2*k}, v{d+2*k+1}" for k in range(4)]
        L += ["v_nop", f"v_permlane16_swap_b32 v{p}, v{p+2}", f"v_permlane16_swap_b32 v{p+1}, v{p+3}",
              f"ds_write_b128 v2, v[{p}:{p+3}] offset:{8192*ps}@X{ps}"]
        if not FULL: L.append(f"ds_read_b128 v[{p+8}:{p+11}], v9 offset:{8192*ps}@E{ps}")
        return L
    def xbar(ps):
        wait_for({f"X{ps}"})
        a("s_barrier")
        emit(f"ds_read_b128 v[{92+4*ps}:{95+4*ps}], v9 offset:{8192*ps}@E{ps}")
    def store(ps):
        wait_for({f"E{ps}"})
        if ps: a("v_add_u32 v3, s37, v3")
        if FULL: a("s_mov_b64 exec, s[60:61]")
        a(f"global_store_dwordx4 v3, v[{92+4*ps}:{95+4*ps}], s[24:25] {STB}")
        if FULL: a("s_mov_b64 exec, -1")
    for ps in range(2):
        fill = (V(2) + late + V(3)) if ps == 0 else ["s_nop 0"] * 4 + epi(0)
        if ps == 1:
            a("s_cmp_ge_u32 s50, 1152")
            a("s_cbranch_scc1 " + ("L_narrow" if FULL else "L_fin"))
        lm = LATEM and ps == 0
        nxt = 3 if lm else LA
        for k in range(nxt): ord_(ps, k)
        if lm: MX(2); MM_(2)
        for k in range(18):
            wait_for({("O", ps, k)} | ({"W"} if k >= 16 else set()))
            for t in range(2):
                d = OA + 8*ps + 4*t
                mf(d, WOF + 8*k + 4*t, ofr(ps, k), "0" if k == 0 else f"v[{d}:{d+3}]")
                if lm and k == 0 and t == 1: MX(3); MM_(3)
                if not (lm and k == 0 and t == 0):
                    for _ in range(2):
                        if nxt < 18 and nxt <= k + LA: ord_(ps, nxt); nxt += 1
                for _ in range(3 if NSC and ps == 0 else 2):
                    if fill and not (lm and k == 0): emit(fill.pop(0))
            if ps == 1 and k == 7 and FULL: xbar(0)
            if ps == 1 and k == (11 if FULL else 9): store(0)
        assert not fill
        if ps == 0:
            a("s_waitcnt lgkmcnt(0)"); done[0] = len(q_) - 1
            a("s_barrier")
            stamp(12)
    for x in epi(1): emit(x)
    if FULL: xbar(1)
    store(1)
    stamp(13)
    if FULL:
        a("s_branch L_fin")
        a("L_narrow:")
        for ps in range(2):
            a("s_barrier")
            a(f"ds_read_b128 v[{92+4*ps}:{95+4*ps}], v9 offset:{8192*ps}")
            a("s_waitcnt lgkmcnt(0)")
            if ps: a("v_add_u32 v3, s37, v3")
            a("s_mov_b64 exec, s[60:61]")
            a(f"global_store_dwordx4 v3, v[{92+4*ps}:{95+4*ps}], s[24:25] {STB}")
            a("s_mov_b64 exec, -1")
```

```python
import sys, os
from asmlib import *
import hazard
from gen_a import *
from gen_b import *

NST = 15
STAMP_OFF = 200 << 20
def build(stamps=False, do_a=True, do_b=True, do_p3=True):
    a = Asm()
    sbase = 64
    def stamp(i):
        if stamps: a(f"{'s_memtime' if os.environ.get('CYC') else 's_memrealtime'} s[{sbase+2*i}:{sbase+2*i+1}]")
    stamp(0)
    a("s_load_dwordx16 s[4:19], s[0:1], 0")
    a("s_load_dwordx8 s[20:27], s[0:1], 64")
    a("s_load_dwordx2 s[28:29], s[0:1], 96")
    a("s_cmp_ge_u32 s2, 256")
    a("s_cbranch_scc1 L_end")
    a("v_and_b32 v1, 63, v0")
    a("v_lshrrev_b32 v2, 6, v0")
    a("s_and_b32 s42, s2, 7")
    a("s_lshr_b32 s43, s2, 3")
    a("v_readfirstlane_b32 s31, v2")
    if not os.environ.get("NOCPF"):
        a("s_and_b32 s34, s43, 7")
        a("s_cmp_lg_u32 s34, s31")
        a("s_cbranch_scc1 L_nocpf")
        a("s_getpc_b64 s[36:37]")
        a("L_pc:")
        a("s_lshl_b32 s34, s34, 13")
        a("v_lshl_add_u32 v4, v1, 7, s34")
        a("v_min_u32 v4, L_code_end-L_pc-4, v4")
        a("v_mov_b32 v5, s37")
        a("v_add_co_u32 v4, vcc, s36, v4")
        a("v_addc_co_u32 v5, vcc, 0, v5, vcc")
        a("global_load_dword v255, v[4:5], off")
        a("L_nocpf:")
    if os.environ.get("SWAP9", "1") == "1":
        a("s_mov_b32 s39, s2")
        a("s_sub_u32 s35, s2, 179")
        a("s_cmp_lt_u32 s35, 2")
        a("s_cselect_b32 s36, 74, 0")
        a("s_add_u32 s39, s39, s36")
        a("s_sub_u32 s35, s2, 253")
        a("s_cmp_lt_u32 s35, 2")
        a("s_cselect_b32 s36, 74, 0")
        a("s_sub_u32 s39, s39, s36")
        a("s_and_b32 s42, s39, 7")
        a("s_lshr_b32 s43, s39, 3")
        a("s_add_u32 s35, s42, 15")
        a("s_cmp_gt_u32 s39, 248")
        a("s_cselect_b32 s36, s35, s43")
        a("s_cselect_b32 s37, 0, s42")
        a("s_sub_u32 s35, s43, 16")
        a("s_cmp_lt_u32 s35, 7")
        a("s_cselect_b32 s38, s42, 1")
        a("s_add_u32 s35, s35, 1")
        a("s_cmp_eq_u32 s38, 0")
        a("s_cselect_b32 s43, 31, s36")
        a("s_cselect_b32 s42, s35, s37")
    a("v_and_b32 v2, 15, v1")
    a("v_lshrrev_b32 v3, 4, v1")
    a("s_and_b32 s34, s42, 3")
    if KRT == 5:
        a("s_cmp_ge_u32 s43, 13")
        a("s_cbranch_scc1 L_notkv")
        a("s_mul_i32 s35, s34, 13")
        a("s_add_u32 s35, s35, s43")
        a("s_lshr_b32 s33, s35, 2")
        a("s_and_b32 s36, s35, 3")
        a("s_and_b32 s32, s42, 4")
        a("s_add_u32 s32, s32, s36")
        a("s_add_u32 s94, s33, s36")
        if os.environ.get("ROT3", "1") == "1":
            a("s_mul_i32 s35, s94, 86")
            a("s_lshr_b32 s35, s35, 8")
            a("s_mul_i32 s35, s35, 3")
            a("s_sub_u32 s94, s94, s35")
            a("s_mul_i32 s94, s94, 3")
        else:
            a("s_and_b32 s94, s94, 3")
            a("s_lshl_b32 s94, s94, 1")
        role_gemm(a, "kv", stamp)
        a("L_notkv:")
        a(f"s_cmp_ge_u32 s43, {AS0}")
        a("s_cbranch_scc1 L_rolea")
        a("s_cmp_ge_u32 s43, 21")
        a("s_cbranch_scc1 L_spare")
        a("s_sub_u32 s35, s43, 13")
        a("s_lshr_b32 s33, s35, 1")
        a("s_lshl_b32 s36, s34, 2")
        a("s_add_u32 s33, s33, s36")
        a("s_and_b32 s36, s35, 1")
        a("s_lshr_b32 s32, s42, 1")
        a("s_and_b32 s32, s32, 2")
        a("s_add_u32 s32, s32, s36")
        a("s_mov_b32 s94, s35")
    else:
        a("s_cmp_ge_u32 s43, 16")
        a("s_cbranch_scc1 L_notkv")
        a("s_lshr_b32 s35, s43, 2")
        a("s_and_b32 s36, s43, 3")
        a("s_lshl_b32 s33, s34, 2")
        a("s_add_u32 s33, s33, s35")
        a("s_and_b32 s32, s42, 4")
        a("s_add_u32 s32, s32, s36")
        RK = os.environ.get("RK", "4")
        a("s_add_u32 s94, s35, s36")
        if RK == "4": a("s_and_b32 s94, s94, 3\ns_lshl_b32 s94, s94, 1")
        elif RK == "2": a("s_and_b32 s94, s94, 1\ns_lshl_b32 s94, s94, 2")
        elif RK == "4n": a("s_and_b32 s94, s94, 3")
        elif RK == "2n": a("s_and_b32 s94, s94, 1")
        else: a("s_mov_b32 s94, 0")
        role_gemm(a, "kv", stamp)
        a("L_notkv:")
        a(f"s_cmp_ge_u32 s43, {AS0}")
        a("s_cbranch_scc1 L_rolea")
        a("s_mul_i32 s35, s34, 107")
        a("s_add_u32 s36, s35, 107")
        a("s_lshr_b32 s35, s35, 4")
        a("s_lshr_b32 s36, s36, 4")
        a("s_add_u32 s35, s35, s43")
        a("s_sub_u32 s35, s35, 16")
        a("s_cmp_ge_u32 s35, s36")
        a("s_cbranch_scc1 L_spare")
        a("s_lshr_b32 s33, s35, 1")
        a("s_and_b32 s36, s35, 1")
        a("s_lshr_b32 s32, s42, 1")
        a("s_and_b32 s32, s32, 2")
        a("s_add_u32 s32, s32, s36")
        a("s_sub_u32 s94, s43, 16")
        if RK == "4": a("s_and_b32 s94, s94, 6")
        elif RK == "2": a("s_and_b32 s94, s94, 2\ns_lshl_b32 s94, s94, 1")
        elif RK == "4n": a("s_lshr_b32 s94, s94, 1")
        elif RK == "2n": a("s_lshr_b32 s94, s94, 1\ns_and_b32 s94, s94, 1")
        else: a("s_mov_b32 s94, 0")
    role_gemm(a, "q", stamp)
    phase3(a, stamp)
    a("s_branch L_fin")
    a("L_spare:")
    a("s_cmp_lg_u32 s42, 0")
    a("s_cbranch_scc1 L_end")
    role_zero(a)
    a("L_rolea:")
    if do_a:
        a("s_lshl_b32 s30, s42, 3")
        a("s_add_u32 s30, s30, s43")
        a(f"s_sub_u32 s30, s30, {AS0}")
        a("s_add_u32 s33, s42, 64")
        a("s_cmp_eq_u32 s43, 31")
        a("s_cselect_b32 s30, s33, s30")
        role_a(a, stamp, None)
    a("L_fin:")
    if stamps:
        a("s_waitcnt vmcnt(0)")
        stamp(NST - 1)
        a("s_waitcnt lgkmcnt(0)")
        a("s_mov_b64 exec, 1")
        if os.environ.get("SPINK"):
            k = int(os.environ["SPINK"]); wsel = int(os.environ.get("DBGWG", "0")); wv = int(os.environ.get("DBGWV", "0"))
            a(f"s_cmp_lg_u32 s2, {wsel}")
            a("s_cbranch_scc1 L_end")
            a(f"s_cmp_lg_u32 s31, {wv}")
            a("s_cbranch_scc1 L_end")
            a("L_spin:")
            a("s_sleep 2")
            a("s_memrealtime s[62:63]")
            a("s_waitcnt lgkmcnt(0)")
            a(f"s_sub_u32 s3, s62, s{sbase+2*k}")
            a("s_cmp_lt_u32 s3, 3000")
            a("s_cbranch_scc1 L_spin")
            a("s_branch L_end")
        if "dbgout" in DBG:
            a("v_mov_b32 v2, 0")
            a(f"v_mov_b32 v4, s{sbase+2*(NST-1)}")
            a("global_atomic_umax v2, v4, s[26:27] offset:4")
            a(f"s_not_b32 s3, s{sbase}")
            a("v_mov_b32 v4, s3")
            a("global_atomic_umax v2, v4, s[26:27] offset:8")
            wsel = int(os.environ.get("DBGWG", "0")); wv = int(os.environ.get("DBGWV", "0"))
            a(f"s_cmp_lg_u32 s2, {wsel}")
            a("s_cbranch_scc1 L_end")
            a(f"s_cmp_lg_u32 s31, {wv}")
            a("s_cbranch_scc1 L_end")
            for i in range(1, 14):
                a(f"v_mov_b32 v4, s{sbase+2*i}")
                a(f"global_store_dword v2, v4, s[26:27] offset:{8+4*i}")
            a("s_branch L_end")
        a("s_lshl_b32 s3, s31, 8")
        a("s_add_u32 s3, s3, s2")
        a(f"s_mul_i32 s3, s3, {8*NST}")
        a(f"s_add_u32 s3, s3, {STAMP_OFF}")
        a("v_mov_b32 v2, s3")
        for i in range(NST):
            a(f"v_mov_b32 v4, s{sbase+2*i}\nv_mov_b32 v5, s{sbase+2*i+1}")
            a(f"global_store_dwordx2 v2, v[4:5], s[28:29] offset:{8*i}")
    a("L_end:")
    a("s_endpgm")
    a("L_code_end:")
    lines, n = hazard.fix(a.lines)
    print("nops inserted:", n, "lines", len(lines), file=sys.stderr)
    k = kernel_wrap(KN + "_kernel", "\n".join(lines), 256, 102, extra="  .amdhsa_float_denorm_mode_32 3\n")
    return make_file([f"; @launch grid=(256,1,1) block=(512,1,1) lds={B_LDS}"], [k])
if __name__ == "__main__":
    out = sys.argv[1]
    open(out, "w").write(build(stamps="--stamps" in sys.argv, do_a="--noa" not in sys.argv, do_p3="--nop3" not in sys.argv))
```

```python
import math, os
STA = os.environ.get("STA", "")
LOG2E = 1.4426950408889634
import struct
def f2u(x): return struct.unpack("<I", struct.pack("<f", x))[0]
def hexf(x): return "0x%08x" % f2u(x)
L2E_HI = struct.unpack("<f", struct.pack("<f", LOG2E))[0]
L2E_LO = LOG2E - L2E_HI

USTR = 4624
KBASE = 8 * USTR
KSTR = 8768
YOFF = 4352
EOFF = 2112
YSTR = 4160
GROW = 544
USTG = KBASE + 8 * KSTR
BSH = USTG + 32768
A_LDS = BSH + 8192

STREAMS = [(-24, 16, 2), (-16, 4, 1), (-16, 8, 2), (-16, 12, 1), (-24, 16, 4), (-16, 8, 3)]
BAND = 224
CUTS = [int(x) for x in os.environ.get('CUTS', '3,6').split(',') if x]
HPF = os.environ.get('HPF', '')
HN = [int(x) for x in os.environ.get('HN', '2,1,1,0').split(',')]
ULAST = int(os.environ.get('ULAST', '0'))
ASYM = int(os.environ.get('ASYM', '0'))
B2P = int(os.environ.get('B2P', '0'))
UDEF = int(os.environ.get('UDEF', '4'))
SYM = int(os.environ.get('SYM', '0'))
MRG = int(os.environ.get('MRG', '0')) if SYM else 0
YQ = 3 if SYM else int(os.environ.get('YQ', '1'))
U0 = os.environ.get('U0', 'b')
ULATE = int(os.environ.get('ULATE', '1'))
def role_a(a, stamp=lambda i: None, pf=None):
    a.c("---------------- role A ----------------")
    if pf: pf[0](a, 216, 218)
    a("s_lshl_b32 s32, s30, 3")
    a("s_add_u32 s32, s32, s31")
    a("s_lshl_b32 s33, s32, 8")
    a("v_lshl_add_u32 v2, v1, 2, s33")
    a("s_lshl_b32 s33, s32, 1")
    a("v_mov_b32 v3, s33")
    a("s_waitcnt lgkmcnt(0)")
    a("global_load_dword v10, v2, s[6:7]")
    a("global_load_ushort v14, v3, s[14:15]")
    a("global_load_dword v11, v2, s[8:9]")
    a("global_load_dword v12, v2, s[10:11]")
    a("global_load_dword v13, v2, s[12:13]")
    a("global_load_ushort v15, v3, s[16:17]")
    a("v_mul_u32_u24 v252, 1152, v0")
    a("s_lshl_b32 s33, s30, 4")
    a("v_add_u32 v252, s33, v252")
    a("s_mov_b64 s[44:45], s[4:5]\ns_mov_b32 s46, 2359296\ns_mov_b32 s47, 0x20000")
    a("s_lshl_b32 s48, s31, 10")
    a(f"s_add_u32 s48, s48, {USTG}")
    a("s_and_b32 s49, s30, 1")
    def uload(h):
        if "nou" in os.environ.get("DBGA", ""): return
        a(f"s_lshl_b32 s3, s49, 13")
        a("s_add_u32 s3, s48, s3")
        a(f"s_add_u32 m0, s3, {16384*h}")
        a(f"s_mul_i32 s3, s49, {512*1152}")
        if h: a(f"s_add_u32 s3, s3, {1024*1152}")
        a("s_xor_b32 s49, s49, 1")
        a("buffer_load_dwordx4 v252, s[44:47], s3 offen lds")
    a("s_mov_b32 s57, s30")
    def uold():
        lab = a.label("L_uo")
        a("s_cmp_ge_u32 s31, 4")
        a(f"s_cbranch_scc1 {lab}")
        a("s_and_b32 s57, s57, 3")
        a("s_lshl_b32 s3, s57, 12")
        a("s_add_u32 m0, s48, s3")
        a(f"s_mul_i32 s3, s57, {256*1152}")
        a("s_add_u32 s57, s57, 1")
        a("buffer_load_dwordx4 v252, s[44:47], s3 offen lds")
        a(f"{lab}:")
    NPF = 0
    PF0, PF1 = os.environ.get('PFP', 'p,w').split(',')
    a("v_and_b32 v5, 15, v1")
    a("v_lshrrev_b32 v6, 4, v1")
    a(f"s_mul_i32 s34, s31, {KSTR}")
    a(f"s_add_u32 s34, s34, {KBASE}")
    a(f"s_mul_i32 s35, s31, {USTR}")
    a("v_lshl_add_u32 v7, v1, 3, s34")
    a(f"v_mul_u32_u24 v8, {GROW}, v5")
    a("v_lshl_add_u32 v8, v6, 4, v8")
    a("v_add_u32 v8, s34, v8")
    a("v_mov_b32 v16, 0\nv_mov_b32 v17, 0")
    a("v_lshl_add_u32 v9, v1, 3, s35")
    a("ds_write_b64 v9, v[16:17]")
    a(f"s_mov_b32 s36, {hexf(L2E_HI)}")
    a(f"s_mov_b32 s37, {hexf(L2E_LO)}")
    a(f"s_mov_b32 s38, {hexf(math.log(2.0))}")
    a("s_mov_b32 s39, 0xffff0000")
    a("v_lshlrev_b32 v20, 3, v6")
    a("v_sub_u32 v20, v20, v5")
    a("v_add_u32 v21, 1, v20")
    a("s_mov_b32 s40, 0x05040100")
    a("v_perm_b32 v20, v21, v20, s40")
    a("s_mov_b32 s41, 0x3f803f80")
    a("s_mov_b32 s50, 0x00010001")
    rng = [(-st - sh - hw, -st - sh + hw) for (st, sh, hw) in STREAMS] + [(12, 13), (12, 13)]
    tlo = sum((lo & 15) << (4*k) for k, (lo, hi) in enumerate(rng))
    tn = sum((hi - lo + 1) << (4*k) for k, (lo, hi) in enumerate(rng))
    assert all(0 <= lo < 16 for lo, hi in rng)
    a("s_lshl_b32 s3, s31, 2")
    a(f"s_lshr_b32 s52, {tlo:#x}, s3")
    a("s_and_b32 s52, s52, 15")
    a("s_mul_i32 s52, s52, s50")
    a(f"s_lshr_b32 s51, {tn:#x}, s3")
    a("s_and_b32 s51, s51, 15")
    a("s_mul_i32 s51, s51, s50")
    a("s_cmp_lt_u32 s31, 6")
    a("s_cselect_b32 s41, s41, s50")
    a("v_pk_sub_u16 v20, v20, s52")
    for d in range(4):
        r = BAND + d
        if d: a(f"s_mov_b32 s52, {hex(2 * d * 0x10001)}\nv_pk_add_u16 v{r}, v20, s52")
        a(f"v_pk_sub_u16 v{r}, s51, v{r if d else 20} clamp")
        a(f"v_pk_min_u16 v{r}, v{r}, s50")
        a(f"v_pk_mul_lo_u16 v{r}, v{r}, s41")
    a(f"v_lshlrev_b32 v222, 4, v1")
    a(f"v_add_u32 v222, {BSH}, v222")
    a("s_lshl_b32 s3, s31, 10")
    a("v_add_u32 v21, s3, v222")
    a(f"ds_write_b128 v21, v[{BAND}:{BAND+3}]")
    def wopf():
        a("s_and_b32 s58, s30, 7")
        a("s_lshl_b32 s3, s31, 3")
        a("s_add_u32 s58, s58, s3")
        if HPF: a("s_xor_b32 s58, s58, 32")
        a("s_lshl_b32 s3, s58, 13")
        a("v_lshl_add_u32 v220, v1, 7, s3")
        a("v_min_u32 v216, 14, v5")
        a("v_mul_u32_u24 v217, 52, v216")
        a("v_lshrrev_b32 v217, 8, v217")
        a(f"v_mul_u32_u24 v217, {1152-640}, v217")
        a("v_lshl_add_u32 v216, v216, 7, v217")
        a("v_mul_u32_u24 v217, 3456, v6")
        a(f"s_mul_i32 s59, s58, {4*3456}")
        a("s_and_b32 s3, s2, 4")
        a("s_lshl_b32 s3, s3, 7")
        a("s_add_u32 s59, s59, s3")
        a(f"s_add_u32 s59, s59, {512*3456}")
        a("v_add3_u32 v216, v216, v217, s59")
        a("s_and_b32 s3, s2, 3")
        a("s_lshl_b32 s3, s3, 9")
        a("s_lshl_b32 s59, s58, 6")
        a("s_add_u32 s3, s3, s59")
        a(f"s_sub_u32 s3, s3, {17*64}")
        a("v_add_u32 v217, s3, v1")
        a("v_max_i32 v217, 0, v217")
        a("v_min_i32 v217, 2047, v217")
        a("v_mul_u32_u24 v217, 1152, v217")
        a("v_add_u32 v217, 1024, v217")
        a(f"v_add_u32 v221, {(64-26)*8192}, v220")
        a("v_min_u32 v221, 663548, v221")
        a("s_cmp_lt_u32 s58, 26")
        a("s_cselect_b64 vcc, -1, 0")
        a("s_cselect_b64 s[54:55], s[18:19], s[22:23]")
        a("v_cndmask_b32 v221, v221, v217, vcc")
        a("s_cmp_lt_u32 s58, 16")
        a("s_cselect_b64 vcc, -1, 0")
        a("s_cselect_b64 s[54:55], s[20:21], s[54:55]")
        a("v_cndmask_b32 v221, v221, v216, vcc")
        a("s_movk_i32 s56, 128")
        a(f"s_cselect_b32 s56, {64*3456}, s56")
    hcnt = [0]
    def hpf():
        if not HPF or hcnt[0] >= len(HPF): return
        st = int(HPF[hcnt[0]]); d = 172 + hcnt[0]; hcnt[0] += 1
        lab = a.label("L_hpf")
        a("s_cmp_ge_u32 s58, 26")
        a(f"s_cbranch_scc1 {lab}")
        a(f"s_mul_i32 s3, s56, {8 - st}")
        a(f"v_subrev_u32 v{d}, s3, v221")
        a(f"global_load_dword v{d}, v{d}, s[54:55]")
        a(f"{lab}:")
    WP = int(os.environ.get('WP', '0'))
    wopf()
    stamp(1)
    def exp_bf16(dst, x, t0, t1):
        a(f"v_mul_f32 v{t0}, s36, v{x}")
        a(f"v_fma_f32 v{t1}, v{x}, s36, -v{t0}")
        a(f"v_fmac_f32 v{t1}, s37, v{x}")
        a(f"v_exp_f32 v{t0}, v{t0}")
        a(f"v_mul_f32 v{t1}, s38, v{t1}")
        a(f"v_fma_f32 v{t0}, v{t0}, v{t1}, v{t0}")
        a(f"v_cvt_pk_bf16_f32 v{t0}, v{t0}, v{t0}")
        a(f"v_and_b32 v{dst}, s39, v{t0}")
    a(f"s_waitcnt vmcnt({4 + NPF})")
    a("v_lshlrev_b32 v20, 16, v10")
    a("v_and_b32 v21, s39, v10")
    a("v_lshlrev_b32 v14, 16, v14")
    exp_bf16(18, 14, 22, 23)
    exp_bf16(20, 20, 22, 23)
    exp_bf16(21, 21, 24, 25)
    a("v_mul_f32 v20, v20, v18\nv_mul_f32 v21, v21, v18")
    a("v_mul_f32 v20, s36, v20\nv_mul_f32 v21, s36, v21")
    a(f"s_waitcnt vmcnt({NPF})")
    for _ in range(HN[0]): hpf()
    if pf and PF0 == 'p': pf[1](a, 216, 0)
    if pf and PF1 == 'p': pf[1](a, 216, 1)
    a("v_lshlrev_b32 v22, 16, v11\nv_and_b32 v23, s39, v11")
    a("v_mul_f32 v22, v22, v18\nv_mul_f32 v23, v23, v18")
    a("v_mul_f32 v22, 0.15915494, v22\nv_mul_f32 v23, 0.15915494, v23")
    a("v_add_f32 v19, v18, v18")
    C = 24
    a("v_lshlrev_b32 v24, 16, v12\nv_and_b32 v25, s39, v12")
    a("v_lshlrev_b32 v26, 16, v13\nv_and_b32 v27, s39, v13")
    a("v_mul_f32 v24, v24, v19\nv_mul_f32 v25, v25, v19")
    a("v_mul_f32 v26, v26, -v19\nv_mul_f32 v27, v27, -v19" .replace("v_mul_f32", "v_mul_f32_e64"))
    a("v_lshlrev_b32 v15, 16, v15")
    def direct(dst, c, conj):
        t = 60
        cs = hexf(float(c))
        for h in range(2):
            a(f"v_mul_f32 v{t+h}, {hexf(-float(c))}, v{20+h}")
            a(f"v_mul_f32 v{t+2+h}, {hexf(-float(c) if conj else float(c))}, v{22+h}")
        for h in range(2):
            a(f"v_exp_f32 v{t+h}, v{t+h}")
            a(f"v_fract_f32 v{t+2+h}, v{t+2+h}")
        for h in range(2):
            a(f"v_cos_f32 v{dst+h}, v{t+2+h}")
            a(f"v_sin_f32 v{dst+2+h}, v{t+2+h}")
        a(f"v_pk_mul_f32 v[{dst}:{dst+1}], v[{dst}:{dst+1}], v[{t}:{t+1}]")
        a(f"v_pk_mul_f32 v[{dst+2}:{dst+3}], v[{dst+2}:{dst+3}], v[{t}:{t+1}]")
    tcnt = [0]
    def cmul(d, z, w):
        t = 64 + 4 * (tcnt[0] % 2); tcnt[0] += 1
        assert d != z and d != w
        if "nok" in os.environ.get("DBGA", ""): a("s_nop 15"); return
        a(f"v_pk_mul_f32 v[{t}:{t+1}], v[{z+2}:{z+3}], v[{w+2}:{w+3}]")
        a(f"v_pk_mul_f32 v[{t+2}:{t+3}], v[{z+2}:{z+3}], v[{w}:{w+1}]")
        a(f"v_pk_fma_f32 v[{d}:{d+1}], v[{z}:{z+1}], v[{w}:{w+1}], v[{t}:{t+1}] neg_lo:[0,0,1] neg_hi:[0,0,1]")
        a(f"v_pk_fma_f32 v[{d+2}:{d+3}], v[{z}:{z+1}], v[{w+2}:{w+3}], v[{t+2}:{t+3}]")
    pcnt = [0]
    def emit(z, row):
        p = 72 + 2 * (pcnt[0] % 4); pcnt[0] += 1
        a(f"v_cvt_pk_bf16_f32 v{p}, v{z}, v{z+2}")
        a(f"v_cvt_pk_bf16_f32 v{p+1}, v{z+1}, v{z+3}")
        a(f"ds_write_b64 v7, v[{p}:{p+1}] offset:{row*GROW}")
    W16, W1, E256, W2, W4, W8 = 28, 32, 36, 40, 44, 48
    Z0, Z1, G0, G1 = 52, 56, 80, 84
    FA, FB = 96, 128
    ACC = 160
    direct(W16, 16, False)
    a("v_mov_b32 v72, 0x3f80\nv_mov_b32 v73, 0x3f80")
    a("ds_write_b64 v7, v[72:73]"); pcnt[0] = 1
    for _ in range(HN[1]): hpf()
    emit(W16, 1)
    cmul(Z0, W16, W16); emit(Z0, 2)
    z, o = Z0, Z1
    for i in range(3, 16):
        cmul(o, z, W16); emit(o, i); z, o = o, z
        if i == 5:
            for _ in range(HN[2]): hpf()
        if i == 9:
            for _ in range(HN[3]): hpf()
        if i == 10 and U0 == 'a': uload(0)
        if (U0 == 'o' and i in (4, 12)) or (U0 == 'p' and i == 10): uold()
    for s in range(8): a(f"ds_read_b128 v[{FA+4*s}:{FA+4*s+3}], v8 offset:{64*s}")
    if pf and PF1 == 'd': pf[1](a, 216, 1)
    direct(W1, 1, True)
    if U0 in 'ab': uload(0)
    if U0 in 'op': uold()
    direct(E256, 256, True)
    def tile_mfma(t):
        for s in range(8): a(f"ds_read_b128 v[{FB+4*s}:{FB+4*s+3}], v8 offset:{64*s}")
    def tile_mfma2(t, swap=False):
        a("s_waitcnt lgkmcnt(0)")
        for s in range(8):
            c = "0" if s == 0 else f"v[{ACC+4*t}:{ACC+4*t+3}]"
            x, y = (FA, FB) if swap else (FB, FA)
            a(f"v_mfma_f32_16x16x32_bf16 v[{ACC+4*t}:{ACC+4*t+3}], v[{x+4*s}:{x+4*s+3}], v[{y+4*s}:{y+4*s+3}], {c}")
    def wopf2(i):
        a("global_load_dword v221, v221, s[54:55]" if i == 0 else "global_load_dword v220, v220, s[22:23]")
    def utr(h, nvm):
        a(f"s_waitcnt vmcnt({nvm}) lgkmcnt(0)")
        a("s_barrier")
        for i in range(4): a(f"ds_read_b64_tr_b16 v[{UT+2*i}:{UT+1+2*i}], v253 offset:{16384*h + 512*i}")
        for i in range(4):
            a(f"s_waitcnt lgkmcnt(3)")
            a(f"ds_write_b64 v254, v[{UT+2*i}:{UT+1+2*i}] offset:{512 + 2048*h + 64*i}")
    UT = 204
    def utrans():
        a("v_bfe_u32 v200, v1, 2, 2")
        a("v_lshl_add_u32 v200, v6, 3, v200")
        a("v_bfe_u32 v201, v1, 1, 1")
        a("v_lshl_add_u32 v200, v201, 2, v200")
        a("v_lshlrev_b32 v200, 4, v200")
        a("v_and_b32 v201, 1, v1")
        a("v_lshl_add_u32 v200, v201, 3, v200")
        a("s_lshl_b32 s3, s31, 11")
        a(f"s_add_u32 s3, s3, {USTG}")
        a("v_add_u32 v253, s3, v200")
        a("v_and_b32 v201, 7, v1")
        a(f"v_mul_u32_u24 v201, {USTR}, v201")
        a("v_lshrrev_b32 v202, 3, v1")
        a("v_lshl_add_u32 v201, v202, 3, v201")
        a("s_lshl_b32 s3, s31, 8")
        a("v_add_u32 v254, s3, v201")
        stamp(7)
        utr(0, 2)
        stamp(8)
        for k in range(7): a(f"ds_read_b128 v[{BAND+4*k}:{BAND+4*k+3}], v222 offset:{1024*k}")
    emit(C, 0)
    cmul(Z0, C, W1); emit(Z0, 1)
    z, o = Z0, Z1
    for j in range(2, 16):
        cmul(o, z, W1); emit(o, j); z, o = o, z
        if (U0 == 'b' and j == 8) or (U0 == 'c' and j in (5, 13)): uload(0)
        if (U0 == 'o' and j == 6) or (U0 == 'p' and j in (5, 12)): uold()
    if WP == 1: wopf2(0)
    tile_mfma(0)
    cmul(W2, W1, W1); cmul(G0, C, E256); cmul(W4, W2, W2); cmul(Z0, G0, W2); cmul(W8, W4, W4)
    tile_mfma2(0)
    emit(G0, 0); emit(Z0, 1)
    cmul(G1, G0, E256)
    z, o = Z0, Z1
    for j in range(2, 8):
        cmul(o, z, W2); emit(o, j); z, o = o, z
    emit(G1, 8)
    if WP == 0: wopf2(0)
    wopf2(1)
    tile_mfma(1)
    cmul(G0, G1, E256)
    cmul(Z0, G1, W4)
    cmul(Z1, Z0, W4)
    tile_mfma2(1)
    def only(young, fn):
        lab = a.label("L_a_cls")
        a("s_cmp_lt_u32 s31, 4" if young else "s_cmp_ge_u32 s31, 4")
        a(f"s_cbranch_scc1 {lab}")
        fn()
        a(f"{lab}:")
    def bar2(): a("s_waitcnt lgkmcnt(0)\ns_barrier")
    if ASYM == 1: only(True, utrans)
    emit(Z0, 1); emit(Z1, 2); cmul(Z0, Z1, W4); emit(Z0, 3); cmul(Z1, Z0, W4); emit(Z1, 0)
    cmul(G1, G0, E256)
    if ASYM == 1 and B2P == 0: only(True, bar2)
    cmul(Z0, G0, W4); emit(Z0, 5); cmul(Z1, Z0, W4); emit(Z1, 6); cmul(Z0, Z1, W4); emit(Z0, 7); cmul(Z1, Z0, W4); emit(Z1, 4)
    if ASYM == 1 and B2P == 1: only(True, bar2)
    if ASYM == 2: only(True, utrans)
    g, og = G1, G0
    for h in range(4):
        if ASYM == 2 and h == 1: only(True, bar2)
        cmul(Z0, g, W8)
        if h < 3: cmul(og, g, E256)
        emit(Z0, 8 + 2*h + 1)
        cmul(Z1, Z0, W8); emit(Z1, 8 + 2*h)
        g, og = og, g
    if ULAST:
        if ASYM == 3: only(True, lambda: (utrans(), bar2()))
    elif ASYM: only(False, utrans)
    else: utrans()
    tile_mfma(2)
    if UDEF == 2: uload(1); uload(1)
    stamp(2)
    T0, T1, T2 = ACC, ACC+4, ACC+8
    a("v_lshl_add_u32 v25, v1, 4, s34")
    a("v_mov_b64 v[18:19], v[16:17]")
    a("ds_write_b128 v25, v[16:19]")
    a("ds_write_b128 v25, v[16:19] offset:1024")
    a("ds_write_b128 v25, v[16:19] offset:2048")
    a("v_cmp_eq_u32 vcc, 0, v1")
    a("v_cndmask_b32 v15, 0, v15, vcc")
    a(f"v_add_f32 v{T0}, v{T0}, v15")
    a("v_lshlrev_b32 v20, 5, v5")
    a("v_sub_u32 v20, s34, v20")
    a(f"v_cvt_pk_bf16_f32 v64, v{T1+3}, v{T1+3}")
    a(f"v_cvt_pk_bf16_f32 v66, v{T1+2}, v{T1+2}")
    a(f"v_cvt_pk_bf16_f32 v69, v{T1}, v{T1}")
    a(f"v_cvt_pk_bf16_f32 v70, v{T1+2}, v{T1+1}")
    a("v_lshlrev_b32 v23, 4, v6")
    a("v_sub_u32 v23, v20, v23")
    a("v_lshlrev_b32 v24, 3, v6")
    a("v_sub_u32 v26, s34, v24")
    a("v_sub_u32 v24, v20, v24")
    a(f"v_cvt_pk_bf16_f32 v72, v{T0+3}, v{T0+2}")
    a(f"v_cvt_pk_bf16_f32 v73, v{T0+1}, v{T0}")
    a("s_mov_b32 exec_lo, 0\ns_mov_b32 exec_hi, 1")
    a(f"ds_write_b16 v20, v69 offset:{14*4+2}")
    a(f"ds_write_b32 v20, v69 offset:{15*4}")
    a(f"ds_write_b16 v20, v69 offset:{16*4}")
    a("s_mov_b32 exec_lo, -1\ns_mov_b32 exec_hi, 0")
    a(f"ds_write_b16 v23, v64 offset:{140*4+2}")
    a("ds_write2_b32 v23, v66, v70 offset0:141 offset1:142")
    a(f"ds_write_b32 v23, v69 offset:{143*4}")
    a(f"ds_write_b16 v23, v69 offset:{144*4}")
    a("s_mov_b64 exec, -1")
    a(f"ds_write_b64 v24, v[72:73] offset:{270*4}")
    a("v_and_b32 v27, 3, v5")
    a("v_mul_u32_u24 v27, 96, v27")
    a("v_bfe_u32 v28, v5, 2, 1")
    a("v_lshlrev_b32 v28, 5, v28")
    a("v_sub_u32 v27, v27, v28")
    a("v_and_b32 v28, 1, v5")
    a("v_mul_u32_u24 v28, 160, v28")
    a("v_bfe_u32 v29, v5, 1, 2")
    a("v_lshlrev_b32 v29, 5, v29")
    a("v_sub_u32 v28, v28, v29")
    a(f"v_add_u32 v28, {(406-294)*4}, v28")
    a("v_cmp_gt_u32 vcc, 8, v5")
    a("v_cndmask_b32 v27, v28, v27, vcc")
    a("v_add_u32 v27, v27, v26")
    a("s_waitcnt lgkmcnt(11)")
    for s_ in range(8):
        c = "0" if s_ == 0 else f"v[{T2}:{T2+3}]"
        a(f"v_mfma_f32_16x16x32_bf16 v[{T2}:{T2+3}], v[{FA+4*s_}:{FA+4*s_+3}], v[{FB+4*s_}:{FB+4*s_+3}], {c}")
    if ULAST: pass
    elif ASYM: only(False, lambda: a("s_barrier"))
    else: a("s_barrier")
    stamp(3)
    a("v_and_b32 v28, 1, v5")
    a(f"v_mul_u32_u24 v28, {EOFF}, v28")
    a("v_lshrrev_b32 v29, 1, v5")
    a("v_lshlrev_b32 v29, 2, v29")
    a("v_add_u32 v28, v28, v29")
    a("v_sub_u32 v28, s34, v28")
    a(f"v_add_u32 v28, {EOFF}, v28")
    a("v_lshl_add_u32 v10, v6, 4, v28")
    a(f"v_add_u32 v11, {128*4}, v10")
    a("v_lshl_add_u32 v12, v6, 3, v28")
    a(f"v_add_u32 v12, {256*4}, v12")
    a("v_lshlrev_b32 v13, 5, v5")
    a("v_lshl_add_u32 v14, v6, 3, v13")
    a("v_lshl_add_u32 v13, v6, 4, v13")
    a("v_add_u32 v13, s35, v13")
    a(f"s_add_u32 s3, s34, {YOFF}")
    a("v_add_u32 v14, s3, v14")
    a(f"v_cvt_pk_bf16_f32 v72, v{T2+3}, v{T2+2}")
    a(f"v_cvt_pk_bf16_f32 v73, v{T2+1}, v{T2}")
    a(f"ds_write_b64 v27, v[72:73] offset:{294*4}")
    for j in range(2):
        a(f"ds_read_b128 v[{96+8*j}:{99+8*j}], v25 offset:{1024*j}")
        a(f"ds_read_b32 v{100+8*j}, v25 offset:{1024*j+16}")
    a("v_readlane_b32 s53, v72, 52")
    a("s_and_b32 s53, s53, 0xffff")
    a("s_mul_i32 s53, s53, 0x10001")
    def t65():
        for d in range(4): a(f"v_pk_mul_lo_u16 v{BAND+24+d}, v{BAND+24+d}, s53")
    if not ULAST: t65()
    a("v_lshrrev_b32 v3, 2, v5")
    a(f"v_mul_u32_u24 v3, {KSTR}, v3")
    a("v_and_b32 v4, 3, v5")
    a("v_lshl_add_u32 v3, v4, 3, v3")
    a("v_lshl_add_u32 v3, v6, 5, v3")
    a(f"v_add_u32 v3, {KBASE+YOFF}, v3")
    a("v_mul_u32_u24 v4, 2304, v1")
    a("s_lshl_b32 s33, s30, 4")
    a("v_add_u32 v4, s33, v4")
    if SYM:
        a("s_lshl_b32 s33, s31, 7")
        a("v_add_u32 v3, s33, v3")
        a(f"s_mul_i32 s33, s31, {64*2304}")
        a("v_add_u32 v4, s33, v4")
    for j in range(2):
        a(f"s_waitcnt lgkmcnt({2-2*j})")
        for k in range(4):
            a(f"v_alignbit_b32 v{128+4*j+k}, v{97+8*j+k}, v{96+8*j+k}, 16")
        a(f"ds_write_b128 v25, v[{128+4*j}:{131+4*j}] offset:{EOFF+1024*j}")
    if not ULAST:
        if UDEF == 4: uload(1); uload(1)
        stamp(4)
    Y = 16
    TF = 48
    BF = 116
    UR = 156
    WT = 188
    YP = 212
    T65 = BAND + 24
    q_ = []
    def lds(txt, tag=None):
        if not ("nord" in os.environ.get("DBGA", "") and tag and tag[0] in "UTB"): a(txt)
        q_.append(tag)
    def need(tags):
        idx = max(i for i, t in enumerate(q_) if t in tags)
        n = len(q_) - 1 - idx
        if n < need.done:
            a(f"s_waitcnt lgkmcnt({min(n, 15)})")
        need.best = None
    done_upto = [-1]
    def wait_for(tags):
        idx = max(i for i, t in enumerate(q_) if t in tags)
        if idx > done_upto[0]:
            n = len(q_) - 1 - idx
            if "nowt" not in os.environ.get("DBGA", ""): a(f"s_waitcnt lgkmcnt({min(n, 15)})")
            done_upto[0] = idx if n <= 15 else len(q_) - 1 - 15
    def tload(k):
        o = 271 - 8 * (2*k + 1)
        ad = 10
        if o >= 128: ad, o = 11, o - 128
        lds(f"ds_read2_b32 v[{TF+4*k}:{TF+4*k+1}], v{ad} offset0:{o} offset1:{o+1}", ("T", k))
        lds(f"ds_read2_b32 v[{TF+4*k+2}:{TF+4*k+3}], v{ad} offset0:{o+2} offset1:{o+3}", ("T", k))
    bfl = [(0, d) for d in (2, 3, 4)] + [(1, d) for d in (2, 3, 4)] + [(2, d) for d in (4, 5, 6, 7)]
    def bload(n):
        pr, dl = bfl[n]
        for hf in range(2):
            if pr < 2: o = 280 + 24 * (2*pr + hf) + 31 - 8 * dl
            else: o = 376 + 40 * hf + 63 - 8 * dl
            o -= 256
            lds(f"ds_read2_b32 v[{BF+4*n+2*hf}:{BF+4*n+2*hf+1}], v12 offset0:{o} offset1:{o+1}", ("B", n))
    useq = []
    for q in range(8):
        useq += ([(q, 'x')] if q < 6 else []) + [(q, r) for r in range(8)]
    upos = {u: i for i, u in enumerate(useq)}
    def ureg(u): return UR + 4 * (upos[u] % 8)
    unext = [0]
    def uld():
        if unext[0] >= len(useq): return
        q, r = u = useq[unext[0]]; unext[0] += 1
        o = 512 * q + (480 - 16 if r == 'x' else 480 - 64 * r)
        lds(f"ds_read_b128 v[{ureg(u)}:{ureg(u)+3}], v13 offset:{o}", ("U", u))
    first = set()
    def mf(d, x, y, c):
        if "noc" in os.environ.get("DBGA", ""): a("s_nop 7"); return
        a(f"v_mfma_f32_16x16x32_bf16 v[{d}:{d+3}], v[{x}:{x+3}], v[{y}:{y+3}], {c}")
    def ymf(at, x, y):
        c = f"v[{Y+4*at}:{Y+4*at+3}]" if at in first else "0"
        first.add(at)
        mf(Y + 4*at, x, y, c)
    def ywrite(at):
        p = YP + 2 * (at % 2)
        a(f"v_cvt_pk_bf16_f32 v{p}, v{Y+4*at}, v{Y+4*at+1}")
        a(f"v_cvt_pk_bf16_f32 v{p+1}, v{Y+4*at+2}, v{Y+4*at+3}")
        lds(f"ds_write_b64 v14, v[{p}:{p+1}] offset:{512*at}", ("Y", at))
    if ULAST:
        for k in range(17): tload(k)
        for n in range(10): bload(n)
        if ASYM: only(False, utrans)
        else: utrans()
        a("s_waitcnt lgkmcnt(0)"); done_upto[0] = len(q_) - 1
        t65()
        if ASYM: only(False, lambda: a("s_barrier"))
        else: a("s_barrier")
        for _ in range(5): uld()
        pend = []
        if UDEF == 4: uload(1); uload(1)
        stamp(4)
    else:
        uld(); uld()
        pend = []
        tload(0); tload(8); tload(16)
        for k in range(1, 8): pend.append(lambda k=k: (tload(k), tload(k + 8)))
        for n in range(10): pend.append(lambda n=n: bload(n))
        for _ in range(3): uld()
        for _ in range(2): pend.pop(0)()
    for q in range(8):
        npair = 3 if q < 4 else (2 if q < 6 else 0)
        for pr in range(npair):
            for hf in range(2):
                st = STREAMS[2*pr + hf]
                u = (q, 'x') if st[0] == -24 else (q, 0)
                wait_for({("U", u)})
                mf(WT + 8*pr + 4*hf, ureg(u), BAND + 4*(2*pr + hf), "0")
                if pend: pend.pop(0)()
        if q < 6: uld()
        scat = [(n, pr, dl) for n, (pr, dl) in enumerate(bfl) if pr < npair and q + dl < 8]
        scat.sort(key=lambda t: t[1])
        for r in range(8):
            u = (q, r)
            wait_for({("U", u), ("T", r)})
            ymf(q, TF + 4*r, ureg(u))
            if pend: pend.pop(0)()
            if q < 7:
                wait_for({("T", r + 8)})
                ymf(q + 1, TF + 4*(r + 8), ureg(u))
            if r == 0:
                if q < 6: wait_for({("T", 16)}); ymf(q + 2, TF + 64, ureg(u))
                if q < 4: ymf(q + 4, T65, ureg(u))
            uld()
            if pend: pend.pop(0)()
            if r == 1 and q > 0: ywrite(q - 1)
            if 2 <= r <= 4 and r - 2 < npair:
                w = WT + 8 * (r - 2)
                for k in range(4):
                    if "nocv" not in os.environ.get("DBGA", ""): a(f"v_cvt_pk_bf16_f32 v{w+k}, v{w+2*k}, v{w+2*k+1}")
            if r >= 3:
                take = [t for t in scat if t[1] <= r - 3][:(3 if r < 7 else 99)]
                for t in take:
                    scat.remove(t)
                    n, pr, dl = t
                    wait_for({("B", n)})
                    ymf(q + dl, WT + 8*pr, BF + 4*n)
            if q == 0 and UDEF == 5 and r in (2, 6): uload(1)
            if MRG and q == 2 and r == 7:
                for i in range(4):
                    wait_for({("R", i)})
                    lds(f"ds_write_b64 v254, v[{(252, 216, 218, 8)[i]}:{(252, 216, 218, 8)[i]+1}] offset:{512 + 2048 + 64*i}".replace("v[252:253]", "v[0:1]"), ("W2", i))
            if MRG and q == 3 and r == 2:
                wait_for({("W2", 3)})
                a("s_barrier")
            if r == 1 and q in (YQ, 3) and not MRG:
                lab = a.label("L_a_not")
                if YQ != 3:
                    a("s_cmp_lt_u32 s31, 4" if q == YQ else "s_cmp_ge_u32 s31, 4")
                    a(f"s_cbranch_scc1 {lab}")
                UT = 212 if SYM else 216
                utr(1, 1 if SYM else 0)
                a("s_waitcnt lgkmcnt(0)")
                a("s_barrier")
                a(f"{lab}:")
            if SYM and q in (2, 4, 6):
                rb = 5 if (MRG and q == 2) else 2
                if r == rb:
                    wait_for({("Y", q - 1)})
                    if q == 2: a(f"s_waitcnt vmcnt({0 if MRG else 2})")
                    a("s_barrier")
                    if MRG and q == 2:
                        for i in range(4):
                            lds(f"ds_read_b64_tr_b16 v[{(0, 216, 218, 8)[i]}:{(0, 216, 218, 8)[i]+1}], v253 offset:{16384 + 512*i}", ("R", i))
                    lds(f"ds_read_b64_tr_b16 v[8:9], v3 offset:{512*(q-2)}".replace("v[8:9]", "v[220:221]"), ("S", q))
                    lds(f"ds_read_b64_tr_b16 v[222:223], v3 offset:{512*(q-2) + 4*KSTR}", ("S", q))
                if r == rb + 2:
                    wait_for({("S", q)})
                    if "nos" not in os.environ.get("DBGA", ""): a(f"global_store_dwordx4 v4, v[220:223], s[24:25] {STA}")
                    a(f"v_add_u32 v4, {512*2304}, v4")
            if r == 2 and q in CUTS and not SYM:
                lab = a.label("L_a_noy")
                a("s_cmp_lt_u32 s31, 4")
                a(f"s_cbranch_scc1 {lab}")
                idx = max(i for i, t in enumerate(q_) if t == ("Y", q - 1))
                a(f"s_waitcnt lgkmcnt({len(q_) - 1 - idx})")
                a("s_barrier")
                a(f"{lab}:")
        assert not scat
    stamp(5)
    ywrite(7)
    def ystore(n, row0_sreg):
        a(f"s_lshl_b32 s3, s{row0_sreg}, 1")
        a("v_add_u32 v7, s3, v3")
        a(f"s_mul_i32 s3, s{row0_sreg}, 2304")
        a("v_add_u32 v8, s3, v4")
        for j in range(n):
            a(f"ds_read_b64_tr_b16 v[{60+4*j}:{61+4*j}], v7 offset:{128*j}")
            a(f"ds_read_b64_tr_b16 v[{62+4*j}:{63+4*j}], v7 offset:{128*j+4*KSTR}")
        for j in range(n):
            a(f"s_waitcnt lgkmcnt({2*(n-1-j)})")
            if "nos" not in os.environ.get("DBGA", ""): a(f"global_store_dwordx4 v8, v[{60+4*j}:{63+4*j}], s[24:25] {STA}")
            if j < n - 1: a(f"v_add_u32 v8, {64*2304}, v8")
    a("s_waitcnt lgkmcnt(0)")
    if SYM:
        a("s_barrier")
        a(f"ds_read_b64_tr_b16 v[60:61], v3 offset:{3072}")
        a(f"ds_read_b64_tr_b16 v[62:63], v3 offset:{3072 + 4*KSTR}")
        a("s_waitcnt lgkmcnt(0)")
        if "nos" not in os.environ.get("DBGA", ""): a(f"global_store_dwordx4 v4, v[60:63], s[24:25] {STA}")
    else:
        a("s_cmp_ge_u32 s31, 4")
        a("s_cbranch_scc1 L_a_y2")
    prev = 0
    for cut in ([] if SYM else CUTS):
        n = cut - prev
        a("s_barrier")
        a(f"s_mul_i32 s33, s31, {64*n}")
        a(f"s_add_u32 s33, s33, {256*prev}")
        ystore(n, 33)
        a("s_nop 1")
        prev = cut
    if not SYM:
        a("L_a_y2:")
        a("s_barrier")
        n = (8 - prev) // 2
        a(f"s_mul_i32 s33, s31, {64*n}")
        a(f"s_add_u32 s33, s33, {256*prev}")
        ystore(n, 33)
    stamp(6)
    wb = os.environ.get("WBL2", "last")
    if wb == "last":
        a("s_waitcnt vmcnt(0)")
        a("s_barrier")
        a("s_cmp_lg_u32 s31, 0")
        a("s_cbranch_scc1 L_fin")
        a("s_and_b32 s33, s2, 7")
        a("s_lshl_b32 s3, s33, 2")
        a("v_mov_b32 v2, s3")
        a("v_mov_b32 v3, 1")
        a("s_mov_b64 exec, 1")
        a("global_atomic_add v4, v2, v3, s[26:27] offset:128 sc0")
        a("s_waitcnt vmcnt(0)")
        a("v_readfirstlane_b32 s3, v4")
        a("s_mov_b64 exec, -1")
        a("s_cmp_eq_u32 s33, 0")
        a("s_cselect_b32 s33, 15, 7")
        a("s_cmp_lg_u32 s3, s33")
        a("s_cbranch_scc1 L_fin")
        a("buffer_wbl2 sc1")
    elif wb != "0":
        a(f"s_cmp_lg_u32 s43, {wb}")
        a("s_cbranch_scc1 L_fin")
        a("s_waitcnt vmcnt(0)")
        a("s_barrier")
        a("s_cmp_lg_u32 s31, 0")
        a("s_cbranch_scc1 L_fin")
        a("buffer_wbl2 sc1")
```

```python
import os
from gen_a import hexf, LOG2E
DBG = os.environ.get('DBG', '')
STB = os.environ.get('STB', 'sc1')
PORD = os.environ.get('PORD', 'cc')
QW = int(os.environ.get('QW', '8'))
POLL2 = int(os.environ.get('POLL2', '0'))
KW = int(os.environ.get('KW', '8'))
KRT = int(os.environ.get('KRT', '4'))
NSC = int(os.environ.get('NSC', '1'))
PQW = int(os.environ.get('PQW', '4'))
PQE = int(os.environ.get('PQE', '2')) if PORD == 'qk' else 0
FAIR = int(os.environ.get('FAIR', '0'))
PSLEEP = int(os.environ.get('PSLEEP', '0'))
SHARD = int(os.environ.get('SHARD', '16'))
LATEM = int(os.environ.get('LATEM', '3'))
ROTW = int(os.environ.get('ROTW', '1'))
ROTR = int(os.environ.get('ROTR', '1'))
FULL = int(os.environ.get('FULL', '1'))
SEQ8 = int(os.environ.get('SEQ8', '1'))
PKW = int(os.environ.get('PKW', '5'))
PS0 = int(os.environ.get('PS0', '0'))
NS = 4
WROW = 288
WSZ = 64 * WROW
EXS = 160
LCNT = 163776
EX = LCNT - 2 * 128 * EXS
B_LDS = 163840
EPI = 147456
RXB = 147456
RXF = 157696
KVACC, CNT, PQC, PQ, PQL, WS_SZ = 0, 0xC000, 0x10000, 0x100000, 0x300000, 0x400000
PAIRB = 2816
O_MMB, O_LD, O_XM, O_XL = 1024, 2048, 2304, 2688
EPS = 1e-6
ONE_EPS = 1.0 + 1e-6
OOB = "0x7ffffff0"
SX, SW, SWO, SWS, SDB = 44, 48, 52, 56, 60
WSR = f"s[{SWS}:{SWS+3}]"
WOF = 112
AS0 = 23

def srd(a, r, p, size):
    a(f"s_mov_b32 s{r}, s{p}\ns_mov_b32 s{r+1}, s{p+1}\ns_mov_b32 s{r+2}, {size}\ns_mov_b32 s{r+3}, 0x20000")

def pf_setup(a, v, t):
    a("s_and_b32 s58, s30, 7")
    a("s_lshl_b32 s58, s58, 3")
    a("s_add_u32 s58, s58, s31")
    a(f"v_min_u32 v{t}, 14, v2")
    a(f"v_mul_u32_u24 v{t+1}, 52, v{t}")
    a(f"v_lshrrev_b32 v{t+1}, 8, v{t+1}")
    a(f"v_mul_u32_u24 v{t+1}, {1152-640}, v{t+1}")
    a(f"v_lshl_add_u32 v{t}, v{t}, 7, v{t+1}")
    a(f"v_mul_u32_u24 v{t+1}, 3456, v3")
    a("s_and_b32 s59, s58, 31")
    a(f"s_mul_i32 s59, s59, {4*3456}")
    a("s_and_b32 s3, s2, 4")
    a("s_lshl_b32 s3, s3, 7")
    a("s_add_u32 s59, s59, s3")
    a(f"s_add_u32 s59, s59, {384*3456}")
    a(f"v_add3_u32 v{v}, v{t}, v{t+1}, s59")
    a("s_and_b32 s3, s2, 3")
    a("s_lshl_b32 s3, s3, 9")
    a("s_lshl_b32 s59, s58, 6")
    a("s_add_u32 s3, s3, s59")
    a(f"s_sub_u32 s3, s3, {49*64}")
    a(f"v_add_u32 v{t+1}, s3, v1")
    a(f"v_max_i32 v{t+1}, 0, v{t+1}")
    a(f"v_min_i32 v{t+1}, 2047, v{t+1}")
    a(f"v_mul_u32_u24 v{t+1}, 1152, v{t+1}")
    a(f"v_add_u32 v{t+1}, 1024, v{t+1}")
    a(f"v_add_u32 v{t}, {128*3456}, v{v}")
    a("s_cmp_lt_u32 s58, 48")
    a("s_cselect_b64 vcc, -1, 0")
    a(f"v_cndmask_b32 v{v+1}, v{t+1}, v{t}, vcc")
def pf_round(a, v, r):
    lab = a.label("L_pf")
    if r == 0:
        a("s_cmp_ge_u32 s58, 32")
        a(f"s_cbranch_scc1 {lab}")
        a(f"global_load_dword v{v}, v{v}, s[20:21]")
    else:
        a("s_sub_u32 s3, s58, 32")
        a("s_cmp_ge_u32 s3, 26")
        a(f"s_cbranch_scc1 {lab}")
        a("s_cmp_lt_u32 s58, 48")
        a("s_cselect_b64 s[54:55], s[20:21], s[18:19]")
        a(f"global_load_dword v{v+1}, v{v+1}, s[54:55]")
    a(f"{lab}:")

def role_zero(a):
    a.c("---------------- zero-init WG ----------------")
    a("v_lshlrev_b32 v2, 4, v0")
    for i in range(4): a(f"v_mov_b32 v{4+i}, 0")
    a("s_mov_b32 s33, 0")
    a("s_waitcnt lgkmcnt(0)")
    srd(a, SWS, 28, WS_SZ); srd(a, SDB, 26, 256)
    for j in range(9):
        a(f"buffer_store_dwordx4 v[4:7], v2, {WSR}, s33 offen sc1")
        a("s_add_u32 s33, s33, 8192")
    a("s_waitcnt vmcnt(0)")
    a("s_barrier")
    a("s_cmp_lg_u32 s31, 0")
    a("s_cbranch_scc1 L_fin")
    a("v_mov_b32 v8, 1")
    a("s_mov_b64 exec, 1")
    a(f"buffer_atomic_add v8, v4, s[{SDB}:{SDB+3}], 0 offen")
    a("s_mov_b64 exec, -1")
    a("s_branch L_fin")

def phi4(a, r, t, d):
    if isinstance(a, list):
        L = a; a = lambda x: L.append(x)
    for h in (0, 2):
        a(f"v_pk_fma_f32 v[{t+h}:{t+h+1}], v[{r+h}:{r+h+1}], s[40:41], v[250:251]|v_fma_f32 v{t+h}, v{r+h}, s40, v250|v_fma_f32 v{t+h+1}, v{r+h+1}, s40, v250")
    for i in range(4): a(f"v_exp_f32_e64 v{t+i}, v{t+i} clamp")
    for h in (0, 2):
        a(f"v_pk_add_f32 v[{t+h}:{t+h+1}], v[{t+h}:{t+h+1}], v[252:253]|v_add_f32 v{t+h}, v252, v{t+h}|v_add_f32 v{t+h+1}, v252, v{t+h+1}")
    for i in range(4): a(f"v_max_f32 v{t+i}, v{t+i}, v{r+i}")
    if d is not None:
        a(f"v_cvt_pk_bf16_f32 v{d}, v{t}, v{t+1}")
        a(f"v_cvt_pk_bf16_f32 v{d+1}, v{t+2}, v{t+3}")

def ct_calc(a):
    assert KRT == 4
    a("s_lshr_b32 s96, s43, 2")
    a("s_and_b32 s97, s43, 3")
    a("s_cmp_ge_u32 s43, 16")
    a("s_cselect_b32 s96, s97, s96")
    a("s_cselect_b32 s97, 4, s97")
def wo_voff(a, d):
    a("s_and_b32 s30, s31, 1")
    a("s_lshl_b32 s3, s30, 3")
    a(f"v_lshl_add_u32 v{d+2}, v3, 1, s3")
    a(f"v_xor_b32 v{d+2}, v{d+2}, v2")
    a("s_lshl_b32 s3, s97, 8")
    a(f"v_lshl_add_u32 v{d+2}, v{d+2}, 4, s3")
    a(f"v_mov_b32 v{d}, 0x40000000")
    a(f"v_cmp_gt_u32 vcc, 1152, v{d+2}")
    a(f"v_cndmask_b32 v{d+2}, v{d}, v{d+2}, vcc")
    a("s_and_b32 s3, s31, 3")
    a("s_lshl_b32 s95, s3, 10")
    a(f"v_lshl_add_u32 v{d}, v3, 2, s3")
    a(f"v_mul_u32_u24 v{d}, 1152, v{d}")
    a(f"v_add_u32 v{d}, v{d}, v{d+2}")
    a("s_mul_i32 s3, s3, 18")
    a("s_lshl_b32 s30, s30, 4")
    a("s_sub_u32 s3, s3, s30")
    a("s_add_u32 s3, s3, 16")
    a(f"v_lshrrev_b32 v{d+1}, 1, v3")
    a(f"v_mul_u32_u24 v{d+1}, 70, v{d+1}")
    a(f"v_add3_u32 v{d+1}, v{d+1}, v3, s3")
    a(f"v_mul_u32_u24 v{d+1}, 1152, v{d+1}")
    a(f"v_add_u32 v{d+1}, v{d+1}, v{d+2}")
def wo_loads(a, d, steps):
    for st in steps:
        for h in range(2):
            a(f"s_add_u32 m0, s95, {8192*st + 4096*h}")
            a(f"s_mov_b32 s3, {((36*st + 20*h) if st < 16 else (288*(st-16) + 144*h))*1152}")
            a(f"buffer_load_dwordx4 v{d + (st >= 16)}, s[{SWO}:{SWO+3}], s3 offen lds")
def wotr(a, s, ar, base=0):
    L = []
    for t in range(2):
        for h in range(2):
            r = WOF + 8*s + 4*t + 2*h
            L.append(f"ds_read_b64_tr_b16 v[{r}:{r+1}], v{ar+t} offset:{8192*s + 4096*h - base}")
    return L

def tr_addr(a, d):
    if isinstance(a, list):
        L = a; a = lambda x: L.append(x)
    a(f"v_lshrrev_b32 v{d}, 2, v2")
    a(f"v_lshl_add_u32 v{d}, v3, 2, v{d}")
    a(f"v_and_b32 v{d+1}, 7, v{d}")
    a(f"v_lshlrev_b32 v{d+1}, 1, v{d+1}")
    a(f"v_bfe_u32 v{d+2}, v2, 1, 1")
    a("s_lshr_b32 s3, s31, 1")
    a("s_xor_b32 s3, s3, 2")
    a("s_lshl_b32 s3, s3, 2")
    a(f"v_add_u32 v{d+2}, s3, v{d+2}")
    a(f"v_xor_b32 v{d+1}, v{d+1}, v{d+2}")
    a(f"v_lshlrev_b32 v{d}, 8, v{d}")
    a(f"v_lshl_add_u32 v{d}, v{d+1}, 4, v{d}")
    a(f"v_and_b32 v{d+1}, 1, v2")
    a(f"v_lshl_add_u32 v{d}, v{d+1}, 3, v{d}")
    a(f"v_xor_b32 v{d+1}, 32, v{d}")
    a(f"v_add_u32 v{d+2}, 0x10000, v{d}")
    a(f"v_add_u32 v{d+3}, 0x10000, v{d+1}")
def wo_regs(a, d, n):
    for st in list(range(8, 14)) + list(range(7, -1, -1)):
        for x in (wotr(a, st, d) if st < 8 else wotr(a, st, d + 2, 0x10000)): a(x)
    a(f"v_add_u32 v0, 0x1c000, v{d}")

def lds_last(a, lab):
    a(f"v_mov_b32 v4, {LCNT}")
    a("v_mov_b32 v5, 1")
    a("s_waitcnt vmcnt(0)")
    a("s_mov_b64 exec, 1")
    a("ds_add_rtn_u32 v6, v4, v5")
    a("s_mov_b64 exec, -1")
    a("s_waitcnt lgkmcnt(0)")
    a("v_readfirstlane_b32 s3, v6")
    a("s_cmp_lg_u32 s3, 3")
    a(f"s_cbranch_scc1 {lab}")

def prep3(a):
    a("s_mov_b32 s33, s97")
    a("s_lshl_b32 s34, s42, 2")
    a("s_add_u32 s32, s96, s34")
    a("s_and_b32 s36, s31, 1")
    a("s_lshr_b32 s35, s31, 1")
    a("s_xor_b32 s35, s35, 2")
    a(f"v_mov_b32 v8, {OOB}")
    a("v_lshlrev_b32 v9, 4, v1")
    a("s_add_u32 s40, s31, s43" if ROTW else "s_mov_b32 s40, s31")
    a("s_and_b32 s40, s40, 7")
    a("s_and_b32 s41, s33, 3" if ROTR else "s_mov_b32 s41, 0")
    a(f"s_mul_i32 s37, s40, {2*PAIRB}")
    a("v_and_b32 v6, 3, v2")
    a("v_bfe_u32 v7, v2, 2, 1")
    a("v_lshl_add_u32 v7, v7, 1, v6")
    a("v_cmp_gt_u32 vcc, 2, v6")
    a("v_cndmask_b32 v7, v7, v6, vcc")
    a("v_lshlrev_b32 v12, 4, v3")
    a("v_lshl_add_u32 v12, v7, 6, v12")
    a("v_cmp_gt_u32 s[44:45], 8, v2")
    a("s_or_b64 s[96:97], s[44:45], vcc")
    a("s_orn2_b64 vcc, vcc, s[44:45]")
    a("v_cndmask_b32 v13, v8, v12, vcc")
    a("v_cndmask_b32 v12, v8, v12, s[96:97]")
    a("v_lshlrev_b32 v10, 4, v2")
    a(f"v_lshlrev_b32 v11, 4, v7")
    a(f"v_add_u32 v11, {O_XL - O_LD}, v11")
    a("v_cmp_lt_u32 s[100:101], 1, v3")
    a("v_cndmask_b32 v10, v10, v11, s[100:101]")
    a("v_and_b32 v6, 1, v3")
    a(f"v_mul_u32_u24 v11, {PAIRB}, v6")
    a("v_add_u32 v10, v10, v11")
    a("v_cmp_eq_u32 s[98:99], 1, v6")
    a("v_cmp_eq_u32 s[44:45], 1, v7")
    a("v_cmp_lt_u32 s[46:47], 3, v7")
    a("s_or_b64 s[44:45], s[44:45], s[46:47]")
    a("s_andn2_b64 s[46:47], s[100:101], s[98:99]")
    a("s_and_b64 s[46:47], s[46:47], s[96:97]")
    a("s_and_b64 s[96:97], s[100:101], s[98:99]")
    a("s_and_b64 s[96:97], s[96:97], vcc")
    a("v_lshlrev_b32 v7, 3, v2")
    a("v_lshl_add_u32 v7, v6, 7, v7")
    a("s_lshl_b32 s38, s32, 6")
    a("s_lshl_b32 s39, s40, 1")
    a("s_add_u32 s38, s38, s39")
    a("s_lshl_b32 s39, s38, 7")
    a(f"s_add_u32 s39, s39, {PQL}")
    a("s_lshl_b32 s38, s38, 10")
    a(f"s_add_u32 s38, s38, {PQ}")

def role_gemm(a, kind, stamp):
    Q = kind == "q"
    RT = (9 - KRT) if Q else KRT
    R = 32 * RT
    XSZ = R * 128
    SLOT = XSZ + WSZ
    NL = 5 + RT
    L = lambda s: f"L_{kind}_{s}"
    a.c(f"---------------- role {kind} ----------------")
    rstamp = stamp
    if "stA" in DBG or "stB" in DBG: stamp = lambda i: None
    a("s_cmp_lt_u32 s31, 4")
    a(f"s_cbranch_scc1 {L('comp')}")
    a("s_sub_u32 s35, s31, 4")
    a("s_and_b32 s37, s35, 1")
    a(f"s_mul_i32 s34, s33, {R}")
    a(f"s_mul_i32 s36, s35, {8*RT}")
    a("s_add_u32 s36, s36, s34")
    a("v_lshrrev_b32 v4, 3, v1")
    a("v_add_u32 v4, s36, v4")
    a("v_mul_u32_u24 v4, 1152, v4")
    a("v_and_b32 v5, 7, v1")
    a("v_xor_b32 v5, v5, v3")
    if RT % 2:
        a("s_lshl_b32 s36, s37, 2")
        a("v_xor_b32 v5, s36, v5")
    a("v_lshl_add_u32 v10, v5, 4, v4")
    a("v_xor_b32 v5, 4, v5")
    a("v_lshl_add_u32 v11, v5, 4, v4")
    a(f"s_mul_i32 s38, s35, {1024*RT}")
    a("s_lshr_b32 s36, s35, 1")
    a("s_lshl_b32 s36, s36, 3")
    a("s_add_u32 s36, s36, s37")
    a(f"s_mul_i32 s36, s36, {4*3456}")
    a(f"s_mul_i32 s39, s32, {288 if Q else 144}")
    a("s_add_u32 s36, s36, s39")
    if not Q: a("s_add_u32 s36, s36, 1152")
    a(f"s_mul_i32 s39, s35, {16*WROW}")
    a(f"s_mov_b32 s{SW+2}, 1990656\ns_mov_b32 s{SW+3}, 0x20000\ns_mov_b32 s{SX+2}, 2359296\ns_mov_b32 s{SX+3}, 0x20000")
    def wcalc(t):
        if t: a(f"v_add_u32 v4, {64*t}, v1")
        src = "v4" if t else "v1"
        if Q:
            a(f"v_mul_u32_u24 v5, 3641, {src}")
            a("v_lshrrev_b32 v5, 16, v5")
            a(f"v_lshl_add_u32 v6, {src}, 4, s36")
            a(f"v_mul_u32_u24 v7, {3456-288}, v5")
        else:
            a(f"v_mul_u32_u24 v5, 7282, {src}")
            a("v_lshrrev_b32 v5, 16, v5")
            a(f"v_lshl_add_u32 v6, {src}, 4, s36")
            a("v_mul_u32_u24 v7, 1008, v5")
            a("v_lshrrev_b32 v5, 1, v5")
            a("v_mad_u32_u24 v7, v5, s34, v7")
        a("v_lshrrev_b32 v5, 2, v5")
        a(f"v_mul_u32_u24 v5, {4*3456}, v5")
        a(f"v_add3_u32 v{13+t}, v5, v6, v7")
    def wload(slot, t):
        if t == 4: a("s_mov_b32 exec_hi, 0")
        a(f"s_add_u32 m0, s39, {slot*SLOT + XSZ + 1024*t}")
        a(f"buffer_load_dwordx4 v{13+t}, s[{SW}:{SW+3}], s30 offen lds")
        if t == 4: a("s_mov_b32 exec_hi, -1")
    def xpart(slot):
        a("s_lshl_b32 s30, s94, 7")
        for t in range(RT):
            a(f"s_add_u32 m0, s38, {slot*SLOT + 1024*t}")
            a(f"s_add_u32 s3, s30, {8*1152*t}")
            a(f"buffer_load_dwordx4 v{10+(t&1)}, s[{SX}:{SX+3}], s3 offen lds")
        a(f"s_mul_i32 s30, s94, {64*3456}")
        nst[0] += 1
        if not SEQ8:
            a("s_add_u32 s94, s94, 1")
            a("s_cmp_eq_u32 s94, 9")
            a("s_cselect_b32 s94, 0, s94")
        elif nst[0] == 8: a("s_mov_b32 s94, 8")
        else: a("s_add_u32 s94, s94, 1\ns_and_b32 s94, s94, 7")
    nst = [0]
    def stage(slot):
        xpart(slot)
        for t in range(5): wload(slot, t)
    a("s_movk_i32 s34, 1152")
    wcalc(0); wcalc(1)
    a("s_waitcnt lgkmcnt(0)")
    a(f"s_mov_b64 s[{SW}:{SW+1}], s[20:21]\ns_mov_b64 s[{SX}:{SX+1}], s[18:19]")
    xpart(0)
    wload(0, 0); wload(0, 1)
    for t in (2, 3, 4): wcalc(t); wload(0, t)
    stamp(1)
    pre = os.environ.get("PREQ" if Q else "PREK", "all")
    if pre == "all": stage(1)
    elif pre == "x": xpart(1); a("s_mov_b32 s34, s30")
    srd(a, SWS, 28, WS_SZ); srd(a, SDB, 26, 256); srd(a, SWO, 22, 663552)
    ct_calc(a)
    wo_voff(a, 21)
    tr_addr(a, 106)
    a("v_mov_b32 v4, 0")
    hs = os.environ.get("HSQ" if Q else "HSK", "2222222")
    units = [(st, p) for st in range(2, 9) for p in "xw"]
    early = {7: [5, 6, 7, 8], 8: [9, 10]}
    lst = [11, 12, 13, 0, 1, 2, 3, 4, 14, 15, 16, 17]
    if hs[6] == "0":
        early = {6: [5, 6, 7], 7: [8, 9, 10, 11], 8: [12, 13]}
        lst = lst[3:]
    out = [("S", 0)] * NL + [("S", 1)] * {"all": NL, "x": RT, "none": 0}[pre]
    for s in range(9):
        idx = max(i for i, t in enumerate(out) if t == ("S", s))
        a(f"s_waitcnt vmcnt({len(out) - 1 - idx})")
        if "stA" in DBG: rstamp(1 + s)
        a("s_barrier")
        if "stB" in DBG: rstamp(1 + s)
        if s == 0 and pre == "none": stage(1); out += [("S", 1)] * NL
        if s == 0 and pre == "x":
            a("s_mov_b32 s30, s34")
            for t in range(5): wload(1, t)
            out += [("S", 1)] * 5
        if s == 5:
            a(f"buffer_load_dword v24, v4, s[{SDB}:{SDB+3}], 0 offen sc1"); out.append("R")
            assert units
        for _ in range(int(hs[s]) if s < 7 else 0):
            st, p = units.pop(0)
            assert st - 3 <= s
            if p == "x": xpart(st % NS); out += [("S", st)] * RT
            else:
                for t in range(5): wload(st % NS, t)
                out += [("S", st)] * 5
        if s in early:
            wo_loads(a, 21, early[s]); out += ["W"] * (2 * len(early[s]))
    stamp(2)
    a("v_readfirstlane_b32 s37, v24")
    a("s_mov_b32 s36, 0")
    a("s_cmp_lg_u32 s37, 0")
    a(f"s_cbranch_scc1 {L('rdy2')}")
    a(f"{L('rdy')}:")
    a(f"buffer_load_dword v5, v4, s[{SDB}:{SDB+3}], 0 offen sc1")
    a("s_add_u32 s36, s36, 1")
    a("s_waitcnt vmcnt(0)")
    a("v_readfirstlane_b32 s37, v5")
    a("s_cmp_ge_u32 s36, 0x10000")
    a(f"s_cbranch_scc1 {L('rdy2')}")
    a("s_cmp_eq_u32 s37, 0")
    a(f"s_cbranch_scc1 {L('rdy')}")
    a(f"{L('rdy2')}:")
    a("s_barrier")
    assert not units
    nb = (QW if Q else KW) - (12 - len(lst))
    wo_loads(a, 21, lst[:nb])
    prep3(a)
    a("s_barrier")
    stamp(3)
    wo_loads(a, 21, lst[nb:])
    stamp(4)
    a(f"v_mov_b32 v4, {LCNT + 4}\nv_mov_b32 v5, 1")
    a("s_waitcnt vmcnt(0)")
    a("s_mov_b64 exec, 1")
    a("ds_add_u32 v4, v5")
    a("s_mov_b64 exec, -1")
    a("s_branch L_bjoin")
    a(f"{L('comp')}:")
    ct_calc(a)
    a("s_and_b32 s35, s31, 1")
    a("s_lshr_b32 s36, s31, 1")
    XA0, XA1, WA, LA = 4, 5, 6, 7
    a("v_lshrrev_b32 v9, 1, v2")
    a("v_xor_b32 v9, v9, v3")
    a("v_lshlrev_b32 v10, 7, v2")
    a("v_lshl_add_u32 v10, v9, 4, v10")
    a(f"s_mul_i32 s37, s35, {RT*2048}")
    a(f"v_add_u32 v{XA0}, s37, v10")
    a(f"v_xor_b32 v{XA1}, 64, v{XA0}")
    a("v_lshrrev_b32 v9, 2, v2")
    a("v_and_b32 v10, 3, v2")
    a("v_lshl_add_u32 v11, v3, 2, v9")
    a(f"v_mul_u32_u24 v11, {WROW}, v11")
    a(f"s_mul_i32 s37, s36, {144 if Q else 72}")
    a(f"s_add_u32 s37, s37, {XSZ}")
    a("v_add_u32 v11, s37, v11")
    a(f"v_lshl_add_u32 v{WA}, v10, 3, v11")
    a("v_and_b32 v12, 1, v10")
    a(f"v_mul_u32_u24 v12, {72 if Q else 144}, v12")
    a(f"v_add3_u32 v{LA}, v11, v12, 32")
    a(f"v_mov_b32 v12, {LCNT}\nv_mov_b32 v14, 0\nv_mov_b32 v15, 0")
    a("ds_write_b64 v12, v[14:15]")
    ACC = 16
    def acc(rt, t): return ACC + 4 * (5 * rt + t)
    a(f"v_mov_b32 v8, {hexf(ONE_EPS)}\nv_mov_b32 v9, v8")
    if not Q:
        a("v_lshrrev_b32 v10, 2, v2")
        a("v_cmp_eq_u32 s[98:99], 1, v10")
        a("v_cmp_eq_u32 s[100:101], 3, v10")
        a("v_cndmask_b32 v10, v8, 0, s[98:99]")
        a("v_mov_b32 v11, v10")
    for rt in range(RT):
        for t in range(5):
            src = "v[8:9]" if Q or t < 2 else ("v[10:11]" if t == 4 else "v[14:15]")
            for i in (0, 2): a(f"v_mov_b64 v[{acc(rt,t)+i}:{acc(rt,t)+i+1}], {src}")
    F = [120, 160]
    woff = [0, 40, 72, 112] if Q else [0, 40, 144, 184]
    TORD = [0, 1, 4, 2, 3]
    def reads(kk):
        f = F[kk]; Lr = []
        def w(t):
            for h in range(2):
                ad, o = (WA, woff[t]) if t < 4 else (LA, 0)
                Lr.append(f"ds_read_b64_tr_b16 v[{f+20+4*t+2*h}:{f+20+4*t+2*h+1}], v{ad} offset:{o + (32*kk + 16*h)*WROW}")
        w(TORD[0])
        for rt in range(RT): Lr.append(f"ds_read_b128 v[{f+4*rt}:{f+4*rt+3}], v{(XA0,XA1)[kk]} offset:{2048*rt}")
        for t in TORD[1:]: w(t)
        return Lr
    def one(kk, rt, t):
        f = F[kk]
        w, x = f"v[{f+20+4*t}:{f+23+4*t}]", f"v[{f+4*rt}:{f+4*rt+3}]"
        if not Q: w, x = x, w
        return f"v_mfma_f32_16x16x32_bf16 v[{acc(rt,t)}:{acc(rt,t)+3}], {w}, {x}, v[{acc(rt,t)}:{acc(rt,t)+3}]"
    def mfmas(kk):
        return [one(kk, rt, t) for t in TORD for rt in range(RT)]
    def inter(M, Rd):
        if "nocomp" in DBG: return
        if "noread" in DBG: Rd = []
        for k, m in enumerate(M):
            if k < len(Rd): a(Rd[k])
            a(m)
    a(f"s_mov_b32 s40, {hexf(LOG2E)}\ns_mov_b32 s41, s40")
    a(f"v_mov_b32 v250, {hexf(-ONE_EPS*LOG2E)}\nv_mov_b32 v251, v250")
    a(f"v_mov_b32 v252, {hexf(EPS)}\nv_mov_b32 v253, v252")
    a("s_waitcnt lgkmcnt(0)")
    srd(a, SWS, 28, WS_SZ); srd(a, SWO, 22, 663552)
    stamp(1)
    post = []
    p = lambda t: post.extend(x.strip() for x in t.split("\n") if x.strip())
    if Q:
        p("v_lshlrev_b32 v8, 4, v1")
        p("v_lshlrev_b32 v9, 3, v1")
        p(f"s_mul_i32 s38, s33, {2*RT}")
        p(f"s_mul_i32 s39, s35, {RT}")
        p("s_add_u32 s38, s38, s39")
        p("s_lshl_b32 s38, s38, 4")
        p("s_lshl_b32 s39, s32, 2")
        p("s_add_u32 s38, s38, s39")
        p("s_lshl_b32 s39, s36, 1")
        p("s_add_u32 s38, s38, s39")
        p("s_lshl_b32 s37, s38, 10")
        p(f"s_add_u32 s37, s37, {PQ}")
        p("s_lshl_b32 s39, s38, 7")
        p(f"s_add_u32 s39, s39, {PQL}")
        p(f"s_mov_b32 s{SX}, s28\ns_mov_b32 s{SX+1}, s29\ns_mov_b32 s{SX+2}, {PQL}\ns_mov_b32 s{SX+3}, 0x20000")
        p(f"s_mov_b32 s{SW}, s28\ns_mov_b32 s{SW+1}, s29\ns_mov_b32 s{SW+2}, {PQL + 0x40000}\ns_mov_b32 s{SW+3}, 0x20000")
    else:
        p(f"s_mul_i32 s38, s33, {2*RT}")
        p(f"s_mul_i32 s39, s35, {RT}")
        p("v_mov_b32 v13, 0x3f803f80")
        p("s_add_u32 s38, s38, s39")
        p("s_lshl_b32 s51, s32, 1")
        p("s_add_u32 s51, s51, s36")
        p(f"s_mul_i32 s51, s51, {PAIRB}")
        p("s_lshl_b32 s50, s33, 3")
        p("s_add_u32 s50, s50, s32")
        p(f"s_and_b32 s50, s50, {SHARD-1}")
        p("s_lshl_b32 s50, s50, 7")
        p(f"s_add_u32 s50, s50, {CNT}")
        p("v_lshlrev_b32 v243, 11, v1")
        p(f"v_mov_b32 v8, {OOB}")
        p("v_lshrrev_b32 v9, 2, v2")
        p("v_and_b32 v10, 3, v2")
        p("v_lshlrev_b32 v11, 8, v9")
        p("v_lshl_add_u32 v11, v3, 4, v11")
        p("v_lshl_add_u32 v236, v10, 2, v11")
        p("v_cmp_gt_u32 s[44:45], 4, v2")
        p("v_cmp_gt_u32 s[46:47], 2, v2")
        p("v_cndmask_b32 v237, v8, v236, s[44:45]")
        p("v_cmp_eq_u32 vcc, 1, v3")
        p("v_cmp_eq_u32 s[48:49], 3, v3")
        p("v_lshlrev_b32 v9, 2, v2")
        p("v_cndmask_b32 v240, v8, v9, vcc")
        p("v_add_u32 v10, 128, v240")
        p("v_cndmask_b32 v238, v10, v9, s[48:49]")
        p("v_add_u32 v10, 256, v240")
        p("v_add_u32 v11, 64, v9")
        p("v_cndmask_b32 v239, v10, v11, s[48:49]")
        p("v_and_b32 v9, 1, v2")
        p("v_lshlrev_b32 v9, 2, v9")
        p("v_bfe_u32 v10, v2, 1, 1")
        p("v_lshl_add_u32 v11, v10, 4, v9")
        p("v_lshl_add_u32 v9, v10, 5, v9")
        p("v_add_u32 v9, 32, v9")
        p("v_cndmask_b32 v9, v8, v9, vcc")
        p("v_cndmask_b32 v242, v8, v9, s[44:45]")
        p("v_cndmask_b32 v9, v9, v11, s[48:49]")
        p("v_cndmask_b32 v241, v8, v9, s[44:45]")
        p("s_lshl_b32 s3, s31, 11")
        p(f"s_add_u32 s3, s3, {RXB}")
        p("v_lshl_add_u32 v248, v1, 4, s3")
        p("v_xor_b32 v249, 0x800, v248")
        p("s_lshl_b32 s3, s31, 9")
        p(f"s_add_u32 s3, s3, {RXF}")
        p("v_lshl_add_u32 v14, v1, 3, s3")
        p("v_xor_b32 v15, 0x200, v14")
        p("v_mov_b64 v[8:9], 0")
        p("ds_write_b64 v14, v[8:9]")
        p("s_waitcnt lgkmcnt(0)")
    tr_addr(post, 244)
    for x in post: a(x)
    for st in range(9):
        a("s_barrier")
        if st == 0:
            for x in reads(0): a(x)
        else: inter(mfmas(1), reads(0))
        a("s_waitcnt lgkmcnt(0)")
        if st < 8:
            dl = SLOT if (st + 1) % NS else -(NS - 1) * SLOT
            upd = [f"v_add_u32 v{r}, {dl & 0xffffffff:#x}, v{r}" for r in (XA0, XA1, WA, LA)]
            inter(mfmas(0), reads(1) + upd)
            a("s_waitcnt lgkmcnt(0)")
    T0_, T1_ = 200, 204
    def postp(rt):
        Lp = []
        d = 208 + 12 * (rt % 2)
        if Q:
            phi4(Lp, acc(rt, 0), T0_, d); phi4(Lp, acc(rt, 1), T1_, d + 2)
            Lp.append(f"buffer_store_dwordx4 v[{d}:{d+3}], v8, s[{SX}:{SX+3}], s37 offen sc1")
            phi4(Lp, acc(rt, 4), T0_, d + 8)
            Lp.append(f"s_mov_b32 exec_hi, 0\nbuffer_store_dwordx2 v[{d+8}:{d+9}], v9, s[{SW}:{SW+3}], s39 offen sc1\ns_mov_b32 exec_hi, -1")
            phi4(Lp, acc(rt, 2), T1_, d + 4); phi4(Lp, acc(rt, 3), T0_, d + 6)
            Lp.append(f"buffer_store_dwordx4 v[{d+4}:{d+7}], v8, s[{SX}:{SX+3}], s37 offen offset:1024 sc1")
            Lp.append("s_add_u32 s37, s37, 16384\ns_add_u32 s39, s39, 2048")
        else:
            pk = lambda t: acc(rt & ~1, t) + 2 * (rt & 1)
            for t in (0, 1): phi4(Lp, acc(rt, t), (T0_, T1_)[t], pk(t))
            phi4(Lp, acc(rt, 4), T0_, None)
            if RT % 2: Lp.append(f"s_add_u32 s39, s38, {rt}\ns_cmp_lt_u32 s39, 128\ns_cselect_b32 s39, 0x3f803f80, 0\nv_mov_b32 v13, s39")
            for i in range(4): Lp.append(f"v_cndmask_b32 v{T0_+i}, v{T0_+i}, v{acc(rt,4)+i}, s[98:99]")
            e = pk(4)
            Lp += [f"v_cvt_pk_bf16_f32 v{e}, v{T0_}, v{T0_+1}", f"v_cvt_pk_bf16_f32 v{e+1}, v{T0_+2}, v{T0_+3}",
                   f"v_cndmask_b32 v{e}, v{e}, v13, s[100:101]", f"v_cndmask_b32 v{e+1}, v{e+1}, v13, s[100:101]"]
            for t in (2, 3):
                e = pk(t)
                Lp += [f"v_cvt_pk_bf16_f32 v{e}, v{acc(rt,t)}, v{acc(rt,t)+1}", f"v_cvt_pk_bf16_f32 v{e+1}, v{acc(rt,t)+2}, v{acc(rt,t)+3}"]
                if rt == RT - 1 and RT % 2: Lp.append(f"v_mov_b64 v[{e+2}:{e+3}], 0")
            if rt == RT - 1 and RT % 2:
                for t in (0, 1, 4): Lp.append(f"v_mov_b64 v[{pk(t)+2}:{pk(t)+3}], 0")
        return Lp
    Rd = reads(1)
    first = [one(0, rt, t) for rt in range(2) for t in TORD]
    for k, m in enumerate(first):
        for x in Rd[2*k:2*k+2]: a(x)
        a(m)
    a("s_waitcnt lgkmcnt(0)")
    a("s_barrier")
    for t in TORD: a(one(1, 0, t))
    rest = []
    for rt in range(1, RT):
        rest += [(rt, one(1, rt, t)) for t in TORD]
        if rt + 1 < RT: rest += [(rt + 1, one(0, rt + 1, t)) for t in TORD]
    for _ in range(3): a(rest.pop(0)[1])
    stamp(2)
    KA = 208
    kvt = [(0, 2, 0), (1, 3, 1), (2, 2, 4), (3, 3, 4), (4, 4, 0), (5, 4, 1), (6, 4, 4)]
    def kvm(ks):
        r = 2 * ks
        return [(99, f"v_mfma_f32_16x16x32_bf16 v[{KA+4*i}:{KA+4*i+3}], v[{acc(r,x)}:{acc(r,x)+3}], v[{acc(r,y)}:{acc(r,y)+3}], " + ("0" if ks == 0 else f"v[{KA+4*i}:{KA+4*i+3}]"))
                for i, x, y in kvt]
    for rt in range(RT):
        while rest and rest[0][0] <= rt: a(rest.pop(0)[1])
        k = 0
        for x in postp(rt):
            alt = x.split("|")
            for y in (alt[1:] if len(alt) > 1 and rest and NSC else alt[:1]):
                a(y); k += 2 if y.startswith("v_exp") else 1
                if k >= 2 and rest: a(rest.pop(0)[1]); k = 0
        if not Q and (rt % 2 == 1 or rt == RT - 1): rest += kvm(rt // 2)
    while rest: a(rest.pop(0)[1])
    if not Q:
        at = lambda r, ad, o: a(f"buffer_atomic_add_f32 v{r}, v{ad}, {WSR}, s51 offen offset:{o}")
        for i in range(4): a(f"v_cndmask_b32 v{KA+8+i}, v{KA+12+i}, v{KA+8+i}, s[46:47]")
        a(f"v_mov_b64 v[{KA+18}:{KA+19}], v[{KA+22}:{KA+23}]")
        a(f"v_cndmask_b32 v{KA+24}, v{KA+26}, v{KA+24}, s[46:47]")
        a(f"v_cndmask_b32 v{KA+25}, v{KA+27}, v{KA+25}, s[46:47]")
        own = [(KA, KA + 8, KA + 24), (KA + 4, KA + 16, KA + 25)]
        a("s_cmp_eq_u32 s35, 1")
        a(f"s_cbranch_scc1 {L('rx1')}")
        for rh in range(2):
            if rh: a(f"{L('rx1')}:")
            o, k = own[1 - rh], own[rh]
            a(f"ds_write_b128 v248, v[{o[0]}:{o[0]+3}]")
            a(f"ds_write_b128 v248, v[{o[1]}:{o[1]+3}] offset:1024")
            a(f"ds_write2_b32 v14, v{o[2]}, v14 offset0:0 offset1:1")
            a("s_mov_b32 s3, 0")
            a(f"{L('rp' + str(rh))}:")
            a("ds_read_b64 v[200:201], v15")
            a("ds_read_b128 v[16:19], v249")
            a("ds_read_b128 v[20:23], v249 offset:1024")
            a("s_add_u32 s3, s3, 1")
            a("s_waitcnt lgkmcnt(0)")
            a("v_cmp_eq_u32 vcc, 0, v201")
            a("s_cmp_ge_u32 s3, 0x100000")
            a(f"s_cbranch_scc1 {L('rq' + str(rh))}")
            a(f"s_cbranch_vccnz {L('rp' + str(rh))}")
            a(f"{L('rq' + str(rh))}:")
            for j in range(2):
                for h in (0, 2): a(f"v_pk_add_f32 v[{k[j]+h}:{k[j]+h+1}], v[{k[j]+h}:{k[j]+h+1}], v[{16+4*j+h}:{17+4*j+h}]")
            a(f"v_add_f32 v{k[2]}, v{k[2]}, v200")
            if rh == 0:
                for i in range(4): at(KA + i, 236, 64*i)
                for i in range(4): at(KA + 8 + i, 237, O_LD + 64*i)
                at(KA + 24, 241, O_XL)
                a(f"s_branch {L('rxd')}")
            else:
                for i in range(4): at(KA + 4 + i, 236, O_MMB + 64*i)
                at(KA + 16, 238, O_XM); at(KA + 17, 240, O_XM + 192)
                at(KA + 18, 239, O_XM); at(KA + 19, 240, O_XM + 320)
                at(KA + 25, 242, O_XL + 16)
        a(f"{L('rxd')}:")
    stamp(3)
    a("s_barrier")
    a("v_mov_b64 v[106:107], v[244:245]\nv_mov_b64 v[108:109], v[246:247]")
    if Q:
        if PORD == "pw":
            a("s_lshl_b32 s50, s33, 2")
            a("s_add_u32 s50, s50, s32")
            a("s_lshl_b32 s50, s50, 7")
        else: a("s_lshl_b32 s50, s33, 7")
        a(f"s_add_u32 s50, s50, {PQC}")
        a("v_mov_b32 v243, 0")
    prep3(a)
    lds_last(a, L("sig"))
    a(f"s_mov_b64 exec, {1 if Q else 0xff}")
    a(f"buffer_atomic_add v5, v243, {WSR}, s50 offen")
    a("s_mov_b64 exec, -1")
    a(f"{L('sig')}:")
    stamp(4)
    a("s_branch L_bjoin")

def phase3(a, stamp):
    a.c("---------------- phase 3 ----------------")
    if "stA" in DBG or "stB" in DBG: stamp = lambda i: None
    a("L_bjoin:")
    stamp(5)
    a("s_cmp_eq_u32 s43, 0" if KRT == 5 else "s_cmp_ge_u32 s43, 20")
    a("s_cbranch_scc1 L_fin")
    def poll_prep_q():
        a("s_lshl_b32 s34, s32, 1")
        a("v_add_u32 v104, s34, v101")
        a(f"v_mul_u32_u24 v104, {205 if KRT == 4 else 256}, v104")
        a("v_lshrrev_b32 v104, 10, v104")
        a("v_lshlrev_b32 v104, 7, v104")
        a(f"s_mov_b32 s34, {PQC}")
    def poll_prep_k():
        a("v_lshlrev_b32 v104, 7, v101")
        a("s_lshl_b32 s34, s42, 11")
        a(f"s_add_u32 s34, s34, {CNT}")
    def poll(wave, prep, nl, tgt, tag, two=False, bar=True):
        a(f"s_cmp_lg_u32 s31, {wave}")
        a(f"s_cbranch_scc1 L_pw{tag}")
        prep()
        a(f"s_mov_b64 exec, {hex((1 << nl) - 1)}")
        a("s_mov_b32 s3, 0")
        if two and POLL2:
            a(f"buffer_load_dword v254, v104, {WSR}, s34 offen sc1")
            a(f"s_sleep {POLL2}")
            a(f"L_poll{tag}:")
            for cur, nxt in ((254, 255), (255, 254)):
                a(f"buffer_load_dword v{nxt}, v104, {WSR}, s34 offen sc1")
                a("s_waitcnt vmcnt(1)")
                a(f"v_cmp_gt_u32 vcc, {tgt}, v{cur}")
                a("s_add_u32 s3, s3, 1")
                a(f"s_cbranch_vccz L_pd{tag}")
            a("s_cmp_lt_u32 s3, 0x20000")
            a(f"s_cbranch_scc1 L_poll{tag}")
        else:
            if PS0: a(f"s_sleep {PS0}")
            a(f"L_poll{tag}:")
            if PSLEEP: a(f"s_sleep {PSLEEP}")
            a(f"buffer_load_dword v105, v104, {WSR}, s34 offen sc1")
            a("s_add_u32 s3, s3, 1")
            a("s_waitcnt vmcnt(0)")
            a(f"v_cmp_gt_u32 vcc, {tgt}, v105")
            a("s_cmp_ge_u32 s3, 0x10000")
            a(f"s_cbranch_scc1 L_pd{tag}")
            a(f"s_cbranch_vccnz L_poll{tag}")
        a(f"L_pd{tag}:")
        a("s_mov_b64 exec, -1")
        a(f"L_pw{tag}:")
        if bar: a("s_barrier")
    AM = [16, 20, 24, 28]
    AX = [32, 36, 40, 44]
    PQR = 56
    T = 48
    def pql(rt, ad=9, al=7):
        b = PQR + 14 * rt
        a(f"s_add_u32 s3, s41, {rt}")
        a("s_and_b32 s3, s3, 3")
        a("s_lshl_b32 s30, s3, 14")
        a("s_add_u32 s30, s30, s38")
        a("s_lshl_b32 s3, s3, 11")
        a("s_add_u32 s3, s3, s39")
        a(f"buffer_load_dwordx4 v[{b+2}:{b+5}], v{ad}, {WSR}, s30 offen sc1")
        a(f"buffer_load_dwordx4 v[{b+8}:{b+11}], v{ad}, {WSR}, s30 offen offset:1024 sc1")
        a(f"buffer_load_dwordx2 v[{b+6}:{b+7}], v{al}, {WSR}, s3 offen sc1")
    def kvl():
        a(f"buffer_load_dwordx4 v[{AX[0]}:{AX[0]+3}], v102, {WSR}, s51 offen offset:{O_XM} sc1")
        a(f"buffer_load_dwordx4 v[{T}:{T+3}], v100, {WSR}, s51 offen offset:{O_LD} sc1")
        a(f"s_add_u32 s3, s51, {PAIRB}")
        a(f"buffer_load_dwordx4 v[{AX[2]}:{AX[2]+3}], v103, {WSR}, s3 offen offset:{O_XM} sc1")
        for c in range(2):
            o = c * PAIRB
            a(f"buffer_load_dwordx4 v[{AM[2*c]}:{AM[2*c]+3}], v98, {WSR}, s51 offen offset:{o} sc1")
            a(f"buffer_load_dwordx4 v[{AM[2*c+1]}:{AM[2*c+1]+3}], v98, {WSR}, s51 offen offset:{o+O_MMB} sc1")
    if PORD == "qk":
        stamp(6)
        poll(PQW, poll_prep_q, 2, 4, "q"); stamp(8)
        a("v_mov_b64 v[16:17], v[106:107]\nv_mov_b64 v[18:19], v[108:109]")
        a("v_add_u32 v0, 0x1c000, v106")
        trs = [x for st in range(14) for x in (wotr(a, st, 16) if st < 8 else wotr(a, st, 18, 0x10000))]
        for rt in range(PQE):
            pql(rt)
            for x in trs[36*rt//PQE:36*(rt+1)//PQE]: a(x)
        a("s_waitcnt lgkmcnt(0)")
        a("v_mov_b64 v[4:5], v[18:19]")
        stamp(7)
        poll(0, poll_prep_k, SHARD, (13 if KRT == 5 else 16) * 8 // SHARD, "k", two=True); stamp(9)
        kvl()
        for x in trs[36:]: a(x.replace("v18 ", "v4 ").replace("v19 ", "v5 "))
        for rt in range(PQE, 4): pql(rt)
        vm = [f"p{r}" for r in range(PQE) for _ in range(3)] + ["x"]*3 + ["m0"]*2 + ["m1"]*2 + [f"p{r}" for r in range(PQE, 4) for _ in range(3)]
    else:
        a(f"v_mov_b32 v4, {LCNT + 4}")
        a("s_mov_b32 s3, 0")
        a("L_xv:")
        a("ds_read_b32 v5, v4")
        a("s_add_u32 s3, s3, 1")
        a("s_waitcnt lgkmcnt(0)")
        a("v_cmp_gt_u32 vcc, 4, v5")
        a("s_cmp_ge_u32 s3, 0x100000")
        a("s_cbranch_scc1 L_xv2")
        a("s_cbranch_vccnz L_xv")
        a("L_xv2:")
        stamp(6)
        a("v_add_u32 v0, 0x1c000, v106")
        a("s_lshl_b32 s3, s33, 2")
        a("s_add_u32 s3, s3, s35")
        a("s_cmp_ge_u32 s3, 18")
        a("s_cbranch_scc1 L_notr")
        for st in range(14):
            for x in (wotr(a, st, 106) if st < 8 else wotr(a, st, 108, 0x10000)): a(x)
        a("L_notr:")
        a("v_mov_b32 v98, v9\nv_mov_b32 v99, v7\nv_mov_b32 v100, v10\nv_mov_b64 v[102:103], v[12:13]\nv_mov_b32 v254, v9\nv_mov_b32 v255, v7\nv_mov_b32 v101, v1")
        a("s_mov_b32 s51, s37")
        a("v_xor_b32 v5, 32, v0\nv_mov_b32 v4, v0")
        for s in (14, 15):
            for x in wotr(a, s, 4, 0x1c000): a(x)
        a("s_lshl_b32 s34, s40, 11")
        a("v_add_u32 v10, s34, v9")
        a("s_lshr_b32 s34, s40, 2")
        a("s_lshl_b32 s34, s34, 10")
        a("s_and_b32 s3, s40, 3")
        a("s_lshl_b32 s3, s3, 2")
        a("s_add_u32 s34, s34, s3")
        a(f"s_add_u32 s34, s34, {16*1024}")
        a("v_add_u32 v11, s34, v9")
        a(f"s_mul_i32 s34, s36, {18*1024}")
        a("v_add_u32 v8, s34, v9")
        a("s_lshl_b32 s34, s31, 10")
        a(f"s_add_u32 s34, s34, {EPI}")
        a("v_add_u32 v9, s34, v9")
        a("v_and_b32 v12, 1, v3")
        a("v_lshrrev_b32 v14, 1, v3")
        a("v_lshl_add_u32 v12, v12, 1, v14")
        if FULL:
            a("s_lshl_b32 s3, s35, 2")
            a("v_add_u32 v12, s3, v12")
            a("v_xor_b32 v12, v12, v2")
            a("v_lshl_add_u32 v12, v2, 4, v12")
            a("s_lshl_b32 s3, s36, 12")
            a(f"s_add_u32 s3, s3, {EPI}")
            a("v_lshl_add_u32 v12, v12, 4, s3")
            a("s_and_b32 s3, s31, 3")
            a("s_lshl_b32 s3, s3, 2")
            a("v_add_u32 v14, s3, v3")
            a("v_xor_b32 v15, v14, v2")
            a("v_cmp_eq_u32 vcc, 0, v3")
            a("v_mov_b32 v2, v12")
            a("s_lshr_b32 s3, s31, 2")
            a("s_add_u32 s3, s3, s41")
            a("s_and_b32 s3, s3, 3")
            a("s_cmp_lt_u32 s3, 2")
            a(f"s_mov_b32 s37, {32*2304}")
            a(f"s_cselect_b32 s37, s37, {(-32*2304) & 0xffffffff:#x}")
            a("s_lshl_b32 s34, s32, 6")
            a("s_lshl_b32 s3, s3, 4")
            a("s_add_u32 s34, s34, s3")
            a("v_add_u32 v14, s34, v14")
            a("v_mul_u32_u24 v14, 2304, v14")
            a("s_lshl_b32 s34, s33, 8")
            a("v_lshl_add_u32 v15, v15, 4, s34")
            a("s_movk_i32 s3, 1152")
            a("v_cmp_gt_u32 s[60:61], s3, v15")
            a("v_add3_u32 v3, v14, v15, s3")
            a("s_lshl_b32 s3, s35, 6")
            a("s_add_u32 s34, s34, s3")
        else:
            a("v_lshl_add_u32 v12, v2, 2, v12")
            a("v_cmp_eq_u32 vcc, 0, v3")
            a("v_lshl_add_u32 v2, v12, 4, s34")
            a("s_add_u32 s3, s36, s41")
            a("s_and_b32 s3, s3, 3")
            a("s_cmp_lt_u32 s3, 2")
            a(f"s_mov_b32 s37, {32*2304}")
            a(f"s_cselect_b32 s37, s37, {(-32*2304) & 0xffffffff:#x}")
            a("s_lshl_b32 s34, s32, 6")
            a("s_lshl_b32 s3, s3, 4")
            a("s_add_u32 s34, s34, s3")
            a("v_lshrrev_b32 v14, 2, v1")
            a("v_add_u32 v14, s34, v14")
            a("v_mul_u32_u24 v14, 2304, v14")
            a("v_and_b32 v15, 3, v1")
            a("v_lshl_add_u32 v14, v15, 4, v14")
            a("s_lshl_b32 s34, s33, 8")
            a("s_lshl_b32 s3, s35, 6")
            a("s_add_u32 s34, s34, s3")
            a("s_add_u32 s3, s34, 1152")
            a("v_add_u32 v3, s3, v14")
        a("v_xor_b32 v1, 32, v0")
        a(f"v_mov_b32 v12, {hexf(EPS)}\nv_mov_b32 v13, v12\nv_mov_b32 v14, 0\nv_mov_b32 v15, 0")
        a(f"v_mov_b32 v{AX[1]+2}, 0\nv_mov_b32 v{AX[3]+2}, 0")
        a("s_andn2_b64 s[48:49], s[98:99], s[100:101]")
        a("s_mov_b64 s[94:95], vcc")
        a("s_mov_b32 s50, s34")
        a("s_waitcnt lgkmcnt(0)")
        stamp(8)
        if PORD == "pw":
            assert SHARD == 16 and KRT == 4
            a("s_barrier")
            a("v_and_b32 v105, 1, v101")
            a("s_lshl_b32 s34, s32, 1")
            a("v_add_u32 v104, s34, v105")
            a("v_mul_u32_u24 v104, 205, v104")
            a("v_lshrrev_b32 v104, 10, v104")
            a("s_lshr_b32 s34, s40, 1")
            a("s_lshl_b32 s34, s34, 7")
            a(f"s_add_u32 s34, s34, {PQC}")
            a("v_lshl_add_u32 v104, v104, 9, s34")
            a("s_lshl_b32 s34, s42, 11")
            a("s_lshl_b32 s3, s40, 7")
            a("s_add_u32 s34, s34, s3")
            a(f"s_add_u32 s34, s34, {CNT}")
            a("v_lshl_add_u32 v105, v105, 10, s34")
            a("v_cmp_gt_u32 vcc, 2, v101")
            a("v_cndmask_b32 v104, v104, v105, vcc")
            a("v_cndmask_b32_e64 v110, 1, 8, vcc")
            a("s_mov_b64 exec, 15")
            a("s_mov_b32 s3, 0")
            a("L_pollw:")
            if PSLEEP: a(f"s_sleep {PSLEEP}")
            a(f"buffer_load_dword v105, v104, {WSR}, 0 offen sc1")
            a("s_add_u32 s3, s3, 1")
            a("s_waitcnt vmcnt(0)")
            a("v_cmp_gt_u32 vcc, v110, v105")
            a("s_cmp_ge_u32 s3, 0x10000")
            a("s_cbranch_scc1 L_pdw")
            a("s_cbranch_vccnz L_pollw")
            a("L_pdw:")
            a("s_mov_b64 exec, -1")
            stamp(7)
        else:
            if PORD == "cc": poll(PQW, poll_prep_q, 2, 4, "q", bar=False)
            poll(PKW, poll_prep_k, SHARD, (13 if KRT == 5 else 16) * 8 // SHARD, "k", two=True); stamp(7)
        kvl()
        if PORD in ("cc", "pw"): pql(0, 98, 99); pql(1, 98, 99)
        vm = ["x"]*3 + ["m0"]*2 + ["m1"]*2 + [f"p{r}" for r in range(2 if PORD in ("cc", "pw") else 0) for _ in range(3)]
    vdone = [-1]
    def vwait(tag):
        idx = max(i for i, t in enumerate(vm) if t == tag)
        if idx > vdone[0]:
            a(f"s_waitcnt vmcnt({len(vm) - 1 - idx})"); vdone[0] = idx
    def pmov(rt):
        b = PQR + 14 * rt
        vwait(f"p{rt}")
        a(f"v_mov_b64 v[{b}:{b+1}], v[{b+6}:{b+7}]\nv_mov_b64 v[{b+12}:{b+13}], v[{b+6}:{b+7}]")
    for rt in range(PQE): pmov(rt)
    def mf(d, x, y, c): a(f"v_mfma_f32_16x16x32_bf16 v[{d}:{d+3}], v[{x}:{x+3}], v[{y}:{y+3}], {c}")
    def regs(rt): return (PQR + 14 * rt, (48, 240, 48, 56)[rt], (52, 244, 52, 60)[rt], (4, 248, 4, 64)[rt])
    def MX(rt):
        b, X0, X1, D0 = regs(rt)
        ops = [b, b+4, b+6, b+10]
        if rt >= PQE: pmov(rt)
        mf(X0, AX[1], ops[1], "v[12:15]"); mf(X1, AX[3], ops[3], "v[12:15]")
        mf(X0, AX[0], ops[0], f"v[{X0}:{X0+3}]"); mf(X1, AX[2], ops[2], f"v[{X1}:{X1+3}]")
    def MM_(rt):
        b, X0, X1, D0 = regs(rt)
        ops = [b, b+4, b+6, b+10]
        mf(D0, AM[0], ops[0], "0")
        mf(b, AM[1], ops[1], "0")
        mf(b+6, AM[2], ops[2], "0")
        mf(b+10, AM[3], ops[3], "0")
    def conv(st=True):
        vwait("x")
        if st: stamp(9)
        a(f"v_cvt_pk_bf16_f32 v252, v{T}, v{T+1}")
        a(f"v_cvt_pk_bf16_f32 v253, v{T+2}, v{T+3}")
        for c in range(2):
            xa, xb = AX[2*c], AX[2*c+1]
            mk = "s[46:47]" if c == 0 else "s[96:97]"
            a(f"v_cvt_pk_bf16_f32 v{T+2}, v{xa}, v{xa+1}")
            a(f"v_cvt_pk_bf16_f32 v{T+3}, v{xa+2}, v{xa+3}")
            a(f"v_cndmask_b32 v{T+4}, 0, v252, {mk}")
            a(f"v_mov_b32 v{xa+1}, 0")
            a(f"v_cndmask_b32 v{xb}, 0, v{T+2}, s[44:45]")
            a(f"v_cndmask_b32 v{xb+1}, 0, v{T+3}, s[44:45]")
            a(f"v_cndmask_b32 v{xb+3}, 0, v{T+4}, s[44:45]")
            a(f"v_cndmask_b32 v{xa}, v{T+4}, 0, s[44:45]")
            a(f"v_cndmask_b32 v{xa+2}, v{T+2}, 0, s[44:45]")
            a(f"v_cndmask_b32 v{xa+3}, v{T+3}, 0, s[44:45]")
        for c in range(2):
            ma, mb = AM[2*c], AM[2*c+1]
            mk = "s[94:95]" if c == 0 else "s[48:49]"
            vwait(f"m{c}")
            a(f"v_cvt_pk_bf16_f32 v{ma+3}, v{ma+2}, v{ma+3}")
            a(f"v_cvt_pk_bf16_f32 v{ma+2}, v{ma}, v{ma+1}")
            a(f"v_cndmask_b32 v{ma}, 0, v252, {mk}")
            a(f"v_mov_b32 v{ma+1}, 0")
            a(f"v_cvt_pk_bf16_f32 v{mb}, v{mb}, v{mb+1}")
            a(f"v_cvt_pk_bf16_f32 v{mb+1}, v{mb+2}, v{mb+3}")
            a(f"v_mov_b32 v{mb+2}, 0")
            a(f"v_cndmask_b32 v{mb+3}, 0, v253, {mk}")
    if PORD in ("cc", "pw"): conv()
    else:
        a(f"s_cmp_eq_u32 s31, {PQW}")
        a("s_cbranch_scc1 L_skipconv")
        conv()
        a("L_skipconv:")
        poll(PQW, poll_prep_q, 2, 4, "q")
        stamp(10)
        pql(0, 98, 99); pql(1, 98, 99); vm.extend(["p0"]*3 + ["p1"]*3)
        a(f"s_cmp_lg_u32 s31, {PQW}")
        a("s_cbranch_scc1 L_skipconv2")
        conv(False)
        a("L_skipconv2:")
    def V(rt):
        b, X0, X1, D0 = regs(rt)
        L = []
        p = lambda t: L.extend(x.strip() for x in t.split("\n"))
        for x in (X0, X1):
            p(f"v_rcp_f32 v{x}, v{x}\nv_rcp_f32 v{x+1}, v{x+1}")
        if NSC: p(f"v_add_f32 v{X0+2}, v{X0+2}, v{X1+2}\nv_add_f32 v{X0+3}, v{X0+3}, v{X1+3}")
        else: p(f"v_pk_add_f32 v[{X0+2}:{X0+3}], v[{X0+2}:{X0+3}], v[{X1+2}:{X1+3}]")
        p(f"v_cndmask_b32 v{X1+2}, v{X0}, v{X0+1}, s[98:99]")
        p(f"v_cndmask_b32 v{X1+3}, v{X1}, v{X1+1}, s[98:99]")
        p(f"v_cndmask_b32 v{X1+2}, v{X1+2}, v{X1+3}, s[100:101]")
        if NSC: p(f"v_mul_f32 v{X0+2}, v{X0+2}, v{X1+2}\nv_mul_f32 v{X0+3}, v{X0+3}, v{X1+2}")
        else: p(f"v_pk_mul_f32 v[{X0+2}:{X0+3}], v[{X0+2}:{X0+3}], v[{X1+2}:{X1+3}] op_sel:[0,0] op_sel_hi:[1,0]")
        p(f"v_cvt_pk_bf16_f32 v{b+4}, v{X0+2}, v{X0+3}")
        p(f"ds_write_b32 v11, v{b+4} offset:{rt*18*1024}")
        for d, rc in ((D0, X0), (b, X0+1), (b+6, X1), (b+10, X1+1)):
            sel = "op_sel:[0,0] op_sel_hi:[1,0]" if rc % 2 == 0 else "op_sel:[0,1] op_sel_hi:[1,1]"
            rp = rc & ~1
            if NSC:
                for i in range(4): p(f"v_mul_f32 v{d+i}, v{d+i}, v{rc}")
                continue
            p(f"v_pk_mul_f32 v[{d}:{d+1}], v[{d}:{d+1}], v[{rp}:{rp+1}] {sel}")
            p(f"v_pk_mul_f32 v[{d+2}:{d+3}], v[{d+2}:{d+3}], v[{rp}:{rp+1}] {sel}")
        p(f"v_cvt_pk_bf16_f32 v{D0}, v{D0}, v{D0+1}\nv_cvt_pk_bf16_f32 v{D0+1}, v{D0+2}, v{D0+3}")
        p(f"v_cvt_pk_bf16_f32 v{D0+2}, v{b}, v{b+1}\nv_cvt_pk_bf16_f32 v{D0+3}, v{b+2}, v{b+3}")
        p(f"ds_write_b128 v10, v[{D0}:{D0+3}] offset:{rt*18*1024}")
        p(f"v_cvt_pk_bf16_f32 v{b+6}, v{b+6}, v{b+7}\nv_cvt_pk_bf16_f32 v{b+7}, v{b+8}, v{b+9}")
        p(f"v_cvt_pk_bf16_f32 v{b+8}, v{b+10}, v{b+11}\nv_cvt_pk_bf16_f32 v{b+9}, v{b+12}, v{b+13}")
        p(f"ds_write_b128 v10, v[{b+6}:{b+9}] offset:{rt*18*1024+1024}")
        return L
    def late_pq():
        for rt in (2, 3):
            pql(rt, 254, 255); vm.extend([f"p{rt}"] * 3)
    if PORD == "qk": MM_(0); MM_(1)
    else:
        if LATEM == 1: late_pq()
        MX(0); MM_(0)
        if LATEM == 2: late_pq()
        MX(1); MM_(1)
        if LATEM == 3: late_pq()
    for x in V(0): a(x)
    if not LATEM: MX(2); MM_(2)
    for x in V(1): a(x)
    if not LATEM: MX(3); MM_(3)
    a("s_waitcnt lgkmcnt(0)")
    a("s_barrier")
    stamp(11)
    OA = 68
    OF = 16
    q_ = []; done = [-1]
    def lds(t, tag=None): a(t); q_.append(tag)
    def wait_for(tags):
        idx = max(i for i, t in enumerate(q_) if t in tags)
        if idx > done[0]:
            n = len(q_) - 1 - idx
            a(f"s_waitcnt lgkmcnt({min(n, 15)})")
            done[0] = idx if n <= 15 else len(q_) - 16
    def emit(x):
        if "@" in x: t, g = x.split("@"); lds(t, g)
        elif x.startswith("ds_"): lds(x)
        else: a(x)
    late = [x + "@W" for s in (16, 17) for x in wotr(a, s, 0, 0x1c000)]
    LA = 5
    def ofr(ps, k): return 240 + 4*k if (LATEM and ps == 0 and k < 3) else OF + 4*(k%8)
    def ord_(ps, k): lds(f"ds_read_b128 v[{ofr(ps,k)}:{ofr(ps,k)+3}], v8 offset:{(ps*36 + k)*1024}", ("O", ps, k))
    def epi(ps):
        d = OA + 8*ps; p = 84 + 4*ps
        L = [f"v_cvt_pk_bf16_f32 v{p+k}, v{d+2*k}, v{d+2*k+1}" for k in range(4)]
        L += ["v_nop", f"v_permlane16_swap_b32 v{p}, v{p+2}", f"v_permlane16_swap_b32 v{p+1}, v{p+3}",
              f"ds_write_b128 v2, v[{p}:{p+3}] offset:{8192*ps}@X{ps}"]
        if not FULL: L.append(f"ds_read_b128 v[{p+8}:{p+11}], v9 offset:{8192*ps}@E{ps}")
        return L
    def xbar(ps):
        wait_for({f"X{ps}"})
        a("s_barrier")
        emit(f"ds_read_b128 v[{92+4*ps}:{95+4*ps}], v9 offset:{8192*ps}@E{ps}")
    def store(ps):
        wait_for({f"E{ps}"})
        if ps: a("v_add_u32 v3, s37, v3")
        if FULL: a("s_mov_b64 exec, s[60:61]")
        a(f"global_store_dwordx4 v3, v[{92+4*ps}:{95+4*ps}], s[24:25] {STB}")
        if FULL: a("s_mov_b64 exec, -1")
    for ps in range(2):
        fill = (V(2) + late + V(3)) if ps == 0 else ["s_nop 0"] * 4 + epi(0)
        if ps == 1:
            a("s_cmp_ge_u32 s50, 1152")
            a("s_cbranch_scc1 " + ("L_narrow" if FULL else "L_fin"))
        lm = LATEM and ps == 0
        nxt = 3 if lm else LA
        for k in range(nxt): ord_(ps, k)
        if lm: MX(2); MM_(2)
        for k in range(18):
            wait_for({("O", ps, k)} | ({"W"} if k >= 16 else set()))
            for t in range(2):
                d = OA + 8*ps + 4*t
                mf(d, WOF + 8*k + 4*t, ofr(ps, k), "0" if k == 0 else f"v[{d}:{d+3}]")
                if lm and k == 0 and t == 1: MX(3); MM_(3)
                if not (lm and k == 0 and t == 0):
                    for _ in range(2):
                        if nxt < 18 and nxt <= k + LA: ord_(ps, nxt); nxt += 1
                for _ in range(3 if NSC and ps == 0 else 2):
                    if fill and not (lm and k == 0): emit(fill.pop(0))
            if ps == 1 and k == 7 and FULL: xbar(0)
            if ps == 1 and k == (11 if FULL else 9): store(0)
        assert not fill
        if ps == 0:
            a("s_waitcnt lgkmcnt(0)"); done[0] = len(q_) - 1
            a("s_barrier")
            stamp(12)
    for x in epi(1): emit(x)
    if FULL: xbar(1)
    store(1)
    stamp(13)
    if FULL:
        a("s_branch L_fin")
        a("L_narrow:")
        for ps in range(2):
            a("s_barrier")
            a(f"ds_read_b128 v[{92+4*ps}:{95+4*ps}], v9 offset:{8192*ps}")
            a("s_waitcnt lgkmcnt(0)")
            if ps: a("v_add_u32 v3, s37, v3")
            a("s_mov_b64 exec, s[60:61]")
            a(f"global_store_dwordx4 v3, v[{92+4*ps}:{95+4*ps}], s[24:25] {STB}")
            a("s_mov_b64 exec, -1")
```

```python
import sys, os
from asmlib import *
import hazard
from gen_a import *
from gen_b import *

NST = 15
STAMP_OFF = 200 << 20
def build(stamps=False, do_a=True, do_b=True, do_p3=True):
    a = Asm()
    sbase = 64
    def stamp(i):
        if stamps: a(f"{'s_memtime' if os.environ.get('CYC') else 's_memrealtime'} s[{sbase+2*i}:{sbase+2*i+1}]")
    stamp(0)
    a("s_load_dwordx16 s[4:19], s[0:1], 0")
    a("s_load_dwordx8 s[20:27], s[0:1], 64")
    a("s_load_dwordx2 s[28:29], s[0:1], 96")
    a("s_cmp_ge_u32 s2, 256")
    a("s_cbranch_scc1 L_end")
    a("v_and_b32 v1, 63, v0")
    a("v_lshrrev_b32 v2, 6, v0")
    a("s_and_b32 s42, s2, 7")
    a("s_lshr_b32 s43, s2, 3")
    a("v_readfirstlane_b32 s31, v2")
    if not os.environ.get("NOCPF"):
        if os.environ.get("CPFW", "0") == "1":
            a("s_and_b32 s34, s43, 3")
            a("s_cmp_lg_u32 s34, s31")
            a("s_cbranch_scc1 L_nocpf")
            a("s_and_b32 s34, s43, 7")
        else:
            a("s_and_b32 s34, s43, 7")
            a("s_cmp_lg_u32 s34, s31")
            a("s_cbranch_scc1 L_nocpf")
        a("s_getpc_b64 s[36:37]")
        a("L_pc:")
        a("s_lshl_b32 s34, s34, 13")
        a("v_lshl_add_u32 v4, v1, 7, s34")
        a("v_min_u32 v4, L_code_end-L_pc-4, v4")
        a("v_mov_b32 v5, s37")
        a("v_add_co_u32 v4, vcc, s36, v4")
        a("v_addc_co_u32 v5, vcc, 0, v5, vcc")
        a("global_load_dword v255, v[4:5], off")
        a("L_nocpf:")
    a("v_and_b32 v2, 15, v1")
    a("v_lshrrev_b32 v3, 4, v1")
    def kv_role():
        a("s_and_b32 s34, s42, 3")
        a("s_lshr_b32 s35, s43, 2")
        a("s_and_b32 s36, s43, 3")
        a("s_lshl_b32 s33, s34, 2")
        a("s_add_u32 s33, s33, s35")
        a("s_and_b32 s32, s42, 4")
        a("s_add_u32 s32, s32, s36")
        a("s_add_u32 s94, s35, s36")
        RK = os.environ.get("RK", "4")
        a({"4": "s_and_b32 s94, s94, 3\ns_lshl_b32 s94, s94, 1", "4n": "s_and_b32 s94, s94, 3", "2n": "s_and_b32 s94, s94, 1", "1": "s_mov_b32 s94, 0"}[RK])
        role_gemm(a, "kv", stamp)
    QF = os.environ.get("QFIRST", "0") == "1"
    a("s_cmp_lt_u32 s43, 16" if QF else "s_cmp_ge_u32 s43, 16")
    a("s_cbranch_scc1 " + ("L_kv" if QF else "L_notkv"))
    if not QF:
        kv_role()
        a("L_notkv:")
    if os.environ.get("SWAP9", "1") == "1":
        a("s_mov_b32 s39, s2")
        a("s_sub_u32 s35, s2, 179")
        a("s_cmp_lt_u32 s35, 2")
        a("s_cselect_b32 s36, 74, 0")
        a("s_add_u32 s39, s39, s36")
        a("s_sub_u32 s35, s2, 253")
        a("s_cmp_lt_u32 s35, 2")
        a("s_cselect_b32 s36, 74, 0")
        a("s_sub_u32 s39, s39, s36")
        a("s_and_b32 s42, s39, 7")
        a("s_lshr_b32 s43, s39, 3")
        a("s_add_u32 s35, s42, 15")
        a("s_cmp_gt_u32 s39, 248")
        a("s_cselect_b32 s36, s35, s43")
        a("s_cselect_b32 s37, 0, s42")
        a("s_sub_u32 s35, s43, 16")
        a("s_cmp_lt_u32 s35, 7")
        a("s_cselect_b32 s38, s42, 1")
        a("s_add_u32 s35, s35, 1")
        a("s_cmp_eq_u32 s38, 0")
        a("s_cselect_b32 s43, 31, s36")
        a("s_cselect_b32 s42, s35, s37")
    a("s_and_b32 s34, s42, 3")
    a(f"s_cmp_ge_u32 s43, {AS0}")
    a("s_cbranch_scc1 L_rolea")
    a("s_mul_i32 s35, s34, 107")
    a("s_add_u32 s36, s35, 107")
    a("s_lshr_b32 s35, s35, 4")
    a("s_lshr_b32 s36, s36, 4")
    a("s_add_u32 s35, s35, s43")
    a("s_sub_u32 s35, s35, 16")
    a("s_cmp_ge_u32 s35, s36")
    a("s_cbranch_scc1 L_spare")
    a("s_lshr_b32 s33, s35, 1")
    a("s_and_b32 s36, s35, 1")
    a("s_lshr_b32 s32, s42, 1")
    a("s_and_b32 s32, s32, 2")
    a("s_add_u32 s32, s32, s36")
    a({"4": "s_and_b32 s94, s43, 6", "4n": "s_bfe_u32 s94, s43, 0x20001", "2n": "s_bfe_u32 s94, s43, 0x10001", "1": "s_mov_b32 s94, 0"}[os.environ.get("RK", "4")])
    role_gemm(a, "q", stamp)
    if QF:
        a("L_kv:")
        kv_role()
    phase3(a, stamp)
    a("s_branch L_fin")
    a("L_spare:")
    a("s_cmp_lg_u32 s42, 0")
    a("s_cbranch_scc1 L_end")
    role_zero(a)
    a("L_rolea:")
    if do_a:
        a("s_lshl_b32 s30, s42, 3")
        a("s_add_u32 s30, s30, s43")
        a(f"s_sub_u32 s30, s30, {AS0}")
        a("s_add_u32 s33, s42, 64")
        a("s_cmp_eq_u32 s43, 31")
        a("s_cselect_b32 s30, s33, s30")
        role_a(a, stamp, None)
    a("L_fin:")
    if stamps:
        a("s_waitcnt vmcnt(0)")
        stamp(NST - 1)
        a("s_waitcnt lgkmcnt(0)")
        a("s_mov_b64 exec, 1")
        if os.environ.get("SPINK"):
            k = int(os.environ["SPINK"]); wsel = int(os.environ.get("DBGWG", "0")); wv = int(os.environ.get("DBGWV", "0"))
            a(f"s_cmp_lg_u32 s2, {wsel}")
            a("s_cbranch_scc1 L_end")
            a(f"s_cmp_lg_u32 s31, {wv}")
            a("s_cbranch_scc1 L_end")
            a("L_spin:")
            a("s_sleep 2")
            a("s_memrealtime s[62:63]")
            a("s_waitcnt lgkmcnt(0)")
            a(f"s_sub_u32 s3, s62, s{sbase+2*k}")
            a("s_cmp_lt_u32 s3, 3000")
            a("s_cbranch_scc1 L_spin")
            a("s_branch L_end")
        if "dbgout" in DBG:
            a("v_mov_b32 v2, 0")
            a(f"v_mov_b32 v4, s{sbase+2*(NST-1)}")
            a("global_atomic_umax v2, v4, s[26:27] offset:4")
            a(f"s_not_b32 s3, s{sbase}")
            a("v_mov_b32 v4, s3")
            a("global_atomic_umax v2, v4, s[26:27] offset:8")
            wsel = int(os.environ.get("DBGWG", "0")); wv = int(os.environ.get("DBGWV", "0"))
            a(f"s_cmp_lg_u32 s2, {wsel}")
            a("s_cbranch_scc1 L_end")
            a(f"s_cmp_lg_u32 s31, {wv}")
            a("s_cbranch_scc1 L_end")
            for i in range(1, 14):
                a(f"v_mov_b32 v4, s{sbase+2*i}")
                a(f"global_store_dword v2, v4, s[26:27] offset:{8+4*i}")
            a("s_branch L_end")
        a("s_lshl_b32 s3, s31, 8")
        a("s_add_u32 s3, s3, s2")
        a(f"s_mul_i32 s3, s3, {8*NST}")
        a(f"s_add_u32 s3, s3, {STAMP_OFF}")
        a("v_mov_b32 v2, s3")
        for i in range(NST):
            a(f"v_mov_b32 v4, s{sbase+2*i}\nv_mov_b32 v5, s{sbase+2*i+1}")
            a(f"global_store_dwordx2 v2, v[4:5], s[28:29] offset:{8*i}")
    a("L_end:")
    a("s_endpgm")
    a("L_code_end:")
    lines, n = hazard.fix(a.lines)
    print("nops inserted:", n, "lines", len(lines), file=sys.stderr)
    k = kernel_wrap(KN + "_kernel", "\n".join(lines), 256, 102, extra="  .amdhsa_float_denorm_mode_32 3\n")
    return make_file([f"; @launch grid=(256,1,1) block=(512,1,1) lds={B_LDS}"], [k])
if __name__ == "__main__":
    out = sys.argv[1]
    open(out, "w").write(build(stamps="--stamps" in sys.argv, do_a="--noa" not in sys.argv, do_p3="--nop3" not in sys.argv))
```

```python
import os
from gen_a import hexf, LOG2E
DBG = os.environ.get('DBG', '')
STB = os.environ.get('STB', 'sc1')
PORD = os.environ.get('PORD', 'cc')
QW = int(os.environ.get('QW', '8'))
POLL2 = int(os.environ.get('POLL2', '0'))
KW = int(os.environ.get('KW', '8'))
KRT = int(os.environ.get('KRT', '4'))
NSC = int(os.environ.get('NSC', '1'))
PQW = int(os.environ.get('PQW', '4'))
PQE = int(os.environ.get('PQE', '2')) if PORD == 'qk' else 0
FAIR = int(os.environ.get('FAIR', '0'))
PSLEEP = int(os.environ.get('PSLEEP', '0'))
SHARD = int(os.environ.get('SHARD', '16'))
LATEM = int(os.environ.get('LATEM', '3'))
ROTW = int(os.environ.get('ROTW', '1'))
ROTR = int(os.environ.get('ROTR', '1'))
FULL = int(os.environ.get('FULL', '1'))
SEQ8 = int(os.environ.get('SEQ8', '1'))
PKW = int(os.environ.get('PKW', '5'))
PS0 = int(os.environ.get('PS0', '0'))
NS = 4
WROW = 288
WSZ = 64 * WROW
EXS = 160
LCNT = 163776
EX = LCNT - 2 * 128 * EXS
B_LDS = 163840
EPI = 147456
RXB = 147456
RXF = 157696
KVACC, CNT, PQC, PQ, PQL, WS_SZ = 0, 0xC000, 0x10000, 0x100000, 0x300000, 0x400000
PAIRB = 2816
O_MMB, O_LD, O_XM, O_XL = 1024, 2048, 2304, 2688
EPS = 1e-6
ONE_EPS = 1.0 + 1e-6
OOB = "0x7ffffff0"
SX, SW, SWO, SWS, SDB = 44, 48, 52, 56, 60
WSR = f"s[{SWS}:{SWS+3}]"
WOF = 112
AS0 = 23

def srd(a, r, p, size):
    a(f"s_mov_b32 s{r}, s{p}\ns_mov_b32 s{r+1}, s{p+1}\ns_mov_b32 s{r+2}, {size}\ns_mov_b32 s{r+3}, 0x20000")

def pf_setup(a, v, t):
    a("s_and_b32 s58, s30, 7")
    a("s_lshl_b32 s58, s58, 3")
    a("s_add_u32 s58, s58, s31")
    a(f"v_min_u32 v{t}, 14, v2")
    a(f"v_mul_u32_u24 v{t+1}, 52, v{t}")
    a(f"v_lshrrev_b32 v{t+1}, 8, v{t+1}")
    a(f"v_mul_u32_u24 v{t+1}, {1152-640}, v{t+1}")
    a(f"v_lshl_add_u32 v{t}, v{t}, 7, v{t+1}")
    a(f"v_mul_u32_u24 v{t+1}, 3456, v3")
    a("s_and_b32 s59, s58, 31")
    a(f"s_mul_i32 s59, s59, {4*3456}")
    a("s_and_b32 s3, s2, 4")
    a("s_lshl_b32 s3, s3, 7")
    a("s_add_u32 s59, s59, s3")
    a(f"s_add_u32 s59, s59, {384*3456}")
    a(f"v_add3_u32 v{v}, v{t}, v{t+1}, s59")
    a("s_and_b32 s3, s2, 3")
    a("s_lshl_b32 s3, s3, 9")
    a("s_lshl_b32 s59, s58, 6")
    a("s_add_u32 s3, s3, s59")
    a(f"s_sub_u32 s3, s3, {49*64}")
    a(f"v_add_u32 v{t+1}, s3, v1")
    a(f"v_max_i32 v{t+1}, 0, v{t+1}")
    a(f"v_min_i32 v{t+1}, 2047, v{t+1}")
    a(f"v_mul_u32_u24 v{t+1}, 1152, v{t+1}")
    a(f"v_add_u32 v{t+1}, 1024, v{t+1}")
    a(f"v_add_u32 v{t}, {128*3456}, v{v}")
    a("s_cmp_lt_u32 s58, 48")
    a("s_cselect_b64 vcc, -1, 0")
    a(f"v_cndmask_b32 v{v+1}, v{t+1}, v{t}, vcc")
def pf_round(a, v, r):
    lab = a.label("L_pf")
    if r == 0:
        a("s_cmp_ge_u32 s58, 32")
        a(f"s_cbranch_scc1 {lab}")
        a(f"global_load_dword v{v}, v{v}, s[20:21]")
    else:
        a("s_sub_u32 s3, s58, 32")
        a("s_cmp_ge_u32 s3, 26")
        a(f"s_cbranch_scc1 {lab}")
        a("s_cmp_lt_u32 s58, 48")
        a("s_cselect_b64 s[54:55], s[20:21], s[18:19]")
        a(f"global_load_dword v{v+1}, v{v+1}, s[54:55]")
    a(f"{lab}:")

def role_zero(a):
    a.c("---------------- zero-init WG ----------------")
    a("v_lshlrev_b32 v2, 4, v0")
    for i in range(4): a(f"v_mov_b32 v{4+i}, 0")
    a("s_mov_b32 s33, 0")
    a("s_waitcnt lgkmcnt(0)")
    srd(a, SWS, 28, WS_SZ); srd(a, SDB, 26, 256)
    for j in range(9):
        a(f"buffer_store_dwordx4 v[4:7], v2, {WSR}, s33 offen sc1")
        a("s_add_u32 s33, s33, 8192")
    a("s_waitcnt vmcnt(0)")
    a("s_barrier")
    a("s_cmp_lg_u32 s31, 0")
    a("s_cbranch_scc1 L_fin")
    a("v_mov_b32 v8, 1")
    a("s_mov_b64 exec, 1")
    a(f"buffer_atomic_add v8, v4, s[{SDB}:{SDB+3}], 0 offen")
    a("s_mov_b64 exec, -1")
    a("s_branch L_fin")

def phi4(a, r, t, d):
    if isinstance(a, list):
        L = a; a = lambda x: L.append(x)
    for h in (0, 2):
        a(f"v_pk_fma_f32 v[{t+h}:{t+h+1}], v[{r+h}:{r+h+1}], s[40:41], v[250:251]|v_fma_f32 v{t+h}, v{r+h}, s40, v250|v_fma_f32 v{t+h+1}, v{r+h+1}, s40, v250")
    for i in range(4): a(f"v_exp_f32_e64 v{t+i}, v{t+i} clamp")
    for h in (0, 2):
        a(f"v_pk_add_f32 v[{t+h}:{t+h+1}], v[{t+h}:{t+h+1}], v[252:253]|v_add_f32 v{t+h}, v252, v{t+h}|v_add_f32 v{t+h+1}, v252, v{t+h+1}")
    for i in range(4): a(f"v_max_f32 v{t+i}, v{t+i}, v{r+i}")
    if d is not None:
        a(f"v_cvt_pk_bf16_f32 v{d}, v{t}, v{t+1}")
        a(f"v_cvt_pk_bf16_f32 v{d+1}, v{t+2}, v{t+3}")

def ct_calc(a):
    assert KRT == 4
    a("s_lshr_b32 s96, s43, 2")
    a("s_and_b32 s97, s43, 3")
    a("s_cmp_ge_u32 s43, 16")
    a("s_cselect_b32 s96, s97, s96")
    a("s_cselect_b32 s97, 4, s97")
def wo_voff(a, d):
    a("s_and_b32 s30, s31, 1")
    a("s_lshl_b32 s3, s30, 3")
    a(f"v_lshl_add_u32 v{d+2}, v3, 1, s3")
    a(f"v_xor_b32 v{d+2}, v{d+2}, v2")
    a("s_lshl_b32 s3, s97, 8")
    a(f"v_lshl_add_u32 v{d+2}, v{d+2}, 4, s3")
    a(f"v_mov_b32 v{d}, 0x40000000")
    a(f"v_cmp_gt_u32 vcc, 1152, v{d+2}")
    a(f"v_cndmask_b32 v{d+2}, v{d}, v{d+2}, vcc")
    a("s_and_b32 s3, s31, 3")
    a("s_lshl_b32 s95, s3, 10")
    a(f"v_lshl_add_u32 v{d}, v3, 2, s3")
    a(f"v_mul_u32_u24 v{d}, 1152, v{d}")
    a(f"v_add_u32 v{d}, v{d}, v{d+2}")
    a("s_mul_i32 s3, s3, 18")
    a("s_lshl_b32 s30, s30, 4")
    a("s_sub_u32 s3, s3, s30")
    a("s_add_u32 s3, s3, 16")
    a(f"v_lshrrev_b32 v{d+1}, 1, v3")
    a(f"v_mul_u32_u24 v{d+1}, 70, v{d+1}")
    a(f"v_add3_u32 v{d+1}, v{d+1}, v3, s3")
    a(f"v_mul_u32_u24 v{d+1}, 1152, v{d+1}")
    a(f"v_add_u32 v{d+1}, v{d+1}, v{d+2}")
def wo_loads(a, d, steps):
    for st in steps:
        for h in range(2):
            a(f"s_add_u32 m0, s95, {8192*st + 4096*h}")
            a(f"s_mov_b32 s3, {((36*st + 20*h) if st < 16 else (288*(st-16) + 144*h))*1152}")
            a(f"buffer_load_dwordx4 v{d + (st >= 16)}, s[{SWO}:{SWO+3}], s3 offen lds")
def wotr(a, s, ar, base=0):
    L = []
    for t in range(2):
        for h in range(2):
            r = WOF + 8*s + 4*t + 2*h
            L.append(f"ds_read_b64_tr_b16 v[{r}:{r+1}], v{ar+t} offset:{8192*s + 4096*h - base}")
    return L

def tr_addr(a, d):
    if isinstance(a, list):
        L = a; a = lambda x: L.append(x)
    a(f"v_lshrrev_b32 v{d}, 2, v2")
    a(f"v_lshl_add_u32 v{d}, v3, 2, v{d}")
    a(f"v_and_b32 v{d+1}, 7, v{d}")
    a(f"v_lshlrev_b32 v{d+1}, 1, v{d+1}")
    a(f"v_bfe_u32 v{d+2}, v2, 1, 1")
    a("s_lshr_b32 s3, s31, 1")
    a("s_xor_b32 s3, s3, 2")
    a("s_lshl_b32 s3, s3, 2")
    a(f"v_add_u32 v{d+2}, s3, v{d+2}")
    a(f"v_xor_b32 v{d+1}, v{d+1}, v{d+2}")
    a(f"v_lshlrev_b32 v{d}, 8, v{d}")
    a(f"v_lshl_add_u32 v{d}, v{d+1}, 4, v{d}")
    a(f"v_and_b32 v{d+1}, 1, v2")
    a(f"v_lshl_add_u32 v{d}, v{d+1}, 3, v{d}")
    a(f"v_xor_b32 v{d+1}, 32, v{d}")
    a(f"v_add_u32 v{d+2}, 0x10000, v{d}")
    a(f"v_add_u32 v{d+3}, 0x10000, v{d+1}")
def wo_regs(a, d, n):
    for st in list(range(8, 14)) + list(range(7, -1, -1)):
        for x in (wotr(a, st, d) if st < 8 else wotr(a, st, d + 2, 0x10000)): a(x)
    a(f"v_add_u32 v0, 0x1c000, v{d}")

def lds_last(a, lab):
    a(f"v_mov_b32 v4, {LCNT}")
    a("v_mov_b32 v5, 1")
    a("s_waitcnt vmcnt(0)")
    a("s_mov_b64 exec, 1")
    a("ds_add_rtn_u32 v6, v4, v5")
    a("s_mov_b64 exec, -1")
    a("s_waitcnt lgkmcnt(0)")
    a("v_readfirstlane_b32 s3, v6")
    a("s_cmp_lg_u32 s3, 3")
    a(f"s_cbranch_scc1 {lab}")

def prep3(a):
    a("s_mov_b32 s33, s97")
    a("s_lshl_b32 s34, s42, 2")
    a("s_add_u32 s32, s96, s34")
    a("s_and_b32 s36, s31, 1")
    a("s_lshr_b32 s35, s31, 1")
    a("s_xor_b32 s35, s35, 2")
    a(f"v_mov_b32 v8, {OOB}")
    a("v_lshlrev_b32 v9, 4, v1")
    a("s_add_u32 s40, s31, s43" if ROTW else "s_mov_b32 s40, s31")
    a("s_and_b32 s40, s40, 7")
    a("s_and_b32 s41, s33, 3" if ROTR else "s_mov_b32 s41, 0")
    a(f"s_mul_i32 s37, s40, {2*PAIRB}")
    a("v_and_b32 v6, 3, v2")
    a("v_bfe_u32 v7, v2, 2, 1")
    a("v_lshl_add_u32 v7, v7, 1, v6")
    a("v_cmp_gt_u32 vcc, 2, v6")
    a("v_cndmask_b32 v7, v7, v6, vcc")
    a("v_lshlrev_b32 v12, 4, v3")
    a("v_lshl_add_u32 v12, v7, 6, v12")
    a("v_cmp_gt_u32 s[44:45], 8, v2")
    a("s_or_b64 s[96:97], s[44:45], vcc")
    a("s_orn2_b64 vcc, vcc, s[44:45]")
    a("v_cndmask_b32 v13, v8, v12, vcc")
    a("v_cndmask_b32 v12, v8, v12, s[96:97]")
    a("v_lshlrev_b32 v10, 4, v2")
    a(f"v_lshlrev_b32 v11, 4, v7")
    a(f"v_add_u32 v11, {O_XL - O_LD}, v11")
    a("v_cmp_lt_u32 s[100:101], 1, v3")
    a("v_cndmask_b32 v10, v10, v11, s[100:101]")
    a("v_and_b32 v6, 1, v3")
    a(f"v_mul_u32_u24 v11, {PAIRB}, v6")
    a("v_add_u32 v10, v10, v11")
    a("v_cmp_eq_u32 s[98:99], 1, v6")
    a("v_cmp_eq_u32 s[44:45], 1, v7")
    a("v_cmp_lt_u32 s[46:47], 3, v7")
    a("s_or_b64 s[44:45], s[44:45], s[46:47]")
    a("s_andn2_b64 s[46:47], s[100:101], s[98:99]")
    a("s_and_b64 s[46:47], s[46:47], s[96:97]")
    a("s_and_b64 s[96:97], s[100:101], s[98:99]")
    a("s_and_b64 s[96:97], s[96:97], vcc")
    a("v_lshlrev_b32 v7, 3, v2")
    a("v_lshl_add_u32 v7, v6, 7, v7")
    a("s_lshl_b32 s38, s32, 6")
    a("s_lshl_b32 s39, s40, 1")
    a("s_add_u32 s38, s38, s39")
    a("s_lshl_b32 s39, s38, 7")
    a(f"s_add_u32 s39, s39, {PQL}")
    a("s_lshl_b32 s38, s38, 10")
    a(f"s_add_u32 s38, s38, {PQ}")

def role_gemm(a, kind, stamp):
    Q = kind == "q"
    RT = (9 - KRT) if Q else KRT
    R = 32 * RT
    XSZ = R * 128
    SLOT = XSZ + WSZ
    NL = 5 + RT
    L = lambda s: f"L_{kind}_{s}"
    a.c(f"---------------- role {kind} ----------------")
    rstamp = stamp
    if "stA" in DBG or "stB" in DBG: stamp = lambda i: None
    a("s_cmp_lt_u32 s31, 4")
    a(f"s_cbranch_scc1 {L('comp')}")
    a("s_sub_u32 s35, s31, 4")
    a("s_and_b32 s37, s35, 1")
    a(f"s_mul_i32 s34, s33, {R}")
    a(f"s_mul_i32 s36, s35, {8*RT}")
    a("s_add_u32 s36, s36, s34")
    a("v_lshrrev_b32 v4, 3, v1")
    a("v_add_u32 v4, s36, v4")
    a("v_mul_u32_u24 v4, 1152, v4")
    a("v_and_b32 v5, 7, v1")
    a("v_xor_b32 v5, v5, v3")
    if RT % 2:
        a("s_lshl_b32 s36, s37, 2")
        a("v_xor_b32 v5, s36, v5")
    a("v_lshl_add_u32 v10, v5, 4, v4")
    a("v_xor_b32 v5, 4, v5")
    a("v_lshl_add_u32 v11, v5, 4, v4")
    a(f"s_mul_i32 s38, s35, {1024*RT}")
    a("s_lshr_b32 s36, s35, 1")
    a("s_lshl_b32 s36, s36, 3")
    a("s_add_u32 s36, s36, s37")
    a(f"s_mul_i32 s36, s36, {4*3456}")
    a(f"s_mul_i32 s39, s32, {288 if Q else 144}")
    a("s_add_u32 s36, s36, s39")
    if not Q: a("s_add_u32 s36, s36, 1152")
    a(f"s_mul_i32 s39, s35, {16*WROW}")
    a(f"s_mov_b32 s{SW+2}, 1990656\ns_mov_b32 s{SW+3}, 0x20000\ns_mov_b32 s{SX+2}, 2359296\ns_mov_b32 s{SX+3}, 0x20000")
    def wcalc(t):
        if t: a(f"v_add_u32 v4, {64*t}, v1")
        src = "v4" if t else "v1"
        if Q:
            a(f"v_mul_u32_u24 v5, 3641, {src}")
            a("v_lshrrev_b32 v5, 16, v5")
            a(f"v_lshl_add_u32 v6, {src}, 4, s36")
            a(f"v_mul_u32_u24 v7, {3456-288}, v5")
        else:
            a(f"v_mul_u32_u24 v5, 7282, {src}")
            a("v_lshrrev_b32 v5, 16, v5")
            a(f"v_lshl_add_u32 v6, {src}, 4, s36")
            a("v_mul_u32_u24 v7, 1008, v5")
            a("v_lshrrev_b32 v5, 1, v5")
            a("v_mad_u32_u24 v7, v5, s34, v7")
        a("v_lshrrev_b32 v5, 2, v5")
        a(f"v_mul_u32_u24 v5, {4*3456}, v5")
        a(f"v_add3_u32 v{13+t}, v5, v6, v7")
    def wload(slot, t):
        if t == 4: a("s_mov_b32 exec_hi, 0")
        a(f"s_add_u32 m0, s39, {slot*SLOT + XSZ + 1024*t}")
        a(f"buffer_load_dwordx4 v{13+t}, s[{SW}:{SW+3}], s30 offen lds")
        if t == 4: a("s_mov_b32 exec_hi, -1")
    def xpart(slot):
        a("s_lshl_b32 s30, s94, 7")
        for t in range(RT):
            a(f"s_add_u32 m0, s38, {slot*SLOT + 1024*t}")
            a(f"s_add_u32 s3, s30, {8*1152*t}")
            a(f"buffer_load_dwordx4 v{10+(t&1)}, s[{SX}:{SX+3}], s3 offen lds")
        a(f"s_mul_i32 s30, s94, {64*3456}")
        nst[0] += 1
        if not SEQ8:
            a("s_add_u32 s94, s94, 1")
            a("s_cmp_eq_u32 s94, 9")
            a("s_cselect_b32 s94, 0, s94")
        elif nst[0] == 8: a("s_mov_b32 s94, 8")
        else: a("s_add_u32 s94, s94, 1\ns_and_b32 s94, s94, 7")
    nst = [0]
    def stage(slot):
        xpart(slot)
        for t in range(5): wload(slot, t)
    a("s_movk_i32 s34, 1152")
    wcalc(0); wcalc(1)
    a("s_waitcnt lgkmcnt(0)")
    a(f"s_mov_b64 s[{SW}:{SW+1}], s[20:21]\ns_mov_b64 s[{SX}:{SX+1}], s[18:19]")
    xpart(0)
    wload(0, 0); wload(0, 1)
    for t in (2, 3, 4): wcalc(t); wload(0, t)
    stamp(1)
    pre = os.environ.get("PREQ" if Q else "PREK", "all")
    if pre == "all": stage(1)
    elif pre == "x": xpart(1); a("s_mov_b32 s34, s30")
    srd(a, SWS, 28, WS_SZ); srd(a, SDB, 26, 256); srd(a, SWO, 22, 663552)
    ct_calc(a)
    wo_voff(a, 21)
    tr_addr(a, 106)
    a("v_mov_b32 v4, 0")
    hs = os.environ.get("HSQ" if Q else "HSK", "2222222")
    units = [(st, p) for st in range(2, 9) for p in "xw"]
    early = {7: [5, 6, 7, 8], 8: [9, 10]}
    lst = [11, 12, 13, 0, 1, 2, 3, 4, 14, 15, 16, 17]
    if hs[6] == "0":
        early = {6: [5, 6, 7], 7: [8, 9, 10, 11], 8: [12, 13]}
        lst = lst[3:]
    out = [("S", 0)] * NL + [("S", 1)] * {"all": NL, "x": RT, "none": 0}[pre]
    for s in range(9):
        idx = max(i for i, t in enumerate(out) if t == ("S", s))
        a(f"s_waitcnt vmcnt({len(out) - 1 - idx})")
        if "stA" in DBG: rstamp(1 + s)
        a("s_barrier")
        if "stB" in DBG: rstamp(1 + s)
        if s == 0 and pre == "none": stage(1); out += [("S", 1)] * NL
        if s == 0 and pre == "x":
            a("s_mov_b32 s30, s34")
            for t in range(5): wload(1, t)
            out += [("S", 1)] * 5
        if s == 5:
            a(f"buffer_load_dword v24, v4, s[{SDB}:{SDB+3}], 0 offen sc1"); out.append("R")
            assert units
        for _ in range(int(hs[s]) if s < 7 else 0):
            st, p = units.pop(0)
            assert st - 3 <= s
            if p == "x": xpart(st % NS); out += [("S", st)] * RT
            else:
                for t in range(5): wload(st % NS, t)
                out += [("S", st)] * 5
        if s in early:
            wo_loads(a, 21, early[s]); out += ["W"] * (2 * len(early[s]))
    stamp(2)
    a("v_readfirstlane_b32 s37, v24")
    a("s_mov_b32 s36, 0")
    a("s_cmp_lg_u32 s37, 0")
    a(f"s_cbranch_scc1 {L('rdy2')}")
    a(f"{L('rdy')}:")
    a(f"buffer_load_dword v5, v4, s[{SDB}:{SDB+3}], 0 offen sc1")
    a("s_add_u32 s36, s36, 1")
    a("s_waitcnt vmcnt(0)")
    a("v_readfirstlane_b32 s37, v5")
    a("s_cmp_ge_u32 s36, 0x10000")
    a(f"s_cbranch_scc1 {L('rdy2')}")
    a("s_cmp_eq_u32 s37, 0")
    a(f"s_cbranch_scc1 {L('rdy')}")
    a(f"{L('rdy2')}:")
    a("s_barrier")
    assert not units
    nb = (QW if Q else KW) - (12 - len(lst))
    wo_loads(a, 21, lst[:nb])
    prep3(a)
    a("s_barrier")
    stamp(3)
    wo_loads(a, 21, lst[nb:])
    stamp(4)
    a(f"v_mov_b32 v4, {LCNT + 4}\nv_mov_b32 v5, 1")
    a("s_waitcnt vmcnt(0)")
    a("s_mov_b64 exec, 1")
    a("ds_add_u32 v4, v5")
    a("s_mov_b64 exec, -1")
    a("s_branch L_bjoin")
    a(f"{L('comp')}:")
    ct_calc(a)
    a("s_and_b32 s35, s31, 1")
    a("s_lshr_b32 s36, s31, 1")
    XA0, XA1, WA, LA = 4, 5, 6, 7
    a("v_lshrrev_b32 v9, 1, v2")
    a("v_xor_b32 v9, v9, v3")
    a("v_lshlrev_b32 v10, 7, v2")
    a("v_lshl_add_u32 v10, v9, 4, v10")
    a(f"s_mul_i32 s37, s35, {RT*2048}")
    a(f"v_add_u32 v{XA0}, s37, v10")
    a(f"v_xor_b32 v{XA1}, 64, v{XA0}")
    a("v_lshrrev_b32 v9, 2, v2")
    a("v_and_b32 v10, 3, v2")
    a("v_lshl_add_u32 v11, v3, 2, v9")
    a(f"v_mul_u32_u24 v11, {WROW}, v11")
    a(f"s_mul_i32 s37, s36, {144 if Q else 72}")
    a(f"s_add_u32 s37, s37, {XSZ}")
    a("v_add_u32 v11, s37, v11")
    a(f"v_lshl_add_u32 v{WA}, v10, 3, v11")
    a("v_and_b32 v12, 1, v10")
    a(f"v_mul_u32_u24 v12, {72 if Q else 144}, v12")
    a(f"v_add3_u32 v{LA}, v11, v12, 32")
    a(f"v_mov_b32 v12, {LCNT}\nv_mov_b32 v14, 0\nv_mov_b32 v15, 0")
    a("ds_write_b64 v12, v[14:15]")
    ACC = 16
    def acc(rt, t): return ACC + 4 * (5 * rt + t)
    a(f"v_mov_b32 v8, {hexf(ONE_EPS)}\nv_mov_b32 v9, v8")
    if not Q:
        a("v_lshrrev_b32 v10, 2, v2")
        a("v_cmp_eq_u32 s[98:99], 1, v10")
        a("v_cmp_eq_u32 s[100:101], 3, v10")
        a("v_cndmask_b32 v10, v8, 0, s[98:99]")
        a("v_mov_b32 v11, v10")
    for rt in range(RT):
        for t in range(5):
            src = "v[8:9]" if Q or t < 2 else ("v[10:11]" if t == 4 else "v[14:15]")
            for i in (0, 2): a(f"v_mov_b64 v[{acc(rt,t)+i}:{acc(rt,t)+i+1}], {src}")
    F = [120, 160]
    woff = [0, 40, 72, 112] if Q else [0, 40, 144, 184]
    TORD = [0, 1, 4, 2, 3]
    def reads(kk):
        f = F[kk]; Lr = []
        def w(t):
            for h in range(2):
                ad, o = (WA, woff[t]) if t < 4 else (LA, 0)
                Lr.append(f"ds_read_b64_tr_b16 v[{f+20+4*t+2*h}:{f+20+4*t+2*h+1}], v{ad} offset:{o + (32*kk + 16*h)*WROW}")
        w(TORD[0])
        for rt in range(RT): Lr.append(f"ds_read_b128 v[{f+4*rt}:{f+4*rt+3}], v{(XA0,XA1)[kk]} offset:{2048*rt}")
        for t in TORD[1:]: w(t)
        return Lr
    def one(kk, rt, t):
        f = F[kk]
        w, x = f"v[{f+20+4*t}:{f+23+4*t}]", f"v[{f+4*rt}:{f+4*rt+3}]"
        if not Q: w, x = x, w
        return f"v_mfma_f32_16x16x32_bf16 v[{acc(rt,t)}:{acc(rt,t)+3}], {w}, {x}, v[{acc(rt,t)}:{acc(rt,t)+3}]"
    def mfmas(kk):
        return [one(kk, rt, t) for t in TORD for rt in range(RT)]
    def inter(M, Rd):
        if "nocomp" in DBG: return
        if "noread" in DBG: Rd = []
        for k, m in enumerate(M):
            if k < len(Rd): a(Rd[k])
            a(m)
    a(f"s_mov_b32 s40, {hexf(LOG2E)}\ns_mov_b32 s41, s40")
    a(f"v_mov_b32 v250, {hexf(-ONE_EPS*LOG2E)}\nv_mov_b32 v251, v250")
    a(f"v_mov_b32 v252, {hexf(EPS)}\nv_mov_b32 v253, v252")
    a("s_waitcnt lgkmcnt(0)")
    srd(a, SWS, 28, WS_SZ); srd(a, SWO, 22, 663552)
    stamp(1)
    post = []
    p = lambda t: post.extend(x.strip() for x in t.split("\n") if x.strip())
    if Q:
        p("v_lshlrev_b32 v8, 4, v1")
        p("v_lshlrev_b32 v9, 3, v1")
        p(f"s_mul_i32 s38, s33, {2*RT}")
        p(f"s_mul_i32 s39, s35, {RT}")
        p("s_add_u32 s38, s38, s39")
        p("s_lshl_b32 s38, s38, 4")
        p("s_lshl_b32 s39, s32, 2")
        p("s_add_u32 s38, s38, s39")
        p("s_lshl_b32 s39, s36, 1")
        p("s_add_u32 s38, s38, s39")
        p("s_lshl_b32 s37, s38, 10")
        p(f"s_add_u32 s37, s37, {PQ}")
        p("s_lshl_b32 s39, s38, 7")
        p(f"s_add_u32 s39, s39, {PQL}")
        p(f"s_mov_b32 s{SX}, s28\ns_mov_b32 s{SX+1}, s29\ns_mov_b32 s{SX+2}, {PQL}\ns_mov_b32 s{SX+3}, 0x20000")
        p(f"s_mov_b32 s{SW}, s28\ns_mov_b32 s{SW+1}, s29\ns_mov_b32 s{SW+2}, {PQL + 0x40000}\ns_mov_b32 s{SW+3}, 0x20000")
    else:
        p(f"s_mul_i32 s38, s33, {2*RT}")
        p(f"s_mul_i32 s39, s35, {RT}")
        p("v_mov_b32 v13, 0x3f803f80")
        p("s_add_u32 s38, s38, s39")
        p("s_lshl_b32 s51, s32, 1")
        p("s_add_u32 s51, s51, s36")
        p(f"s_mul_i32 s51, s51, {PAIRB}")
        p("s_lshl_b32 s50, s33, 3")
        p("s_add_u32 s50, s50, s32")
        p(f"s_and_b32 s50, s50, {SHARD-1}")
        p("s_lshl_b32 s50, s50, 7")
        p(f"s_add_u32 s50, s50, {CNT}")
        p("v_lshlrev_b32 v243, 11, v1")
        p(f"v_mov_b32 v8, {OOB}")
        p("v_lshrrev_b32 v9, 2, v2")
        p("v_and_b32 v10, 3, v2")
        p("v_lshlrev_b32 v11, 8, v9")
        p("v_lshl_add_u32 v11, v3, 4, v11")
        p("v_lshl_add_u32 v236, v10, 2, v11")
        p("v_cmp_gt_u32 s[44:45], 4, v2")
        p("v_cmp_gt_u32 s[46:47], 2, v2")
        p("v_cndmask_b32 v237, v8, v236, s[44:45]")
        p("v_cmp_eq_u32 vcc, 1, v3")
        p("v_cmp_eq_u32 s[48:49], 3, v3")
        p("v_lshlrev_b32 v9, 2, v2")
        p("v_cndmask_b32 v240, v8, v9, vcc")
        p("v_add_u32 v10, 128, v240")
        p("v_cndmask_b32 v238, v10, v9, s[48:49]")
        p("v_add_u32 v10, 256, v240")
        p("v_add_u32 v11, 64, v9")
        p("v_cndmask_b32 v239, v10, v11, s[48:49]")
        p("v_and_b32 v9, 1, v2")
        p("v_lshlrev_b32 v9, 2, v9")
        p("v_bfe_u32 v10, v2, 1, 1")
        p("v_lshl_add_u32 v11, v10, 4, v9")
        p("v_lshl_add_u32 v9, v10, 5, v9")
        p("v_add_u32 v9, 32, v9")
        p("v_cndmask_b32 v9, v8, v9, vcc")
        p("v_cndmask_b32 v242, v8, v9, s[44:45]")
        p("v_cndmask_b32 v9, v9, v11, s[48:49]")
        p("v_cndmask_b32 v241, v8, v9, s[44:45]")
        p("s_lshl_b32 s3, s31, 11")
        p(f"s_add_u32 s3, s3, {RXB}")
        p("v_lshl_add_u32 v248, v1, 4, s3")
        p("v_xor_b32 v249, 0x800, v248")
        p("s_lshl_b32 s3, s31, 9")
        p(f"s_add_u32 s3, s3, {RXF}")
        p("v_lshl_add_u32 v14, v1, 3, s3")
        p("v_xor_b32 v15, 0x200, v14")
        p("v_mov_b64 v[8:9], 0")
        p("ds_write_b64 v14, v[8:9]")
        p("s_waitcnt lgkmcnt(0)")
    tr_addr(post, 244)
    for x in post: a(x)
    for st in range(9):
        a("s_barrier")
        if st == 0:
            for x in reads(0): a(x)
        else: inter(mfmas(1), reads(0))
        a("s_waitcnt lgkmcnt(0)")
        if st < 8:
            dl = SLOT if (st + 1) % NS else -(NS - 1) * SLOT
            upd = [f"v_add_u32 v{r}, {dl & 0xffffffff:#x}, v{r}" for r in (XA0, XA1, WA, LA)]
            inter(mfmas(0), reads(1) + upd)
            a("s_waitcnt lgkmcnt(0)")
    T0_, T1_ = 200, 204
    def postp(rt):
        Lp = []
        d = 208 + 12 * (rt % 2)
        if Q:
            phi4(Lp, acc(rt, 0), T0_, d); phi4(Lp, acc(rt, 1), T1_, d + 2)
            Lp.append(f"buffer_store_dwordx4 v[{d}:{d+3}], v8, s[{SX}:{SX+3}], s37 offen sc1")
            phi4(Lp, acc(rt, 4), T0_, d + 8)
            Lp.append(f"s_mov_b32 exec_hi, 0\nbuffer_store_dwordx2 v[{d+8}:{d+9}], v9, s[{SW}:{SW+3}], s39 offen sc1\ns_mov_b32 exec_hi, -1")
            phi4(Lp, acc(rt, 2), T1_, d + 4); phi4(Lp, acc(rt, 3), T0_, d + 6)
            Lp.append(f"buffer_store_dwordx4 v[{d+4}:{d+7}], v8, s[{SX}:{SX+3}], s37 offen offset:1024 sc1")
            Lp.append("s_add_u32 s37, s37, 16384\ns_add_u32 s39, s39, 2048")
        else:
            pk = lambda t: acc(rt & ~1, t) + 2 * (rt & 1)
            for t in (0, 1): phi4(Lp, acc(rt, t), (T0_, T1_)[t], pk(t))
            phi4(Lp, acc(rt, 4), T0_, None)
            if RT % 2: Lp.append(f"s_add_u32 s39, s38, {rt}\ns_cmp_lt_u32 s39, 128\ns_cselect_b32 s39, 0x3f803f80, 0\nv_mov_b32 v13, s39")
            for i in range(4): Lp.append(f"v_cndmask_b32 v{T0_+i}, v{T0_+i}, v{acc(rt,4)+i}, s[98:99]")
            e = pk(4)
            Lp += [f"v_cvt_pk_bf16_f32 v{e}, v{T0_}, v{T0_+1}", f"v_cvt_pk_bf16_f32 v{e+1}, v{T0_+2}, v{T0_+3}",
                   f"v_cndmask_b32 v{e}, v{e}, v13, s[100:101]", f"v_cndmask_b32 v{e+1}, v{e+1}, v13, s[100:101]"]
            for t in (2, 3):
                e = pk(t)
                Lp += [f"v_cvt_pk_bf16_f32 v{e}, v{acc(rt,t)}, v{acc(rt,t)+1}", f"v_cvt_pk_bf16_f32 v{e+1}, v{acc(rt,t)+2}, v{acc(rt,t)+3}"]
                if rt == RT - 1 and RT % 2: Lp.append(f"v_mov_b64 v[{e+2}:{e+3}], 0")
            if rt == RT - 1 and RT % 2:
                for t in (0, 1, 4): Lp.append(f"v_mov_b64 v[{pk(t)+2}:{pk(t)+3}], 0")
        return Lp
    Rd = reads(1)
    first = [one(0, rt, t) for rt in range(2) for t in TORD]
    for k, m in enumerate(first):
        for x in Rd[2*k:2*k+2]: a(x)
        a(m)
    a("s_waitcnt lgkmcnt(0)")
    a("s_barrier")
    for t in TORD: a(one(1, 0, t))
    rest = []
    for rt in range(1, RT):
        rest += [(rt, one(1, rt, t)) for t in TORD]
        if rt + 1 < RT: rest += [(rt + 1, one(0, rt + 1, t)) for t in TORD]
    for _ in range(3): a(rest.pop(0)[1])
    stamp(2)
    KA = 208
    kvt = [(0, 2, 0), (1, 3, 1), (2, 2, 4), (3, 3, 4), (4, 4, 0), (5, 4, 1), (6, 4, 4)]
    def kvm(ks):
        r = 2 * ks
        return [(99, f"v_mfma_f32_16x16x32_bf16 v[{KA+4*i}:{KA+4*i+3}], v[{acc(r,x)}:{acc(r,x)+3}], v[{acc(r,y)}:{acc(r,y)+3}], " + ("0" if ks == 0 else f"v[{KA+4*i}:{KA+4*i+3}]"))
                for i, x, y in kvt]
    for rt in range(RT):
        while rest and rest[0][0] <= rt: a(rest.pop(0)[1])
        k = 0
        for x in postp(rt):
            if "nophi" in DBG and x.startswith("v_exp"): continue
            alt = x.split("|")
            for y in (alt[1:] if len(alt) > 1 and rest and NSC else alt[:1]):
                a(y); k += 2 if y.startswith("v_exp") else 1
                if k >= 2 and rest: a(rest.pop(0)[1]); k = 0
        if not Q and (rt % 2 == 1 or rt == RT - 1): rest += kvm(rt // 2)
    while rest: a(rest.pop(0)[1])
    if not Q:
        at = lambda r, ad, o: a(f"buffer_atomic_add_f32 v{r}, v{ad}, {WSR}, s51 offen offset:{o}")
        for i in range(4): a(f"v_cndmask_b32 v{KA+8+i}, v{KA+12+i}, v{KA+8+i}, s[46:47]")
        a(f"v_mov_b64 v[{KA+18}:{KA+19}], v[{KA+22}:{KA+23}]")
        a(f"v_cndmask_b32 v{KA+24}, v{KA+26}, v{KA+24}, s[46:47]")
        a(f"v_cndmask_b32 v{KA+25}, v{KA+27}, v{KA+25}, s[46:47]")
        own = [(KA, KA + 8, KA + 24), (KA + 4, KA + 16, KA + 25)]
        a("s_cmp_eq_u32 s35, 1")
        a(f"s_cbranch_scc1 {L('rx1')}")
        for rh in range(2):
            if rh: a(f"{L('rx1')}:")
            o, k = own[1 - rh], own[rh]
            a(f"ds_write_b128 v248, v[{o[0]}:{o[0]+3}]")
            a(f"ds_write_b128 v248, v[{o[1]}:{o[1]+3}] offset:1024")
            a(f"ds_write2_b32 v14, v{o[2]}, v14 offset0:0 offset1:1")
            a("s_mov_b32 s3, 0")
            a(f"{L('rp' + str(rh))}:")
            a("ds_read_b64 v[200:201], v15")
            a("ds_read_b128 v[16:19], v249")
            a("ds_read_b128 v[20:23], v249 offset:1024")
            a("s_add_u32 s3, s3, 1")
            a("s_waitcnt lgkmcnt(0)")
            a("v_cmp_eq_u32 vcc, 0, v201")
            a("s_cmp_ge_u32 s3, 0x100000")
            a(f"s_cbranch_scc1 {L('rq' + str(rh))}")
            a(f"s_cbranch_vccnz {L('rp' + str(rh))}")
            a(f"{L('rq' + str(rh))}:")
            for j in range(2):
                for h in (0, 2): a(f"v_pk_add_f32 v[{k[j]+h}:{k[j]+h+1}], v[{k[j]+h}:{k[j]+h+1}], v[{16+4*j+h}:{17+4*j+h}]")
            a(f"v_add_f32 v{k[2]}, v{k[2]}, v200")
            if rh == 0:
                for i in range(4): at(KA + i, 236, 64*i)
                for i in range(4): at(KA + 8 + i, 237, O_LD + 64*i)
                at(KA + 24, 241, O_XL)
                a(f"s_branch {L('rxd')}")
            else:
                for i in range(4): at(KA + 4 + i, 236, O_MMB + 64*i)
                at(KA + 16, 238, O_XM); at(KA + 17, 240, O_XM + 192)
                at(KA + 18, 239, O_XM); at(KA + 19, 240, O_XM + 320)
                at(KA + 25, 242, O_XL + 16)
        a(f"{L('rxd')}:")
    stamp(3)
    a("s_barrier")
    a("v_mov_b64 v[106:107], v[244:245]\nv_mov_b64 v[108:109], v[246:247]")
    if Q:
        if PORD == "pw":
            a("s_lshl_b32 s50, s33, 2")
            a("s_add_u32 s50, s50, s32")
            a("s_lshl_b32 s50, s50, 7")
        else: a("s_lshl_b32 s50, s33, 7")
        a(f"s_add_u32 s50, s50, {PQC}")
        a("v_mov_b32 v243, 0")
    prep3(a)
    lds_last(a, L("sig"))
    a(f"s_mov_b64 exec, {1 if Q else 0xff}")
    a(f"buffer_atomic_add v5, v243, {WSR}, s50 offen")
    a("s_mov_b64 exec, -1")
    a(f"{L('sig')}:")
    stamp(4)
    a("s_branch L_bjoin")

def phase3(a, stamp):
    a.c("---------------- phase 3 ----------------")
    if "stA" in DBG or "stB" in DBG: stamp = lambda i: None
    a("L_bjoin:")
    stamp(5)
    if "nop3" in DBG: a("s_branch L_fin")
    a("s_cmp_eq_u32 s43, 0" if KRT == 5 else "s_cmp_ge_u32 s43, 20")
    a("s_cbranch_scc1 L_fin")
    def poll_prep_q():
        a("s_lshl_b32 s34, s32, 1")
        a("v_add_u32 v104, s34, v101")
        a(f"v_mul_u32_u24 v104, {205 if KRT == 4 else 256}, v104")
        a("v_lshrrev_b32 v104, 10, v104")
        a("v_lshlrev_b32 v104, 7, v104")
        a(f"s_mov_b32 s34, {PQC}")
    def poll_prep_k():
        a("v_lshlrev_b32 v104, 7, v101")
        a("s_lshl_b32 s34, s42, 11")
        a(f"s_add_u32 s34, s34, {CNT}")
    def poll(wave, prep, nl, tgt, tag, two=False, bar=True):
        a(f"s_cmp_lg_u32 s31, {wave}")
        a(f"s_cbranch_scc1 L_pw{tag}")
        prep()
        a(f"s_mov_b64 exec, {hex((1 << nl) - 1)}")
        a("s_mov_b32 s3, 0")
        if two and POLL2:
            a(f"buffer_load_dword v254, v104, {WSR}, s34 offen sc1")
            a(f"s_sleep {POLL2}")
            a(f"L_poll{tag}:")
            for cur, nxt in ((254, 255), (255, 254)):
                a(f"buffer_load_dword v{nxt}, v104, {WSR}, s34 offen sc1")
                a("s_waitcnt vmcnt(1)")
                a(f"v_cmp_gt_u32 vcc, {tgt}, v{cur}")
                a("s_add_u32 s3, s3, 1")
                a(f"s_cbranch_vccz L_pd{tag}")
            a("s_cmp_lt_u32 s3, 0x20000")
            a(f"s_cbranch_scc1 L_poll{tag}")
        else:
            if PS0: a(f"s_sleep {PS0}")
            a(f"L_poll{tag}:")
            if PSLEEP: a(f"s_sleep {PSLEEP}")
            a(f"buffer_load_dword v105, v104, {WSR}, s34 offen sc1")
            a("s_add_u32 s3, s3, 1")
            a("s_waitcnt vmcnt(0)")
            a(f"v_cmp_gt_u32 vcc, {tgt}, v105")
            a("s_cmp_ge_u32 s3, 0x10000")
            a(f"s_cbranch_scc1 L_pd{tag}")
            a(f"s_cbranch_vccnz L_poll{tag}")
        a(f"L_pd{tag}:")
        a("s_mov_b64 exec, -1")
        a(f"L_pw{tag}:")
        if bar: a("s_barrier")
    AM = [16, 20, 24, 28]
    AX = [32, 36, 40, 44]
    PQR = 56
    T = 48
    def pql(rt, ad=9, al=7):
        b = PQR + 14 * rt
        a(f"s_add_u32 s3, s41, {rt}")
        a("s_and_b32 s3, s3, 3")
        a("s_lshl_b32 s30, s3, 14")
        a("s_add_u32 s30, s30, s38")
        a("s_lshl_b32 s3, s3, 11")
        a("s_add_u32 s3, s3, s39")
        a(f"buffer_load_dwordx4 v[{b+2}:{b+5}], v{ad}, {WSR}, s30 offen sc1")
        a(f"buffer_load_dwordx4 v[{b+8}:{b+11}], v{ad}, {WSR}, s30 offen offset:1024 sc1")
        a(f"buffer_load_dwordx2 v[{b+6}:{b+7}], v{al}, {WSR}, s3 offen sc1")
    def kvl():
        a(f"buffer_load_dwordx4 v[{AX[0]}:{AX[0]+3}], v102, {WSR}, s51 offen offset:{O_XM} sc1")
        a(f"buffer_load_dwordx4 v[{T}:{T+3}], v100, {WSR}, s51 offen offset:{O_LD} sc1")
        a(f"s_add_u32 s3, s51, {PAIRB}")
        a(f"buffer_load_dwordx4 v[{AX[2]}:{AX[2]+3}], v103, {WSR}, s3 offen offset:{O_XM} sc1")
        for c in range(2):
            o = c * PAIRB
            a(f"buffer_load_dwordx4 v[{AM[2*c]}:{AM[2*c]+3}], v98, {WSR}, s51 offen offset:{o} sc1")
            a(f"buffer_load_dwordx4 v[{AM[2*c+1]}:{AM[2*c+1]+3}], v98, {WSR}, s51 offen offset:{o+O_MMB} sc1")
    if PORD == "qk":
        stamp(6)
        poll(PQW, poll_prep_q, 2, 4, "q"); stamp(8)
        a("v_mov_b64 v[16:17], v[106:107]\nv_mov_b64 v[18:19], v[108:109]")
        a("v_add_u32 v0, 0x1c000, v106")
        trs = [x for st in range(14) for x in (wotr(a, st, 16) if st < 8 else wotr(a, st, 18, 0x10000))]
        for rt in range(PQE):
            pql(rt)
            for x in trs[36*rt//PQE:36*(rt+1)//PQE]: a(x)
        a("s_waitcnt lgkmcnt(0)")
        a("v_mov_b64 v[4:5], v[18:19]")
        stamp(7)
        poll(0, poll_prep_k, SHARD, (13 if KRT == 5 else 16) * 8 // SHARD, "k", two=True); stamp(9)
        kvl()
        for x in trs[36:]: a(x.replace("v18 ", "v4 ").replace("v19 ", "v5 "))
        for rt in range(PQE, 4): pql(rt)
        vm = [f"p{r}" for r in range(PQE) for _ in range(3)] + ["x"]*3 + ["m0"]*2 + ["m1"]*2 + [f"p{r}" for r in range(PQE, 4) for _ in range(3)]
    else:
        a(f"v_mov_b32 v4, {LCNT + 4}")
        a("s_mov_b32 s3, 0")
        a("L_xv:")
        a("ds_read_b32 v5, v4")
        a("s_add_u32 s3, s3, 1")
        a("s_waitcnt lgkmcnt(0)")
        a("v_cmp_gt_u32 vcc, 4, v5")
        a("s_cmp_ge_u32 s3, 0x100000")
        a("s_cbranch_scc1 L_xv2")
        a("s_cbranch_vccnz L_xv")
        a("L_xv2:")
        stamp(6)
        a("v_add_u32 v0, 0x1c000, v106")
        a("s_lshl_b32 s3, s33, 2")
        a("s_add_u32 s3, s3, s35")
        a("s_cmp_ge_u32 s3, 18")
        a("s_cbranch_scc1 L_notr")
        for st in range(14):
            for x in (wotr(a, st, 106) if st < 8 else wotr(a, st, 108, 0x10000)): a(x)
        a("L_notr:")
        a("v_mov_b32 v98, v9\nv_mov_b32 v99, v7\nv_mov_b32 v100, v10\nv_mov_b64 v[102:103], v[12:13]\nv_mov_b32 v254, v9\nv_mov_b32 v255, v7\nv_mov_b32 v101, v1")
        a("s_mov_b32 s51, s37")
        a("v_xor_b32 v5, 32, v0\nv_mov_b32 v4, v0")
        for s in (14, 15):
            for x in wotr(a, s, 4, 0x1c000): a(x)
        a("s_lshl_b32 s34, s40, 11")
        a("v_add_u32 v10, s34, v9")
        a("s_lshr_b32 s34, s40, 2")
        a("s_lshl_b32 s34, s34, 10")
        a("s_and_b32 s3, s40, 3")
        a("s_lshl_b32 s3, s3, 2")
        a("s_add_u32 s34, s34, s3")
        a(f"s_add_u32 s34, s34, {16*1024}")
        a("v_add_u32 v11, s34, v9")
        a(f"s_mul_i32 s34, s36, {18*1024}")
        a("v_add_u32 v8, s34, v9")
        a("s_lshl_b32 s34, s31, 10")
        a(f"s_add_u32 s34, s34, {EPI}")
        a("v_add_u32 v9, s34, v9")
        a("v_and_b32 v12, 1, v3")
        a("v_lshrrev_b32 v14, 1, v3")
        a("v_lshl_add_u32 v12, v12, 1, v14")
        if FULL:
            a("s_lshl_b32 s3, s35, 2")
            a("v_add_u32 v12, s3, v12")
            a("v_xor_b32 v12, v12, v2")
            a("v_lshl_add_u32 v12, v2, 4, v12")
            a("s_lshl_b32 s3, s36, 12")
            a(f"s_add_u32 s3, s3, {EPI}")
            a("v_lshl_add_u32 v12, v12, 4, s3")
            a("s_and_b32 s3, s31, 3")
            a("s_lshl_b32 s3, s3, 2")
            a("v_add_u32 v14, s3, v3")
            a("v_xor_b32 v15, v14, v2")
            a("v_cmp_eq_u32 vcc, 0, v3")
            a("v_mov_b32 v2, v12")
            a("s_lshr_b32 s3, s31, 2")
            a("s_add_u32 s3, s3, s41")
            a("s_and_b32 s3, s3, 3")
            a("s_cmp_lt_u32 s3, 2")
            a(f"s_mov_b32 s37, {32*2304}")
            a(f"s_cselect_b32 s37, s37, {(-32*2304) & 0xffffffff:#x}")
            a("s_lshl_b32 s34, s32, 6")
            a("s_lshl_b32 s3, s3, 4")
            a("s_add_u32 s34, s34, s3")
            a("v_add_u32 v14, s34, v14")
            a("v_mul_u32_u24 v14, 2304, v14")
            a("s_lshl_b32 s34, s33, 8")
            a("v_lshl_add_u32 v15, v15, 4, s34")
            a("s_movk_i32 s3, 1152")
            a("v_cmp_gt_u32 s[60:61], s3, v15")
            a("v_add3_u32 v3, v14, v15, s3")
            a("s_lshl_b32 s3, s35, 6")
            a("s_add_u32 s34, s34, s3")
        else:
            a("v_lshl_add_u32 v12, v2, 2, v12")
            a("v_cmp_eq_u32 vcc, 0, v3")
            a("v_lshl_add_u32 v2, v12, 4, s34")
            a("s_add_u32 s3, s36, s41")
            a("s_and_b32 s3, s3, 3")
            a("s_cmp_lt_u32 s3, 2")
            a(f"s_mov_b32 s37, {32*2304}")
            a(f"s_cselect_b32 s37, s37, {(-32*2304) & 0xffffffff:#x}")
            a("s_lshl_b32 s34, s32, 6")
            a("s_lshl_b32 s3, s3, 4")
            a("s_add_u32 s34, s34, s3")
            a("v_lshrrev_b32 v14, 2, v1")
            a("v_add_u32 v14, s34, v14")
            a("v_mul_u32_u24 v14, 2304, v14")
            a("v_and_b32 v15, 3, v1")
            a("v_lshl_add_u32 v14, v15, 4, v14")
            a("s_lshl_b32 s34, s33, 8")
            a("s_lshl_b32 s3, s35, 6")
            a("s_add_u32 s34, s34, s3")
            a("s_add_u32 s3, s34, 1152")
            a("v_add_u32 v3, s3, v14")
        a("v_xor_b32 v1, 32, v0")
        a(f"v_mov_b32 v12, {hexf(EPS)}\nv_mov_b32 v13, v12\nv_mov_b32 v14, 0\nv_mov_b32 v15, 0")
        a(f"v_mov_b32 v{AX[1]+2}, 0\nv_mov_b32 v{AX[3]+2}, 0")
        a("s_andn2_b64 s[48:49], s[98:99], s[100:101]")
        a("s_mov_b64 s[94:95], vcc")
        a("s_mov_b32 s50, s34")
        a("s_waitcnt lgkmcnt(0)")
        stamp(8)
        if PORD == "pw":
            assert SHARD == 16 and KRT == 4
            a("s_barrier")
            a("v_and_b32 v105, 1, v101")
            a("s_lshl_b32 s34, s32, 1")
            a("v_add_u32 v104, s34, v105")
            a("v_mul_u32_u24 v104, 205, v104")
            a("v_lshrrev_b32 v104, 10, v104")
            a("s_lshr_b32 s34, s40, 1")
            a("s_lshl_b32 s34, s34, 7")
            a(f"s_add_u32 s34, s34, {PQC}")
            a("v_lshl_add_u32 v104, v104, 9, s34")
            a("s_lshl_b32 s34, s42, 11")
            a("s_lshl_b32 s3, s40, 7")
            a("s_add_u32 s34, s34, s3")
            a(f"s_add_u32 s34, s34, {CNT}")
            a("v_lshl_add_u32 v105, v105, 10, s34")
            a("v_cmp_gt_u32 vcc, 2, v101")
            a("v_cndmask_b32 v104, v104, v105, vcc")
            a("v_cndmask_b32_e64 v110, 1, 8, vcc")
            a("s_mov_b64 exec, 15")
            a("s_mov_b32 s3, 0")
            a("L_pollw:")
            if PSLEEP: a(f"s_sleep {PSLEEP}")
            a(f"buffer_load_dword v105, v104, {WSR}, 0 offen sc1")
            a("s_add_u32 s3, s3, 1")
            a("s_waitcnt vmcnt(0)")
            a("v_cmp_gt_u32 vcc, v110, v105")
            a("s_cmp_ge_u32 s3, 0x10000")
            a("s_cbranch_scc1 L_pdw")
            a("s_cbranch_vccnz L_pollw")
            a("L_pdw:")
            a("s_mov_b64 exec, -1")
            stamp(7)
        else:
            if "ubq" in DBG:
                pql(0, 98, 99); pql(1, 98, 99); pql(2, 98, 99)
            elif PORD == "cc": poll(PQW, poll_prep_q, 2, 4, "q", bar=False)
            poll(PKW, poll_prep_k, SHARD, (13 if KRT == 5 else 16) * 8 // SHARD, "k", two=True); stamp(7)
        kvl()
        if PORD in ("cc", "pw") and "ubq" not in DBG: pql(0, 98, 99); pql(1, 98, 99)
        vm = ["x"]*3 + ["m0"]*2 + ["m1"]*2 + [f"p{r}" for r in range(2 if PORD in ("cc", "pw") else 0) for _ in range(3)]
    if "ubq" in DBG: vm = [f"p{r}" for r in range(3) for _ in range(3)] + vm[:7]
    vdone = [-1]
    def vwait(tag):
        idx = max(i for i, t in enumerate(vm) if t == tag)
        if idx > vdone[0]:
            a(f"s_waitcnt vmcnt({len(vm) - 1 - idx})"); vdone[0] = idx
    def pmov(rt):
        b = PQR + 14 * rt
        vwait(f"p{rt}")
        a(f"v_mov_b64 v[{b}:{b+1}], v[{b+6}:{b+7}]\nv_mov_b64 v[{b+12}:{b+13}], v[{b+6}:{b+7}]")
    for rt in range(PQE): pmov(rt)
    def mf(d, x, y, c): a(f"v_mfma_f32_16x16x32_bf16 v[{d}:{d+3}], v[{x}:{x+3}], v[{y}:{y+3}], {c}")
    def regs(rt): return (PQR + 14 * rt, (48, 240, 48, 56)[rt], (52, 244, 52, 60)[rt], (4, 248, 4, 64)[rt])
    def MX(rt):
        b, X0, X1, D0 = regs(rt)
        ops = [b, b+4, b+6, b+10]
        if rt >= PQE: pmov(rt)
        mf(X0, AX[1], ops[1], "v[12:15]"); mf(X1, AX[3], ops[3], "v[12:15]")
        mf(X0, AX[0], ops[0], f"v[{X0}:{X0+3}]"); mf(X1, AX[2], ops[2], f"v[{X1}:{X1+3}]")
    def MM_(rt):
        b, X0, X1, D0 = regs(rt)
        ops = [b, b+4, b+6, b+10]
        mf(D0, AM[0], ops[0], "0")
        mf(b, AM[1], ops[1], "0")
        mf(b+6, AM[2], ops[2], "0")
        mf(b+10, AM[3], ops[3], "0")
    def conv(st=True):
        vwait("x")
        if st: stamp(9)
        a(f"v_cvt_pk_bf16_f32 v252, v{T}, v{T+1}")
        a(f"v_cvt_pk_bf16_f32 v253, v{T+2}, v{T+3}")
        for c in range(2):
            xa, xb = AX[2*c], AX[2*c+1]
            mk = "s[46:47]" if c == 0 else "s[96:97]"
            a(f"v_cvt_pk_bf16_f32 v{T+2}, v{xa}, v{xa+1}")
            a(f"v_cvt_pk_bf16_f32 v{T+3}, v{xa+2}, v{xa+3}")
            a(f"v_cndmask_b32 v{T+4}, 0, v252, {mk}")
            a(f"v_mov_b32 v{xa+1}, 0")
            a(f"v_cndmask_b32 v{xb}, 0, v{T+2}, s[44:45]")
            a(f"v_cndmask_b32 v{xb+1}, 0, v{T+3}, s[44:45]")
            a(f"v_cndmask_b32 v{xb+3}, 0, v{T+4}, s[44:45]")
            a(f"v_cndmask_b32 v{xa}, v{T+4}, 0, s[44:45]")
            a(f"v_cndmask_b32 v{xa+2}, v{T+2}, 0, s[44:45]")
            a(f"v_cndmask_b32 v{xa+3}, v{T+3}, 0, s[44:45]")
        for c in range(2):
            ma, mb = AM[2*c], AM[2*c+1]
            mk = "s[94:95]" if c == 0 else "s[48:49]"
            vwait(f"m{c}")
            a(f"v_cvt_pk_bf16_f32 v{ma+3}, v{ma+2}, v{ma+3}")
            a(f"v_cvt_pk_bf16_f32 v{ma+2}, v{ma}, v{ma+1}")
            a(f"v_cndmask_b32 v{ma}, 0, v252, {mk}")
            a(f"v_mov_b32 v{ma+1}, 0")
            a(f"v_cvt_pk_bf16_f32 v{mb}, v{mb}, v{mb+1}")
            a(f"v_cvt_pk_bf16_f32 v{mb+1}, v{mb+2}, v{mb+3}")
            a(f"v_mov_b32 v{mb+2}, 0")
            a(f"v_cndmask_b32 v{mb+3}, 0, v253, {mk}")
    if PORD in ("cc", "pw"): conv()
    else:
        a(f"s_cmp_eq_u32 s31, {PQW}")
        a("s_cbranch_scc1 L_skipconv")
        conv()
        a("L_skipconv:")
        poll(PQW, poll_prep_q, 2, 4, "q")
        stamp(10)
        pql(0, 98, 99); pql(1, 98, 99); vm.extend(["p0"]*3 + ["p1"]*3)
        a(f"s_cmp_lg_u32 s31, {PQW}")
        a("s_cbranch_scc1 L_skipconv2")
        conv(False)
        a("L_skipconv2:")
    def V(rt):
        b, X0, X1, D0 = regs(rt)
        L = []
        p = lambda t: L.extend(x.strip() for x in t.split("\n"))
        for x in (X0, X1):
            p(f"v_rcp_f32 v{x}, v{x}\nv_rcp_f32 v{x+1}, v{x+1}")
        if NSC: p(f"v_add_f32 v{X0+2}, v{X0+2}, v{X1+2}\nv_add_f32 v{X0+3}, v{X0+3}, v{X1+3}")
        else: p(f"v_pk_add_f32 v[{X0+2}:{X0+3}], v[{X0+2}:{X0+3}], v[{X1+2}:{X1+3}]")
        p(f"v_cndmask_b32 v{X1+2}, v{X0}, v{X0+1}, s[98:99]")
        p(f"v_cndmask_b32 v{X1+3}, v{X1}, v{X1+1}, s[98:99]")
        p(f"v_cndmask_b32 v{X1+2}, v{X1+2}, v{X1+3}, s[100:101]")
        if NSC: p(f"v_mul_f32 v{X0+2}, v{X0+2}, v{X1+2}\nv_mul_f32 v{X0+3}, v{X0+3}, v{X1+2}")
        else: p(f"v_pk_mul_f32 v[{X0+2}:{X0+3}], v[{X0+2}:{X0+3}], v[{X1+2}:{X1+3}] op_sel:[0,0] op_sel_hi:[1,0]")
        p(f"v_cvt_pk_bf16_f32 v{b+4}, v{X0+2}, v{X0+3}")
        p(f"ds_write_b32 v11, v{b+4} offset:{rt*18*1024}")
        for d, rc in ((D0, X0), (b, X0+1), (b+6, X1), (b+10, X1+1)):
            sel = "op_sel:[0,0] op_sel_hi:[1,0]" if rc % 2 == 0 else "op_sel:[0,1] op_sel_hi:[1,1]"
            rp = rc & ~1
            if NSC:
                for i in range(4): p(f"v_mul_f32 v{d+i}, v{d+i}, v{rc}")
                continue
            p(f"v_pk_mul_f32 v[{d}:{d+1}], v[{d}:{d+1}], v[{rp}:{rp+1}] {sel}")
            p(f"v_pk_mul_f32 v[{d+2}:{d+3}], v[{d+2}:{d+3}], v[{rp}:{rp+1}] {sel}")
        p(f"v_cvt_pk_bf16_f32 v{D0}, v{D0}, v{D0+1}\nv_cvt_pk_bf16_f32 v{D0+1}, v{D0+2}, v{D0+3}")
        p(f"v_cvt_pk_bf16_f32 v{D0+2}, v{b}, v{b+1}\nv_cvt_pk_bf16_f32 v{D0+3}, v{b+2}, v{b+3}")
        p(f"ds_write_b128 v10, v[{D0}:{D0+3}] offset:{rt*18*1024}")
        p(f"v_cvt_pk_bf16_f32 v{b+6}, v{b+6}, v{b+7}\nv_cvt_pk_bf16_f32 v{b+7}, v{b+8}, v{b+9}")
        p(f"v_cvt_pk_bf16_f32 v{b+8}, v{b+10}, v{b+11}\nv_cvt_pk_bf16_f32 v{b+9}, v{b+12}, v{b+13}")
        p(f"ds_write_b128 v10, v[{b+6}:{b+9}] offset:{rt*18*1024+1024}")
        return L
    def late_pq():
        for rt in ((3,) if "ubq" in DBG else (2, 3)):
            pql(rt, 254, 255); vm.extend([f"p{rt}"] * 3)
    if PORD == "qk": MM_(0); MM_(1)
    else:
        if LATEM == 1: late_pq()
        MX(0); MM_(0)
        if LATEM == 2: late_pq()
        MX(1); MM_(1)
        if LATEM == 3: late_pq()
    for x in V(0):
        if "nov0" not in DBG or x.startswith("ds_"): a(x)
    if not LATEM: MX(2); MM_(2)
    for x in V(1):
        if "nov0" not in DBG or x.startswith("ds_"): a(x)
    if not LATEM: MX(3); MM_(3)
    a("s_waitcnt lgkmcnt(0)")
    a("s_barrier")
    stamp(11)
    OA = 68
    OF = 16
    q_ = []; done = [-1]
    def lds(t, tag=None): a(t); q_.append(tag)
    def wait_for(tags):
        idx = max(i for i, t in enumerate(q_) if t in tags)
        if idx > done[0]:
            n = len(q_) - 1 - idx
            a(f"s_waitcnt lgkmcnt({min(n, 15)})")
            done[0] = idx if n <= 15 else len(q_) - 16
    def emit(x):
        if "@" in x: t, g = x.split("@"); lds(t, g)
        elif x.startswith("ds_"): lds(x)
        else: a(x)
    late = [x + "@W" for s in (16, 17) for x in wotr(a, s, 0, 0x1c000)]
    LA = 5
    def ofr(ps, k): return 240 + 4*k if (LATEM and ps == 0 and k < 3) else OF + 4*(k%8)
    def ord_(ps, k): lds(f"ds_read_b128 v[{ofr(ps,k)}:{ofr(ps,k)+3}], v8 offset:{(ps*36 + k)*1024}", ("O", ps, k))
    def epi(ps):
        d = OA + 8*ps; p = 84 + 4*ps
        L = [f"v_cvt_pk_bf16_f32 v{p+k}, v{d+2*k}, v{d+2*k+1}" for k in range(4)]
        L += ["v_nop", f"v_permlane16_swap_b32 v{p}, v{p+2}", f"v_permlane16_swap_b32 v{p+1}, v{p+3}",
              f"ds_write_b128 v2, v[{p}:{p+3}] offset:{8192*ps}@X{ps}"]
        if not FULL: L.append(f"ds_read_b128 v[{p+8}:{p+11}], v9 offset:{8192*ps}@E{ps}")
        return L
    def xbar(ps):
        wait_for({f"X{ps}"})
        a("s_barrier")
        emit(f"ds_read_b128 v[{92+4*ps}:{95+4*ps}], v9 offset:{8192*ps}@E{ps}")
    def store(ps):
        wait_for({f"E{ps}"})
        if ps: a("v_add_u32 v3, s37, v3")
        if FULL: a("s_mov_b64 exec, s[60:61]")
        a(f"global_store_dwordx4 v3, v[{92+4*ps}:{95+4*ps}], s[24:25] {STB}")
        if FULL: a("s_mov_b64 exec, -1")
    for ps in range(2):
        vv = (lambda r: [x for x in V(r) if x.startswith("ds_")]) if "nov" in DBG else V
        fill = (vv(2) + late + vv(3)) if ps == 0 else ["s_nop 0"] * 4 + epi(0)
        if ps == 1:
            a("s_cmp_ge_u32 s50, 1152")
            a("s_cbranch_scc1 " + ("L_narrow" if FULL else "L_fin"))
        lm = LATEM and ps == 0
        nxt = 3 if lm else LA
        for k in range(nxt): ord_(ps, k)
        if lm: MX(2); MM_(2)
        for k in range(18):
            wait_for({("O", ps, k)} | ({"W"} if k >= 16 else set()))
            for t in range(2):
                d = OA + 8*ps + 4*t
                mf(d, WOF + 8*k + 4*t, ofr(ps, k), "0" if k == 0 else f"v[{d}:{d+3}]")
                if lm and k == 0 and t == 1: MX(3); MM_(3)
                if not (lm and k == 0 and t == 0):
                    for _ in range(2):
                        if nxt < 18 and nxt <= k + LA: ord_(ps, nxt); nxt += 1
                for _ in range(3 if NSC and ps == 0 else 2):
                    if fill and not (lm and k == 0): emit(fill.pop(0))
            if ps == 1 and k == 7 and FULL: xbar(0)
            if ps == 1 and k == (11 if FULL else 9): store(0)
        assert not fill
        if ps == 0:
            a("s_waitcnt lgkmcnt(0)"); done[0] = len(q_) - 1
            a("s_barrier")
            stamp(12)
    for x in epi(1): emit(x)
    if FULL: xbar(1)
    store(1)
    stamp(13)
    if FULL:
        a("s_branch L_fin")
        a("L_narrow:")
        for ps in range(2):
            a("s_barrier")
            a(f"ds_read_b128 v[{92+4*ps}:{95+4*ps}], v9 offset:{8192*ps}")
            a("s_waitcnt lgkmcnt(0)")
            if ps: a("v_add_u32 v3, s37, v3")
            a("s_mov_b64 exec, s[60:61]")
            a(f"global_store_dwordx4 v3, v[{92+4*ps}:{95+4*ps}], s[24:25] {STB}")
            a("s_mov_b64 exec, -1")
```
